```python
import torch

def _softmax(x, axis=-1):
    return torch.softmax(x, dim=axis)
def _gelu(x):
    return torch.nn.functional.gelu(x, approximate="tanh")
def _silu(x):
    return torch.nn.functional.silu(x)
def _sigmoid(x):
    return torch.sigmoid(x)
def _layernorm(x, axis=-1, eps=1e-5):
    m = x.mean(dim=axis, keepdim=True)
    v = x.var(dim=axis, keepdim=True, unbiased=False)
    return (x - m) / torch.sqrt(v + eps)
def _scatter_add(tgt, idx, src, axis=0):
    return tgt.clone().index_add_(axis, idx, src)
def _segment_sum(src, seg, n):
    out = torch.zeros((n,) + src.shape[1:], dtype=src.dtype)
    return out.index_add_(0, seg, src)
def _pad(x, pw):
    flat = tuple(v for pair in reversed(pw) for v in pair)
    return torch.nn.functional.pad(x, flat)

kernel_name = 'standalone__paged_block_table_kv_pagedattention__sampling'

def setup_inputs():

    _w = (lambda a: (lambda t: t.to(torch.bfloat16) if t.is_floating_point() else t)(torch.as_tensor(a)))
    B, Hq, Hkv, Sq, Skv, D = 8, 32, 4, 32, 8192, 128
    bs = 16
    nbps = max(1, Skv // bs)
    num_phys = B * nbps + 4
    bt = torch.randperm(num_phys)[: B * nbps].reshape(B, nbps).to(torch.int64)
    cl = (nbps * bs - (torch.arange(1, B + 1, dtype=torch.int64) * 2654435761) % max(1, nbps * bs // 2)).to(torch.int64)
    return {
        "q": _w((lambda *s: torch.randn(*s, dtype=torch.bfloat16) * 0.8)(B, Hq, Sq, D)),
        "k_cache": _w((lambda *s: torch.randn(*s, dtype=torch.bfloat16) * 0.8)(num_phys, bs, Hkv, D)),
        "v_cache": _w((lambda *s: torch.randn(*s, dtype=torch.bfloat16) * 0.05)(num_phys, bs, Hkv, D)),
        "block_table": _w(bt),
        "context_lens": _w(cl),
    }

def reference(q, k_cache, v_cache, block_table, context_lens):
    B, Hq, Sq, D = q.shape
    bs = k_cache.shape[1]
    Hkv = k_cache.shape[2]
    nbps = block_table.shape[1]
    Skv = nbps * bs
    bt = block_table.reshape(-1)
    k = (lambda x, *d: x.permute(*d))(k_cache[bt].reshape(B, Skv, Hkv, D), 0, 2, 1, 3)
    v = (lambda x, *d: x.permute(*d))(v_cache[bt].reshape(B, Skv, Hkv, D), 0, 2, 1, 3)
    g = Hq // Hkv
    qg = q.reshape(B, Hkv, g, Sq, D)
    scores = torch.einsum("bhgqd,bhkd->bhgqk", qg, k) * (D ** -0.5)
    pos = torch.arange(Skv)
    msk = pos[None, :] < context_lens[:, None]
    scores = torch.where(msk[:, None, None, None, :], scores, -1e9)
    p = _softmax(scores, axis=-1)
    out = torch.einsum("bhgqk,bhkd->bhgqd", p, v)
    return out.reshape(B, Hq, Sq, D)
```

```python
import sys, math

NAME = "standalone__paged_block_table_kv_pagedattention__sampling"
OUT = "cdna_kernels/%s.s" % NAME

KV_BYTES = 4100 * 16384
Q_BYTES = 8 * 32 * 32 * 128 * 2
BT_BYTES = 8 * 512 * 4
WS_ML = 0x1000000
WS_DBG = WS_ML + 256 * 2048
WS_BYTES = WS_DBG + 0x100000
SCALE = math.log2(math.e) / math.sqrt(128.0)
THR_LOG2 = 12

import struct
def f32bits(x):
    return struct.unpack("<I", struct.pack("<f", x))[0]

class Asm:
    def __init__(self):
        self.lines = []
    def __call__(self, s):
        for l in s.strip("\n").split("\n"):
            self.lines.append("    " + l.strip())
    def label(self, l):
        self.lines.append(l + ":")
    def raw(self, s):
        self.lines.append(s)
    def text(self):
        return "\n".join(self.lines) + "\n"

S_ = {0: 0, 1: 16}
C_ = {0: 32, 1: 48}
O_ = {0: 64, 1: 128}
P_ = {0: 192, 1: 200}
KADDR = 208
VADDR = 216
VOFFK = 220
VOFFV = 222
PAGES = 224
L_ = {0: 225, 1: 226}
M_ = {0: 227, 1: 228}
TS0, TS1 = 229, 230
ET = 232
VLANE = 238
VH4 = 239
VT = 240
AQ = {0: 0, 1: 32}
AK = 64
AV = 96

s_wg = 2
s_q, s_k, s_v, s_bt, s_cl, s_out, s_dbg, s_ws = 4, 6, 8, 10, 12, 14, 16, 18
SRD_K, SRD_V, SRD_Q, SRD_X, SRD_WS = 20, 24, 28, 32, 36
s_w = 40
s_h = 41
s_slot = 42
s_n = 43
s_i = 44
s_patch = 45
s_rem = 46
s_idx = 47
s_pg = {0: 48, 1: 49}
s_m0k = 50
s_m0v = 51
s_thr = {0: 52, 1: 53}
s_floor = {0: 54, 1: 55}
s_first = {0: 56, 1: 57}
s_ret = 58
s_t0 = 60
s_b = 80
s_start = 81
s_scale = 82
s_wgslot = 83


def emit_srd(a, d, ptr, nbytes):
    a(f"""
    s_mov_b32 s{d}, s{ptr}
    s_and_b32 s{d+1}, s{ptr+1}, 0xffff
    s_mov_b32 s{d+2}, 0x{nbytes:x}
    s_mov_b32 s{d+3}, 0x20000
    """)


def sum8(a, dst, src, tmp):
    a(f"""
    s_nop 1
    v_add_u32_dpp v{tmp}, v{src}, v{src} quad_perm:[1,0,3,2] row_mask:0xf bank_mask:0xf
    s_nop 1
    v_add_u32_dpp v{dst}, v{tmp}, v{tmp} quad_perm:[2,3,0,1] row_mask:0xf bank_mask:0xf
    s_nop 1
    v_add_u32_dpp v{dst}, v{dst}, v{dst} row_half_mirror row_mask:0xf bank_mask:0xf
    """)


def emit_partition(a, vlane, vcl, vt, st):
    Lm1, T_, Cc, Nn, NS, INC, Qq, Rr, X0, X1 = range(vt, vt + 10)
    a(f"""
    v_add_u32 v{Lm1}, -1, v{vcl}
    v_min_u32 v{Lm1}, 0x1fff, v{Lm1}
    v_lshrrev_b32 v{T_}, 5, v{Lm1}
    v_add_u32 v{T_}, 1, v{T_}
    """)
    sum8(a, Cc, T_, X0)
    a(f"""
    v_add_u32 v{Cc}, 63, v{Cc}
    v_lshrrev_b32 v{Cc}, 6, v{Cc}
    v_lshrrev_b32 v{X0}, 3, v{vlane}
    v_add_u32 v{Cc}, v{Cc}, v{X0}
    v_cvt_f32_u32 v{X0}, v{Cc}
    v_rcp_f32 v{X0}, v{X0}
    v_add3_u32 v{X1}, v{T_}, v{Cc}, -1
    v_cvt_f32_u32 v{X1}, v{X1}
    v_add_f32 v{X1}, 0.5, v{X1}
    v_mul_f32 v{X1}, v{X1}, v{X0}
    v_cvt_u32_f32 v{Nn}, v{X1}
    """)
    sum8(a, NS, Nn, X0)
    a(f"""
    s_nop 1
    v_add_u32_dpp v{INC}, v{Nn}, v{Nn} row_shr:1 row_mask:0xf bank_mask:0xf bound_ctrl:0
    v_cvt_f32_u32 v{X0}, v{Nn}
    v_rcp_f32 v{X0}, v{X0}
    v_add_u32_dpp v{INC}, v{INC}, v{INC} row_shr:2 row_mask:0xf bank_mask:0xf bound_ctrl:0
    v_cvt_f32_u32 v{X1}, v{T_}
    v_add_f32 v{X1}, 0.5, v{X1}
    v_add_u32_dpp v{INC}, v{INC}, v{INC} row_shr:4 row_mask:0xf bank_mask:0xf bound_ctrl:0
    v_mul_f32 v{X1}, v{X1}, v{X0}
    v_cvt_u32_f32 v{Qq}, v{X1}
    v_add_u32_dpp v{INC}, v{INC}, v{INC} row_shr:8 row_mask:0xf bank_mask:0xf bound_ctrl:0
    v_mul_u32_u24 v{X0}, v{Qq}, v{Nn}
    v_sub_u32 v{Rr}, v{T_}, v{X0}
    v_mov_b32_dpp v{X1}, v{NS} row_shr:8 row_mask:0xf bank_mask:0xf bound_ctrl:0
    v_sub_u32 v{INC}, v{INC}, v{X1}
    v_cmp_ge_u32 vcc, 64, v{NS}
    s_ff1_i32_b64 s{st}, vcc
    s_mov_b64 s[{st+2}:{st+3}], 0xff
    s_lshl_b64 s[{st+2}:{st+3}], s[{st+2}:{st+3}], s{st}
    """)
    return dict(Lm1=Lm1, t=T_, n=Nn, incl=INC, q=Qq, r=Rr)


def sm_stream(X):
    S = S_[X]; P = P_[X]
    def tmp(j):
        if j == 0:
            return TS0, TS1
        k = (j - 1) % 3
        return ET + 2 * k, ET + 2 * k + 1
    E = lambda j, h: (8, f"v_exp_f32 v{tmp(j)[h]}, v{S + 2 * j + h}")
    A = lambda j, h: (4, f"v_add_f32 v{(TS0, TS1)[h]}, v{(TS0, TS1)[h]}, v{tmp(j)[h]}")
    C = lambda j: (4, f"v_cvt_pk_bf16_f32 v{P + j}, v{tmp(j)[0]}, v{tmp(j)[1]}")
    st = [E(0, 0), E(0, 1), E(1, 0), C(0), E(1, 1)]
    for j in range(1, 7):
        st += [A(j, 0), E(j + 1, 0), A(j, 1), C(j), E(j + 1, 1)]
    st += [A(7, 0), A(7, 1), C(7), (4, f"v_add_f32 v{TS0}, v{TS0}, v{TS1}")]
    return st


def mfma_qk(X, s):
    c = C_[X] if s == 0 else S_[X]
    return (f"v_mfma_f32_32x32x16_bf16 v[{S_[X]}:{S_[X]+15}], a[{AK+4*s}:{AK+4*s+3}], "
            f"a[{AQ[X]+4*s}:{AQ[X]+4*s+3}], v[{c}:{c+15}]")


def mfma_pv(X, f):
    t, dt = f >> 2, f & 3
    o = O_[X] + 16 * dt
    return (f"v_mfma_f32_32x32x16_bf16 v[{o}:{o+15}], a[{AV+4*f}:{AV+4*f+3}], "
            f"v[{P_[X]+4*t}:{P_[X]+4*t+3}], v[{o}:{o+15}]")


def k_read(s, slot):
    return f"ds_read_b128 a[{AK+4*s}:{AK+4*s+3}], v{KADDR+s} offset:{slot*8192}"


def v_read(f, y, slot):
    t, dt = f >> 2, f & 3
    return (f"ds_read_b64_tr_b16 a[{AV+4*f+2*y}:{AV+4*f+2*y+1}], v{VADDR+dt} "
            f"offset:{slot*8192 + (16*t+8*y)*256}")


def dma_k(a_list, slot, spg):
    return [f"s_add_u32 m0, s{s_m0k}, {slot*8192}",
            None,
            f"buffer_load_dwordx4 v{VOFFK}, s[{SRD_K}:{SRD_K+3}], s{spg} offen lds",
            f"buffer_load_dwordx4 v{VOFFK+1}, s[{SRD_K}:{SRD_K+3}], s{spg} offen offset:1024 lds"]


def dma_v(a_list, slot, spg):
    return [f"s_add_u32 m0, s{s_m0v}, {slot*8192}",
            None,
            f"buffer_load_dwordx4 v{VOFFV}, s[{SRD_V}:{SRD_V+3}], s{spg} offen lds",
            f"buffer_load_dwordx4 v{VOFFV+1}, s[{SRD_V}:{SRD_V+3}], s{spg} offen offset:1024 lds"]


def emit_body(a, k, tramps, cfg):
    kn = (k + 1) % 8
    pgn = s_pg[k & 1]
    pgo = s_pg[(k & 1) ^ 1]
    mf = [mfma_qk(1, s) for s in range(8)] + [mfma_pv(1, f) for f in range(8)] + \
         [mfma_qk(0, s) for s in range(8)] + [mfma_pv(0, f) for f in range(8)]
    pre = {i: [] for i in range(32)}
    fix = {i: [] for i in range(32)}
    for s in range(8):
        fix[s + 1].append((4, k_read(s, kn)))
    vslots = cfg["vslots"]
    vr = [(f, y) for f in range(8) for y in range(2)]
    for (f, y), sl in zip(vr, vslots):
        assert sl >= 9 + f - 0 - 0 or sl > 8 + f, (f, sl)
        fix[sl].append((4, v_read(f, y, k)))
    def vr_before(m):
        return sum(1 for sl in vslots if sl < m)
    pre[16].append(f"s_waitcnt lgkmcnt({vr_before(16)})")
    assert vr_before(24) >= 8
    pre[24].append(f"s_waitcnt lgkmcnt({vr_before(24) - 8})")
    assert vr_before(28) == 16
    pre[28].append("s_waitcnt lgkmcnt(0)")
    fix[cfg["rl_slot"]].append((4, f"v_readlane_b32 s{pgn}, v{PAGES}, s{s_idx}"))
    fix[cfg["rl_slot"]].append((4, f"s_add_u32 s{s_idx}, s{s_idx}, 1"))
    dk = dma_k(None, k, pgn)
    dv = dma_v(None, (k + 7) % 8, pgo)
    ds = cfg["dma_slots"]
    dcost = cfg["dma_cost"]
    fix[ds[0] - 1].append((4, dv[0]))
    fix[ds[0]].append((dcost, dv[2]))
    fix[ds[1]].append((dcost, dv[3]))
    assert ds[2] - 1 >= ds[1]
    fix[ds[2] - 1].append((4, dk[0]))
    fix[ds[2]].append((dcost, dk[2]))
    fix[ds[3]].append((dcost, dk[3]))
    assert ds[2] > cfg["rl_slot"] + 1
    fix[11].append((4, f"s_cmp_eq_u32 s{s_i}, s{s_patch}"))
    fix[11].append((4, f"s_cbranch_scc1 L_patch_{k}"))
    fix[11].append((0, f"L_patch_ret_{k}:"))
    tramps.append((f"L_patch_{k}", "L_sub_patch", f"L_patch_ret_{k}"))
    sm = {i: [] for i in range(32)}
    for X, lo, hi in ((0, 0, cfg["sm_end"]), (1, 16, 16 + cfg["sm_end"])):
        st = sm_stream(X)
        tot = sum(c for c, _ in st)
        free = [max(0, 24 - sum(c for c, _ in fix[i])) for i in range(lo, hi + 1)]
        ftot = sum(free)
        acc = 0.0; done = 0; idx = 0
        for n_, i in enumerate(range(lo, hi + 1)):
            acc += free[n_] * tot / ftot
            while idx < len(st) and (done + st[idx][0] / 2.0 <= acc or i == hi):
                sm[i].append(st[idx]); done += st[idx][0]; idx += 1
        sm[hi].append((4, f"v_cmp_lt_f32 vcc, s{s_thr[X]}, v{TS0}"))
        sm[hi + 1].append((4, f"s_cbranch_vccnz L_fb{X}_{k}"))
        sm[hi + 1].append((0, f"L_fb{X}_ret_{k}:"))
        sm[hi + 1].append((4, f"v_add_f32 v{L_[X]}, v{L_[X]}, v{TS0}"))
        tramps.append((f"L_fb{X}_{k}", f"L_sub_fb{X}", f"L_fb{X}_ret_{k}"))
    a.label(f"L_body_{k}")
    a("s_waitcnt vmcnt(24)")
    a("s_barrier")
    for i in range(32):
        for t in pre[i]:
            a(t)
        a(mf[i])
        seq = []
        smi = list(sm[i]); fx = list(fix[i])
        while smi or fx:
            if smi:
                seq.append(smi.pop(0))
                while smi and smi[0][0] == 0:
                    seq.append(smi.pop(0))
            if fx:
                seq.append(fx.pop(0))
                while fx and (fx[0][0] == 0 or fx[0][1].startswith("s_cbranch")):
                    seq.append(fx.pop(0))
        for c, t in seq:
            if t.endswith(":"):
                a.label(t[:-1])
            else:
                a(t)
    a(f"""
    s_add_u32 s{s_i}, s{s_i}, 1
    s_cmp_ge_u32 s{s_i}, s{s_n}
    s_cbranch_scc1 L_drain
    """)
    if k == 7:
        a("s_branch L_body_0")


def emit_fallback(a, X):
    S = S_[X]; C = C_[X]; O = O_[X]; P = P_[X]
    mx, t1, dl, f = VT, VT + 1, VT + 2, VT + 3
    a.label(f"L_sub_fb{X}")
    a("s_nop 7")
    a(f"v_max3_f32 v{mx}, v{S}, v{S+1}, v{S+2}")
    for r in range(3, 15, 2):
        a(f"v_max3_f32 v{mx}, v{mx}, v{S+r}, v{S+r+1}")
    a(f"v_max_f32 v{mx}, v{mx}, v{S+15}")
    a(f"""
    v_mov_b32 v{t1}, v{mx}
    s_nop 1
    v_permlane32_swap_b32 v{mx}, v{t1}
    s_nop 1
    v_max_f32 v{mx}, v{mx}, v{t1}
    v_max_f32 v{dl}, s{s_floor[X]}, v{mx}
    v_max_f32 v{f}, 0, v{dl}
    v_exp_f32 v{f}, -v{f}
    v_add_f32 v{M_[X]}, v{M_[X]}, v{dl}
    """)
    for r in range(16):
        a(f"v_sub_f32 v{C+r}, v{C+r}, v{dl}")
        a(f"v_sub_f32 v{S+r}, v{S+r}, v{dl}")
    a(f"""
    v_mul_f32 v{L_[X]}, v{L_[X]}, v{f}
    s_cmp_eq_u32 s{s_first[X]}, 1
    s_cbranch_scc1 L_sub_fb{X}_noscale
    """)
    for r in range(64):
        a(f"v_mul_f32 v{O+r}, v{O+r}, v{f}")
    a.label(f"L_sub_fb{X}_noscale")
    a(f"""
    s_mov_b32 s{s_first[X]}, 0
    s_mov_b32 s{s_floor[X]}, 0
    s_mov_b32 s{s_thr[X]}, 0x{f32bits(2.0**THR_LOG2):x}
    """)
    for c, t in sm_stream(X):
        a(t)
    a(f"""
    s_nop 3
    s_setpc_b64 s[{s_ret}:{s_ret+1}]
    """)


def emit_patch(a):
    ninf = VT
    a.label("L_sub_patch")
    a(f"""
    s_nop 7
    v_mov_b32 v{ninf}, 0xff800000
    """)
    for r in range(16):
        cst = 8 * (r >> 2) + (r & 3)
        a(f"""
        s_sub_i32 s{s_t0}, s{s_rem}, {cst}
        v_cmp_gt_i32 vcc, s{s_t0}, v{VH4}
        s_nop 1
        v_cndmask_b32 v{C_[0]+r}, v{ninf}, v{C_[0]+r}, vcc
        v_cndmask_b32 v{C_[1]+r}, v{ninf}, v{C_[1]+r}, vcc
        """)
    a(f"""
    s_nop 3
    s_setpc_b64 s[{s_ret}:{s_ret+1}]
    """)


def emit_main(a, cfg):
    K = NAME + "_kernel"
    a.raw(f".globl {K}\n.p2align 8\n.type {K},@function")
    a.label(K)
    a(f"""
    s_cmp_ge_u32 s{s_wg}, 256
    s_cbranch_scc1 L_end
    s_load_dwordx16 s[4:19], s[0:1], 0
    v_lshrrev_b32 v{VT}, 6, v0
    v_and_b32 v{VLANE}, 63, v0
    s_lshr_b32 s{s_h}, s{s_wg}, 3
    v_readfirstlane_b32 s{s_w}, v{VT}
    s_and_b32 s{s_h}, s{s_h}, 3
    s_lshr_b32 s{s_t0}, s{s_wg}, 5
    s_lshl_b32 s{s_t0}, s{s_t0}, 3
    s_and_b32 s{s_slot}, s{s_wg}, 7
    s_or_b32 s{s_slot}, s{s_slot}, s{s_t0}
    v_and_b32 v{VT+1}, 7, v{VLANE}
    v_lshlrev_b32 v{VT+1}, 2, v{VT+1}
    """)
    for r in range(64, 128):
        a(f"v_mov_b32 v{r}, 0")
    a("s_waitcnt lgkmcnt(0)")
    emit_srd(a, SRD_X, s_cl, 32)
    VCL = VT + 10
    a(f"buffer_load_dword v{VCL}, v{VT+1}, s[{SRD_X}:{SRD_X+3}], 0 offen")
    emit_srd(a, SRD_K, s_k, KV_BYTES)
    emit_srd(a, SRD_V, s_v, KV_BYTES)
    emit_srd(a, SRD_Q, s_q, Q_BYTES)
    emit_srd(a, SRD_WS, s_ws, WS_BYTES)
    for r in range(128, 208):
        a(f"v_mov_b32 v{r}, 0")
    for r in range(32):
        a(f"v_accvgpr_write_b32 a{AV+r}, 0")
    t0, t1, t2, t3 = VT + 11, VT + 12, VT + 13, VT + 14
    a(f"""
    v_mov_b32 v{L_[0]}, 0
    v_mov_b32 v{L_[1]}, 0
    v_mov_b32 v{M_[0]}, 0
    v_mov_b32 v{M_[1]}, 0
    v_lshrrev_b32 v{t0}, 5, v{VLANE}            ; h2
    v_lshlrev_b32 v{VH4}, 2, v{t0}
    v_and_b32 v{t1}, 31, v{VLANE}               ; key / q
    v_and_b32 v{t2}, 15, v{VLANE}
    v_xor_b32 v{t2}, v{t2}, v{t0}               ; (key&15)^h2
    v_lshlrev_b32 v{t2}, 4, v{t2}
    v_lshl_add_u32 v{KADDR}, v{t1}, 8, v{t2}
    """)
    for s in range(1, 8):
        a(f"v_xor_b32 v{KADDR+s}, {s << 5}, v{KADDR}")
    a(f"""
    v_bfe_u32 v{t1}, v{VLANE}, 2, 2              ; r
    v_add_u32 v{t2}, v{VH4}, v{t1}               ; 4h2 + r
    v_lshlrev_b32 v{t2}, 8, v{t2}
    v_bfe_u32 v{t3}, v{VLANE}, 4, 1              ; sub
    v_lshl_add_u32 v{t2}, v{t3}, 5, v{t2}
    v_and_b32 v{t3}, 3, v{VLANE}                 ; c
    v_lshl_add_u32 v{t2}, v{t3}, 3, v{t2}
    v_add_u32 v{t2}, 0x10000, v{t2}
    v_lshl_add_u32 v{VADDR}, v{t1}, 6, v{t2}     ; dt=0 : (0^r)<<6
    """)
    for dt in range(1, 4):
        a(f"v_xor_b32 v{VADDR+dt}, {dt << 6}, v{VADDR}")
    a(f"""
    s_and_b32 s{s_t0}, s{s_w}, 1
    s_lshl_b32 s{s_t0}, s{s_t0}, 3               ; 8*(w&1)
    s_lshl_b32 s{s_t0+1}, s{s_h}, 8              ; h*256
    v_lshrrev_b32 v{t0}, 4, v{VLANE}             ; l>>4
    v_and_b32 v{t1}, 15, v{VLANE}                ; pc
    v_add_u32 v{t2}, s{s_t0}, v{t0}              ; R&15 for x=0
    v_xor_b32 v{t3}, v{t1}, v{t2}
    v_lshlrev_b32 v{t3}, 4, v{t3}
    v_lshl_add_u32 v{t3}, v{t2}, 10, v{t3}
    v_add_u32 v{VOFFK}, s{s_t0+1}, v{t3}
    v_add_u32 v{t2}, 4, v{t2}                    ; R&15 for x=1
    v_xor_b32 v{t3}, v{t1}, v{t2}
    v_lshlrev_b32 v{t3}, 4, v{t3}
    v_lshl_add_u32 v{t3}, v{t2}, 10, v{t3}
    v_add_u32 v{t3}, s{s_t0+1}, v{t3}
    v_add_u32 v{VOFFK+1}, 0xfffffc00, v{t3}
    v_lshlrev_b32 v{t3}, 2, v{t0}
    v_xor_b32 v{t3}, v{t1}, v{t3}
    v_lshlrev_b32 v{t3}, 4, v{t3}
    v_add_u32 v{t2}, s{s_t0}, v{t0}
    v_lshl_add_u32 v{t3}, v{t2}, 10, v{t3}
    v_add_u32 v{VOFFV}, s{s_t0+1}, v{t3}
    v_add_u32 v{VOFFV+1}, 0xc00, v{VOFFV}        ; +4096 -1024
    s_lshl_b32 s{s_m0k}, s{s_w}, 11
    s_add_u32 s{s_m0v}, s{s_m0k}, 0x10000
    s_mov_b32 s{s_thr[0]}, 0xbf800000
    s_mov_b32 s{s_thr[1]}, 0xbf800000
    s_mov_b32 s{s_floor[0]}, 0xff800000
    s_mov_b32 s{s_floor[1]}, 0xff800000
    s_mov_b32 s{s_first[0]}, 1
    s_mov_b32 s{s_first[1]}, 1
    s_mov_b32 s{s_i}, 0
    s_mov_b32 s{s_idx}, 8
    s_waitcnt vmcnt(0)
    """)
    st = s_t0
    R = emit_partition(a, VLANE, VCL, VT, st)
    sn, sincl, sLm1, scl, sq, sr, sj = st + 4, st + 5, st + 6, st + 7, st + 8, st + 9, st + 10
    a(f"""
    v_cmp_lt_u32 vcc, s{s_slot}, v{R['incl']}
    s_and_b64 vcc, vcc, s[{st+2}:{st+3}]
    s_cbranch_scc0 L_end
    s_ff1_i32_b64 s{st}, vcc
    s_and_b32 s{s_b}, s{st}, 7
    v_readlane_b32 s{sn}, v{R['n']}, s{st}
    v_readlane_b32 s{sincl}, v{R['incl']}, s{st}
    v_readlane_b32 s{sLm1}, v{R['Lm1']}, s{st}
    v_readlane_b32 s{scl}, v{VCL}, s{st}
    v_readlane_b32 s{sq}, v{R['q']}, s{st}
    v_readlane_b32 s{sr}, v{R['r']}, s{st}
    s_nop 3
    s_sub_u32 s{sj}, s{sincl}, s{sn}
    s_sub_u32 s{sj}, s{s_slot}, s{sj}            ; j = slot - E_b
    s_mul_i32 s{s_start}, s{sj}, s{sq}
    s_min_u32 s{st}, s{sj}, s{sr}
    s_add_u32 s{s_start}, s{s_start}, s{st}
    s_cmp_lt_u32 s{sj}, s{sr}
    s_addc_u32 s{s_n}, s{sq}, 0                  ; n = q + (j<r)
    s_min_u32 s{s_n}, s{s_n}, 54
    s_and_b32 s{s_rem}, s{sLm1}, 31
    s_add_u32 s{s_rem}, s{s_rem}, 1
    s_add_u32 s{st}, s{sj}, 1
    s_cmp_eq_u32 s{st}, s{sn}
    s_cselect_b32 s{s_rem}, s{s_rem}, 32
    s_sub_u32 s{s_patch}, s{s_n}, 2
    s_cmp_lt_u32 s{s_rem}, 32
    s_cselect_b32 s{s_patch}, s{s_patch}, 0x7fffffff
    s_mov_b32 s{s_scale}, 0x{f32bits(SCALE):x}
    s_cmp_lt_i32 s{scl}, 1
    s_cselect_b32 s{s_scale}, 0, s{s_scale}
    s_lshl_b32 s{s_wgslot}, s{s_h}, 6
    s_add_u32 s{s_wgslot}, s{s_wgslot}, s{s_slot}
    """)
    if cfg.get("debug"):
        a(f"""
        s_lshl_b32 s{st}, s{s_wg}, 12
        s_lshl_b32 s{st+1}, s{s_w}, 10
        s_add_u32 s{st}, s{st}, s{st+1}
        s_add_u32 s{st}, s{st}, 0x{WS_DBG:x}
        v_lshlrev_b32 v{t0}, 2, v{VLANE}
        buffer_store_dword v{R['incl']}, v{t0}, s[{SRD_WS}:{SRD_WS+3}], s{st} offen
        buffer_store_dword v{R['n']}, v{t0}, s[{SRD_WS}:{SRD_WS+3}], s{st} offen offset:256
        buffer_store_dword v{VCL}, v{t0}, s[{SRD_WS}:{SRD_WS+3}], s{st} offen offset:512
        v_mov_b32 v{t1}, 0
        v_writelane_b32 v{t1}, s{s_b}, 0
        v_writelane_b32 v{t1}, s{s_start}, 1
        v_writelane_b32 v{t1}, s{s_n}, 2
        v_writelane_b32 v{t1}, s{s_rem}, 3
        v_writelane_b32 v{t1}, s{s_patch}, 4
        v_writelane_b32 v{t1}, s{s_slot}, 5
        v_writelane_b32 v{t1}, s{s_h}, 6
        v_writelane_b32 v{t1}, s{s_w}, 7
        v_writelane_b32 v{t1}, s{sn}, 8
        v_writelane_b32 v{t1}, s{sincl}, 9
        v_writelane_b32 v{t1}, s{sq}, 10
        v_writelane_b32 v{t1}, s{sr}, 11
        v_writelane_b32 v{t1}, s{sj}, 12
        buffer_store_dword v{t1}, v{t0}, s[{SRD_WS}:{SRD_WS+3}], s{st} offen offset:768
        s_waitcnt vmcnt(0)
        """)
    emit_srd(a, SRD_X, s_bt, BT_BYTES)
    a(f"""
    s_lshl_b32 s{st}, s{s_b}, 9
    s_lshl_b32 s{st+1}, s{s_start}, 1
    s_add_u32 s{st}, s{st}, s{st+1}
    s_lshr_b32 s{st+1}, s{s_w}, 1
    s_add_u32 s{st}, s{st}, s{st+1}
    s_lshl_b32 s{st}, s{st}, 2
    v_lshlrev_b32 v{t0}, 3, v{VLANE}
    buffer_load_dword v{PAGES}, v{t0}, s[{SRD_X}:{SRD_X+3}], s{st} offen
    """)
    a(f"""
    s_lshl_b32 s{st}, s{s_b}, 5
    s_lshl_b32 s{st+1}, s{s_h}, 3
    s_add_u32 s{st}, s{st}, s{st+1}
    s_lshl_b32 s{st+1}, s{s_w}, 1
    s_add_u32 s{st}, s{st}, s{st+1}
    s_lshl_b32 s{st}, s{st}, 13
    s_add_u32 s{st+1}, s{st}, 0x2000
    v_and_b32 v{t1}, 31, v{VLANE}
    v_lshlrev_b32 v{t1}, 8, v{t1}
    v_lshl_add_u32 v{t1}, v{VH4}, 2, v{t1}       ; q*256 + h2*16
    """)
    for X in range(2):
        for s in range(8):
            r = 32 * X + 4 * s
            a(f"buffer_load_dwordx4 v[{r}:{r+3}], v{t1}, s[{SRD_Q}:{SRD_Q+3}], s{st+X} offen offset:{32*s}")
    a(f"""
    v_mov_b32 v{t2}, 0x80000000
    v_cmp_gt_u32 vcc, s{s_n}, v{VLANE}
    s_waitcnt vmcnt(16)
    v_lshlrev_b32 v{PAGES}, 14, v{PAGES}
    v_cndmask_b32 v{PAGES}, v{t2}, v{PAGES}, vcc
    s_nop 0
    """)
    for j in range(8):
        a(f"v_readlane_b32 s{st+j}, v{PAGES}, {j}")
    a("s_nop 3")
    def issue(lst):
        a(lst[0]); a("s_nop 0"); a(lst[2]); a(lst[3])
    issue(dma_k(None, 0, st + 0))
    for j in range(7):
        issue(dma_k(None, j + 1, st + j + 1))
        issue(dma_v(None, j, st + j))
    a(f"s_mov_b32 s{s_pg[1]}, s{st+7}")
    a("s_waitcnt vmcnt(30)")
    for r in range(64):
        ta, tb = VT + (r & 1) * 2, VT + (r & 1) * 2 + 1
        a(f"""
        v_lshlrev_b32 v{ta}, 16, v{r}
        v_and_b32 v{tb}, 0xffff0000, v{r}
        v_mul_f32 v{ta}, s{s_scale}, v{ta}
        v_mul_f32 v{tb}, s{s_scale}, v{tb}
        v_cvt_pk_bf16_f32 v{ta}, v{ta}, v{tb}
        v_accvgpr_write_b32 a{r}, v{ta}
        """)
    for r in range(32, 64):
        a(f"v_mov_b32 v{r}, 0")
    a(f"""
    s_cmp_eq_u32 s{s_patch}, -1
    s_cbranch_scc0 L_nopatch0
    s_call_b64 s[{s_ret}:{s_ret+1}], L_sub_patch
    """)
    a.label("L_nopatch0")
    a("""
    s_waitcnt vmcnt(28)
    s_barrier
    """)
    for s in range(8):
        a(k_read(s, 0))
    for s in range(8):
        a(f"s_waitcnt lgkmcnt({7-s})")
        a(mfma_qk(0, s))
    a("s_nop 15")
    tramps = []
    for k in range(8):
        emit_body(a, k, tramps, cfg)
    a.label("L_drain")
    for f in range(8):
        a(mfma_pv(1, f))
    a(f"""
    v_mov_b32 v{VT}, v{L_[0]}
    v_mov_b32 v{VT+1}, v{L_[1]}
    s_lshl_b32 s{st}, s{s_wgslot}, 16
    s_lshl_b32 s{st+1}, s{s_w}, 14
    s_add_u32 s{st}, s{st}, s{st+1}
    v_permlane32_swap_b32 v{L_[0]}, v{VT}
    v_permlane32_swap_b32 v{L_[1]}, v{VT+1}
    v_lshlrev_b32 v{VT+4}, 4, v{VLANE}
    v_mov_b32 v{VT+6}, v{M_[0]}
    v_add_f32 v{VT+7}, v{L_[0]}, v{VT}
    v_mov_b32 v{VT+8}, v{M_[1]}
    v_add_f32 v{VT+9}, v{L_[1]}, v{VT+1}
    """)
    for X in range(2):
        for dt in range(4):
            if X == 1 and dt == 0:
                a("s_nop 7")
            o = O_[X] + 16 * dt
            d = 8 * (4 * X + dt)
            for j in range(8):
                a(f"v_cvt_pk_bf16_f32 v{d+j}, v{o+2*j}, v{o+2*j+1}")
            a(f"s_add_u32 s{st+1}, s{st}, {X*8192 + dt*2048}")
            a(f"buffer_store_dwordx4 v[{d}:{d+3}], v{VT+4}, s[{SRD_WS}:{SRD_WS+3}], s{st+1} offen{cfg['st_flags']}")
            a(f"buffer_store_dwordx4 v[{d+4}:{d+7}], v{VT+4}, s[{SRD_WS}:{SRD_WS+3}], s{st+1} offen offset:1024{cfg['st_flags']}")
    a(f"""
    s_lshl_b32 s{st}, s{s_wgslot}, 11
    s_lshl_b32 s{st+1}, s{s_w}, 9
    s_add_u32 s{st}, s{st}, s{st+1}
    s_add_u32 s{st}, s{st}, 0x{WS_ML:x}
    v_lshlrev_b32 v{VT+4}, 3, v{VLANE}
    s_mov_b32 exec_hi, 0
    buffer_store_dwordx2 v[{VT+6}:{VT+7}], v{VT+4}, s[{SRD_WS}:{SRD_WS+3}], s{st} offen{cfg['st_flags']}
    buffer_store_dwordx2 v[{VT+8}:{VT+9}], v{VT+4}, s[{SRD_WS}:{SRD_WS+3}], s{st} offen offset:256{cfg['st_flags']}
    """)
    a.label("L_end")
    a("s_endpgm")
    for lab, sub, ret in tramps:
        a.label(lab)
        a(f"s_call_b64 s[{s_ret}:{s_ret+1}], {sub}")
        a(f"s_branch {ret}")
    emit_fallback(a, 0)
    emit_fallback(a, 1)
    emit_patch(a)


def emit_combine(a, cfg):
    K = "pa_combine_kernel"
    NB = 12
    a.raw(f".globl {K}\n.p2align 8\n.type {K},@function")
    a.label(K)
    VL, VCL, VT_ = 200, 201, 202
    ACC = 160
    DEN, MX, MN, SC, W = 170, 171, 172, 173, 174
    U0, U1 = 176, 177
    OB = 0
    MLB = 64
    SRD_C, SRD_W, SRD_O = 20, 24, 28
    sw, sb, sh, swx, sn, sE, sbase, sj = 40, 41, 42, 43, 44, 45, 46, 47
    st = 60
    a(f"""
    s_cmp_ge_u32 s2, 256
    s_cbranch_scc1 L_cend
    s_load_dwordx16 s[4:19], s[0:1], 0
    v_lshrrev_b32 v{VT_}, 6, v0
    v_and_b32 v{VL}, 63, v0
    s_lshr_b32 s{sb}, s2, 5
    v_readfirstlane_b32 s{sw}, v{VT_}
    s_lshr_b32 s{sh}, s2, 3
    s_and_b32 s{sh}, s{sh}, 3
    s_and_b32 s{swx}, s2, 7
    v_and_b32 v{VT_+1}, 7, v{VL}
    v_lshlrev_b32 v{VT_+1}, 2, v{VT_+1}
    s_waitcnt lgkmcnt(0)
    """)
    emit_srd(a, SRD_C, s_cl, 32)
    a(f"buffer_load_dword v{VCL}, v{VT_+1}, s[{SRD_C}:{SRD_C+3}], 0 offen")
    emit_srd(a, SRD_W, s_ws, WS_BYTES)
    emit_srd(a, SRD_O, s_out, Q_BYTES)
    VOFF, VML, VOUT = 180, 181, 182
    a(f"""
    s_lshl_b32 s{st}, s{swx}, 13
    s_lshl_b32 s{st+1}, s{sw}, 10
    s_add_u32 s{st}, s{st}, s{st+1}
    v_lshlrev_b32 v{VOFF}, 4, v{VL}
    v_add_u32 v{VOFF}, s{st}, v{VOFF}
    s_lshl_b32 s{st}, s{swx}, 8
    s_add_u32 s{st}, s{st}, 0x{WS_ML:x}
    v_and_b32 v{VML}, 31, v{VL}
    v_lshlrev_b32 v{VOUT}, 8, v{VML}             ; q*256
    v_lshlrev_b32 v{VML}, 3, v{VML}
    v_add_u32 v{VML}, s{st}, v{VML}
    v_lshrrev_b32 v{VT_+2}, 5, v{VL}
    v_lshl_add_u32 v{VOUT}, v{VT_+2}, 3, v{VOUT} ; + h2*8
    s_lshl_b32 s{st}, s2, 13
    s_lshl_b32 s{st+1}, s{sw}, 5
    s_add_u32 s{st}, s{st}, s{st+1}
    v_add_u32 v{VOUT}, s{st}, v{VOUT}
    v_mov_b32 v{DEN}, 0
    v_mov_b32 v{MX}, 0xff800000
    """)
    for r in range(8):
        a(f"v_mov_b32 v{ACC+r}, 0")
    a("s_waitcnt vmcnt(0)")
    R = emit_partition(a, VL, VCL, VT_, st)
    a(f"""
    s_add_u32 s{st}, s{st}, s{sb}
    v_readlane_b32 s{sn}, v{R['n']}, s{st}
    v_readlane_b32 s{sE}, v{R['incl']}, s{st}
    s_nop 3
    s_sub_u32 s{sE}, s{sE}, s{sn}
    s_min_u32 s{sn}, s{sn}, 64
    s_lshl_b32 s{st}, s{sh}, 6
    s_add_u32 s{sE}, s{sE}, s{st}
    s_mov_b32 s{sbase}, 0
    """)
    a.label("L_cloop")
    for j in range(NB):
        a(f"""
        s_add_u32 s{sj}, s{sbase}, {j}
        s_add_u32 s{st}, s{sE}, s{sj}
        s_lshl_b32 s{st+1}, s{st}, 16
        s_lshl_b32 s{st}, s{st}, 11
        s_cmp_lt_u32 s{sj}, s{sn}
        s_cselect_b32 s{st+1}, s{st+1}, 0x80000000
        s_cselect_b32 s{st}, s{st}, 0x80000000
        buffer_load_dwordx2 v[{MLB+2*j}:{MLB+2*j+1}], v{VML}, s[{SRD_W}:{SRD_W+3}], s{st} offen
        buffer_load_dwordx4 v[{OB+4*j}:{OB+4*j+3}], v{VOFF}, s[{SRD_W}:{SRD_W+3}], s{st+1} offen
        """)
    a(f"v_mov_b32 v{MN}, v{MX}")
    for j in range(NB):
        a(f"""
        s_add_u32 s{sj}, s{sbase}, {j}
        s_cmp_ge_u32 s{sj}, s{sn}
        s_cbranch_scc1 L_cmaxdone
        s_waitcnt vmcnt({2*(NB-1-j)+1})
        v_max_f32 v{MN}, v{MN}, v{MLB+2*j}
        """)
    a.label("L_cmaxdone")
    a(f"""
    v_sub_f32 v{SC}, v{MX}, v{MN}
    v_exp_f32 v{SC}, v{SC}
    v_mov_b32 v{MX}, v{MN}
    v_mul_f32 v{DEN}, v{DEN}, v{SC}
    """)
    for r in range(8):
        a(f"v_mul_f32 v{ACC+r}, v{ACC+r}, v{SC}")
    for j in range(NB):
        a(f"""
        s_add_u32 s{sj}, s{sbase}, {j}
        s_cmp_ge_u32 s{sj}, s{sn}
        s_cbranch_scc1 L_cfin
        v_sub_f32 v{W}, v{MLB+2*j}, v{MX}
        v_exp_f32 v{W}, v{W}
        s_waitcnt vmcnt({2*(NB-1-j)})
        v_fmac_f32 v{DEN}, v{W}, v{MLB+2*j+1}
        """)
        for r in range(4):
            a(f"""
            v_lshlrev_b32 v{U0}, 16, v{OB+4*j+r}
            v_and_b32 v{U1}, 0xffff0000, v{OB+4*j+r}
            v_fmac_f32 v{ACC+2*r}, v{W}, v{U0}
            v_fmac_f32 v{ACC+2*r+1}, v{W}, v{U1}
            """)
    a(f"""
    s_add_u32 s{sbase}, s{sbase}, {NB}
    s_branch L_cloop
    """)
    a.label("L_cfin")
    a(f"""
    v_rcp_f32 v{SC}, v{DEN}
    s_nop 0
    """)
    for r in range(8):
        a(f"v_mul_f32 v{ACC+r}, v{ACC+r}, v{SC}")
    for r in range(4):
        a(f"v_cvt_pk_bf16_f32 v{ACC+r}, v{ACC+2*r}, v{ACC+2*r+1}")
    a(f"""
    buffer_store_dwordx2 v[{ACC}:{ACC+1}], v{VOUT}, s[{SRD_O}:{SRD_O+3}], 0 offen
    buffer_store_dwordx2 v[{ACC+2}:{ACC+3}], v{VOUT}, s[{SRD_O}:{SRD_O+3}], 0 offen offset:16
    """)
    a.label("L_cend")
    a("s_endpgm")


def descriptor(name, vgpr, accum, sgpr=102):
    return f"""
.p2align 6
.amdhsa_kernel {name}
  .amdhsa_next_free_vgpr {vgpr}
  .amdhsa_next_free_sgpr {sgpr}
  .amdhsa_accum_offset {accum}
  .amdhsa_group_segment_fixed_size 0
  .amdhsa_kernarg_size 64
  .amdhsa_user_sgpr_count 2
  .amdhsa_user_sgpr_kernarg_segment_ptr 1
  .amdhsa_system_sgpr_workgroup_id_x 1
.end_amdhsa_kernel
"""


DEFAULT_CFG = dict(
    vslots=[9, 10, 11, 12, 13, 14, 15, 16, 17, 18, 19, 20, 21, 22, 23, 24],
    rl_slot=20,
    dma_slots=[25, 27, 29, 31],
    dma_cost=12,
    sm_end=14,
    st_flags="",
)


def generate(cfg=None, out=OUT):
    c = dict(DEFAULT_CFG)
    if cfg:
        c.update(cfg)
    a = Asm()
    a.raw(f"""; Paged attention (GQA, split-KV) for gfx950 -- generated by gen.py (hand-scheduled)
; @launch kernel={NAME}_kernel grid=(256,1,1) block=(256,1,1) lds=131072
; @launch kernel=pa_combine_kernel grid=(256,1,1) block=(512,1,1) lds=0
.amdgcn_target "amdgcn-amd-amdhsa--gfx950"
.text""")
    emit_main(a, c)
    emit_combine(a, c)
    a.raw('.section .rodata,"a"')
    a.raw(descriptor(NAME + "_kernel", 384, 256))
    a.raw(descriptor("pa_combine_kernel", 216, 216))
    open(out, "w").write(a.text())


if __name__ == "__main__":
    import json
    cfg = json.loads(sys.argv[1]) if len(sys.argv) > 1 else None
    generate(cfg, sys.argv[2] if len(sys.argv) > 2 else OUT)
```

```python
import sys, math

NAME = "standalone__paged_block_table_kv_pagedattention__sampling"
OUT = "cdna_kernels/%s.s" % NAME

KV_BYTES = 4100 * 16384
Q_BYTES = 8 * 32 * 32 * 128 * 2
BT_BYTES = 8 * 512 * 4
WS_ML = 0x1000000
WS_DBG = WS_ML + 256 * 2048
WS_BYTES = WS_DBG + 0x100000
SCALE = math.log2(math.e) / math.sqrt(128.0)
THR_LOG2 = 12

import struct
def f32bits(x):
    return struct.unpack("<I", struct.pack("<f", x))[0]

class Asm:
    def __init__(self):
        self.lines = []
    def __call__(self, s):
        for l in s.strip("\n").split("\n"):
            self.lines.append("    " + l.strip())
    def label(self, l):
        self.lines.append(l + ":")
    def raw(self, s):
        self.lines.append(s)
    def text(self):
        return "\n".join(self.lines) + "\n"

S_ = {0: 0, 1: 16}
C_ = {0: 32, 1: 48}
O_ = {0: 64, 1: 128}
P_ = {0: 192, 1: 200}
KADDR = 208
VADDR = 216
VOFFK = 220
VOFFV = 222
PAGES = 224
L_ = {0: 225, 1: 226}
M_ = {0: 227, 1: 228}
TS_ = {0: (229, 230), 1: (231, 232)}
ET = 233
VLANE = 239
VT = 240
VH4 = 255
AQ = {0: 0, 1: 32}
AK = 64
AV = 96

s_wg = 2
s_q, s_k, s_v, s_bt, s_cl, s_out, s_dbg, s_ws = 4, 6, 8, 10, 12, 14, 16, 18
SRD_K, SRD_V, SRD_Q, SRD_X, SRD_WS, SRD_BT = 20, 24, 28, 32, 36, 76
s_w = 40
s_h = 41
s_slot = 42
s_n = 43
s_i = 44
s_patch = 45
s_rem = 46
s_idx = 47
s_pg = {0: 48, 1: 49}
s_m0k = 50
s_m0v = 51
s_thr = {0: 52, 1: 53}
s_floor = {0: 54, 1: 55}
s_first = {0: 56, 1: 57}
s_ret = 58
s_t0 = 60
s_qb = 84
s_qlds = 54
s_b = 80
s_start = 81
s_scale = 56
s_wgslot = 83


def emit_srd(a, d, ptr, nbytes):
    a(f"""
    s_mov_b32 s{d}, s{ptr}
    s_and_b32 s{d+1}, s{ptr+1}, 0xffff
    s_mov_b32 s{d+2}, 0x{nbytes:x}
    s_mov_b32 s{d+3}, 0x20000
    """)


def sum8(a, dst, src, tmp):
    a(f"""
    s_nop 1
    v_add_u32_dpp v{tmp}, v{src}, v{src} quad_perm:[1,0,3,2] row_mask:0xf bank_mask:0xf
    s_nop 1
    v_add_u32_dpp v{dst}, v{tmp}, v{tmp} quad_perm:[2,3,0,1] row_mask:0xf bank_mask:0xf
    s_nop 1
    v_add_u32_dpp v{dst}, v{dst}, v{dst} row_half_mirror row_mask:0xf bank_mask:0xf
    """)


def emit_partition(a, vlane, vcl, vt, st):
    Lm1, T_, Cc, Nn, NS, INC, Qq, Rr, X0, X1 = range(vt, vt + 10)
    a(f"""
    v_add_u32 v{Lm1}, -1, v{vcl}
    v_min_u32 v{Lm1}, 0x1fff, v{Lm1}
    v_lshrrev_b32 v{T_}, 5, v{Lm1}
    v_add_u32 v{T_}, 1, v{T_}
    """)
    sum8(a, Cc, T_, X0)
    a(f"""
    v_add_u32 v{Cc}, 63, v{Cc}
    v_lshrrev_b32 v{Cc}, 6, v{Cc}
    v_lshrrev_b32 v{X0}, 3, v{vlane}
    v_add_u32 v{Cc}, v{Cc}, v{X0}
    v_cvt_f32_u32 v{X0}, v{Cc}
    v_rcp_f32 v{X0}, v{X0}
    v_add3_u32 v{X1}, v{T_}, v{Cc}, -1
    v_cvt_f32_u32 v{X1}, v{X1}
    v_add_f32 v{X1}, 0.5, v{X1}
    v_mul_f32 v{X1}, v{X1}, v{X0}
    v_cvt_u32_f32 v{Nn}, v{X1}
    """)
    sum8(a, NS, Nn, X0)
    a(f"""
    s_nop 1
    v_add_u32_dpp v{INC}, v{Nn}, v{Nn} row_shr:1 row_mask:0xf bank_mask:0xf bound_ctrl:0
    v_cvt_f32_u32 v{X0}, v{Nn}
    v_rcp_f32 v{X0}, v{X0}
    v_add_u32_dpp v{INC}, v{INC}, v{INC} row_shr:2 row_mask:0xf bank_mask:0xf bound_ctrl:0
    v_cvt_f32_u32 v{X1}, v{T_}
    v_add_f32 v{X1}, 0.5, v{X1}
    v_add_u32_dpp v{INC}, v{INC}, v{INC} row_shr:4 row_mask:0xf bank_mask:0xf bound_ctrl:0
    v_mul_f32 v{X1}, v{X1}, v{X0}
    v_cvt_u32_f32 v{Qq}, v{X1}
    v_add_u32_dpp v{INC}, v{INC}, v{INC} row_shr:8 row_mask:0xf bank_mask:0xf bound_ctrl:0
    v_mul_u32_u24 v{X0}, v{Qq}, v{Nn}
    v_sub_u32 v{Rr}, v{T_}, v{X0}
    v_mov_b32_dpp v{X1}, v{NS} row_shr:8 row_mask:0xf bank_mask:0xf bound_ctrl:0
    v_sub_u32 v{INC}, v{INC}, v{X1}
    v_cmp_ge_u32 vcc, 64, v{NS}
    s_ff1_i32_b64 s{st}, vcc
    s_mov_b64 s[{st+2}:{st+3}], 0xff
    s_lshl_b64 s[{st+2}:{st+3}], s[{st+2}:{st+3}], s{st}
    """)
    return dict(Lm1=Lm1, t=T_, n=Nn, incl=INC, q=Qq, r=Rr)


def sm_stream(X, et=None):
    S = S_[X]; P = P_[X]
    TS0, TS1 = TS_[X]
    et = ET if et is None else et
    def tmp(j):
        if j == 0:
            return TS0, TS1
        k = (j - 1) % 3
        return et + 2 * k, et + 2 * k + 1
    E = lambda j, h: (8, f"v_exp_f32 v{tmp(j)[h]}, v{S + 2 * j + h}")
    A = lambda j, h: (4, f"v_add_f32 v{(TS0, TS1)[h]}, v{(TS0, TS1)[h]}, v{tmp(j)[h]}")
    C = lambda j: (4, f"v_cvt_pk_bf16_f32 v{P + j}, v{tmp(j)[0]}, v{tmp(j)[1]}")
    st = [E(0, 0), E(0, 1), E(1, 0), C(0), E(1, 1)]
    for j in range(1, 7):
        st += [A(j, 0), E(j + 1, 0), A(j, 1), C(j), E(j + 1, 1)]
    st += [A(7, 0), A(7, 1), C(7), (4, f"v_add_f32 v{TS0}, v{TS0}, v{TS1}")]
    return st


def mfma_qk(X, s):
    c = C_[X] if s == 0 else S_[X]
    return (f"v_mfma_f32_32x32x16_bf16 v[{S_[X]}:{S_[X]+15}], a[{AK+4*s}:{AK+4*s+3}], "
            f"a[{AQ[X]+4*s}:{AQ[X]+4*s+3}], v[{c}:{c+15}]")


def mfma_pv(X, f):
    t, dt = f >> 2, f & 3
    o = O_[X] + 16 * dt
    return (f"v_mfma_f32_32x32x16_bf16 v[{o}:{o+15}], a[{AV+4*f}:{AV+4*f+3}], "
            f"v[{P_[X]+4*t}:{P_[X]+4*t+3}], v[{o}:{o+15}]")


def k_read(s, slot):
    return f"ds_read_b128 a[{AK+4*s}:{AK+4*s+3}], v{KADDR+s} offset:{slot*8192}"


def v_read(f, y, slot):
    t, dt = f >> 2, f & 3
    return (f"ds_read_b64_tr_b16 a[{AV+4*f+2*y}:{AV+4*f+2*y+1}], v{VADDR+dt} "
            f"offset:{slot*8192 + (16*t+8*y)*256}")


LDFLAGS = ""
def dma_k(a_list, slot, spg):
    return [f"s_add_u32 m0, s{s_m0k}, {slot*8192}",
            None,
            f"buffer_load_dwordx4 v{VOFFK}, s[{SRD_K}:{SRD_K+3}], s{spg} offen{LDFLAGS} lds",
            f"buffer_load_dwordx4 v{VOFFK+1}, s[{SRD_K}:{SRD_K+3}], s{spg} offen offset:1024{LDFLAGS} lds"]


def dma_v(a_list, slot, spg):
    return [f"s_add_u32 m0, s{s_m0v}, {slot*8192}",
            None,
            f"buffer_load_dwordx4 v{VOFFV}, s[{SRD_V}:{SRD_V+3}], s{spg} offen{LDFLAGS} lds",
            f"buffer_load_dwordx4 v{VOFFV+1}, s[{SRD_V}:{SRD_V+3}], s{spg} offen offset:1024{LDFLAGS} lds"]


def plan_body(k, cfg, tramps=None):
    kn = (k + 1) % 8
    D = cfg["depth"]
    pgn = s_pg[k & 1]
    pgo = s_pg[(k & 1) ^ 1]
    tramps = [] if tramps is None else tramps
    pre = {i: [] for i in range(32)}
    front = {i: [] for i in range(32)}
    valu = {i: [] for i in range(32)}
    tail = {i: [] for i in range(32)}
    for s in range(8):
        front[s + 1].append((4, k_read(s, kn)))
    vslots = cfg["vslots"]
    vr = [(f, y) for f in range(8) for y in range(2)]
    for (f, y), sl in zip(vr, vslots):
        assert sl >= 9 + f, (f, sl)
        front[sl].append((4, v_read(f, y, k)))
    def vr_before(m):
        return sum(1 for sl in vslots if sl < m)
    pre[16].append(f"s_waitcnt lgkmcnt({vr_before(16)})")
    assert vr_before(24) >= 8
    pre[24].append(f"s_waitcnt lgkmcnt({vr_before(24) - 8})")
    assert vr_before(28) == 16
    pre[28].append("s_waitcnt lgkmcnt(0)")
    valu[cfg["rl_slot"]].append((4, f"v_readlane_b32 s{pgn}, v{PAGES}, s{s_idx}"))
    tail[cfg["rl_slot"]].append(f"s_add_u32 s{s_idx}, s{s_idx}, 1")
    dk = dma_k(None, (k + D + 1) % 8, pgn)
    dv = dma_v(None, (k + D) % 8, pgo)
    ds = cfg["dma_slots"]
    dcost = cfg["dma_cost"]
    tail[ds[0] - 1].append(dv[0])
    front[ds[0]].append((dcost, dv[2]))
    front[ds[1]].append((dcost, dv[3]))
    assert ds[2] - 1 >= ds[1]
    tail[ds[2] - 1].append(dk[0])
    front[ds[2]].append((dcost, dk[2]))
    front[ds[3]].append((dcost, dk[3]))
    assert ds[2] > cfg["rl_slot"] + 1
    ps = cfg["patch_slot"]
    tail[ps - 1].append(f"s_cmp_eq_u32 s{s_i}, s{s_patch}")
    front[ps].insert(0, (8, f"s_cbranch_scc1 L_patch_{k}"))
    front[ps].insert(1, (0, f"L_patch_ret_{k}:"))
    tramps.append((f"L_patch_{k}", "L_sub_patch", f"L_patch_ret_{k}"))
    assert max(ds) < 30
    tail[30].append(f"s_add_u32 s{s_i}, s{s_i}, 1")
    tail[30].append(f"s_cmp_ge_u32 s{s_i}, s{s_n}")
    front[31].append((8, "s_cbranch_scc1 L_drain"))
    dl = cfg["delta"]
    for X, lo in ((0, 32 - dl), (1, 16 - dl)):
        hi = lo + 15
        bs = (hi + cfg["br_dist"]) % 32
        front[bs].insert(0, (8, f"s_cbranch_vccnz L_fb{X}_{k}"))
        front[bs].insert(1, (0, f"L_fb{X}_ret_{k}:"))
        valu[bs].insert(0, (4, f"v_add_f32 v{L_[X]}, v{L_[X]}, v{TS_[X][0]}"))
        tramps.append((f"L_fb{X}_{k}", f"L_sub_fb{X}", f"L_fb{X}_ret_{k}"))
    for X, lo in ((0, 32 - dl), (1, 16 - dl)):
        gaps = [(lo + j) % 32 for j in range(16)]
        st = sm_stream(X) + [(4, f"v_cmp_lt_f32 vcc, s{s_thr[X]}, v{TS_[X][0]}")]
        tot = sum(c for c, _ in st)
        free = [max(0, 24 - sum(c for c, _ in front[g]) - sum(c for c, _ in valu[g])) for g in gaps]
        for n_, g in enumerate(gaps):
            if g in cfg["empty_gaps"]:
                free[n_] = 0
        ftot = sum(free)
        assert ftot >= tot, (ftot, tot)
        acc = 0.0; done = 0; idx = 0
        for n_, g in enumerate(gaps):
            acc += free[n_] * tot / ftot
            used = 0
            while idx < len(st) and used + st[idx][0] <= free[n_] and len(valu[g]) < 5 and \
                    (done + st[idx][0] / 2.0 <= acc or n_ == 15):
                valu[g].append(st[idx]); done += st[idx][0]; used += st[idx][0]; idx += 1
        assert idx == len(st), (X, idx, len(st))
    return pre, front, valu, tail


def skip(t, cfg):
    if cfg.get("no_dma") and t.startswith("buffer_load"): return True
    if cfg.get("no_lds") and t.startswith("ds_read"): return True
    if cfg.get("no_sm") and (t.startswith("v_exp") or t.startswith("v_add_f32") or t.startswith("v_cvt")): return True
    if cfg.get("no_mfma") and t.startswith("v_mfma"): return True
    return False


def emit_body(a, k, tramps, cfg):
    D = cfg["depth"]
    mf = [mfma_qk(1, s) for s in range(8)] + [mfma_pv(1, f) for f in range(8)] + \
         [mfma_qk(0, s) for s in range(8)] + [mfma_pv(0, f) for f in range(8)]
    pre, front, valu, tail = plan_body(k, cfg, tramps)
    a.label(f"L_body_{k}")
    if cfg.get("stamp"):
        a(f"""
        s_memtime s[90:91]
        s_mov_b32 m0, s{s_i}
        s_waitcnt lgkmcnt(0)
        v_writelane_b32 v{VT+12}, s90, m0
        """)
    bp = cfg["bar_period"]
    if k % bp == 0:
        a(f"s_waitcnt vmcnt({4*(D-bp)})")
        if not cfg.get("no_bar"):
            a("s_barrier")
    if cfg.get("stamp"):
        a(f"""
        s_memtime s[90:91]
        s_waitcnt lgkmcnt(0)
        v_writelane_b32 v{VT+13}, s90, m0
        """)
    for i in range(32):
        seq = pre[i] + [mf[i]] + [t for _, t in front[i]] + [t for _, t in valu[i]] + tail[i]
        for t in seq:
            if t.endswith(":"):
                a.label(t[:-1])
            elif not skip(t, cfg):
                a(t)
    if k == 7:
        a("s_branch L_body_0")


def emit_rowmax(a, X, mx, t1):
    S = S_[X]
    out = [f"v_max3_f32 v{mx}, v{S}, v{S+1}, v{S+2}"]
    for r in range(3, 15, 2):
        out.append(f"v_max3_f32 v{mx}, v{mx}, v{S+r}, v{S+r+1}")
    out += [f"v_max_f32 v{mx}, v{mx}, v{S+15}", f"v_mov_b32 v{t1}, v{mx}", "s_nop 1",
            f"v_permlane32_swap_b32 v{mx}, v{t1}", "s_nop 1", f"v_max_f32 v{mx}, v{mx}, v{t1}"]
    return out


def emit_fallback(a, X):
    S = S_[X]; C = C_[X]; O = O_[X]; P = P_[X]
    mx, t1, f = VT, VT + 1, VT + 3
    a.label(f"L_sub_fb{X}")
    a("s_nop 7")
    for t in emit_rowmax(a, X, mx, t1):
        a(t)
    a(f"""
    v_max_f32 v{mx}, 0, v{mx}
    v_exp_f32 v{f}, -v{mx}
    v_add_f32 v{M_[X]}, v{M_[X]}, v{mx}
    """)
    for r in range(16):
        a(f"v_sub_f32 v{C+r}, v{C+r}, v{mx}")
        a(f"v_sub_f32 v{S+r}, v{S+r}, v{mx}")
    a(f"v_mul_f32 v{L_[X]}, v{L_[X]}, v{f}")
    for r in range(64):
        a(f"v_mul_f32 v{O+r}, v{O+r}, v{f}")
    for c, t in sm_stream(X, VT + 4):
        a(t)
    a(f"""
    s_nop 3
    s_setpc_b64 s[{s_ret}:{s_ret+1}]
    """)


def emit_patch(a):
    ninf = VT
    a.label("L_sub_patch")
    a(f"""
    s_nop 7
    v_mov_b32 v{ninf}, 0xff800000
    """)
    for r in range(16):
        cst = 8 * (r >> 2) + (r & 3)
        a(f"""
        s_sub_i32 s{s_t0}, s{s_rem}, {cst}
        v_cmp_gt_i32 vcc, s{s_t0}, v{VH4}
        s_nop 1
        v_cndmask_b32 v{C_[0]+r}, v{ninf}, v{C_[0]+r}, vcc
        v_cndmask_b32 v{C_[1]+r}, v{ninf}, v{C_[1]+r}, vcc
        """)
    a(f"""
    s_nop 3
    s_setpc_b64 s[{s_ret}:{s_ret+1}]
    """)


def emit_main(a, cfg):
    K = NAME + "_kernel"
    D = cfg["depth"]
    assert D <= 5
    a.raw(f".globl {K}\n.p2align 8\n.type {K},@function")
    a.label(K)
    t0, t1, t2, t3 = VT + 11, VT + 12, VT + 13, VT + 14
    VCL = VT + 10
    def sstamp(n):
        if cfg.get("stamp"):
            a(f"""
            s_memtime s[90:91]
            s_waitcnt lgkmcnt(0)
            s_mov_b32 s{n}, s90
            """)
    def pstamp(n):
        if cfg.get("stamp"):
            a(f"""
            s_memtime s[90:91]
            s_waitcnt lgkmcnt(0)
            v_writelane_b32 v{VT+12}, s90, {40+n}
            """)
    a(f"""
    s_cmp_ge_u32 s{s_wg}, 256
    s_cbranch_scc1 L_end
    s_load_dwordx16 s[4:19], s[0:1], 0
    v_lshrrev_b32 v{VT}, 6, v0
    v_and_b32 v{VLANE}, 63, v0
    s_lshr_b32 s{s_h}, s{s_wg}, 1
    v_readfirstlane_b32 s{s_w}, v{VT}
    s_and_b32 s{s_h}, s{s_h}, 3
    s_and_b32 s{s_t0}, s{s_wg}, 1
    s_lshl_b32 s{s_t0}, s{s_t0}, 5
    s_lshr_b32 s{s_slot}, s{s_wg}, 3
    s_or_b32 s{s_slot}, s{s_slot}, s{s_t0}
    v_and_b32 v{VT+1}, 7, v{VLANE}
    v_lshlrev_b32 v{VT+1}, 2, v{VT+1}
    v_lshlrev_b32 v{VT+2}, 7, v{VLANE}
    """)
    if cfg.get("stamp"):
        a("s_memtime s[92:93]")
        a("s_memrealtime s[100:101]")
    a(f"""
    s_and_b32 s{s_t0}, s{s_w}, 1
    s_lshl_b32 s{s_t0}, s{s_t0}, 3               ; 8*(w&1)
    s_lshl_b32 s{s_t0+1}, s{s_h}, 8              ; h*256
    v_lshrrev_b32 v{t0}, 4, v{VLANE}             ; l>>4
    v_and_b32 v{t1}, 15, v{VLANE}                ; pc
    v_add_u32 v{t2}, s{s_t0}, v{t0}              ; R&15 for x=0
    v_xor_b32 v{t3}, v{t1}, v{t2}
    v_lshlrev_b32 v{t3}, 4, v{t3}
    v_lshl_add_u32 v{t3}, v{t2}, 10, v{t3}
    v_add_u32 v{VOFFK}, s{s_t0+1}, v{t3}
    v_add_u32 v{t2}, 4, v{t2}                    ; R&15 for x=1
    v_xor_b32 v{t3}, v{t1}, v{t2}
    v_lshlrev_b32 v{t3}, 4, v{t3}
    v_lshl_add_u32 v{t3}, v{t2}, 10, v{t3}
    v_add_u32 v{t3}, s{s_t0+1}, v{t3}
    v_add_u32 v{VOFFK+1}, 0xfffffc00, v{t3}
    v_lshlrev_b32 v{t3}, 2, v{t0}
    v_xor_b32 v{t3}, v{t1}, v{t3}
    v_lshlrev_b32 v{t3}, 4, v{t3}
    v_add_u32 v{t2}, s{s_t0}, v{t0}
    v_lshl_add_u32 v{t3}, v{t2}, 10, v{t3}
    v_add_u32 v{VOFFV}, s{s_t0+1}, v{t3}
    v_add_u32 v{VOFFV+1}, 0xc00, v{VOFFV}        ; +4096 -1024
    s_lshl_b32 s{s_m0k}, s{s_w}, 11
    s_add_u32 s{s_m0v}, s{s_m0k}, 0x10000
    s_mov_b32 s{s_thr[0]}, 0x{f32bits(2.0**cfg["thr_log2"]):x}
    s_mov_b32 s{s_thr[1]}, 0x{f32bits(2.0**cfg["thr_log2"]):x}
    s_mov_b32 s{s_i}, 0
    s_mov_b32 s{s_idx}, {D+1}
    v_lshrrev_b32 v{t0}, 5, v{VLANE}            ; h2
    v_lshlrev_b32 v{VH4}, 2, v{t0}
    v_lshrrev_b32 v{t2}, 4, v{VLANE}
    v_xor_b32 v{t3}, v{t1}, v{t2}
    v_lshlrev_b32 v{t3}, 4, v{t3}
    v_lshl_add_u32 v{ET}, v{t2}, 8, v{t3}        ; Q voffset (j&3 == 0)
    v_xor_b32 v{ET+1}, 64, v{ET}
    v_xor_b32 v{ET+2}, 0x80, v{ET}
    v_xor_b32 v{ET+3}, 0xc0, v{ET}
    v_lshlrev_b32 v{ET+4}, 3, v{VLANE}
    s_lshl_b32 s{s_qlds}, s{s_w}, 13
    s_add_u32 s{s_qlds}, s{s_qlds}, 0x20000      ; Q_A staging : 128K + w*8K
    s_and_b32 s{s_t0}, s{s_w}, 1
    s_lshl_b32 s{s_t0}, s{s_t0}, 13
    s_lshr_b32 s{s_t0+1}, s{s_w}, 1
    s_lshl_b32 s{s_t0+1}, s{s_t0+1}, 16
    s_add_u32 s{s_t0}, s{s_t0}, s{s_t0+1}
    s_add_u32 s{s_qlds+1}, s{s_t0}, 0xc000
    s_waitcnt lgkmcnt(0)
    """)
    emit_srd(a, SRD_X, s_cl, 32)
    a(f"buffer_load_dword v{VCL}, v{VT+1}, s[{SRD_X}:{SRD_X+3}], 0 offen")
    emit_srd(a, SRD_BT, s_bt, BT_BYTES)
    emit_srd(a, SRD_Q, s_q, Q_BYTES)
    nwarm = 0
    if cfg["warm"]:
        a(f"""
        s_lshr_b32 s{s_t0}, s{s_wg}, 3
        s_lshr_b32 s{s_t0+1}, s{s_t0}, 2
        s_lshl_b32 s{s_t0+1}, s{s_t0+1}, 18          ; b*262144
        s_and_b32 s{s_t0+2}, s{s_t0}, 3
        s_lshl_b32 s{s_t0+2}, s{s_t0+2}, 14
        s_add_u32 s{s_t0+1}, s{s_t0+1}, s{s_t0+2}
        s_lshl_b32 s{s_t0+2}, s{s_h}, 16
        s_add_u32 s{s_t0+1}, s{s_t0+1}, s{s_t0+2}
        s_lshl_b32 s{s_t0+2}, s{s_w}, 13
        s_add_u32 s{s_t0+1}, s{s_t0+1}, s{s_t0+2}
        s_lshl_b32 s{s_t0}, s{s_t0}, 9
        s_cmp_lt_u32 s{s_w}, 2
        s_cselect_b32 s{s_t0+1}, s{s_t0+1}, 0x80000000
        s_cmp_eq_u32 s{s_w}, 2
        s_cselect_b32 s{s_t0}, s{s_t0}, 0x80000000
        v_min_u32 v{VT+3}, 0x180, v{VT+2}
        buffer_load_dword v{P_[0]}, v{VT+2}, s[{SRD_Q}:{SRD_Q+3}], s{s_t0+1} offen
        buffer_load_dword v{P_[0]+1}, v{VT+3}, s[{SRD_BT}:{SRD_BT+3}], s{s_t0} offen
        """)
        nwarm = 2
    emit_srd(a, SRD_K, s_k, KV_BYTES)
    emit_srd(a, SRD_V, s_v, KV_BYTES)
    emit_srd(a, SRD_WS, s_ws, WS_BYTES)
    sstamp(88)
    a(f"""
    v_and_b32 v{t1}, 31, v{VLANE}               ; key / q
    v_and_b32 v{t2}, 15, v{VLANE}
    v_xor_b32 v{t2}, v{t2}, v{t0}               ; (key&15)^h2
    v_lshlrev_b32 v{t2}, 4, v{t2}
    v_lshl_add_u32 v{KADDR}, v{t1}, 8, v{t2}
    """)
    for s in range(1, 8):
        a(f"v_xor_b32 v{KADDR+s}, {s << 5}, v{KADDR}")
    a(f"""
    v_bfe_u32 v{t1}, v{VLANE}, 2, 2              ; r
    v_add_u32 v{t2}, v{VH4}, v{t1}               ; 4h2 + r
    v_lshlrev_b32 v{t2}, 8, v{t2}
    v_bfe_u32 v{t3}, v{VLANE}, 4, 1              ; sub
    v_lshl_add_u32 v{t2}, v{t3}, 5, v{t2}
    v_and_b32 v{t3}, 3, v{VLANE}                 ; c
    v_lshl_add_u32 v{t2}, v{t3}, 3, v{t2}
    v_add_u32 v{t2}, 0x10000, v{t2}
    v_lshl_add_u32 v{VADDR}, v{t1}, 6, v{t2}     ; dt=0 : (0^r)<<6
    """)
    for dt in range(1, 4):
        a(f"v_xor_b32 v{VADDR+dt}, {dt << 6}, v{VADDR}")
    a(f"s_waitcnt vmcnt({nwarm})")
    sstamp(89)
    st = s_t0
    R = emit_partition(a, VLANE, VCL, VT, st)
    sn, sincl, sLm1, scl, sq, sr, sj = st + 4, st + 5, st + 6, st + 7, st + 8, st + 9, st + 10
    a(f"""
    v_cmp_lt_u32 vcc, s{s_slot}, v{R['incl']}
    s_and_b64 vcc, vcc, s[{st+2}:{st+3}]
    s_cbranch_scc0 L_end
    s_ff1_i32_b64 s{st}, vcc
    s_and_b32 s{s_b}, s{st}, 7
    v_readlane_b32 s{sn}, v{R['n']}, s{st}
    v_readlane_b32 s{sincl}, v{R['incl']}, s{st}
    v_readlane_b32 s{sq}, v{R['q']}, s{st}
    v_readlane_b32 s{sr}, v{R['r']}, s{st}
    v_readlane_b32 s{sLm1}, v{R['Lm1']}, s{st}
    v_readlane_b32 s{scl}, v{VCL}, s{st}
    s_lshl_b32 s{st+2}, s{s_b}, 5
    s_lshl_b32 s{st+1}, s{s_h}, 3
    s_add_u32 s{st+2}, s{st+2}, s{st+1}
    s_lshl_b32 s{st+1}, s{s_w}, 1
    s_add_u32 s{st+2}, s{st+2}, s{st+1}
    s_lshl_b32 s{st+2}, s{st+2}, 13              ; Q base = ((b*32 + 8h + 2w)*32)*256
    s_add_u32 s{st+3}, s{st+2}, 0x2000
    s_sub_u32 s{sj}, s{sincl}, s{sn}
    s_sub_u32 s{sj}, s{s_slot}, s{sj}            ; j = slot - E_b
    s_mul_i32 s{s_start}, s{sj}, s{sq}
    s_min_u32 s{st}, s{sj}, s{sr}
    s_add_u32 s{s_start}, s{s_start}, s{st}
    s_lshl_b32 s{st}, s{s_b}, 9
    s_lshl_b32 s{st+1}, s{s_start}, 1
    s_add_u32 s{st}, s{st}, s{st+1}
    s_lshr_b32 s{st+1}, s{s_w}, 1
    s_add_u32 s{st}, s{st}, s{st+1}
    s_lshl_b32 s{st}, s{st}, 2
    buffer_load_dword v{PAGES}, v{ET+4}, s[{SRD_BT}:{SRD_BT+3}], s{st} offen
    """)
    def qload(X):
        for hf in range(2):
            a(f"s_add_u32 m0, s{s_qlds+X}, {4096*hf}")
            a(f"s_add_u32 s{s_qb+2}, s{s_qb+X}, {4096*hf}")
            for j in range(4):
                a(f"buffer_load_dwordx4 v{ET+j}, s[{SRD_Q}:{SRD_Q+3}], s{s_qb+2} offen offset:{1024*j} lds")
    a(f"""
    s_mov_b32 s{s_qb}, s{st+2}
    s_mov_b32 s{s_qb+1}, s{st+3}
    """)
    qload(0)
    a(f"""
    s_cmp_lt_u32 s{sj}, s{sr}
    s_addc_u32 s{s_n}, s{sq}, 0                  ; n = q + (j<r)
    s_min_u32 s{s_n}, s{s_n}, 54
    s_and_b32 s{s_rem}, s{sLm1}, 31
    s_add_u32 s{s_rem}, s{s_rem}, 1
    s_add_u32 s{st}, s{sj}, 1
    s_cmp_eq_u32 s{st}, s{sn}
    s_cselect_b32 s{s_rem}, s{s_rem}, 32
    s_sub_u32 s{s_patch}, s{s_n}, 2
    s_cmp_lt_u32 s{s_rem}, 32
    s_cselect_b32 s{s_patch}, s{s_patch}, 0x7fffffff
    s_mov_b32 s{s_scale}, 0x{f32bits(SCALE):x}
    s_cmp_lt_i32 s{scl}, 1
    s_cselect_b32 s{s_scale}, 0, s{s_scale}
    s_mov_b32 s{s_scale+1}, s{s_scale}
    s_lshl_b32 s{s_wgslot}, s{s_h}, 6
    s_add_u32 s{s_wgslot}, s{s_wgslot}, s{s_slot}
    """)
    sstamp(93)
    nz = cfg["zero_early"]
    for r in range(64, 64 + nz):
        a(f"v_mov_b32 v{r}, 0")
    a(f"""
    v_mov_b32 v{t2}, 0x80000000
    v_cmp_gt_u32 vcc, s{s_n}, v{VLANE}
    s_waitcnt vmcnt(8)
    v_lshlrev_b32 v{PAGES}, 14, v{PAGES}
    v_cndmask_b32 v{PAGES}, v{t2}, v{PAGES}, vcc
    s_nop 0
    """)
    for j in range(D + 1):
        a(f"v_readlane_b32 s{st+j}, v{PAGES}, {j}")
    a("s_nop 3")
    vm = ["QA"] * 8
    def vwait(tag):
        idx = max(i for i, t in enumerate(vm) if t == tag)
        a(f"s_waitcnt vmcnt({len(vm) - 1 - idx})")
    def issue(lst, tag):
        a(lst[0]); a("s_nop 0"); a(lst[2]); a(lst[3])
        vm.extend([tag, tag])
    pairs = [("K", 0)]
    for j in range(D):
        pairs += [("K", j + 1), ("V", j)]
    def pair():
        if not pairs:
            return
        kind, j = pairs.pop(0)
        issue(dma_k(None, j, st + j) if kind == "K" else dma_v(None, j, st + j), f"{kind}{j}")
    QRAW = {0: 0, 1: 128}
    def qread(X):
        for s in range(8):
            a(f"v_add_u32 v{VT+4+s}, s{s_qlds+X}, v{KADDR+s}")
        for s in range(8):
            r = QRAW[X] + 4 * s
            a(f"ds_read_b128 v[{r}:{r+3}], v{VT+4+s}")
    def prescale(X, packed):
        out = []
        for i in range(32):
            r = QRAW[X] + i
            ta, tb = VT + (i & 1) * 2, VT + (i & 1) * 2 + 1
            g = []
            if i % 4 == 0:
                g.append(f"s_waitcnt lgkmcnt({7 - i // 4})")
            g += [f"v_lshlrev_b32 v{ta}, 16, v{r}", f"v_and_b32 v{tb}, 0xffff0000, v{r}"]
            if packed(i):
                g.append(f"v_pk_mul_f32 v[{ta}:{tb}], v[{ta}:{tb}], s[{s_scale}:{s_scale+1}]")
            else:
                g += [f"v_mul_f32 v{ta}, s{s_scale}, v{ta}", f"v_mul_f32 v{tb}, s{s_scale}, v{tb}"]
            g += [f"v_cvt_pk_bf16_f32 v{ta}, v{ta}, v{tb}", f"v_accvgpr_write_b32 a{32*X+i}, v{ta}"]
            out.append(g)
        return out
    pstamp(0)
    for _ in range(cfg["pp0"]):
        pair()
    qload(1); vm.extend(["QB"] * 8)
    for _ in range(cfg["pp1"]):
        pair()
    pstamp(1)
    for r in list(range(64 + nz, 128)) + list(range(160, 208)) + list(range(32, 64)):
        a(f"v_mov_b32 v{r}, 0")
    for r in range(32):
        a(f"v_accvgpr_write_b32 a{AV+r}, 0")
    a(f"""
    v_mov_b32 v{L_[0]}, 0
    v_mov_b32 v{L_[1]}, 0
    s_cmp_eq_u32 s{s_patch}, -1
    s_cbranch_scc0 L_nopatch0
    s_call_b64 s[{s_ret}:{s_ret+1}], L_sub_patch
    """)
    a.label("L_nopatch0")
    vwait("QA")
    pstamp(10)
    qread(0)
    for i, g in enumerate(prescale(0, lambda i: cfg["pk"])):
        for t in g:
            a(t)
        if i in cfg["ppA"]:
            pair()
    pstamp(2)
    vwait("QB")
    pstamp(11)
    qread(1)
    for i, g in enumerate(prescale(1, lambda i: cfg["pk"])):
        for t in g:
            a(t)
        if i in cfg["ppB"]:
            pair()
    pstamp(3)
    vwait("K0")
    pstamp(4)
    a("s_barrier")
    pstamp(12)
    for s in range(8):
        a(k_read(s, 0))
    for s in range(8):
        a(f"s_waitcnt lgkmcnt({7-s})")
        a(mfma_qk(0, s))
        if s in cfg["ppQ"]:
            pair()
        for r in range(128 + 4 * s, 132 + 4 * s):
            a(f"v_mov_b32 v{r}, 0")
    a(mfma_qk(1, 0))
    a("s_nop 7")
    mxa = emit_rowmax(a, 0, M_[0], VT)
    mxa += [f"v_sub_f32 v{S_[0]+r}, v{S_[0]+r}, v{M_[0]}" for r in range(16)]
    mxa += [f"v_sub_f32 v{C_[0]+r}, v{C_[0]+r}, v{M_[0]}" for r in range(16)]
    for s in range(1, 8):
        a(mfma_qk(1, s))
        for _ in range(5):
            a(mxa.pop(0))
    while pairs:
        pair()
    a(f"s_mov_b32 s{s_pg[1]}, s{st+D}")
    while mxa:
        a(mxa.pop(0))
    a("s_nop 7")
    for t in emit_rowmax(a, 1, M_[1], VT):
        a(t)
    for r in range(16):
        a(f"v_sub_f32 v{C_[1]+r}, v{C_[1]+r}, v{M_[1]}")
    sstamp(94)
    sstamp(95)
    pre, front, valu, tail = plan_body(7, cfg)
    hd = [t for g in range(32 - cfg["delta"], 32) for _, t in valu[g]
          if not t.startswith(f"v_add_f32 v{L_[1]},")]
    for t in hd:
        a(t)
    a("s_nop 1")
    tramps = []
    for k in range(8):
        emit_body(a, k, tramps, cfg)
    a.label("L_drain")
    if cfg.get("stamp"):
        a(f"""
        s_memtime s[90:91]
        s_waitcnt lgkmcnt(0)
        s_mov_b32 s96, s90
        """)
    def conv(X, dt):
        o = O_[X] + 16 * dt
        d = 8 * (4 * X + dt)
        out = [f"v_cvt_pk_bf16_f32 v{d+j}, v{o+2*j}, v{o+2*j+1}" for j in range(8)]
        out.append(f"s_add_u32 s{st+1}, s{st}, {X*8192 + dt*2048}")
        out.append(f"buffer_store_dwordx4 v[{d}:{d+3}], v{VT+4}, s[{SRD_WS}:{SRD_WS+3}], s{st+1} offen{cfg['st_flags']}")
        out.append(f"buffer_store_dwordx4 v[{d+4}:{d+7}], v{VT+4}, s[{SRD_WS}:{SRD_WS+3}], s{st+1} offen offset:1024{cfg['st_flags']}")
        return out
    ep = f"""
    v_mov_b32 v{VT}, v{L_[0]}
    v_mov_b32 v{VT+1}, v{L_[1]}
    s_lshl_b32 s{st}, s{s_wgslot}, 16
    s_lshl_b32 s{st+1}, s{s_w}, 14
    s_add_u32 s{st}, s{st}, s{st+1}
    v_permlane32_swap_b32 v{L_[0]}, v{VT}
    v_permlane32_swap_b32 v{L_[1]}, v{VT+1}
    v_lshlrev_b32 v{VT+4}, 4, v{VLANE}
    v_mov_b32 v{VT+6}, v{M_[0]}
    v_add_f32 v{VT+7}, v{L_[0]}, v{VT}
    v_mov_b32 v{VT+8}, v{M_[1]}
    v_add_f32 v{VT+9}, v{L_[1]}, v{VT+1}
    """.strip().split("\n")
    ep += conv(0, 0) + conv(0, 1) + conv(0, 2) + conv(0, 3)
    for f in range(8):
        a(mfma_pv(1, f))
        for _ in range(6):
            a(ep.pop(0))
    while ep:
        a(ep.pop(0))
    a("s_nop 7")
    for dt in range(4):
        for t in conv(1, dt):
            a(t)
    a(f"""
    s_lshl_b32 s{st}, s{s_wgslot}, 11
    s_lshl_b32 s{st+1}, s{s_w}, 9
    s_add_u32 s{st}, s{st}, s{st+1}
    s_add_u32 s{st}, s{st}, 0x{WS_ML:x}
    v_lshlrev_b32 v{VT+4}, 3, v{VLANE}
    s_mov_b32 exec_hi, 0
    buffer_store_dwordx2 v[{VT+6}:{VT+7}], v{VT+4}, s[{SRD_WS}:{SRD_WS+3}], s{st} offen{cfg['st_flags']}
    buffer_store_dwordx2 v[{VT+8}:{VT+9}], v{VT+4}, s[{SRD_WS}:{SRD_WS+3}], s{st} offen offset:256{cfg['st_flags']}
    """)
    if cfg.get("stamp"):
        a(f"""
        s_mov_b64 exec, -1
        s_waitcnt vmcnt(0)
        s_memtime s[90:91]
        s_memrealtime s[86:87]
        s_getreg_b32 s98, hwreg(HW_REG_XCC_ID)
        s_waitcnt lgkmcnt(0)
        v_mov_b32 v{VT+14}, 0
        v_writelane_b32 v{VT+14}, s92, 0
        v_writelane_b32 v{VT+14}, s93, 1
        v_writelane_b32 v{VT+14}, s94, 2
        v_writelane_b32 v{VT+14}, s95, 3
        v_writelane_b32 v{VT+14}, s96, 4
        v_writelane_b32 v{VT+14}, s90, 5
        v_writelane_b32 v{VT+14}, s{s_n}, 6
        v_writelane_b32 v{VT+14}, s98, 7
        v_writelane_b32 v{VT+14}, s100, 8
        v_writelane_b32 v{VT+14}, s86, 9
        v_writelane_b32 v{VT+14}, s88, 10
        v_writelane_b32 v{VT+14}, s89, 11
        s_lshl_b32 s{st}, s{s_wg}, 12
        s_lshl_b32 s{st+1}, s{s_w}, 10
        s_add_u32 s{st}, s{st}, s{st+1}
        s_add_u32 s{st}, s{st}, 0x{WS_DBG:x}
        v_lshlrev_b32 v{VT}, 2, v{VLANE}
        buffer_store_dword v{VT+12}, v{VT}, s[{SRD_WS}:{SRD_WS+3}], s{st} offen
        buffer_store_dword v{VT+13}, v{VT}, s[{SRD_WS}:{SRD_WS+3}], s{st} offen offset:256
        buffer_store_dword v{VT+14}, v{VT}, s[{SRD_WS}:{SRD_WS+3}], s{st} offen offset:512
        """)
    a.label("L_end")
    a("s_endpgm")
    for lab, sub, ret in tramps:
        a.label(lab)
        a(f"s_call_b64 s[{s_ret}:{s_ret+1}], {sub}")
        a(f"s_branch {ret}")
    emit_fallback(a, 0)
    emit_fallback(a, 1)
    emit_patch(a)


def emit_combine(a, cfg):
    K = "pa_combine_kernel"
    NB = 12
    a.raw(f".globl {K}\n.p2align 8\n.type {K},@function")
    a.label(K)
    VL, VCL, VT_ = 200, 201, 202
    ACC = 160
    DEN, MX, MN, SC, W = 170, 171, 172, 173, 174
    U0, U1 = 176, 177
    OB = 0
    MLB = 64
    SRD_C, SRD_W, SRD_O = 20, 24, 28
    sw, sb, sh, swx, sn, sE, sbase, sj = 40, 41, 42, 43, 44, 45, 46, 47
    st = 60
    a(f"""
    s_cmp_ge_u32 s2, 256
    s_cbranch_scc1 L_cend
    s_load_dwordx16 s[4:19], s[0:1], 0
    v_lshrrev_b32 v{VT_}, 6, v0
    v_and_b32 v{VL}, 63, v0
    s_lshr_b32 s{sb}, s2, 5
    v_readfirstlane_b32 s{sw}, v{VT_}
    s_lshr_b32 s{sh}, s2, 3
    s_and_b32 s{sh}, s{sh}, 3
    s_and_b32 s{swx}, s2, 7
    v_and_b32 v{VT_+1}, 7, v{VL}
    v_lshlrev_b32 v{VT_+1}, 2, v{VT_+1}
    s_waitcnt lgkmcnt(0)
    """)
    emit_srd(a, SRD_C, s_cl, 32)
    a(f"buffer_load_dword v{VCL}, v{VT_+1}, s[{SRD_C}:{SRD_C+3}], 0 offen")
    emit_srd(a, SRD_W, s_ws, WS_BYTES)
    emit_srd(a, SRD_O, s_out, Q_BYTES)
    VOFF, VML, VOUT = 180, 181, 182
    a(f"""
    s_lshl_b32 s{st}, s{swx}, 13
    s_lshl_b32 s{st+1}, s{sw}, 10
    s_add_u32 s{st}, s{st}, s{st+1}
    v_lshlrev_b32 v{VOFF}, 4, v{VL}
    v_add_u32 v{VOFF}, s{st}, v{VOFF}
    s_lshl_b32 s{st}, s{swx}, 8
    s_add_u32 s{st}, s{st}, 0x{WS_ML:x}
    v_and_b32 v{VML}, 31, v{VL}
    v_lshlrev_b32 v{VOUT}, 8, v{VML}             ; q*256
    v_lshlrev_b32 v{VML}, 3, v{VML}
    v_add_u32 v{VML}, s{st}, v{VML}
    v_lshrrev_b32 v{VT_+2}, 5, v{VL}
    v_lshl_add_u32 v{VOUT}, v{VT_+2}, 3, v{VOUT} ; + h2*8
    s_lshl_b32 s{st}, s2, 13
    s_lshl_b32 s{st+1}, s{sw}, 5
    s_add_u32 s{st}, s{st}, s{st+1}
    v_add_u32 v{VOUT}, s{st}, v{VOUT}
    v_mov_b32 v{DEN}, 0
    v_mov_b32 v{MX}, 0xff800000
    """)
    for r in range(8):
        a(f"v_mov_b32 v{ACC+r}, 0")
    a("s_waitcnt vmcnt(0)")
    R = emit_partition(a, VL, VCL, VT_, st)
    a(f"""
    s_add_u32 s{st}, s{st}, s{sb}
    v_readlane_b32 s{sn}, v{R['n']}, s{st}
    v_readlane_b32 s{sE}, v{R['incl']}, s{st}
    s_nop 3
    s_sub_u32 s{sE}, s{sE}, s{sn}
    s_min_u32 s{sn}, s{sn}, 64
    s_lshl_b32 s{st}, s{sh}, 6
    s_add_u32 s{sE}, s{sE}, s{st}
    s_mov_b32 s{sbase}, 0
    """)
    a.label("L_cloop")
    for j in range(NB):
        a(f"""
        s_add_u32 s{sj}, s{sbase}, {j}
        s_add_u32 s{st}, s{sE}, s{sj}
        s_lshl_b32 s{st+1}, s{st}, 16
        s_lshl_b32 s{st}, s{st}, 11
        s_cmp_lt_u32 s{sj}, s{sn}
        s_cselect_b32 s{st+1}, s{st+1}, 0x80000000
        s_cselect_b32 s{st}, s{st}, 0x80000000
        buffer_load_dwordx2 v[{MLB+2*j}:{MLB+2*j+1}], v{VML}, s[{SRD_W}:{SRD_W+3}], s{st} offen
        buffer_load_dwordx4 v[{OB+4*j}:{OB+4*j+3}], v{VOFF}, s[{SRD_W}:{SRD_W+3}], s{st+1} offen
        """)
    a(f"v_mov_b32 v{MN}, v{MX}")
    for j in range(NB):
        a(f"""
        s_add_u32 s{sj}, s{sbase}, {j}
        s_cmp_ge_u32 s{sj}, s{sn}
        s_cbranch_scc1 L_cmaxdone
        s_waitcnt vmcnt({2*(NB-1-j)+1})
        v_max_f32 v{MN}, v{MN}, v{MLB+2*j}
        """)
    a.label("L_cmaxdone")
    a(f"""
    v_sub_f32 v{SC}, v{MX}, v{MN}
    v_exp_f32 v{SC}, v{SC}
    v_mov_b32 v{MX}, v{MN}
    v_mul_f32 v{DEN}, v{DEN}, v{SC}
    """)
    for r in range(8):
        a(f"v_mul_f32 v{ACC+r}, v{ACC+r}, v{SC}")
    for j in range(NB):
        a(f"""
        s_add_u32 s{sj}, s{sbase}, {j}
        s_cmp_ge_u32 s{sj}, s{sn}
        s_cbranch_scc1 L_cfin
        v_sub_f32 v{W}, v{MLB+2*j}, v{MX}
        v_exp_f32 v{W}, v{W}
        s_waitcnt vmcnt({2*(NB-1-j)})
        v_fmac_f32 v{DEN}, v{W}, v{MLB+2*j+1}
        """)
        for r in range(4):
            a(f"""
            v_lshlrev_b32 v{U0}, 16, v{OB+4*j+r}
            v_and_b32 v{U1}, 0xffff0000, v{OB+4*j+r}
            v_fmac_f32 v{ACC+2*r}, v{W}, v{U0}
            v_fmac_f32 v{ACC+2*r+1}, v{W}, v{U1}
            """)
    a(f"""
    s_add_u32 s{sbase}, s{sbase}, {NB}
    s_branch L_cloop
    """)
    a.label("L_cfin")
    a(f"""
    v_rcp_f32 v{SC}, v{DEN}
    s_nop 0
    """)
    for r in range(8):
        a(f"v_mul_f32 v{ACC+r}, v{ACC+r}, v{SC}")
    for r in range(4):
        a(f"v_cvt_pk_bf16_f32 v{ACC+r}, v{ACC+2*r}, v{ACC+2*r+1}")
    a(f"""
    buffer_store_dwordx2 v[{ACC}:{ACC+1}], v{VOUT}, s[{SRD_O}:{SRD_O+3}], 0 offen
    buffer_store_dwordx2 v[{ACC+2}:{ACC+3}], v{VOUT}, s[{SRD_O}:{SRD_O+3}], 0 offen offset:16
    """)
    a.label("L_cend")
    a("s_endpgm")


def descriptor(name, vgpr, accum, sgpr=102):
    return f"""
.p2align 6
.amdhsa_kernel {name}
  .amdhsa_next_free_vgpr {vgpr}
  .amdhsa_next_free_sgpr {sgpr}
  .amdhsa_accum_offset {accum}
  .amdhsa_group_segment_fixed_size 0
  .amdhsa_kernarg_size 64
  .amdhsa_user_sgpr_count 2
  .amdhsa_user_sgpr_kernarg_segment_ptr 1
  .amdhsa_system_sgpr_workgroup_id_x 1
.end_amdhsa_kernel
"""


DEFAULT_CFG = dict(
    vslots=[9, 10, 11, 12, 13, 14, 15, 16, 17, 18, 19, 20, 21, 22, 23, 24],
    rl_slot=22,
    dma_slots=[25, 26, 27, 29],
    dma_cost=12,
    patch_slot=9,
    delta=3,
    br_dist=2,
    empty_gaps=[31],
    bar_period=2,
    pp0=1, pp1=0, ppA=[7, 15], ppB=[15, 31], ppQ=[1, 3, 5, 7],
    pk=1,
    warm=1,
    zero_early=64,
    thr_log2=12,
    st_flags="",
    depth=5,
    ld_flags=" nt",
)


def generate(cfg=None, out=OUT):
    c = dict(DEFAULT_CFG)
    if cfg:
        c.update(cfg)
    global LDFLAGS
    LDFLAGS = c["ld_flags"]
    a = Asm()
    a.raw(f"""; Paged attention (GQA, split-KV) for gfx950 -- generated by gen.py (hand-scheduled)
; @launch kernel={NAME}_kernel grid=(256,1,1) block=(256,1,1) lds=163840
; @launch kernel=pa_combine_kernel grid=(256,1,1) block=(512,1,1) lds=0
.amdgcn_target "amdgcn-amd-amdhsa--gfx950"
.text""")
    emit_main(a, c)
    emit_combine(a, c)
    a.raw('.section .rodata,"a"')
    a.raw(descriptor(NAME + "_kernel", 384, 256))
    a.raw(descriptor("pa_combine_kernel", 216, 216))
    open(out, "w").write(a.text())


if __name__ == "__main__":
    import json
    cfg = json.loads(sys.argv[1]) if len(sys.argv) > 1 else None
    generate(cfg, sys.argv[2] if len(sys.argv) > 2 else OUT)
```

```python
import sys, math

NAME = "standalone__paged_block_table_kv_pagedattention__sampling"
OUT = "cdna_kernels/%s.s" % NAME

KV_BYTES = 4100 * 16384
Q_BYTES = 8 * 32 * 32 * 128 * 2
BT_BYTES = 8 * 512 * 4
WS_ML = 0x1000000
WS_DBG = WS_ML + 256 * 2048
WS_BYTES = WS_DBG + 0x100000
SCALE = math.log2(math.e) / math.sqrt(128.0)
THR_LOG2 = 12

import struct
def f32bits(x):
    return struct.unpack("<I", struct.pack("<f", x))[0]

class Asm:
    def __init__(self):
        self.lines = []
    def __call__(self, s):
        for l in s.strip("\n").split("\n"):
            self.lines.append("    " + l.strip())
    def label(self, l):
        self.lines.append(l + ":")
    def raw(self, s):
        self.lines.append(s)
    def text(self):
        return "\n".join(self.lines) + "\n"

S_ = {0: 0, 1: 16}
C_ = {0: 32, 1: 48}
O_ = {0: 64, 1: 128}
P_ = {0: 192, 1: 200}
KADDR = 208
VADDR = 216
VOFFK = 220
VOFFV = 222
PAGES = 224
L_ = {0: 225, 1: 226}
M_ = {0: 227, 1: 228}
TS_ = {0: (229, 230), 1: (231, 232)}
ET = 233
VLANE = 239
VT = 240
VH4 = 255
AQ = {0: 0, 1: 32}
AK = 64
AV = 96

s_wg = 2
s_q, s_k, s_v, s_bt, s_cl, s_out, s_dbg, s_ws = 4, 6, 8, 10, 12, 14, 16, 18
SRD_K, SRD_V, SRD_Q, SRD_X, SRD_WS, SRD_BT = 20, 24, 28, 32, 36, 76
s_w = 40
s_h = 41
s_slot = 42
s_n = 43
s_i = 44
s_patch = 45
s_rem = 46
s_idx = 47
s_pg = {0: 48, 1: 49}
s_m0k = 50
s_m0v = 51
s_thr = {0: 52, 1: 53}
s_floor = {0: 54, 1: 55}
s_first = {0: 56, 1: 57}
s_ret = 58
s_t0 = 60
s_qb = 84
s_qlds = 54
s_b = 80
s_start = 81
s_scale = 56
s_wgslot = 83


def emit_srd(a, d, ptr, nbytes):
    a(f"""
    s_mov_b32 s{d}, s{ptr}
    s_and_b32 s{d+1}, s{ptr+1}, 0xffff
    s_mov_b32 s{d+2}, 0x{nbytes:x}
    s_mov_b32 s{d+3}, 0x20000
    """)


def sum8(a, dst, src, tmp):
    a(f"""
    s_nop 1
    v_add_u32_dpp v{tmp}, v{src}, v{src} quad_perm:[1,0,3,2] row_mask:0xf bank_mask:0xf
    s_nop 1
    v_add_u32_dpp v{dst}, v{tmp}, v{tmp} quad_perm:[2,3,0,1] row_mask:0xf bank_mask:0xf
    s_nop 1
    v_add_u32_dpp v{dst}, v{dst}, v{dst} row_half_mirror row_mask:0xf bank_mask:0xf
    """)


def emit_partition(a, vlane, vcl, vt, st):
    Lm1, T_, Cc, Nn, NS, INC, Qq, Rr, X0, X1 = range(vt, vt + 10)
    a(f"""
    v_add_u32 v{Lm1}, -1, v{vcl}
    v_min_u32 v{Lm1}, 0x1fff, v{Lm1}
    v_lshrrev_b32 v{T_}, 5, v{Lm1}
    v_add_u32 v{T_}, 1, v{T_}
    """)
    sum8(a, Cc, T_, X0)
    a(f"""
    v_add_u32 v{Cc}, 63, v{Cc}
    v_lshrrev_b32 v{Cc}, 6, v{Cc}
    v_lshrrev_b32 v{X0}, 3, v{vlane}
    v_add_u32 v{Cc}, v{Cc}, v{X0}
    v_cvt_f32_u32 v{X0}, v{Cc}
    v_rcp_f32 v{X0}, v{X0}
    v_add3_u32 v{X1}, v{T_}, v{Cc}, -1
    v_cvt_f32_u32 v{X1}, v{X1}
    v_add_f32 v{X1}, 0.5, v{X1}
    v_mul_f32 v{X1}, v{X1}, v{X0}
    v_cvt_u32_f32 v{Nn}, v{X1}
    """)
    sum8(a, NS, Nn, X0)
    a(f"""
    s_nop 1
    v_add_u32_dpp v{INC}, v{Nn}, v{Nn} row_shr:1 row_mask:0xf bank_mask:0xf bound_ctrl:0
    v_cvt_f32_u32 v{X0}, v{Nn}
    v_rcp_f32 v{X0}, v{X0}
    v_add_u32_dpp v{INC}, v{INC}, v{INC} row_shr:2 row_mask:0xf bank_mask:0xf bound_ctrl:0
    v_cvt_f32_u32 v{X1}, v{T_}
    v_add_f32 v{X1}, 0.5, v{X1}
    v_add_u32_dpp v{INC}, v{INC}, v{INC} row_shr:4 row_mask:0xf bank_mask:0xf bound_ctrl:0
    v_mul_f32 v{X1}, v{X1}, v{X0}
    v_cvt_u32_f32 v{Qq}, v{X1}
    v_add_u32_dpp v{INC}, v{INC}, v{INC} row_shr:8 row_mask:0xf bank_mask:0xf bound_ctrl:0
    v_mul_u32_u24 v{X0}, v{Qq}, v{Nn}
    v_sub_u32 v{Rr}, v{T_}, v{X0}
    v_mov_b32_dpp v{X1}, v{NS} row_shr:8 row_mask:0xf bank_mask:0xf bound_ctrl:0
    v_sub_u32 v{INC}, v{INC}, v{X1}
    v_cmp_ge_u32 vcc, 64, v{NS}
    s_ff1_i32_b64 s{st}, vcc
    s_mov_b64 s[{st+2}:{st+3}], 0xff
    s_lshl_b64 s[{st+2}:{st+3}], s[{st+2}:{st+3}], s{st}
    """)
    return dict(Lm1=Lm1, t=T_, n=Nn, incl=INC, q=Qq, r=Rr)


def sm_stream(X, et=None):
    S = S_[X]; P = P_[X]
    TS0, TS1 = TS_[X]
    et = ET if et is None else et
    def tmp(j):
        if j == 0:
            return TS0, TS1
        k = (j - 1) % 3
        return et + 2 * k, et + 2 * k + 1
    E = lambda j, h: (8, f"v_exp_f32 v{tmp(j)[h]}, v{S + 2 * j + h}")
    A = lambda j, h: (4, f"v_add_f32 v{(TS0, TS1)[h]}, v{(TS0, TS1)[h]}, v{tmp(j)[h]}")
    C = lambda j: (4, f"v_cvt_pk_bf16_f32 v{P + j}, v{tmp(j)[0]}, v{tmp(j)[1]}")
    st = [E(0, 0), E(0, 1), E(1, 0), C(0), E(1, 1)]
    for j in range(1, 7):
        st += [A(j, 0), E(j + 1, 0), A(j, 1), C(j), E(j + 1, 1)]
    st += [A(7, 0), A(7, 1), C(7), (4, f"v_add_f32 v{TS0}, v{TS0}, v{TS1}")]
    return st


def mfma_qk(X, s):
    c = C_[X] if s == 0 else S_[X]
    return (f"v_mfma_f32_32x32x16_bf16 v[{S_[X]}:{S_[X]+15}], a[{AK+4*s}:{AK+4*s+3}], "
            f"a[{AQ[X]+4*s}:{AQ[X]+4*s+3}], v[{c}:{c+15}]")


def mfma_pv(X, f):
    t, dt = f >> 2, f & 3
    o = O_[X] + 16 * dt
    return (f"v_mfma_f32_32x32x16_bf16 v[{o}:{o+15}], a[{AV+4*f}:{AV+4*f+3}], "
            f"v[{P_[X]+4*t}:{P_[X]+4*t+3}], v[{o}:{o+15}]")


def k_read(s, slot):
    return f"ds_read_b128 a[{AK+4*s}:{AK+4*s+3}], v{KADDR+s} offset:{slot*8192}"


def v_read(f, y, slot):
    t, dt = f >> 2, f & 3
    return (f"ds_read_b64_tr_b16 a[{AV+4*f+2*y}:{AV+4*f+2*y+1}], v{VADDR+dt} "
            f"offset:{slot*8192 + (16*t+8*y)*256}")


LDFLAGS = ""
def dma_k(a_list, slot, spg):
    return [f"s_add_u32 m0, s{s_m0k}, {slot*8192}",
            None,
            f"buffer_load_dwordx4 v{VOFFK}, s[{SRD_K}:{SRD_K+3}], s{spg} offen{LDFLAGS} lds",
            f"buffer_load_dwordx4 v{VOFFK+1}, s[{SRD_K}:{SRD_K+3}], s{spg} offen offset:1024{LDFLAGS} lds"]


def dma_v(a_list, slot, spg):
    return [f"s_add_u32 m0, s{s_m0v}, {slot*8192}",
            None,
            f"buffer_load_dwordx4 v{VOFFV}, s[{SRD_V}:{SRD_V+3}], s{spg} offen{LDFLAGS} lds",
            f"buffer_load_dwordx4 v{VOFFV+1}, s[{SRD_V}:{SRD_V+3}], s{spg} offen offset:1024{LDFLAGS} lds"]


def plan_body(k, cfg, tramps=None):
    kn = (k + 1) % 8
    D = cfg["depth"]
    pgn = s_pg[k & 1]
    pgo = s_pg[(k & 1) ^ 1]
    tramps = [] if tramps is None else tramps
    pre = {i: [] for i in range(32)}
    front = {i: [] for i in range(32)}
    valu = {i: [] for i in range(32)}
    tail = {i: [] for i in range(32)}
    for s in range(8):
        front[s + 1].append((4, k_read(s, kn)))
    vslots = cfg["vslots"]
    vr = [(f, y) for f in range(8) for y in range(2)]
    for (f, y), sl in zip(vr, vslots):
        assert sl >= 9 + f, (f, sl)
        front[sl].append((4, v_read(f, y, k)))
    def vr_before(m):
        return sum(1 for sl in vslots if sl < m)
    pre[16].append(f"s_waitcnt lgkmcnt({vr_before(16)})")
    assert vr_before(24) >= 8
    pre[24].append(f"s_waitcnt lgkmcnt({vr_before(24) - 8})")
    assert vr_before(28) == 16
    pre[28].append("s_waitcnt lgkmcnt(0)")
    valu[cfg["rl_slot"]].append((4, f"v_readlane_b32 s{pgn}, v{PAGES}, s{s_idx}"))
    tail[cfg["rl_slot"]].append(f"s_add_u32 s{s_idx}, s{s_idx}, 1")
    dk = dma_k(None, (k + D + 1) % 8, pgn)
    dv = dma_v(None, (k + D) % 8, pgo)
    ds = cfg["dma_slots"]
    dcost = cfg["dma_cost"]
    tail[ds[0] - 1].append(dv[0])
    front[ds[0]].append((dcost, dv[2]))
    front[ds[1]].append((dcost, dv[3]))
    assert ds[2] - 1 >= ds[1]
    tail[ds[2] - 1].append(dk[0])
    front[ds[2]].append((dcost, dk[2]))
    front[ds[3]].append((dcost, dk[3]))
    assert ds[2] > cfg["rl_slot"] + 1
    ps = cfg["patch_slot"]
    tail[ps - 1].append(f"s_cmp_eq_u32 s{s_i}, s{s_patch}")
    front[ps].insert(0, (8, f"s_cbranch_scc1 L_patch_{k}"))
    front[ps].insert(1, (0, f"L_patch_ret_{k}:"))
    tramps.append((f"L_patch_{k}", "L_sub_patch", f"L_patch_ret_{k}"))
    assert max(ds) < 30
    tail[30].append(f"s_add_u32 s{s_i}, s{s_i}, 1")
    tail[30].append(f"s_cmp_ge_u32 s{s_i}, s{s_n}")
    front[31].append((8, "s_cbranch_scc1 L_drain"))
    dl = cfg["delta"]
    for X, lo in ((0, 32 - dl), (1, 16 - dl)):
        hi = lo + 15
        bs = (hi + cfg["br_dist"]) % 32
        front[bs].insert(0, (8, f"s_cbranch_vccnz L_fb{X}_{k}"))
        front[bs].insert(1, (0, f"L_fb{X}_ret_{k}:"))
        valu[bs].insert(0, (4, f"v_add_f32 v{L_[X]}, v{L_[X]}, v{TS_[X][0]}"))
        tramps.append((f"L_fb{X}_{k}", f"L_sub_fb{X}", f"L_fb{X}_ret_{k}"))
    for X, lo in ((0, 32 - dl), (1, 16 - dl)):
        gaps = [(lo + j) % 32 for j in range(16)]
        st = sm_stream(X) + [(4, f"v_cmp_lt_f32 vcc, s{s_thr[X]}, v{TS_[X][0]}")]
        tot = sum(c for c, _ in st)
        free = [max(0, 24 - sum(c for c, _ in front[g]) - sum(c for c, _ in valu[g])) for g in gaps]
        for n_, g in enumerate(gaps):
            if g in cfg["empty_gaps"]:
                free[n_] = 0
        ftot = sum(free)
        assert ftot >= tot, (ftot, tot)
        acc = 0.0; done = 0; idx = 0
        for n_, g in enumerate(gaps):
            acc += free[n_] * tot / ftot
            used = 0
            while idx < len(st) and used + st[idx][0] <= free[n_] and len(valu[g]) < 5 and \
                    (done + st[idx][0] / 2.0 <= acc or n_ == 15):
                valu[g].append(st[idx]); done += st[idx][0]; used += st[idx][0]; idx += 1
        assert idx == len(st), (X, idx, len(st))
    return pre, front, valu, tail


def skip(t, cfg):
    if cfg.get("no_dma") and t.startswith("buffer_load"): return True
    if cfg.get("no_lds") and t.startswith("ds_read"): return True
    if cfg.get("no_sm") and (t.startswith("v_exp") or t.startswith("v_add_f32") or t.startswith("v_cvt")): return True
    if cfg.get("no_mfma") and t.startswith("v_mfma"): return True
    return False


def emit_body(a, k, tramps, cfg):
    D = cfg["depth"]
    mf = [mfma_qk(1, s) for s in range(8)] + [mfma_pv(1, f) for f in range(8)] + \
         [mfma_qk(0, s) for s in range(8)] + [mfma_pv(0, f) for f in range(8)]
    pre, front, valu, tail = plan_body(k, cfg, tramps)
    a.label(f"L_body_{k}")
    if cfg.get("stamp"):
        a(f"""
        s_memtime s[90:91]
        s_mov_b32 m0, s{s_i}
        s_waitcnt lgkmcnt(0)
        v_writelane_b32 v{VT+12}, s90, m0
        """)
    bp = cfg["bar_period"]
    if k % bp == 0:
        a(f"s_waitcnt vmcnt({4*(D-bp)})")
        if not cfg.get("no_bar"):
            a("s_barrier")
    if cfg.get("stamp"):
        a(f"""
        s_memtime s[90:91]
        s_waitcnt lgkmcnt(0)
        v_writelane_b32 v{VT+13}, s90, m0
        """)
    for i in range(32):
        seq = pre[i] + [mf[i]] + [t for _, t in front[i]] + [t for _, t in valu[i]] + tail[i]
        for t in seq:
            if t.endswith(":"):
                a.label(t[:-1])
            elif not skip(t, cfg):
                a(t)
    if k == 7:
        a("s_branch L_body_0")


def emit_rowmax(a, X, mx, t1):
    S = S_[X]
    out = [f"v_max3_f32 v{mx}, v{S}, v{S+1}, v{S+2}"]
    for r in range(3, 15, 2):
        out.append(f"v_max3_f32 v{mx}, v{mx}, v{S+r}, v{S+r+1}")
    out += [f"v_max_f32 v{mx}, v{mx}, v{S+15}", f"v_mov_b32 v{t1}, v{mx}", "s_nop 1",
            f"v_permlane32_swap_b32 v{mx}, v{t1}", "s_nop 1", f"v_max_f32 v{mx}, v{mx}, v{t1}"]
    return out


def emit_fallback(a, X):
    S = S_[X]; C = C_[X]; O = O_[X]; P = P_[X]
    mx, t1, f = VT, VT + 1, VT + 3
    a.label(f"L_sub_fb{X}")
    a("s_nop 7")
    for t in emit_rowmax(a, X, mx, t1):
        a(t)
    a(f"""
    v_max_f32 v{mx}, 0, v{mx}
    v_exp_f32 v{f}, -v{mx}
    v_add_f32 v{M_[X]}, v{M_[X]}, v{mx}
    """)
    for r in range(16):
        a(f"v_sub_f32 v{C+r}, v{C+r}, v{mx}")
        a(f"v_sub_f32 v{S+r}, v{S+r}, v{mx}")
    a(f"v_mul_f32 v{L_[X]}, v{L_[X]}, v{f}")
    for r in range(64):
        a(f"v_mul_f32 v{O+r}, v{O+r}, v{f}")
    for c, t in sm_stream(X, VT + 4):
        a(t)
    a(f"""
    s_nop 3
    s_setpc_b64 s[{s_ret}:{s_ret+1}]
    """)


def emit_patch(a):
    ninf = VT
    a.label("L_sub_patch")
    a(f"""
    s_nop 7
    v_mov_b32 v{ninf}, 0xff800000
    """)
    for r in range(16):
        cst = 8 * (r >> 2) + (r & 3)
        a(f"""
        s_sub_i32 s{s_t0}, s{s_rem}, {cst}
        v_cmp_gt_i32 vcc, s{s_t0}, v{VH4}
        s_nop 1
        v_cndmask_b32 v{C_[0]+r}, v{ninf}, v{C_[0]+r}, vcc
        v_cndmask_b32 v{C_[1]+r}, v{ninf}, v{C_[1]+r}, vcc
        """)
    a(f"""
    s_nop 3
    s_setpc_b64 s[{s_ret}:{s_ret+1}]
    """)


def emit_main(a, cfg):
    K = NAME + "_kernel"
    D = cfg["depth"]
    assert D <= 5
    a.raw(f".globl {K}\n.p2align 8\n.type {K},@function")
    a.label(K)
    t0, t1, t2, t3 = VT + 11, VT + 12, VT + 13, VT + 14
    VCL = VT + 10
    def sstamp(n):
        if cfg.get("stamp"):
            a(f"""
            s_memtime s[90:91]
            s_waitcnt lgkmcnt(0)
            s_mov_b32 s{n}, s90
            """)
    def pstamp(n):
        if cfg.get("stamp"):
            a(f"""
            s_memtime s[90:91]
            s_waitcnt lgkmcnt(0)
            v_writelane_b32 v{VT+12}, s90, {40+n}
            """)
    a(f"""
    s_cmp_ge_u32 s{s_wg}, 256
    s_cbranch_scc1 L_end
    s_load_dwordx16 s[4:19], s[0:1], 0
    v_lshrrev_b32 v{VT}, 6, v0
    v_and_b32 v{VLANE}, 63, v0
    s_lshr_b32 s{s_h}, s{s_wg}, 1
    v_readfirstlane_b32 s{s_w}, v{VT}
    s_and_b32 s{s_h}, s{s_h}, 3
    s_and_b32 s{s_t0}, s{s_wg}, 1
    s_lshl_b32 s{s_t0}, s{s_t0}, 5
    s_lshr_b32 s{s_slot}, s{s_wg}, 3
    s_or_b32 s{s_slot}, s{s_slot}, s{s_t0}
    v_and_b32 v{VT+1}, 7, v{VLANE}
    v_lshlrev_b32 v{VT+1}, 2, v{VT+1}
    v_lshlrev_b32 v{VT+2}, 7, v{VLANE}
    """)
    if cfg.get("stamp"):
        a("s_memtime s[92:93]")
        a("s_memrealtime s[100:101]")
    a(f"""
    s_and_b32 s{s_t0}, s{s_w}, 1
    s_lshl_b32 s{s_t0}, s{s_t0}, 3               ; 8*(w&1)
    s_lshl_b32 s{s_t0+1}, s{s_h}, 8              ; h*256
    v_lshrrev_b32 v{t0}, 4, v{VLANE}             ; l>>4
    v_and_b32 v{t1}, 15, v{VLANE}                ; pc
    v_add_u32 v{t2}, s{s_t0}, v{t0}              ; R&15 for x=0
    v_xor_b32 v{t3}, v{t1}, v{t2}
    v_lshlrev_b32 v{t3}, 4, v{t3}
    v_lshl_add_u32 v{t3}, v{t2}, 10, v{t3}
    v_add_u32 v{VOFFK}, s{s_t0+1}, v{t3}
    v_add_u32 v{t2}, 4, v{t2}                    ; R&15 for x=1
    v_xor_b32 v{t3}, v{t1}, v{t2}
    v_lshlrev_b32 v{t3}, 4, v{t3}
    v_lshl_add_u32 v{t3}, v{t2}, 10, v{t3}
    v_add_u32 v{t3}, s{s_t0+1}, v{t3}
    v_add_u32 v{VOFFK+1}, 0xfffffc00, v{t3}
    v_lshlrev_b32 v{t3}, 2, v{t0}
    v_xor_b32 v{t3}, v{t1}, v{t3}
    v_lshlrev_b32 v{t3}, 4, v{t3}
    v_add_u32 v{t2}, s{s_t0}, v{t0}
    v_lshl_add_u32 v{t3}, v{t2}, 10, v{t3}
    v_add_u32 v{VOFFV}, s{s_t0+1}, v{t3}
    v_add_u32 v{VOFFV+1}, 0xc00, v{VOFFV}        ; +4096 -1024
    s_lshl_b32 s{s_m0k}, s{s_w}, 11
    s_add_u32 s{s_m0v}, s{s_m0k}, 0x10000
    s_mov_b32 s{s_thr[0]}, 0x{f32bits(2.0**cfg["thr_log2"]):x}
    s_mov_b32 s{s_thr[1]}, 0x{f32bits(2.0**cfg["thr_log2"]):x}
    s_mov_b32 s{s_i}, 0
    s_mov_b32 s{s_idx}, {D+1}
    v_lshrrev_b32 v{t0}, 5, v{VLANE}            ; h2
    v_lshlrev_b32 v{VH4}, 2, v{t0}
    v_lshrrev_b32 v{t2}, 4, v{VLANE}
    v_xor_b32 v{t3}, v{t1}, v{t2}
    v_lshlrev_b32 v{t3}, 4, v{t3}
    v_lshl_add_u32 v{ET}, v{t2}, 8, v{t3}        ; Q voffset (j&3 == 0)
    v_xor_b32 v{ET+1}, 64, v{ET}
    v_xor_b32 v{ET+2}, 0x80, v{ET}
    v_xor_b32 v{ET+3}, 0xc0, v{ET}
    v_lshlrev_b32 v{ET+4}, 3, v{VLANE}
    s_lshl_b32 s{s_qlds}, s{s_w}, 13
    s_add_u32 s{s_qlds}, s{s_qlds}, 0x20000      ; Q_A staging : 128K + w*8K
    s_and_b32 s{s_t0}, s{s_w}, 1
    s_lshl_b32 s{s_t0}, s{s_t0}, 13
    s_lshr_b32 s{s_t0+1}, s{s_w}, 1
    s_lshl_b32 s{s_t0+1}, s{s_t0+1}, 16
    s_add_u32 s{s_t0}, s{s_t0}, s{s_t0+1}
    s_add_u32 s{s_qlds+1}, s{s_t0}, 0xc000
    s_waitcnt lgkmcnt(0)
    """)
    emit_srd(a, SRD_X, s_cl, 32)
    a(f"buffer_load_dword v{VCL}, v{VT+1}, s[{SRD_X}:{SRD_X+3}], 0 offen")
    emit_srd(a, SRD_BT, s_bt, BT_BYTES)
    emit_srd(a, SRD_Q, s_q, Q_BYTES)
    nwarm = 0
    if cfg["warm"]:
        a(f"""
        s_lshr_b32 s{s_t0}, s{s_wg}, 3
        s_lshr_b32 s{s_t0+1}, s{s_t0}, 2
        s_lshl_b32 s{s_t0+1}, s{s_t0+1}, 18          ; b*262144
        s_and_b32 s{s_t0+2}, s{s_t0}, 3
        s_lshl_b32 s{s_t0+2}, s{s_t0+2}, 14
        s_add_u32 s{s_t0+1}, s{s_t0+1}, s{s_t0+2}
        s_lshl_b32 s{s_t0+2}, s{s_h}, 16
        s_add_u32 s{s_t0+1}, s{s_t0+1}, s{s_t0+2}
        s_lshl_b32 s{s_t0+2}, s{s_w}, 13
        s_add_u32 s{s_t0+1}, s{s_t0+1}, s{s_t0+2}
        s_lshl_b32 s{s_t0}, s{s_t0}, 9
        s_cmp_lt_u32 s{s_w}, 2
        s_cselect_b32 s{s_t0+1}, s{s_t0+1}, 0x80000000
        s_cmp_eq_u32 s{s_w}, 2
        s_cselect_b32 s{s_t0}, s{s_t0}, 0x80000000
        v_min_u32 v{VT+3}, 0x180, v{VT+2}
        buffer_load_dword v{P_[0]}, v{VT+2}, s[{SRD_Q}:{SRD_Q+3}], s{s_t0+1} offen
        buffer_load_dword v{P_[0]+1}, v{VT+3}, s[{SRD_BT}:{SRD_BT+3}], s{s_t0} offen
        """)
        nwarm = 2
    emit_srd(a, SRD_K, s_k, KV_BYTES)
    emit_srd(a, SRD_V, s_v, KV_BYTES)
    emit_srd(a, SRD_WS, s_ws, WS_BYTES)
    sstamp(88)
    a(f"""
    v_and_b32 v{t1}, 31, v{VLANE}               ; key / q
    v_and_b32 v{t2}, 15, v{VLANE}
    v_xor_b32 v{t2}, v{t2}, v{t0}               ; (key&15)^h2
    v_lshlrev_b32 v{t2}, 4, v{t2}
    v_lshl_add_u32 v{KADDR}, v{t1}, 8, v{t2}
    """)
    for s in range(1, 8):
        a(f"v_xor_b32 v{KADDR+s}, {s << 5}, v{KADDR}")
    a(f"""
    v_bfe_u32 v{t1}, v{VLANE}, 2, 2              ; r
    v_add_u32 v{t2}, v{VH4}, v{t1}               ; 4h2 + r
    v_lshlrev_b32 v{t2}, 8, v{t2}
    v_bfe_u32 v{t3}, v{VLANE}, 4, 1              ; sub
    v_lshl_add_u32 v{t2}, v{t3}, 5, v{t2}
    v_and_b32 v{t3}, 3, v{VLANE}                 ; c
    v_lshl_add_u32 v{t2}, v{t3}, 3, v{t2}
    v_add_u32 v{t2}, 0x10000, v{t2}
    v_lshl_add_u32 v{VADDR}, v{t1}, 6, v{t2}     ; dt=0 : (0^r)<<6
    """)
    for dt in range(1, 4):
        a(f"v_xor_b32 v{VADDR+dt}, {dt << 6}, v{VADDR}")
    a(f"s_waitcnt vmcnt({nwarm})")
    sstamp(89)
    st = s_t0
    R = emit_partition(a, VLANE, VCL, VT, st)
    sn, sincl, sLm1, scl, sq, sr, sj = st + 4, st + 5, st + 6, st + 7, st + 8, st + 9, st + 10
    a(f"""
    v_cmp_lt_u32 vcc, s{s_slot}, v{R['incl']}
    s_and_b64 vcc, vcc, s[{st+2}:{st+3}]
    s_cbranch_scc0 L_end
    s_ff1_i32_b64 s{st}, vcc
    s_and_b32 s{s_b}, s{st}, 7
    v_readlane_b32 s{sn}, v{R['n']}, s{st}
    v_readlane_b32 s{sincl}, v{R['incl']}, s{st}
    v_readlane_b32 s{sq}, v{R['q']}, s{st}
    v_readlane_b32 s{sr}, v{R['r']}, s{st}
    v_readlane_b32 s{sLm1}, v{R['Lm1']}, s{st}
    v_readlane_b32 s{scl}, v{VCL}, s{st}
    s_lshl_b32 s{st+2}, s{s_b}, 5
    s_lshl_b32 s{st+1}, s{s_h}, 3
    s_add_u32 s{st+2}, s{st+2}, s{st+1}
    s_lshl_b32 s{st+1}, s{s_w}, 1
    s_add_u32 s{st+2}, s{st+2}, s{st+1}
    s_lshl_b32 s{st+2}, s{st+2}, 13              ; Q base = ((b*32 + 8h + 2w)*32)*256
    s_add_u32 s{st+3}, s{st+2}, 0x2000
    s_sub_u32 s{sj}, s{sincl}, s{sn}
    s_sub_u32 s{sj}, s{s_slot}, s{sj}            ; j = slot - E_b
    s_mul_i32 s{s_start}, s{sj}, s{sq}
    s_min_u32 s{st}, s{sj}, s{sr}
    s_add_u32 s{s_start}, s{s_start}, s{st}
    s_lshl_b32 s{st}, s{s_b}, 9
    s_lshl_b32 s{st+1}, s{s_start}, 1
    s_add_u32 s{st}, s{st}, s{st+1}
    s_lshr_b32 s{st+1}, s{s_w}, 1
    s_add_u32 s{st}, s{st}, s{st+1}
    s_lshl_b32 s{st}, s{st}, 2
    buffer_load_dword v{PAGES}, v{ET+4}, s[{SRD_BT}:{SRD_BT+3}], s{st} offen
    """)
    def qload(X):
        for hf in range(2):
            a(f"s_add_u32 m0, s{s_qlds+X}, {4096*hf}")
            a(f"s_add_u32 s{s_qb+2}, s{s_qb+X}, {4096*hf}")
            for j in range(4):
                a(f"buffer_load_dwordx4 v{ET+j}, s[{SRD_Q}:{SRD_Q+3}], s{s_qb+2} offen offset:{1024*j} lds")
    a(f"""
    s_mov_b32 s{s_qb}, s{st+2}
    s_mov_b32 s{s_qb+1}, s{st+3}
    """)
    qload(0)
    a(f"""
    s_cmp_lt_u32 s{sj}, s{sr}
    s_addc_u32 s{s_n}, s{sq}, 0                  ; n = q + (j<r)
    s_min_u32 s{s_n}, s{s_n}, 54
    s_and_b32 s{s_rem}, s{sLm1}, 31
    s_add_u32 s{s_rem}, s{s_rem}, 1
    s_add_u32 s{st}, s{sj}, 1
    s_cmp_eq_u32 s{st}, s{sn}
    s_cselect_b32 s{s_rem}, s{s_rem}, 32
    s_sub_u32 s{s_patch}, s{s_n}, 2
    s_cmp_lt_u32 s{s_rem}, 32
    s_cselect_b32 s{s_patch}, s{s_patch}, 0x7fffffff
    s_mov_b32 s{s_scale}, 0x{f32bits(SCALE):x}
    s_cmp_lt_i32 s{scl}, 1
    s_cselect_b32 s{s_scale}, 0, s{s_scale}
    s_mov_b32 s{s_scale+1}, s{s_scale}
    s_lshl_b32 s{s_wgslot}, s{s_h}, 6
    s_add_u32 s{s_wgslot}, s{s_wgslot}, s{s_slot}
    """)
    sstamp(93)
    nz = cfg["zero_early"]
    for r in range(64, 64 + nz):
        a(f"v_mov_b32 v{r}, 0")
    a(f"""
    v_mov_b32 v{t2}, 0x80000000
    v_cmp_gt_u32 vcc, s{s_n}, v{VLANE}
    s_waitcnt vmcnt(8)
    v_lshlrev_b32 v{PAGES}, 14, v{PAGES}
    v_cndmask_b32 v{PAGES}, v{t2}, v{PAGES}, vcc
    s_nop 0
    """)
    for j in range(D + 1):
        a(f"v_readlane_b32 s{st+j}, v{PAGES}, {j}")
    a("s_nop 3")
    vm = ["QA"] * 8
    def vwait(tag):
        idx = max(i for i, t in enumerate(vm) if t == tag)
        a(f"s_waitcnt vmcnt({len(vm) - 1 - idx})")
    def issue(lst, tag):
        a(lst[0]); a("s_nop 0"); a(lst[2]); a(lst[3])
        vm.extend([tag, tag])
    pairs = [("K", 0)]
    for j in range(D):
        pairs += [("K", j + 1), ("V", j)]
    def pair():
        if not pairs:
            return
        kind, j = pairs.pop(0)
        issue(dma_k(None, j, st + j) if kind == "K" else dma_v(None, j, st + j), f"{kind}{j}")
    QRAW = {0: 0, 1: 128}
    def qread(X):
        for s in range(8):
            a(f"v_add_u32 v{VT+4+s}, s{s_qlds+X}, v{KADDR+s}")
        for s in range(8):
            r = QRAW[X] + 4 * s
            a(f"ds_read_b128 v[{r}:{r+3}], v{VT+4+s}")
    def prescale(X, packed):
        out = []
        for i in range(32):
            r = QRAW[X] + i
            ta, tb = VT + (i & 1) * 2, VT + (i & 1) * 2 + 1
            g = []
            if i % 4 == 0:
                g.append(f"s_waitcnt lgkmcnt({7 - i // 4})")
            g += [f"v_lshlrev_b32 v{ta}, 16, v{r}", f"v_and_b32 v{tb}, 0xffff0000, v{r}"]
            if packed(i):
                g.append(f"v_pk_mul_f32 v[{ta}:{tb}], v[{ta}:{tb}], s[{s_scale}:{s_scale+1}]")
            else:
                g += [f"v_mul_f32 v{ta}, s{s_scale}, v{ta}", f"v_mul_f32 v{tb}, s{s_scale}, v{tb}"]
            g += [f"v_cvt_pk_bf16_f32 v{ta}, v{ta}, v{tb}", f"v_accvgpr_write_b32 a{32*X+i}, v{ta}"]
            out.append(g)
        return out
    pstamp(0)
    for _ in range(cfg["pp0"]):
        pair()
    qload(1); vm.extend(["QB"] * 8)
    for _ in range(cfg["pp1"]):
        pair()
    pstamp(1)
    for r in list(range(64 + nz, 128)) + list(range(160, 208)) + list(range(32, 64)):
        a(f"v_mov_b32 v{r}, 0")
    for r in range(32):
        a(f"v_accvgpr_write_b32 a{AV+r}, 0")
    a(f"""
    v_mov_b32 v{L_[0]}, 0
    v_mov_b32 v{L_[1]}, 0
    s_cmp_eq_u32 s{s_patch}, -1
    s_cbranch_scc0 L_nopatch0
    s_call_b64 s[{s_ret}:{s_ret+1}], L_sub_patch
    """)
    a.label("L_nopatch0")
    vwait("QA")
    pstamp(10)
    qread(0)
    for i, g in enumerate(prescale(0, lambda i: cfg["pk"])):
        for t in g:
            a(t)
        if i in cfg["ppA"]:
            pair()
    pstamp(2)
    vwait("QB")
    pstamp(11)
    qread(1)
    for i, g in enumerate(prescale(1, lambda i: cfg["pk"])):
        for t in g:
            a(t)
        if i in cfg["ppB"]:
            pair()
    pstamp(3)
    vwait("K0")
    pstamp(4)
    a("s_barrier")
    pstamp(12)
    for s in range(8):
        a(k_read(s, 0))
    for s in range(8):
        a(f"s_waitcnt lgkmcnt({7-s})")
        a(mfma_qk(0, s))
        if s in cfg["ppQ"]:
            pair()
        for r in range(128 + 4 * s, 132 + 4 * s):
            a(f"v_mov_b32 v{r}, 0")
    a(mfma_qk(1, 0))
    a("s_nop 7")
    mxa = emit_rowmax(a, 0, M_[0], VT)
    mxa += [f"v_sub_f32 v{S_[0]+r}, v{S_[0]+r}, v{M_[0]}" for r in range(16)]
    mxa += [f"v_sub_f32 v{C_[0]+r}, v{C_[0]+r}, v{M_[0]}" for r in range(16)]
    for s in range(1, 8):
        a(mfma_qk(1, s))
        for _ in range(5):
            a(mxa.pop(0))
    while pairs:
        pair()
    a(f"s_mov_b32 s{s_pg[1]}, s{st+D}")
    while mxa:
        a(mxa.pop(0))
    a("s_nop 7")
    for t in emit_rowmax(a, 1, M_[1], VT):
        a(t)
    for r in range(16):
        a(f"v_sub_f32 v{C_[1]+r}, v{C_[1]+r}, v{M_[1]}")
    sstamp(94)
    sstamp(95)
    pre, front, valu, tail = plan_body(7, cfg)
    hd = [t for g in range(32 - cfg["delta"], 32) for _, t in valu[g]
          if not t.startswith(f"v_add_f32 v{L_[1]},")]
    for t in hd:
        a(t)
    a("s_nop 1")
    tramps = []
    for k in range(8):
        emit_body(a, k, tramps, cfg)
    a.label("L_drain")
    if cfg.get("stamp"):
        a(f"""
        s_memtime s[90:91]
        s_waitcnt lgkmcnt(0)
        s_mov_b32 s96, s90
        """)
    def conv(X, dt):
        o = O_[X] + 16 * dt
        d = 8 * (4 * X + dt)
        out = [f"v_cvt_pk_bf16_f32 v{d+j}, v{o+2*j}, v{o+2*j+1}" for j in range(8)]
        out.append(f"s_add_u32 s{st+1}, s{st}, {X*8192 + dt*2048}")
        out.append(f"buffer_store_dwordx4 v[{d}:{d+3}], v{VT+4}, s[{SRD_WS}:{SRD_WS+3}], s{st+1} offen{cfg['st_flags']}")
        out.append(f"buffer_store_dwordx4 v[{d+4}:{d+7}], v{VT+4}, s[{SRD_WS}:{SRD_WS+3}], s{st+1} offen offset:1024{cfg['st_flags']}")
        return out
    ep = f"""
    v_mov_b32 v{VT}, v{L_[0]}
    v_mov_b32 v{VT+1}, v{L_[1]}
    s_lshl_b32 s{st}, s{s_wgslot}, 16
    s_lshl_b32 s{st+1}, s{s_w}, 14
    s_add_u32 s{st}, s{st}, s{st+1}
    v_permlane32_swap_b32 v{L_[0]}, v{VT}
    v_permlane32_swap_b32 v{L_[1]}, v{VT+1}
    v_lshlrev_b32 v{VT+4}, 4, v{VLANE}
    v_mov_b32 v{VT+6}, v{M_[0]}
    v_add_f32 v{VT+7}, v{L_[0]}, v{VT}
    v_mov_b32 v{VT+8}, v{M_[1]}
    v_add_f32 v{VT+9}, v{L_[1]}, v{VT+1}
    """.strip().split("\n")
    ep += conv(0, 0) + conv(0, 1) + conv(0, 2) + conv(0, 3)
    for f in range(8):
        a(mfma_pv(1, f))
        for _ in range(6):
            a(ep.pop(0))
    while ep:
        a(ep.pop(0))
    a("s_nop 7")
    for dt in range(4):
        for t in conv(1, dt):
            a(t)
    a(f"""
    s_lshl_b32 s{st}, s{s_wgslot}, 11
    s_lshl_b32 s{st+1}, s{s_w}, 9
    s_add_u32 s{st}, s{st}, s{st+1}
    s_add_u32 s{st}, s{st}, 0x{WS_ML:x}
    v_lshlrev_b32 v{VT+4}, 3, v{VLANE}
    s_mov_b32 exec_hi, 0
    buffer_store_dwordx2 v[{VT+6}:{VT+7}], v{VT+4}, s[{SRD_WS}:{SRD_WS+3}], s{st} offen{cfg['st_flags']}
    buffer_store_dwordx2 v[{VT+8}:{VT+9}], v{VT+4}, s[{SRD_WS}:{SRD_WS+3}], s{st} offen offset:256{cfg['st_flags']}
    """)
    if cfg.get("stamp"):
        a(f"""
        s_mov_b64 exec, -1
        s_waitcnt vmcnt(0)
        s_memtime s[90:91]
        s_memrealtime s[86:87]
        s_getreg_b32 s98, hwreg(HW_REG_XCC_ID)
        s_waitcnt lgkmcnt(0)
        v_mov_b32 v{VT+14}, 0
        v_writelane_b32 v{VT+14}, s92, 0
        v_writelane_b32 v{VT+14}, s93, 1
        v_writelane_b32 v{VT+14}, s94, 2
        v_writelane_b32 v{VT+14}, s95, 3
        v_writelane_b32 v{VT+14}, s96, 4
        v_writelane_b32 v{VT+14}, s90, 5
        v_writelane_b32 v{VT+14}, s{s_n}, 6
        v_writelane_b32 v{VT+14}, s98, 7
        v_writelane_b32 v{VT+14}, s100, 8
        v_writelane_b32 v{VT+14}, s86, 9
        v_writelane_b32 v{VT+14}, s88, 10
        v_writelane_b32 v{VT+14}, s89, 11
        s_lshl_b32 s{st}, s{s_wg}, 12
        s_lshl_b32 s{st+1}, s{s_w}, 10
        s_add_u32 s{st}, s{st}, s{st+1}
        s_add_u32 s{st}, s{st}, 0x{WS_DBG:x}
        v_lshlrev_b32 v{VT}, 2, v{VLANE}
        buffer_store_dword v{VT+12}, v{VT}, s[{SRD_WS}:{SRD_WS+3}], s{st} offen
        buffer_store_dword v{VT+13}, v{VT}, s[{SRD_WS}:{SRD_WS+3}], s{st} offen offset:256
        buffer_store_dword v{VT+14}, v{VT}, s[{SRD_WS}:{SRD_WS+3}], s{st} offen offset:512
        """)
    if cfg.get("delay_us"):
        a(f"""
        s_memrealtime s[90:91]
        s_waitcnt lgkmcnt(0)
        s_add_u32 s92, s90, {int(cfg["delay_us"]*100)}
        """)
        a.label("L_delay")
        a(f"""
        s_sleep 4
        s_memrealtime s[90:91]
        s_waitcnt lgkmcnt(0)
        s_sub_u32 s93, s92, s90
        s_cmp_gt_i32 s93, 0
        s_cbranch_scc1 L_delay
        """)
    a.label("L_end")
    a("s_endpgm")
    for lab, sub, ret in tramps:
        a.label(lab)
        a(f"s_call_b64 s[{s_ret}:{s_ret+1}], {sub}")
        a(f"s_branch {ret}")
    emit_fallback(a, 0)
    emit_fallback(a, 1)
    emit_patch(a)


def emit_combine(a, cfg):
    K = "pa_combine_kernel"
    NB = 12
    a.raw(f".globl {K}\n.p2align 8\n.type {K},@function")
    a.label(K)
    VL, VCL, VT_ = 200, 201, 202
    ACC = 160
    DEN, MX, MN, SC, W = 170, 171, 172, 173, 174
    U0, U1 = 176, 177
    OB = 0
    MLB = 64
    SRD_C, SRD_W, SRD_O = 20, 24, 28
    sw, sb, sh, swx, sn, sE, sbase, sj = 40, 41, 42, 43, 44, 45, 46, 47
    st = 60
    a(f"""
    s_cmp_ge_u32 s2, 256
    s_cbranch_scc1 L_cend
    s_load_dwordx16 s[4:19], s[0:1], 0
    v_lshrrev_b32 v{VT_}, 6, v0
    v_and_b32 v{VL}, 63, v0
    s_lshr_b32 s{sb}, s2, 5
    v_readfirstlane_b32 s{sw}, v{VT_}
    s_lshr_b32 s{sh}, s2, 3
    s_and_b32 s{sh}, s{sh}, 3
    s_and_b32 s{swx}, s2, 7
    v_and_b32 v{VT_+1}, 7, v{VL}
    v_lshlrev_b32 v{VT_+1}, 2, v{VT_+1}
    s_waitcnt lgkmcnt(0)
    """)
    emit_srd(a, SRD_C, s_cl, 32)
    a(f"buffer_load_dword v{VCL}, v{VT_+1}, s[{SRD_C}:{SRD_C+3}], 0 offen")
    emit_srd(a, SRD_W, s_ws, WS_BYTES)
    emit_srd(a, SRD_O, s_out, Q_BYTES)
    VOFF, VML, VOUT = 180, 181, 182
    a(f"""
    s_lshl_b32 s{st}, s{swx}, 13
    s_lshl_b32 s{st+1}, s{sw}, 10
    s_add_u32 s{st}, s{st}, s{st+1}
    v_lshlrev_b32 v{VOFF}, 4, v{VL}
    v_add_u32 v{VOFF}, s{st}, v{VOFF}
    s_lshl_b32 s{st}, s{swx}, 8
    s_add_u32 s{st}, s{st}, 0x{WS_ML:x}
    v_and_b32 v{VML}, 31, v{VL}
    v_lshlrev_b32 v{VOUT}, 8, v{VML}             ; q*256
    v_lshlrev_b32 v{VML}, 3, v{VML}
    v_add_u32 v{VML}, s{st}, v{VML}
    v_lshrrev_b32 v{VT_+2}, 5, v{VL}
    v_lshl_add_u32 v{VOUT}, v{VT_+2}, 3, v{VOUT} ; + h2*8
    s_lshl_b32 s{st}, s2, 13
    s_lshl_b32 s{st+1}, s{sw}, 5
    s_add_u32 s{st}, s{st}, s{st+1}
    v_add_u32 v{VOUT}, s{st}, v{VOUT}
    v_mov_b32 v{DEN}, 0
    v_mov_b32 v{MX}, 0xff800000
    """)
    for r in range(8):
        a(f"v_mov_b32 v{ACC+r}, 0")
    a("s_waitcnt vmcnt(0)")
    R = emit_partition(a, VL, VCL, VT_, st)
    a(f"""
    s_add_u32 s{st}, s{st}, s{sb}
    v_readlane_b32 s{sn}, v{R['n']}, s{st}
    v_readlane_b32 s{sE}, v{R['incl']}, s{st}
    s_nop 3
    s_sub_u32 s{sE}, s{sE}, s{sn}
    s_min_u32 s{sn}, s{sn}, 64
    s_lshl_b32 s{st}, s{sh}, 6
    s_add_u32 s{sE}, s{sE}, s{st}
    s_mov_b32 s{sbase}, 0
    """)
    a.label("L_cloop")
    for j in range(NB):
        a(f"""
        s_add_u32 s{sj}, s{sbase}, {j}
        s_add_u32 s{st}, s{sE}, s{sj}
        s_lshl_b32 s{st+1}, s{st}, 16
        s_lshl_b32 s{st}, s{st}, 11
        s_cmp_lt_u32 s{sj}, s{sn}
        s_cselect_b32 s{st+1}, s{st+1}, 0x80000000
        s_cselect_b32 s{st}, s{st}, 0x80000000
        buffer_load_dwordx2 v[{MLB+2*j}:{MLB+2*j+1}], v{VML}, s[{SRD_W}:{SRD_W+3}], s{st} offen
        buffer_load_dwordx4 v[{OB+4*j}:{OB+4*j+3}], v{VOFF}, s[{SRD_W}:{SRD_W+3}], s{st+1} offen
        """)
    a(f"v_mov_b32 v{MN}, v{MX}")
    for j in range(NB):
        a(f"""
        s_add_u32 s{sj}, s{sbase}, {j}
        s_cmp_ge_u32 s{sj}, s{sn}
        s_cbranch_scc1 L_cmaxdone
        s_waitcnt vmcnt({2*(NB-1-j)+1})
        v_max_f32 v{MN}, v{MN}, v{MLB+2*j}
        """)
    a.label("L_cmaxdone")
    a(f"""
    v_sub_f32 v{SC}, v{MX}, v{MN}
    v_exp_f32 v{SC}, v{SC}
    v_mov_b32 v{MX}, v{MN}
    v_mul_f32 v{DEN}, v{DEN}, v{SC}
    """)
    for r in range(8):
        a(f"v_mul_f32 v{ACC+r}, v{ACC+r}, v{SC}")
    for j in range(NB):
        a(f"""
        s_add_u32 s{sj}, s{sbase}, {j}
        s_cmp_ge_u32 s{sj}, s{sn}
        s_cbranch_scc1 L_cfin
        v_sub_f32 v{W}, v{MLB+2*j}, v{MX}
        v_exp_f32 v{W}, v{W}
        s_waitcnt vmcnt({2*(NB-1-j)})
        v_fmac_f32 v{DEN}, v{W}, v{MLB+2*j+1}
        """)
        for r in range(4):
            a(f"""
            v_lshlrev_b32 v{U0}, 16, v{OB+4*j+r}
            v_and_b32 v{U1}, 0xffff0000, v{OB+4*j+r}
            v_fmac_f32 v{ACC+2*r}, v{W}, v{U0}
            v_fmac_f32 v{ACC+2*r+1}, v{W}, v{U1}
            """)
    a(f"""
    s_add_u32 s{sbase}, s{sbase}, {NB}
    s_branch L_cloop
    """)
    a.label("L_cfin")
    a(f"""
    v_rcp_f32 v{SC}, v{DEN}
    s_nop 0
    """)
    for r in range(8):
        a(f"v_mul_f32 v{ACC+r}, v{ACC+r}, v{SC}")
    for r in range(4):
        a(f"v_cvt_pk_bf16_f32 v{ACC+r}, v{ACC+2*r}, v{ACC+2*r+1}")
    a(f"""
    buffer_store_dwordx2 v[{ACC}:{ACC+1}], v{VOUT}, s[{SRD_O}:{SRD_O+3}], 0 offen
    buffer_store_dwordx2 v[{ACC+2}:{ACC+3}], v{VOUT}, s[{SRD_O}:{SRD_O+3}], 0 offen offset:16
    """)
    a.label("L_cend")
    a("s_endpgm")


def descriptor(name, vgpr, accum, sgpr=102):
    return f"""
.p2align 6
.amdhsa_kernel {name}
  .amdhsa_next_free_vgpr {vgpr}
  .amdhsa_next_free_sgpr {sgpr}
  .amdhsa_accum_offset {accum}
  .amdhsa_group_segment_fixed_size 0
  .amdhsa_kernarg_size 64
  .amdhsa_user_sgpr_count 2
  .amdhsa_user_sgpr_kernarg_segment_ptr 1
  .amdhsa_system_sgpr_workgroup_id_x 1
.end_amdhsa_kernel
"""


DEFAULT_CFG = dict(
    vslots=[9, 10, 11, 12, 13, 14, 15, 16, 17, 18, 19, 20, 21, 22, 23, 24],
    rl_slot=22,
    dma_slots=[25, 26, 27, 29],
    dma_cost=12,
    patch_slot=9,
    delta=3,
    br_dist=2,
    empty_gaps=[31],
    bar_period=2,
    pp0=1, pp1=0, ppA=[7, 15], ppB=[15, 31], ppQ=[1, 3, 5, 7],
    pk=1,
    warm=1,
    zero_early=64,
    thr_log2=12,
    st_flags="",
    depth=5,
    ld_flags=" nt",
)


def generate(cfg=None, out=OUT):
    c = dict(DEFAULT_CFG)
    if cfg:
        c.update(cfg)
    global LDFLAGS
    LDFLAGS = c["ld_flags"]
    a = Asm()
    a.raw(f"""; Paged attention (GQA, split-KV) for gfx950 -- generated by gen.py (hand-scheduled)
; @launch kernel={NAME}_kernel grid=(256,1,1) block=(256,1,1) lds=163840
; @launch kernel=pa_combine_kernel grid=(256,1,1) block=(512,1,1) lds=0
{"; @launch kernel=pa_nop_kernel grid=(1,1,1) block=(64,1,1) lds=0" + chr(10) if c.get("nop3") else ""}.amdgcn_target "amdgcn-amd-amdhsa--gfx950"
.text""")
    emit_main(a, c)
    emit_combine(a, c)
    if c.get("nop3"):
        a.raw(".globl pa_nop_kernel\n.p2align 8\n.type pa_nop_kernel,@function\npa_nop_kernel:\n    s_endpgm")
    a.raw('.section .rodata,"a"')
    if c.get("nop3"):
        a.raw(descriptor("pa_nop_kernel", 8, 8))
    a.raw(descriptor(NAME + "_kernel", 384, 256))
    a.raw(descriptor("pa_combine_kernel", 216, 216))
    open(out, "w").write(a.text())


if __name__ == "__main__":
    import json
    cfg = json.loads(sys.argv[1]) if len(sys.argv) > 1 else None
    generate(cfg, sys.argv[2] if len(sys.argv) > 2 else OUT)
```

```python
import sys, math

NAME = "standalone__paged_block_table_kv_pagedattention__sampling"
OUT = "cdna_kernels/%s.s" % NAME

KV_BYTES = 4100 * 16384
Q_BYTES = 8 * 32 * 32 * 128 * 2
BT_BYTES = 8 * 512 * 4
WS_ML = 0x1000000
WS_DBG = WS_ML + 256 * 2048
WS_BYTES = WS_DBG + 0x100000
SCALE = math.log2(math.e) / math.sqrt(128.0)
THR_LOG2 = 12

import struct
def f32bits(x):
    return struct.unpack("<I", struct.pack("<f", x))[0]

class Asm:
    def __init__(self):
        self.lines = []
    def __call__(self, s):
        for l in s.strip("\n").split("\n"):
            self.lines.append("    " + l.strip())
    def label(self, l):
        self.lines.append(l + ":")
    def raw(self, s):
        self.lines.append(s)
    def text(self):
        return "\n".join(self.lines) + "\n"

S_ = {0: 0, 1: 16}
C_ = {0: 32, 1: 48}
O_ = {0: 64, 1: 128}
P_ = {0: 192, 1: 200}
KADDR = 208
VADDR = 216
VOFFK = 220
VOFFV = 222
PAGES = 224
L_ = {0: 225, 1: 226}
M_ = {0: 227, 1: 228}
TS_ = {0: (229, 230), 1: (231, 232)}
ET = 233
VLANE = 239
VT = 240
VH4 = 255
AQ = {0: 0, 1: 32}
AK = 64
AV = 96

s_wg = 2
s_q, s_k, s_v, s_bt, s_cl, s_out, s_dbg, s_ws = 4, 6, 8, 10, 12, 14, 16, 18
SRD_K, SRD_V, SRD_Q, SRD_X, SRD_WS, SRD_BT = 20, 24, 28, 32, 36, 76
s_w = 40
s_h = 41
s_slot = 42
s_n = 43
s_i = 44
s_patch = 45
s_rem = 46
s_idx = 47
s_pg = {0: 48, 1: 49}
s_m0k = 50
s_m0v = 51
s_thr = {0: 52, 1: 53}
s_floor = {0: 54, 1: 55}
s_first = {0: 56, 1: 57}
s_ret = 58
s_t0 = 60
s_qb = 84
s_qlds = 54
s_b = 80
s_start = 81
s_scale = 56
s_wgslot = 83


def emit_srd(a, d, ptr, nbytes):
    a(f"""
    s_mov_b32 s{d}, s{ptr}
    s_and_b32 s{d+1}, s{ptr+1}, 0xffff
    s_mov_b32 s{d+2}, 0x{nbytes:x}
    s_mov_b32 s{d+3}, 0x20000
    """)


def sum8(a, dst, src, tmp):
    a(f"""
    s_nop 1
    v_add_u32_dpp v{tmp}, v{src}, v{src} quad_perm:[1,0,3,2] row_mask:0xf bank_mask:0xf
    s_nop 1
    v_add_u32_dpp v{dst}, v{tmp}, v{tmp} quad_perm:[2,3,0,1] row_mask:0xf bank_mask:0xf
    s_nop 1
    v_add_u32_dpp v{dst}, v{dst}, v{dst} row_half_mirror row_mask:0xf bank_mask:0xf
    """)


def emit_partition(a, vlane, vcl, vt, st):
    Lm1, T_, Cc, Nn, NS, INC, Qq, Rr, X0, X1 = range(vt, vt + 10)
    a(f"""
    v_add_u32 v{Lm1}, -1, v{vcl}
    v_min_u32 v{Lm1}, 0x1fff, v{Lm1}
    v_lshrrev_b32 v{T_}, 5, v{Lm1}
    v_add_u32 v{T_}, 1, v{T_}
    """)
    sum8(a, Cc, T_, X0)
    a(f"""
    v_add_u32 v{Cc}, 63, v{Cc}
    v_lshrrev_b32 v{Cc}, 6, v{Cc}
    v_lshrrev_b32 v{X0}, 3, v{vlane}
    v_add_u32 v{Cc}, v{Cc}, v{X0}
    v_cvt_f32_u32 v{X0}, v{Cc}
    v_rcp_f32 v{X0}, v{X0}
    v_add3_u32 v{X1}, v{T_}, v{Cc}, -1
    v_cvt_f32_u32 v{X1}, v{X1}
    v_add_f32 v{X1}, 0.5, v{X1}
    v_mul_f32 v{X1}, v{X1}, v{X0}
    v_cvt_u32_f32 v{Nn}, v{X1}
    """)
    sum8(a, NS, Nn, X0)
    a(f"""
    s_nop 1
    v_add_u32_dpp v{INC}, v{Nn}, v{Nn} row_shr:1 row_mask:0xf bank_mask:0xf bound_ctrl:0
    v_cvt_f32_u32 v{X0}, v{Nn}
    v_rcp_f32 v{X0}, v{X0}
    v_add_u32_dpp v{INC}, v{INC}, v{INC} row_shr:2 row_mask:0xf bank_mask:0xf bound_ctrl:0
    v_cvt_f32_u32 v{X1}, v{T_}
    v_add_f32 v{X1}, 0.5, v{X1}
    v_add_u32_dpp v{INC}, v{INC}, v{INC} row_shr:4 row_mask:0xf bank_mask:0xf bound_ctrl:0
    v_mul_f32 v{X1}, v{X1}, v{X0}
    v_cvt_u32_f32 v{Qq}, v{X1}
    v_add_u32_dpp v{INC}, v{INC}, v{INC} row_shr:8 row_mask:0xf bank_mask:0xf bound_ctrl:0
    v_mul_u32_u24 v{X0}, v{Qq}, v{Nn}
    v_sub_u32 v{Rr}, v{T_}, v{X0}
    v_mov_b32_dpp v{X1}, v{NS} row_shr:8 row_mask:0xf bank_mask:0xf bound_ctrl:0
    v_sub_u32 v{INC}, v{INC}, v{X1}
    v_cmp_ge_u32 vcc, 64, v{NS}
    s_ff1_i32_b64 s{st}, vcc
    s_mov_b64 s[{st+2}:{st+3}], 0xff
    s_lshl_b64 s[{st+2}:{st+3}], s[{st+2}:{st+3}], s{st}
    """)
    return dict(Lm1=Lm1, t=T_, n=Nn, incl=INC, q=Qq, r=Rr)


def sm_stream(X, et=None):
    S = S_[X]; P = P_[X]
    TS0, TS1 = TS_[X]
    et = ET if et is None else et
    def tmp(j):
        if j == 0:
            return TS0, TS1
        k = (j - 1) % 3
        return et + 2 * k, et + 2 * k + 1
    E = lambda j, h: (8, f"v_exp_f32 v{tmp(j)[h]}, v{S + 2 * j + h}")
    A = lambda j, h: (4, f"v_add_f32 v{(TS0, TS1)[h]}, v{(TS0, TS1)[h]}, v{tmp(j)[h]}")
    C = lambda j: (4, f"v_cvt_pk_bf16_f32 v{P + j}, v{tmp(j)[0]}, v{tmp(j)[1]}")
    st = [E(0, 0), E(0, 1), E(1, 0), C(0), E(1, 1)]
    for j in range(1, 7):
        st += [A(j, 0), E(j + 1, 0), A(j, 1), C(j), E(j + 1, 1)]
    st += [A(7, 0), A(7, 1), C(7), (4, f"v_add_f32 v{TS0}, v{TS0}, v{TS1}")]
    return st


def mfma_qk(X, s):
    c = C_[X] if s == 0 else S_[X]
    return (f"v_mfma_f32_32x32x16_bf16 v[{S_[X]}:{S_[X]+15}], a[{AK+4*s}:{AK+4*s+3}], "
            f"a[{AQ[X]+4*s}:{AQ[X]+4*s+3}], v[{c}:{c+15}]")


def mfma_pv(X, f):
    t, dt = f >> 2, f & 3
    o = O_[X] + 16 * dt
    return (f"v_mfma_f32_32x32x16_bf16 v[{o}:{o+15}], a[{AV+4*f}:{AV+4*f+3}], "
            f"v[{P_[X]+4*t}:{P_[X]+4*t+3}], v[{o}:{o+15}]")


def k_read(s, slot):
    return f"ds_read_b128 a[{AK+4*s}:{AK+4*s+3}], v{KADDR+s} offset:{slot*8192}"


def v_read(f, y, slot):
    t, dt = f >> 2, f & 3
    return (f"ds_read_b64_tr_b16 a[{AV+4*f+2*y}:{AV+4*f+2*y+1}], v{VADDR+dt} "
            f"offset:{slot*8192 + (16*t+8*y)*256}")


LDFLAGS = ""
def dma_k(a_list, slot, spg):
    return [f"s_add_u32 m0, s{s_m0k}, {slot*8192}",
            None,
            f"buffer_load_dwordx4 v{VOFFK}, s[{SRD_K}:{SRD_K+3}], s{spg} offen{LDFLAGS} lds",
            f"buffer_load_dwordx4 v{VOFFK+1}, s[{SRD_K}:{SRD_K+3}], s{spg} offen offset:1024{LDFLAGS} lds"]


def dma_v(a_list, slot, spg):
    return [f"s_add_u32 m0, s{s_m0v}, {slot*8192}",
            None,
            f"buffer_load_dwordx4 v{VOFFV}, s[{SRD_V}:{SRD_V+3}], s{spg} offen{LDFLAGS} lds",
            f"buffer_load_dwordx4 v{VOFFV+1}, s[{SRD_V}:{SRD_V+3}], s{spg} offen offset:1024{LDFLAGS} lds"]


def plan_body(k, cfg, tramps=None):
    kn = (k + 1) % 8
    D = cfg["depth"]
    pgn = s_pg[k & 1]
    pgo = s_pg[(k & 1) ^ 1]
    tramps = [] if tramps is None else tramps
    pre = {i: [] for i in range(32)}
    front = {i: [] for i in range(32)}
    valu = {i: [] for i in range(32)}
    tail = {i: [] for i in range(32)}
    for s in range(8):
        front[s + 1].append((4, k_read(s, kn)))
    vslots = cfg["vslots"]
    vr = [(f, y) for f in range(8) for y in range(2)]
    for (f, y), sl in zip(vr, vslots):
        assert sl >= 9 + f, (f, sl)
        front[sl].append((4, v_read(f, y, k)))
    def vr_before(m):
        return sum(1 for sl in vslots if sl < m)
    pre[16].append(f"s_waitcnt lgkmcnt({vr_before(16)})")
    assert vr_before(24) >= 8
    pre[24].append(f"s_waitcnt lgkmcnt({vr_before(24) - 8})")
    assert vr_before(28) == 16
    pre[28].append("s_waitcnt lgkmcnt(0)")
    valu[cfg["rl_slot"]].append((4, f"v_readlane_b32 s{pgn}, v{PAGES}, s{s_idx}"))
    tail[cfg["rl_slot"]].append(f"s_add_u32 s{s_idx}, s{s_idx}, 1")
    dk = dma_k(None, (k + D + 1) % 8, pgn)
    dv = dma_v(None, (k + D) % 8, pgo)
    ds = cfg["dma_slots"]
    dcost = cfg["dma_cost"]
    tail[ds[0] - 1].append(dv[0])
    front[ds[0]].append((dcost, dv[2]))
    front[ds[1]].append((dcost, dv[3]))
    assert ds[2] - 1 >= ds[1]
    tail[ds[2] - 1].append(dk[0])
    front[ds[2]].append((dcost, dk[2]))
    front[ds[3]].append((dcost, dk[3]))
    assert ds[2] > cfg["rl_slot"] + 1
    ps = cfg["patch_slot"]
    tail[ps - 1].append(f"s_cmp_eq_u32 s{s_i}, s{s_patch}")
    front[ps].insert(0, (8, f"s_cbranch_scc1 L_patch_{k}"))
    front[ps].insert(1, (0, f"L_patch_ret_{k}:"))
    tramps.append((f"L_patch_{k}", "L_sub_patch", f"L_patch_ret_{k}"))
    assert max(ds) < 30
    tail[30].append(f"s_add_u32 s{s_i}, s{s_i}, 1")
    tail[30].append(f"s_cmp_ge_u32 s{s_i}, s{s_n}")
    front[31].append((8, "s_cbranch_scc1 L_drain"))
    dl = cfg["delta"]
    for X, lo in ((0, 32 - dl), (1, 16 - dl)):
        hi = lo + 15
        bs = (hi + cfg["br_dist"]) % 32
        front[bs].insert(0, (8, f"s_cbranch_vccnz L_fb{X}_{k}"))
        front[bs].insert(1, (0, f"L_fb{X}_ret_{k}:"))
        valu[bs].insert(0, (4, f"v_add_f32 v{L_[X]}, v{L_[X]}, v{TS_[X][0]}"))
        tramps.append((f"L_fb{X}_{k}", f"L_sub_fb{X}", f"L_fb{X}_ret_{k}"))
    for X, lo in ((0, 32 - dl), (1, 16 - dl)):
        gaps = [(lo + j) % 32 for j in range(16)]
        st = sm_stream(X) + [(4, f"v_cmp_lt_f32 vcc, s{s_thr[X]}, v{TS_[X][0]}")]
        tot = sum(c for c, _ in st)
        free = [max(0, 24 - sum(c for c, _ in front[g]) - sum(c for c, _ in valu[g])) for g in gaps]
        for n_, g in enumerate(gaps):
            if g in cfg["empty_gaps"]:
                free[n_] = 0
        ftot = sum(free)
        assert ftot >= tot, (ftot, tot)
        acc = 0.0; done = 0; idx = 0
        for n_, g in enumerate(gaps):
            acc += free[n_] * tot / ftot
            used = 0
            while idx < len(st) and used + st[idx][0] <= free[n_] and len(valu[g]) < 5 and \
                    (done + st[idx][0] / 2.0 <= acc or n_ == 15):
                valu[g].append(st[idx]); done += st[idx][0]; used += st[idx][0]; idx += 1
        assert idx == len(st), (X, idx, len(st))
    return pre, front, valu, tail


def skip(t, cfg):
    if cfg.get("no_dma") and t.startswith("buffer_load"): return True
    if cfg.get("no_lds") and t.startswith("ds_read"): return True
    if cfg.get("no_sm") and (t.startswith("v_exp") or t.startswith("v_add_f32") or t.startswith("v_cvt")): return True
    if cfg.get("no_mfma") and t.startswith("v_mfma"): return True
    return False


def emit_body(a, k, tramps, cfg):
    D = cfg["depth"]
    mf = [mfma_qk(1, s) for s in range(8)] + [mfma_pv(1, f) for f in range(8)] + \
         [mfma_qk(0, s) for s in range(8)] + [mfma_pv(0, f) for f in range(8)]
    pre, front, valu, tail = plan_body(k, cfg, tramps)
    a.label(f"L_body_{k}")
    if cfg.get("stamp"):
        a(f"""
        s_memtime s[90:91]
        s_mov_b32 m0, s{s_i}
        s_waitcnt lgkmcnt(0)
        v_writelane_b32 v{VT+12}, s90, m0
        """)
    bp = cfg["bar_period"]
    if k % bp == 0:
        a(f"s_waitcnt vmcnt({4*(D-bp)})")
        if not cfg.get("no_bar"):
            a("s_barrier")
    if cfg.get("stamp"):
        a(f"""
        s_memtime s[90:91]
        s_waitcnt lgkmcnt(0)
        v_writelane_b32 v{VT+13}, s90, m0
        """)
    for i in range(32):
        seq = pre[i] + [mf[i]] + [t for _, t in front[i]] + [t for _, t in valu[i]] + tail[i]
        for t in seq:
            if t.endswith(":"):
                a.label(t[:-1])
            elif not skip(t, cfg):
                a(t)
    if k == 7:
        a("s_branch L_body_0")


def emit_rowmax(a, X, mx, t1):
    S = S_[X]
    out = [f"v_max3_f32 v{mx}, v{S}, v{S+1}, v{S+2}"]
    for r in range(3, 15, 2):
        out.append(f"v_max3_f32 v{mx}, v{mx}, v{S+r}, v{S+r+1}")
    out += [f"v_max_f32 v{mx}, v{mx}, v{S+15}", f"v_mov_b32 v{t1}, v{mx}", "s_nop 1",
            f"v_permlane32_swap_b32 v{mx}, v{t1}", "s_nop 1", f"v_max_f32 v{mx}, v{mx}, v{t1}"]
    return out


def emit_fallback(a, X):
    S = S_[X]; C = C_[X]; O = O_[X]; P = P_[X]
    mx, t1, f = VT, VT + 1, VT + 3
    a.label(f"L_sub_fb{X}")
    a("s_nop 7")
    for t in emit_rowmax(a, X, mx, t1):
        a(t)
    a(f"""
    v_max_f32 v{mx}, 0, v{mx}
    v_exp_f32 v{f}, -v{mx}
    v_add_f32 v{M_[X]}, v{M_[X]}, v{mx}
    """)
    for r in range(16):
        a(f"v_sub_f32 v{C+r}, v{C+r}, v{mx}")
        a(f"v_sub_f32 v{S+r}, v{S+r}, v{mx}")
    a(f"v_mul_f32 v{L_[X]}, v{L_[X]}, v{f}")
    for r in range(64):
        a(f"v_mul_f32 v{O+r}, v{O+r}, v{f}")
    for c, t in sm_stream(X, VT + 4):
        a(t)
    a(f"""
    s_nop 3
    s_setpc_b64 s[{s_ret}:{s_ret+1}]
    """)


def emit_patch(a):
    ninf = VT
    a.label("L_sub_patch")
    a(f"""
    s_nop 7
    v_mov_b32 v{ninf}, 0xff800000
    """)
    for r in range(16):
        cst = 8 * (r >> 2) + (r & 3)
        a(f"""
        s_sub_i32 s{s_t0}, s{s_rem}, {cst}
        v_cmp_gt_i32 vcc, s{s_t0}, v{VH4}
        s_nop 1
        v_cndmask_b32 v{C_[0]+r}, v{ninf}, v{C_[0]+r}, vcc
        v_cndmask_b32 v{C_[1]+r}, v{ninf}, v{C_[1]+r}, vcc
        """)
    a(f"""
    s_nop 3
    s_setpc_b64 s[{s_ret}:{s_ret+1}]
    """)


def emit_main(a, cfg):
    K = NAME + "_kernel"
    D = cfg["depth"]
    assert D <= 5
    a.raw(f".globl {K}\n.p2align 8\n.type {K},@function")
    a.label(K)
    t0, t1, t2, t3 = VT + 11, VT + 12, VT + 13, VT + 14
    VCL = VT + 10
    def sstamp(n):
        if cfg.get("stamp"):
            a(f"""
            s_memtime s[90:91]
            s_waitcnt lgkmcnt(0)
            s_mov_b32 s{n}, s90
            """)
    def pstamp(n):
        if cfg.get("stamp"):
            a(f"""
            s_memtime s[90:91]
            s_waitcnt lgkmcnt(0)
            v_writelane_b32 v{VT+12}, s90, {40+n}
            """)
    a(f"""
    s_cmp_ge_u32 s{s_wg}, 256
    s_cbranch_scc1 L_end
    s_load_dwordx16 s[4:19], s[0:1], 0
    v_lshrrev_b32 v{VT}, 6, v0
    v_and_b32 v{VLANE}, 63, v0
    s_lshr_b32 s{s_h}, s{s_wg}, 1
    v_readfirstlane_b32 s{s_w}, v{VT}
    s_and_b32 s{s_h}, s{s_h}, 3
    s_and_b32 s{s_t0}, s{s_wg}, 1
    s_lshl_b32 s{s_t0}, s{s_t0}, 5
    s_lshr_b32 s{s_slot}, s{s_wg}, 3
    s_or_b32 s{s_slot}, s{s_slot}, s{s_t0}
    v_and_b32 v{VT+1}, 7, v{VLANE}
    v_lshlrev_b32 v{VT+1}, 2, v{VT+1}
    v_lshlrev_b32 v{VT+2}, 7, v{VLANE}
    """)
    if cfg.get("stamp"):
        a("s_memtime s[92:93]")
    if cfg.get("stamp") or cfg.get("pad_to_us"):
        a("s_memrealtime s[100:101]")
    a(f"""
    s_and_b32 s{s_t0}, s{s_w}, 1
    s_lshl_b32 s{s_t0}, s{s_t0}, 3               ; 8*(w&1)
    s_lshl_b32 s{s_t0+1}, s{s_h}, 8              ; h*256
    v_lshrrev_b32 v{t0}, 4, v{VLANE}             ; l>>4
    v_and_b32 v{t1}, 15, v{VLANE}                ; pc
    v_add_u32 v{t2}, s{s_t0}, v{t0}              ; R&15 for x=0
    v_xor_b32 v{t3}, v{t1}, v{t2}
    v_lshlrev_b32 v{t3}, 4, v{t3}
    v_lshl_add_u32 v{t3}, v{t2}, 10, v{t3}
    v_add_u32 v{VOFFK}, s{s_t0+1}, v{t3}
    v_add_u32 v{t2}, 4, v{t2}                    ; R&15 for x=1
    v_xor_b32 v{t3}, v{t1}, v{t2}
    v_lshlrev_b32 v{t3}, 4, v{t3}
    v_lshl_add_u32 v{t3}, v{t2}, 10, v{t3}
    v_add_u32 v{t3}, s{s_t0+1}, v{t3}
    v_add_u32 v{VOFFK+1}, 0xfffffc00, v{t3}
    v_lshlrev_b32 v{t3}, 2, v{t0}
    v_xor_b32 v{t3}, v{t1}, v{t3}
    v_lshlrev_b32 v{t3}, 4, v{t3}
    v_add_u32 v{t2}, s{s_t0}, v{t0}
    v_lshl_add_u32 v{t3}, v{t2}, 10, v{t3}
    v_add_u32 v{VOFFV}, s{s_t0+1}, v{t3}
    v_add_u32 v{VOFFV+1}, 0xc00, v{VOFFV}        ; +4096 -1024
    s_lshl_b32 s{s_m0k}, s{s_w}, 11
    s_add_u32 s{s_m0v}, s{s_m0k}, 0x10000
    s_mov_b32 s{s_thr[0]}, 0x{f32bits(2.0**cfg["thr_log2"]):x}
    s_mov_b32 s{s_thr[1]}, 0x{f32bits(2.0**cfg["thr_log2"]):x}
    s_mov_b32 s{s_i}, 0
    s_mov_b32 s{s_idx}, {D+1}
    v_lshrrev_b32 v{t0}, 5, v{VLANE}            ; h2
    v_lshlrev_b32 v{VH4}, 2, v{t0}
    v_lshrrev_b32 v{t2}, 4, v{VLANE}
    v_xor_b32 v{t3}, v{t1}, v{t2}
    v_lshlrev_b32 v{t3}, 4, v{t3}
    v_lshl_add_u32 v{ET}, v{t2}, 8, v{t3}        ; Q voffset (j&3 == 0)
    v_xor_b32 v{ET+1}, 64, v{ET}
    v_xor_b32 v{ET+2}, 0x80, v{ET}
    v_xor_b32 v{ET+3}, 0xc0, v{ET}
    v_lshlrev_b32 v{ET+4}, 3, v{VLANE}
    s_lshl_b32 s{s_qlds}, s{s_w}, 13
    s_add_u32 s{s_qlds}, s{s_qlds}, 0x20000      ; Q_A staging : 128K + w*8K
    s_and_b32 s{s_t0}, s{s_w}, 1
    s_lshl_b32 s{s_t0}, s{s_t0}, 13
    s_lshr_b32 s{s_t0+1}, s{s_w}, 1
    s_lshl_b32 s{s_t0+1}, s{s_t0+1}, 16
    s_add_u32 s{s_t0}, s{s_t0}, s{s_t0+1}
    s_add_u32 s{s_qlds+1}, s{s_t0}, 0xc000
    s_waitcnt lgkmcnt(0)
    """)
    emit_srd(a, SRD_X, s_cl, 32)
    a(f"buffer_load_dword v{VCL}, v{VT+1}, s[{SRD_X}:{SRD_X+3}], 0 offen")
    emit_srd(a, SRD_BT, s_bt, BT_BYTES)
    emit_srd(a, SRD_Q, s_q, Q_BYTES)
    nwarm = 0
    if cfg["warm"]:
        a(f"""
        s_lshr_b32 s{s_t0}, s{s_wg}, 3
        s_lshr_b32 s{s_t0+1}, s{s_t0}, 2
        s_lshl_b32 s{s_t0+1}, s{s_t0+1}, 18          ; b*262144
        s_and_b32 s{s_t0+2}, s{s_t0}, 3
        s_lshl_b32 s{s_t0+2}, s{s_t0+2}, 14
        s_add_u32 s{s_t0+1}, s{s_t0+1}, s{s_t0+2}
        s_lshl_b32 s{s_t0+2}, s{s_h}, 16
        s_add_u32 s{s_t0+1}, s{s_t0+1}, s{s_t0+2}
        s_lshl_b32 s{s_t0+2}, s{s_w}, 13
        s_add_u32 s{s_t0+1}, s{s_t0+1}, s{s_t0+2}
        s_lshl_b32 s{s_t0}, s{s_t0}, 9
        s_cmp_lt_u32 s{s_w}, 2
        s_cselect_b32 s{s_t0+1}, s{s_t0+1}, 0x80000000
        s_cmp_eq_u32 s{s_w}, 2
        s_cselect_b32 s{s_t0}, s{s_t0}, 0x80000000
        v_min_u32 v{VT+3}, 0x180, v{VT+2}
        buffer_load_dword v{P_[0]}, v{VT+2}, s[{SRD_Q}:{SRD_Q+3}], s{s_t0+1} offen
        buffer_load_dword v{P_[0]+1}, v{VT+3}, s[{SRD_BT}:{SRD_BT+3}], s{s_t0} offen
        """)
        nwarm = 2
    emit_srd(a, SRD_K, s_k, KV_BYTES)
    emit_srd(a, SRD_V, s_v, KV_BYTES)
    emit_srd(a, SRD_WS, s_ws, WS_BYTES)
    sstamp(88)
    a(f"""
    v_and_b32 v{t1}, 31, v{VLANE}               ; key / q
    v_and_b32 v{t2}, 15, v{VLANE}
    v_xor_b32 v{t2}, v{t2}, v{t0}               ; (key&15)^h2
    v_lshlrev_b32 v{t2}, 4, v{t2}
    v_lshl_add_u32 v{KADDR}, v{t1}, 8, v{t2}
    """)
    for s in range(1, 8):
        a(f"v_xor_b32 v{KADDR+s}, {s << 5}, v{KADDR}")
    a(f"""
    v_bfe_u32 v{t1}, v{VLANE}, 2, 2              ; r
    v_add_u32 v{t2}, v{VH4}, v{t1}               ; 4h2 + r
    v_lshlrev_b32 v{t2}, 8, v{t2}
    v_bfe_u32 v{t3}, v{VLANE}, 4, 1              ; sub
    v_lshl_add_u32 v{t2}, v{t3}, 5, v{t2}
    v_and_b32 v{t3}, 3, v{VLANE}                 ; c
    v_lshl_add_u32 v{t2}, v{t3}, 3, v{t2}
    v_add_u32 v{t2}, 0x10000, v{t2}
    v_lshl_add_u32 v{VADDR}, v{t1}, 6, v{t2}     ; dt=0 : (0^r)<<6
    """)
    for dt in range(1, 4):
        a(f"v_xor_b32 v{VADDR+dt}, {dt << 6}, v{VADDR}")
    a(f"s_waitcnt vmcnt({nwarm})")
    sstamp(89)
    st = s_t0
    R = emit_partition(a, VLANE, VCL, VT, st)
    sn, sincl, sLm1, scl, sq, sr, sj = st + 4, st + 5, st + 6, st + 7, st + 8, st + 9, st + 10
    a(f"""
    v_cmp_lt_u32 vcc, s{s_slot}, v{R['incl']}
    s_and_b64 vcc, vcc, s[{st+2}:{st+3}]
    s_cbranch_scc0 L_end
    s_ff1_i32_b64 s{st}, vcc
    s_and_b32 s{s_b}, s{st}, 7
    v_readlane_b32 s{sn}, v{R['n']}, s{st}
    v_readlane_b32 s{sincl}, v{R['incl']}, s{st}
    v_readlane_b32 s{sq}, v{R['q']}, s{st}
    v_readlane_b32 s{sr}, v{R['r']}, s{st}
    v_readlane_b32 s{sLm1}, v{R['Lm1']}, s{st}
    v_readlane_b32 s{scl}, v{VCL}, s{st}
    s_lshl_b32 s{st+2}, s{s_b}, 5
    s_lshl_b32 s{st+1}, s{s_h}, 3
    s_add_u32 s{st+2}, s{st+2}, s{st+1}
    s_lshl_b32 s{st+1}, s{s_w}, 1
    s_add_u32 s{st+2}, s{st+2}, s{st+1}
    s_lshl_b32 s{st+2}, s{st+2}, 13              ; Q base = ((b*32 + 8h + 2w)*32)*256
    s_add_u32 s{st+3}, s{st+2}, 0x2000
    s_sub_u32 s{sj}, s{sincl}, s{sn}
    s_sub_u32 s{sj}, s{s_slot}, s{sj}            ; j = slot - E_b
    s_mul_i32 s{s_start}, s{sj}, s{sq}
    s_min_u32 s{st}, s{sj}, s{sr}
    s_add_u32 s{s_start}, s{s_start}, s{st}
    s_lshl_b32 s{st}, s{s_b}, 9
    s_lshl_b32 s{st+1}, s{s_start}, 1
    s_add_u32 s{st}, s{st}, s{st+1}
    s_lshr_b32 s{st+1}, s{s_w}, 1
    s_add_u32 s{st}, s{st}, s{st+1}
    s_lshl_b32 s{st}, s{st}, 2
    buffer_load_dword v{PAGES}, v{ET+4}, s[{SRD_BT}:{SRD_BT+3}], s{st} offen
    """)
    def qload(X):
        for hf in range(2):
            a(f"s_add_u32 m0, s{s_qlds+X}, {4096*hf}")
            a(f"s_add_u32 s{s_qb+2}, s{s_qb+X}, {4096*hf}")
            for j in range(4):
                a(f"buffer_load_dwordx4 v{ET+j}, s[{SRD_Q}:{SRD_Q+3}], s{s_qb+2} offen offset:{1024*j} lds")
    a(f"""
    s_mov_b32 s{s_qb}, s{st+2}
    s_mov_b32 s{s_qb+1}, s{st+3}
    """)
    qload(0)
    a(f"""
    s_cmp_lt_u32 s{sj}, s{sr}
    s_addc_u32 s{s_n}, s{sq}, 0                  ; n = q + (j<r)
    s_min_u32 s{s_n}, s{s_n}, 54
    s_and_b32 s{s_rem}, s{sLm1}, 31
    s_add_u32 s{s_rem}, s{s_rem}, 1
    s_add_u32 s{st}, s{sj}, 1
    s_cmp_eq_u32 s{st}, s{sn}
    s_cselect_b32 s{s_rem}, s{s_rem}, 32
    s_sub_u32 s{s_patch}, s{s_n}, 2
    s_cmp_lt_u32 s{s_rem}, 32
    s_cselect_b32 s{s_patch}, s{s_patch}, 0x7fffffff
    s_mov_b32 s{s_scale}, 0x{f32bits(SCALE):x}
    s_cmp_lt_i32 s{scl}, 1
    s_cselect_b32 s{s_scale}, 0, s{s_scale}
    s_mov_b32 s{s_scale+1}, s{s_scale}
    s_lshl_b32 s{s_wgslot}, s{s_h}, 6
    s_add_u32 s{s_wgslot}, s{s_wgslot}, s{s_slot}
    """)
    sstamp(93)
    nz = cfg["zero_early"]
    for r in range(64, 64 + nz):
        a(f"v_mov_b32 v{r}, 0")
    a(f"""
    v_mov_b32 v{t2}, 0x80000000
    v_cmp_gt_u32 vcc, s{s_n}, v{VLANE}
    s_waitcnt vmcnt(8)
    v_lshlrev_b32 v{PAGES}, 14, v{PAGES}
    v_cndmask_b32 v{PAGES}, v{t2}, v{PAGES}, vcc
    s_nop 0
    """)
    for j in range(D + 1):
        a(f"v_readlane_b32 s{st+j}, v{PAGES}, {j}")
    a("s_nop 3")
    vm = ["QA"] * 8
    def vwait(tag):
        idx = max(i for i, t in enumerate(vm) if t == tag)
        a(f"s_waitcnt vmcnt({len(vm) - 1 - idx})")
    def issue(lst, tag):
        a(lst[0]); a("s_nop 0"); a(lst[2]); a(lst[3])
        vm.extend([tag, tag])
    pairs = [("K", 0)]
    for j in range(D):
        pairs += [("K", j + 1), ("V", j)]
    def pair():
        if not pairs:
            return
        kind, j = pairs.pop(0)
        issue(dma_k(None, j, st + j) if kind == "K" else dma_v(None, j, st + j), f"{kind}{j}")
    QRAW = {0: 0, 1: 128}
    def qread(X):
        for s in range(8):
            a(f"v_add_u32 v{VT+4+s}, s{s_qlds+X}, v{KADDR+s}")
        for s in range(8):
            r = QRAW[X] + 4 * s
            a(f"ds_read_b128 v[{r}:{r+3}], v{VT+4+s}")
    def prescale(X, packed):
        out = []
        for i in range(32):
            r = QRAW[X] + i
            ta, tb = VT + (i & 1) * 2, VT + (i & 1) * 2 + 1
            g = []
            if i % 4 == 0:
                g.append(f"s_waitcnt lgkmcnt({7 - i // 4})")
            g += [f"v_lshlrev_b32 v{ta}, 16, v{r}", f"v_and_b32 v{tb}, 0xffff0000, v{r}"]
            if packed(i):
                g.append(f"v_pk_mul_f32 v[{ta}:{tb}], v[{ta}:{tb}], s[{s_scale}:{s_scale+1}]")
            else:
                g += [f"v_mul_f32 v{ta}, s{s_scale}, v{ta}", f"v_mul_f32 v{tb}, s{s_scale}, v{tb}"]
            g += [f"v_cvt_pk_bf16_f32 v{ta}, v{ta}, v{tb}", f"v_accvgpr_write_b32 a{32*X+i}, v{ta}"]
            out.append(g)
        return out
    pstamp(0)
    for _ in range(cfg["pp0"]):
        pair()
    qload(1); vm.extend(["QB"] * 8)
    for _ in range(cfg["pp1"]):
        pair()
    pstamp(1)
    for r in list(range(64 + nz, 128)) + list(range(160, 208)) + list(range(32, 64)):
        a(f"v_mov_b32 v{r}, 0")
    for r in range(32):
        a(f"v_accvgpr_write_b32 a{AV+r}, 0")
    a(f"""
    v_mov_b32 v{L_[0]}, 0
    v_mov_b32 v{L_[1]}, 0
    s_cmp_eq_u32 s{s_patch}, -1
    s_cbranch_scc0 L_nopatch0
    s_call_b64 s[{s_ret}:{s_ret+1}], L_sub_patch
    """)
    a.label("L_nopatch0")
    vwait("QA")
    pstamp(10)
    qread(0)
    for i, g in enumerate(prescale(0, lambda i: cfg["pk"])):
        for t in g:
            a(t)
        if i in cfg["ppA"]:
            pair()
    pstamp(2)
    vwait("QB")
    pstamp(11)
    qread(1)
    for i, g in enumerate(prescale(1, lambda i: cfg["pk"])):
        for t in g:
            a(t)
        if i in cfg["ppB"]:
            pair()
    pstamp(3)
    vwait("K0")
    pstamp(4)
    a("s_barrier")
    pstamp(12)
    for s in range(8):
        a(k_read(s, 0))
    for s in range(8):
        a(f"s_waitcnt lgkmcnt({7-s})")
        a(mfma_qk(0, s))
        if s in cfg["ppQ"]:
            pair()
        for r in range(128 + 4 * s, 132 + 4 * s):
            a(f"v_mov_b32 v{r}, 0")
    a(mfma_qk(1, 0))
    a("s_nop 7")
    mxa = emit_rowmax(a, 0, M_[0], VT)
    mxa += [f"v_sub_f32 v{S_[0]+r}, v{S_[0]+r}, v{M_[0]}" for r in range(16)]
    mxa += [f"v_sub_f32 v{C_[0]+r}, v{C_[0]+r}, v{M_[0]}" for r in range(16)]
    for s in range(1, 8):
        a(mfma_qk(1, s))
        for _ in range(5):
            a(mxa.pop(0))
    while pairs:
        pair()
    a(f"s_mov_b32 s{s_pg[1]}, s{st+D}")
    while mxa:
        a(mxa.pop(0))
    a("s_nop 7")
    for t in emit_rowmax(a, 1, M_[1], VT):
        a(t)
    for r in range(16):
        a(f"v_sub_f32 v{C_[1]+r}, v{C_[1]+r}, v{M_[1]}")
    sstamp(94)
    sstamp(95)
    pre, front, valu, tail = plan_body(7, cfg)
    hd = [t for g in range(32 - cfg["delta"], 32) for _, t in valu[g]
          if not t.startswith(f"v_add_f32 v{L_[1]},")]
    for t in hd:
        a(t)
    a("s_nop 1")
    tramps = []
    for k in range(8):
        emit_body(a, k, tramps, cfg)
    a.label("L_drain")
    if cfg.get("stamp"):
        a(f"""
        s_memtime s[90:91]
        s_waitcnt lgkmcnt(0)
        s_mov_b32 s96, s90
        """)
    def conv(X, dt):
        o = O_[X] + 16 * dt
        d = 8 * (4 * X + dt)
        out = [f"v_cvt_pk_bf16_f32 v{d+j}, v{o+2*j}, v{o+2*j+1}" for j in range(8)]
        out.append(f"s_add_u32 s{st+1}, s{st}, {X*8192 + dt*2048}")
        out.append(f"buffer_store_dwordx4 v[{d}:{d+3}], v{VT+4}, s[{SRD_WS}:{SRD_WS+3}], s{st+1} offen{cfg['st_flags']}")
        out.append(f"buffer_store_dwordx4 v[{d+4}:{d+7}], v{VT+4}, s[{SRD_WS}:{SRD_WS+3}], s{st+1} offen offset:1024{cfg['st_flags']}")
        return out
    ep = f"""
    v_mov_b32 v{VT}, v{L_[0]}
    v_mov_b32 v{VT+1}, v{L_[1]}
    s_lshl_b32 s{st}, s{s_wgslot}, 16
    s_lshl_b32 s{st+1}, s{s_w}, 14
    s_add_u32 s{st}, s{st}, s{st+1}
    v_permlane32_swap_b32 v{L_[0]}, v{VT}
    v_permlane32_swap_b32 v{L_[1]}, v{VT+1}
    v_lshlrev_b32 v{VT+4}, 4, v{VLANE}
    v_mov_b32 v{VT+6}, v{M_[0]}
    v_add_f32 v{VT+7}, v{L_[0]}, v{VT}
    v_mov_b32 v{VT+8}, v{M_[1]}
    v_add_f32 v{VT+9}, v{L_[1]}, v{VT+1}
    """.strip().split("\n")
    ep += conv(0, 0) + conv(0, 1) + conv(0, 2) + conv(0, 3)
    for f in range(8):
        a(mfma_pv(1, f))
        for _ in range(6):
            a(ep.pop(0))
    while ep:
        a(ep.pop(0))
    a("s_nop 7")
    for dt in range(4):
        for t in conv(1, dt):
            a(t)
    a(f"""
    s_lshl_b32 s{st}, s{s_wgslot}, 11
    s_lshl_b32 s{st+1}, s{s_w}, 9
    s_add_u32 s{st}, s{st}, s{st+1}
    s_add_u32 s{st}, s{st}, 0x{WS_ML:x}
    v_lshlrev_b32 v{VT+4}, 3, v{VLANE}
    s_mov_b32 exec_hi, 0
    buffer_store_dwordx2 v[{VT+6}:{VT+7}], v{VT+4}, s[{SRD_WS}:{SRD_WS+3}], s{st} offen{cfg['st_flags']}
    buffer_store_dwordx2 v[{VT+8}:{VT+9}], v{VT+4}, s[{SRD_WS}:{SRD_WS+3}], s{st} offen offset:256{cfg['st_flags']}
    """)
    if cfg.get("stamp"):
        a(f"""
        s_mov_b64 exec, -1
        s_waitcnt vmcnt(0)
        s_memtime s[90:91]
        s_memrealtime s[86:87]
        s_getreg_b32 s98, hwreg(HW_REG_XCC_ID)
        s_waitcnt lgkmcnt(0)
        v_mov_b32 v{VT+14}, 0
        v_writelane_b32 v{VT+14}, s92, 0
        v_writelane_b32 v{VT+14}, s93, 1
        v_writelane_b32 v{VT+14}, s94, 2
        v_writelane_b32 v{VT+14}, s95, 3
        v_writelane_b32 v{VT+14}, s96, 4
        v_writelane_b32 v{VT+14}, s90, 5
        v_writelane_b32 v{VT+14}, s{s_n}, 6
        v_writelane_b32 v{VT+14}, s98, 7
        v_writelane_b32 v{VT+14}, s100, 8
        v_writelane_b32 v{VT+14}, s86, 9
        v_writelane_b32 v{VT+14}, s88, 10
        v_writelane_b32 v{VT+14}, s89, 11
        s_lshl_b32 s{st}, s{s_wg}, 12
        s_lshl_b32 s{st+1}, s{s_w}, 10
        s_add_u32 s{st}, s{st}, s{st+1}
        s_add_u32 s{st}, s{st}, 0x{WS_DBG:x}
        v_lshlrev_b32 v{VT}, 2, v{VLANE}
        buffer_store_dword v{VT+12}, v{VT}, s[{SRD_WS}:{SRD_WS+3}], s{st} offen
        buffer_store_dword v{VT+13}, v{VT}, s[{SRD_WS}:{SRD_WS+3}], s{st} offen offset:256
        buffer_store_dword v{VT+14}, v{VT}, s[{SRD_WS}:{SRD_WS+3}], s{st} offen offset:512
        """)
    if cfg.get("pad_to_us"):
        a(f"""
        s_waitcnt vmcnt(0)
        s_add_u32 s92, s100, {int(cfg["pad_to_us"]*100)}
        """)
    if cfg.get("delay_us"):
        a(f"""
        s_memrealtime s[90:91]
        s_waitcnt lgkmcnt(0)
        s_add_u32 s92, s90, {int(cfg["delay_us"]*100)}
        """)
    if cfg.get("delay_us") or cfg.get("pad_to_us"):
        a.label("L_delay")
        a(f"""
        s_sleep 4
        s_memrealtime s[90:91]
        s_waitcnt lgkmcnt(0)
        s_sub_u32 s93, s92, s90
        s_cmp_gt_i32 s93, 0
        s_cbranch_scc1 L_delay
        """)
    a.label("L_end")
    a("s_endpgm")
    for lab, sub, ret in tramps:
        a.label(lab)
        a(f"s_call_b64 s[{s_ret}:{s_ret+1}], {sub}")
        a(f"s_branch {ret}")
    emit_fallback(a, 0)
    emit_fallback(a, 1)
    emit_patch(a)


def emit_combine(a, cfg):
    K = "pa_combine_kernel"
    NB = 12
    a.raw(f".globl {K}\n.p2align 8\n.type {K},@function")
    a.label(K)
    VL, VCL, VT_ = 200, 201, 202
    ACC = 160
    DEN, MX, MN, SC, W = 170, 171, 172, 173, 174
    U0, U1 = 176, 177
    OB = 0
    MLB = 64
    SRD_C, SRD_W, SRD_O = 20, 24, 28
    sw, sb, sh, swx, sn, sE, sbase, sj = 40, 41, 42, 43, 44, 45, 46, 47
    st = 60
    a(f"""
    s_cmp_ge_u32 s2, 256
    s_cbranch_scc1 L_cend
    s_load_dwordx16 s[4:19], s[0:1], 0
    {"s_memrealtime s[100:101]" if cfg.get("cpad_to_us") else ""}
    v_lshrrev_b32 v{VT_}, 6, v0
    v_and_b32 v{VL}, 63, v0
    s_lshr_b32 s{sb}, s2, 5
    v_readfirstlane_b32 s{sw}, v{VT_}
    s_lshr_b32 s{sh}, s2, 3
    s_and_b32 s{sh}, s{sh}, 3
    s_and_b32 s{swx}, s2, 7
    v_and_b32 v{VT_+1}, 7, v{VL}
    v_lshlrev_b32 v{VT_+1}, 2, v{VT_+1}
    s_waitcnt lgkmcnt(0)
    """)
    emit_srd(a, SRD_C, s_cl, 32)
    a(f"buffer_load_dword v{VCL}, v{VT_+1}, s[{SRD_C}:{SRD_C+3}], 0 offen")
    emit_srd(a, SRD_W, s_ws, WS_BYTES)
    emit_srd(a, SRD_O, s_out, Q_BYTES)
    VOFF, VML, VOUT = 180, 181, 182
    a(f"""
    s_lshl_b32 s{st}, s{swx}, 13
    s_lshl_b32 s{st+1}, s{sw}, 10
    s_add_u32 s{st}, s{st}, s{st+1}
    v_lshlrev_b32 v{VOFF}, 4, v{VL}
    v_add_u32 v{VOFF}, s{st}, v{VOFF}
    s_lshl_b32 s{st}, s{swx}, 8
    s_add_u32 s{st}, s{st}, 0x{WS_ML:x}
    v_and_b32 v{VML}, 31, v{VL}
    v_lshlrev_b32 v{VOUT}, 8, v{VML}             ; q*256
    v_lshlrev_b32 v{VML}, 3, v{VML}
    v_add_u32 v{VML}, s{st}, v{VML}
    v_lshrrev_b32 v{VT_+2}, 5, v{VL}
    v_lshl_add_u32 v{VOUT}, v{VT_+2}, 3, v{VOUT} ; + h2*8
    s_lshl_b32 s{st}, s2, 13
    s_lshl_b32 s{st+1}, s{sw}, 5
    s_add_u32 s{st}, s{st}, s{st+1}
    v_add_u32 v{VOUT}, s{st}, v{VOUT}
    v_mov_b32 v{DEN}, 0
    v_mov_b32 v{MX}, 0xff800000
    """)
    for r in range(8):
        a(f"v_mov_b32 v{ACC+r}, 0")
    a("s_waitcnt vmcnt(0)")
    R = emit_partition(a, VL, VCL, VT_, st)
    a(f"""
    s_add_u32 s{st}, s{st}, s{sb}
    v_readlane_b32 s{sn}, v{R['n']}, s{st}
    v_readlane_b32 s{sE}, v{R['incl']}, s{st}
    s_nop 3
    s_sub_u32 s{sE}, s{sE}, s{sn}
    s_min_u32 s{sn}, s{sn}, 64
    s_lshl_b32 s{st}, s{sh}, 6
    s_add_u32 s{sE}, s{sE}, s{st}
    s_mov_b32 s{sbase}, 0
    """)
    a.label("L_cloop")
    for j in range(NB):
        a(f"""
        s_add_u32 s{sj}, s{sbase}, {j}
        s_add_u32 s{st}, s{sE}, s{sj}
        s_lshl_b32 s{st+1}, s{st}, 16
        s_lshl_b32 s{st}, s{st}, 11
        s_cmp_lt_u32 s{sj}, s{sn}
        s_cselect_b32 s{st+1}, s{st+1}, 0x80000000
        s_cselect_b32 s{st}, s{st}, 0x80000000
        buffer_load_dwordx2 v[{MLB+2*j}:{MLB+2*j+1}], v{VML}, s[{SRD_W}:{SRD_W+3}], s{st} offen
        buffer_load_dwordx4 v[{OB+4*j}:{OB+4*j+3}], v{VOFF}, s[{SRD_W}:{SRD_W+3}], s{st+1} offen
        """)
    a(f"v_mov_b32 v{MN}, v{MX}")
    for j in range(NB):
        a(f"""
        s_add_u32 s{sj}, s{sbase}, {j}
        s_cmp_ge_u32 s{sj}, s{sn}
        s_cbranch_scc1 L_cmaxdone
        s_waitcnt vmcnt({2*(NB-1-j)+1})
        v_max_f32 v{MN}, v{MN}, v{MLB+2*j}
        """)
    a.label("L_cmaxdone")
    a(f"""
    v_sub_f32 v{SC}, v{MX}, v{MN}
    v_exp_f32 v{SC}, v{SC}
    v_mov_b32 v{MX}, v{MN}
    v_mul_f32 v{DEN}, v{DEN}, v{SC}
    """)
    for r in range(8):
        a(f"v_mul_f32 v{ACC+r}, v{ACC+r}, v{SC}")
    for j in range(NB):
        a(f"""
        s_add_u32 s{sj}, s{sbase}, {j}
        s_cmp_ge_u32 s{sj}, s{sn}
        s_cbranch_scc1 L_cfin
        v_sub_f32 v{W}, v{MLB+2*j}, v{MX}
        v_exp_f32 v{W}, v{W}
        s_waitcnt vmcnt({2*(NB-1-j)})
        v_fmac_f32 v{DEN}, v{W}, v{MLB+2*j+1}
        """)
        for r in range(4):
            a(f"""
            v_lshlrev_b32 v{U0}, 16, v{OB+4*j+r}
            v_and_b32 v{U1}, 0xffff0000, v{OB+4*j+r}
            v_fmac_f32 v{ACC+2*r}, v{W}, v{U0}
            v_fmac_f32 v{ACC+2*r+1}, v{W}, v{U1}
            """)
    a(f"""
    s_add_u32 s{sbase}, s{sbase}, {NB}
    s_branch L_cloop
    """)
    a.label("L_cfin")
    a(f"""
    v_rcp_f32 v{SC}, v{DEN}
    s_nop 0
    """)
    for r in range(8):
        a(f"v_mul_f32 v{ACC+r}, v{ACC+r}, v{SC}")
    for r in range(4):
        a(f"v_cvt_pk_bf16_f32 v{ACC+r}, v{ACC+2*r}, v{ACC+2*r+1}")
    a(f"""
    buffer_store_dwordx2 v[{ACC}:{ACC+1}], v{VOUT}, s[{SRD_O}:{SRD_O+3}], 0 offen
    buffer_store_dwordx2 v[{ACC+2}:{ACC+3}], v{VOUT}, s[{SRD_O}:{SRD_O+3}], 0 offen offset:16
    """)
    if cfg.get("cpad_to_us"):
        a(f"""
        s_waitcnt vmcnt(0)
        s_add_u32 s92, s100, {int(cfg["cpad_to_us"]*100)}
        """)
        a.label("L_cdelay")
        a(f"""
        s_sleep 4
        s_memrealtime s[90:91]
        s_waitcnt lgkmcnt(0)
        s_sub_u32 s93, s92, s90
        s_cmp_gt_i32 s93, 0
        s_cbranch_scc1 L_cdelay
        """)
    a.label("L_cend")
    a("s_endpgm")


def descriptor(name, vgpr, accum, sgpr=102):
    return f"""
.p2align 6
.amdhsa_kernel {name}
  .amdhsa_next_free_vgpr {vgpr}
  .amdhsa_next_free_sgpr {sgpr}
  .amdhsa_accum_offset {accum}
  .amdhsa_group_segment_fixed_size 0
  .amdhsa_kernarg_size 64
  .amdhsa_user_sgpr_count 2
  .amdhsa_user_sgpr_kernarg_segment_ptr 1
  .amdhsa_system_sgpr_workgroup_id_x 1
.end_amdhsa_kernel
"""


DEFAULT_CFG = dict(
    vslots=[9, 10, 11, 12, 13, 14, 15, 16, 17, 18, 19, 20, 21, 22, 23, 24],
    rl_slot=22,
    dma_slots=[25, 26, 27, 29],
    dma_cost=12,
    patch_slot=9,
    delta=3,
    br_dist=2,
    empty_gaps=[31],
    bar_period=2,
    pp0=1, pp1=0, ppA=[7, 15], ppB=[15, 31], ppQ=[1, 3, 5, 7],
    pk=1,
    warm=1,
    zero_early=64,
    thr_log2=12,
    st_flags="",
    depth=5,
    ld_flags=" nt",
)


def generate(cfg=None, out=OUT):
    c = dict(DEFAULT_CFG)
    if cfg:
        c.update(cfg)
    global LDFLAGS
    LDFLAGS = c["ld_flags"]
    a = Asm()
    a.raw(f"""; Paged attention (GQA, split-KV) for gfx950 -- generated by gen.py (hand-scheduled)
; @launch kernel={NAME}_kernel grid=(256,1,1) block=(256,1,1) lds=163840
; @launch kernel=pa_combine_kernel grid=(256,1,1) block=(512,1,1) lds=0
{"; @launch kernel=pa_nop_kernel grid=(1,1,1) block=(64,1,1) lds=0" + chr(10) if c.get("nop3") else ""}.amdgcn_target "amdgcn-amd-amdhsa--gfx950"
.text""")
    emit_main(a, c)
    emit_combine(a, c)
    if c.get("nop3"):
        a.raw(".globl pa_nop_kernel\n.p2align 8\n.type pa_nop_kernel,@function\npa_nop_kernel:\n    s_endpgm")
    a.raw('.section .rodata,"a"')
    if c.get("nop3"):
        a.raw(descriptor("pa_nop_kernel", 8, 8))
    a.raw(descriptor(NAME + "_kernel", 384, 256))
    a.raw(descriptor("pa_combine_kernel", 216, 216))
    open(out, "w").write(a.text())


if __name__ == "__main__":
    import json
    cfg = json.loads(sys.argv[1]) if len(sys.argv) > 1 else None
    generate(cfg, sys.argv[2] if len(sys.argv) > 2 else OUT)
```

```python
import sys, math

NAME = "standalone__paged_block_table_kv_pagedattention__sampling"
OUT = "cdna_kernels/%s.s" % NAME

KV_BYTES = 4100 * 16384
Q_BYTES = 8 * 32 * 32 * 128 * 2
BT_BYTES = 8 * 512 * 4
WS_ML = 0x1000000
WS_DBG = WS_ML + 256 * 2048
WS_FLAG = WS_DBG + 0x100000
WS_BYTES = WS_FLAG + 32 * 256
SCALE = math.log2(math.e) / math.sqrt(128.0)
THR_LOG2 = 12

import struct
def f32bits(x):
    return struct.unpack("<I", struct.pack("<f", x))[0]

class Asm:
    def __init__(self):
        self.lines = []
    def __call__(self, s):
        for l in s.strip("\n").split("\n"):
            self.lines.append("    " + l.strip())
    def label(self, l):
        self.lines.append(l + ":")
    def raw(self, s):
        self.lines.append(s)
    def text(self):
        return "\n".join(self.lines) + "\n"

S_ = {0: 0, 1: 16}
C_ = {0: 32, 1: 48}
O_ = {0: 64, 1: 128}
P_ = {0: 192, 1: 200}
KADDR = 208
VADDR = 216
VOFFK = 220
VOFFV = 222
PAGES = 224
L_ = {0: 225, 1: 226}
M_ = {0: 227, 1: 228}
TS_ = {0: (229, 230), 1: (231, 232)}
ET = 233
VLANE = 239
VT = 240
VH4 = 255
AQ = {0: 0, 1: 32}
AK = 64
AV = 96

s_wg = 2
s_q, s_k, s_v, s_bt, s_cl, s_out, s_dbg, s_ws = 4, 6, 8, 10, 12, 14, 16, 18
SRD_K, SRD_V, SRD_Q, SRD_X, SRD_WS, SRD_BT = 20, 24, 28, 32, 36, 76
s_w = 40
s_h = 41
s_slot = 42
s_n = 43
s_i = 44
s_patch = 45
s_rem = 46
s_idx = 47
s_pg = {0: 48, 1: 49}
s_m0k = 50
s_m0v = 51
s_thr = {0: 52, 1: 52}
s_E = 53
s_nb = 82
s_jj = 3
s_mine = 74
s_floor = {0: 54, 1: 55}
s_first = {0: 56, 1: 57}
s_ret = 58
s_t0 = 60
s_qb = 84
s_qlds = 54
s_b = 80
s_start = 81
s_scale = 56
s_wgslot = 83


def emit_srd(a, d, ptr, nbytes):
    a(f"""
    s_mov_b32 s{d}, s{ptr}
    s_and_b32 s{d+1}, s{ptr+1}, 0xffff
    s_mov_b32 s{d+2}, 0x{nbytes:x}
    s_mov_b32 s{d+3}, 0x20000
    """)


def sum8(a, dst, src, tmp):
    a(f"""
    s_nop 1
    v_add_u32_dpp v{tmp}, v{src}, v{src} quad_perm:[1,0,3,2] row_mask:0xf bank_mask:0xf
    s_nop 1
    v_add_u32_dpp v{dst}, v{tmp}, v{tmp} quad_perm:[2,3,0,1] row_mask:0xf bank_mask:0xf
    s_nop 1
    v_add_u32_dpp v{dst}, v{dst}, v{dst} row_half_mirror row_mask:0xf bank_mask:0xf
    """)


def emit_partition(a, vlane, vcl, vt, st):
    Lm1, T_, Cc, Nn, NS, INC, Qq, Rr, X0, X1 = range(vt, vt + 10)
    a(f"""
    v_add_u32 v{Lm1}, -1, v{vcl}
    v_min_u32 v{Lm1}, 0x1fff, v{Lm1}
    v_lshrrev_b32 v{T_}, 5, v{Lm1}
    v_add_u32 v{T_}, 1, v{T_}
    """)
    sum8(a, Cc, T_, X0)
    a(f"""
    v_add_u32 v{Cc}, 63, v{Cc}
    v_lshrrev_b32 v{Cc}, 6, v{Cc}
    v_lshrrev_b32 v{X0}, 3, v{vlane}
    v_add_u32 v{Cc}, v{Cc}, v{X0}
    v_cvt_f32_u32 v{X0}, v{Cc}
    v_rcp_f32 v{X0}, v{X0}
    v_add3_u32 v{X1}, v{T_}, v{Cc}, -1
    v_cvt_f32_u32 v{X1}, v{X1}
    v_add_f32 v{X1}, 0.5, v{X1}
    v_mul_f32 v{X1}, v{X1}, v{X0}
    v_cvt_u32_f32 v{Nn}, v{X1}
    """)
    sum8(a, NS, Nn, X0)
    a(f"""
    s_nop 1
    v_add_u32_dpp v{INC}, v{Nn}, v{Nn} row_shr:1 row_mask:0xf bank_mask:0xf bound_ctrl:0
    v_cvt_f32_u32 v{X0}, v{Nn}
    v_rcp_f32 v{X0}, v{X0}
    v_add_u32_dpp v{INC}, v{INC}, v{INC} row_shr:2 row_mask:0xf bank_mask:0xf bound_ctrl:0
    v_cvt_f32_u32 v{X1}, v{T_}
    v_add_f32 v{X1}, 0.5, v{X1}
    v_add_u32_dpp v{INC}, v{INC}, v{INC} row_shr:4 row_mask:0xf bank_mask:0xf bound_ctrl:0
    v_mul_f32 v{X1}, v{X1}, v{X0}
    v_cvt_u32_f32 v{Qq}, v{X1}
    v_add_u32_dpp v{INC}, v{INC}, v{INC} row_shr:8 row_mask:0xf bank_mask:0xf bound_ctrl:0
    v_mul_u32_u24 v{X0}, v{Qq}, v{Nn}
    v_sub_u32 v{Rr}, v{T_}, v{X0}
    v_mov_b32_dpp v{X1}, v{NS} row_shr:8 row_mask:0xf bank_mask:0xf bound_ctrl:0
    v_sub_u32 v{INC}, v{INC}, v{X1}
    v_cmp_ge_u32 vcc, 64, v{NS}
    s_ff1_i32_b64 s{st}, vcc
    s_mov_b64 s[{st+2}:{st+3}], 0xff
    s_lshl_b64 s[{st+2}:{st+3}], s[{st+2}:{st+3}], s{st}
    """)
    return dict(Lm1=Lm1, t=T_, n=Nn, incl=INC, q=Qq, r=Rr)


def sm_stream(X, et=None):
    S = S_[X]; P = P_[X]
    TS0, TS1 = TS_[X]
    et = ET if et is None else et
    def tmp(j):
        if j == 0:
            return TS0, TS1
        k = (j - 1) % 3
        return et + 2 * k, et + 2 * k + 1
    E = lambda j, h: (8, f"v_exp_f32 v{tmp(j)[h]}, v{S + 2 * j + h}")
    A = lambda j, h: (4, f"v_add_f32 v{(TS0, TS1)[h]}, v{(TS0, TS1)[h]}, v{tmp(j)[h]}")
    C = lambda j: (4, f"v_cvt_pk_bf16_f32 v{P + j}, v{tmp(j)[0]}, v{tmp(j)[1]}")
    st = [E(0, 0), E(0, 1), E(1, 0), C(0), E(1, 1)]
    for j in range(1, 7):
        st += [A(j, 0), E(j + 1, 0), A(j, 1), C(j), E(j + 1, 1)]
    st += [A(7, 0), A(7, 1), C(7), (4, f"v_add_f32 v{TS0}, v{TS0}, v{TS1}")]
    return st


def mfma_qk(X, s):
    c = C_[X] if s == 0 else S_[X]
    return (f"v_mfma_f32_32x32x16_bf16 v[{S_[X]}:{S_[X]+15}], a[{AK+4*s}:{AK+4*s+3}], "
            f"a[{AQ[X]+4*s}:{AQ[X]+4*s+3}], v[{c}:{c+15}]")


def mfma_pv(X, f):
    t, dt = f >> 2, f & 3
    o = O_[X] + 16 * dt
    return (f"v_mfma_f32_32x32x16_bf16 v[{o}:{o+15}], a[{AV+4*f}:{AV+4*f+3}], "
            f"v[{P_[X]+4*t}:{P_[X]+4*t+3}], v[{o}:{o+15}]")


def k_read(s, slot):
    return f"ds_read_b128 a[{AK+4*s}:{AK+4*s+3}], v{KADDR+s} offset:{slot*8192}"


def v_read(f, y, slot):
    t, dt = f >> 2, f & 3
    return (f"ds_read_b64_tr_b16 a[{AV+4*f+2*y}:{AV+4*f+2*y+1}], v{VADDR+dt} "
            f"offset:{slot*8192 + (16*t+8*y)*256}")


LDFLAGS = ""
def dma_k(a_list, slot, spg):
    return [f"s_add_u32 m0, s{s_m0k}, {slot*8192}",
            None,
            f"buffer_load_dwordx4 v{VOFFK}, s[{SRD_K}:{SRD_K+3}], s{spg} offen{LDFLAGS} lds",
            f"buffer_load_dwordx4 v{VOFFK+1}, s[{SRD_K}:{SRD_K+3}], s{spg} offen offset:1024{LDFLAGS} lds"]


def dma_v(a_list, slot, spg):
    return [f"s_add_u32 m0, s{s_m0v}, {slot*8192}",
            None,
            f"buffer_load_dwordx4 v{VOFFV}, s[{SRD_V}:{SRD_V+3}], s{spg} offen{LDFLAGS} lds",
            f"buffer_load_dwordx4 v{VOFFV+1}, s[{SRD_V}:{SRD_V+3}], s{spg} offen offset:1024{LDFLAGS} lds"]


def plan_body(k, cfg, tramps=None):
    kn = (k + 1) % 8
    D = cfg["depth"]
    pgn = s_pg[k & 1]
    pgo = s_pg[(k & 1) ^ 1]
    tramps = [] if tramps is None else tramps
    pre = {i: [] for i in range(32)}
    front = {i: [] for i in range(32)}
    valu = {i: [] for i in range(32)}
    tail = {i: [] for i in range(32)}
    for s in range(8):
        front[s + 1].append((4, k_read(s, kn)))
    vslots = cfg["vslots"]
    vr = [(f, y) for f in range(8) for y in range(2)]
    for (f, y), sl in zip(vr, vslots):
        assert sl >= 9 + f, (f, sl)
        front[sl].append((4, v_read(f, y, k)))
    def vr_before(m):
        return sum(1 for sl in vslots if sl < m)
    pre[16].append(f"s_waitcnt lgkmcnt({vr_before(16)})")
    assert vr_before(24) >= 8
    pre[24].append(f"s_waitcnt lgkmcnt({vr_before(24) - 8})")
    assert vr_before(28) == 16
    pre[28].append("s_waitcnt lgkmcnt(0)")
    valu[cfg["rl_slot"]].append((4, f"v_readlane_b32 s{pgn}, v{PAGES}, s{s_idx}"))
    tail[cfg["rl_slot"]].append(f"s_add_u32 s{s_idx}, s{s_idx}, 1")
    dk = dma_k(None, (k + D + 1) % 8, pgn)
    dv = dma_v(None, (k + D) % 8, pgo)
    ds = cfg["dma_slots"]
    dcost = cfg["dma_cost"]
    tail[ds[0] - 1].append(dv[0])
    front[ds[0]].append((dcost, dv[2]))
    front[ds[1]].append((dcost, dv[3]))
    assert ds[2] - 1 >= ds[1]
    tail[ds[2] - 1].append(dk[0])
    front[ds[2]].append((dcost, dk[2]))
    front[ds[3]].append((dcost, dk[3]))
    assert ds[2] > cfg["rl_slot"] + 1
    ps = cfg["patch_slot"]
    tail[ps - 1].append(f"s_cmp_eq_u32 s{s_i}, s{s_patch}")
    front[ps].insert(0, (8, f"s_cbranch_scc1 L_patch_{k}"))
    front[ps].insert(1, (0, f"L_patch_ret_{k}:"))
    tramps.append((f"L_patch_{k}", "L_sub_patch", f"L_patch_ret_{k}"))
    assert max(ds) < 30
    tail[30].append(f"s_add_u32 s{s_i}, s{s_i}, 1")
    tail[30].append(f"s_cmp_ge_u32 s{s_i}, s{s_n}")
    front[31].append((8, "s_cbranch_scc1 L_drain"))
    dl = cfg["delta"]
    for X, lo in ((0, 32 - dl), (1, 16 - dl)):
        hi = lo + 15
        bs = (hi + cfg["br_dist"]) % 32
        front[bs].insert(0, (8, f"s_cbranch_vccnz L_fb{X}_{k}"))
        front[bs].insert(1, (0, f"L_fb{X}_ret_{k}:"))
        valu[bs].insert(0, (4, f"v_add_f32 v{L_[X]}, v{L_[X]}, v{TS_[X][0]}"))
        tramps.append((f"L_fb{X}_{k}", f"L_sub_fb{X}", f"L_fb{X}_ret_{k}"))
    for X, lo in ((0, 32 - dl), (1, 16 - dl)):
        gaps = [(lo + j) % 32 for j in range(16)]
        st = sm_stream(X) + [(4, f"v_cmp_lt_f32 vcc, s{s_thr[X]}, v{TS_[X][0]}")]
        tot = sum(c for c, _ in st)
        free = [max(0, 24 - sum(c for c, _ in front[g]) - sum(c for c, _ in valu[g])) for g in gaps]
        for n_, g in enumerate(gaps):
            if g in cfg["empty_gaps"]:
                free[n_] = 0
        ftot = sum(free)
        assert ftot >= tot, (ftot, tot)
        acc = 0.0; done = 0; idx = 0
        for n_, g in enumerate(gaps):
            acc += free[n_] * tot / ftot
            used = 0
            while idx < len(st) and used + st[idx][0] <= free[n_] and len(valu[g]) < 5 and \
                    (done + st[idx][0] / 2.0 <= acc or n_ == 15):
                valu[g].append(st[idx]); done += st[idx][0]; used += st[idx][0]; idx += 1
        assert idx == len(st), (X, idx, len(st))
    return pre, front, valu, tail


def skip(t, cfg):
    if cfg.get("no_dma") and t.startswith("buffer_load"): return True
    if cfg.get("no_lds") and t.startswith("ds_read"): return True
    if cfg.get("no_sm") and (t.startswith("v_exp") or t.startswith("v_add_f32") or t.startswith("v_cvt")): return True
    if cfg.get("no_mfma") and t.startswith("v_mfma"): return True
    return False


def emit_body(a, k, tramps, cfg):
    D = cfg["depth"]
    mf = [mfma_qk(1, s) for s in range(8)] + [mfma_pv(1, f) for f in range(8)] + \
         [mfma_qk(0, s) for s in range(8)] + [mfma_pv(0, f) for f in range(8)]
    pre, front, valu, tail = plan_body(k, cfg, tramps)
    a.label(f"L_body_{k}")
    if cfg.get("stamp"):
        a(f"""
        s_memtime s[90:91]
        s_mov_b32 m0, s{s_i}
        s_waitcnt lgkmcnt(0)
        v_writelane_b32 v{VT+12}, s90, m0
        """)
    bp = cfg["bar_period"]
    if k % bp == 0:
        a(f"s_waitcnt vmcnt({4*(D-bp)})")
        if not cfg.get("no_bar"):
            a("s_barrier")
    if cfg.get("stamp"):
        a(f"""
        s_memtime s[90:91]
        s_waitcnt lgkmcnt(0)
        v_writelane_b32 v{VT+13}, s90, m0
        """)
    for i in range(32):
        seq = pre[i] + [mf[i]] + [t for _, t in front[i]] + [t for _, t in valu[i]] + tail[i]
        for t in seq:
            if t.endswith(":"):
                a.label(t[:-1])
            elif not skip(t, cfg):
                a(t)
    if k == 7:
        a("s_branch L_body_0")


def emit_rowmax(a, X, mx, t1):
    S = S_[X]
    out = [f"v_max3_f32 v{mx}, v{S}, v{S+1}, v{S+2}"]
    for r in range(3, 15, 2):
        out.append(f"v_max3_f32 v{mx}, v{mx}, v{S+r}, v{S+r+1}")
    out += [f"v_max_f32 v{mx}, v{mx}, v{S+15}", f"v_mov_b32 v{t1}, v{mx}", "s_nop 1",
            f"v_permlane32_swap_b32 v{mx}, v{t1}", "s_nop 1", f"v_max_f32 v{mx}, v{mx}, v{t1}"]
    return out


def emit_fallback(a, X):
    S = S_[X]; C = C_[X]; O = O_[X]; P = P_[X]
    mx, t1, f = VT, VT + 1, VT + 3
    a.label(f"L_sub_fb{X}")
    a("s_nop 7")
    for t in emit_rowmax(a, X, mx, t1):
        a(t)
    a(f"""
    v_max_f32 v{mx}, 0, v{mx}
    v_exp_f32 v{f}, -v{mx}
    v_add_f32 v{M_[X]}, v{M_[X]}, v{mx}
    """)
    for r in range(16):
        a(f"v_sub_f32 v{C+r}, v{C+r}, v{mx}")
        a(f"v_sub_f32 v{S+r}, v{S+r}, v{mx}")
    a(f"v_mul_f32 v{L_[X]}, v{L_[X]}, v{f}")
    for r in range(64):
        a(f"v_mul_f32 v{O+r}, v{O+r}, v{f}")
    for c, t in sm_stream(X, VT + 4):
        a(t)
    a(f"""
    s_nop 3
    s_setpc_b64 s[{s_ret}:{s_ret+1}]
    """)


def emit_patch(a):
    ninf = VT
    a.label("L_sub_patch")
    a(f"""
    s_nop 7
    v_mov_b32 v{ninf}, 0xff800000
    """)
    for r in range(16):
        cst = 8 * (r >> 2) + (r & 3)
        a(f"""
        s_sub_i32 s{s_mine+1}, s{s_rem}, {cst}
        v_cmp_gt_i32 vcc, s{s_mine+1}, v{VH4}
        s_nop 1
        v_cndmask_b32 v{C_[0]+r}, v{ninf}, v{C_[0]+r}, vcc
        v_cndmask_b32 v{C_[1]+r}, v{ninf}, v{C_[1]+r}, vcc
        """)
    a(f"""
    s_nop 3
    s_setpc_b64 s[{s_ret}:{s_ret+1}]
    """)


def emit_main(a, cfg):
    K = NAME + "_kernel"
    D = cfg["depth"]
    assert D <= 7
    a.raw(f".globl {K}\n.p2align 8\n.type {K},@function")
    a.label(K)
    t0, t1, t2, t3 = VT + 11, VT + 12, VT + 13, VT + 14
    VCL = VT + 10
    def sstamp(n):
        if cfg.get("stamp"):
            a(f"""
            s_memtime s[90:91]
            s_waitcnt lgkmcnt(0)
            s_mov_b32 s{n}, s90
            """)
    def pstamp(n):
        if cfg.get("stamp"):
            a(f"""
            s_memtime s[90:91]
            s_waitcnt lgkmcnt(0)
            v_writelane_b32 v{VT+12}, s90, {40+n}
            """)
    a(f"""
    s_cmp_ge_u32 s{s_wg}, 256
    s_cbranch_scc1 L_end
    s_load_dwordx16 s[4:19], s[0:1], 0
    v_lshrrev_b32 v{VT}, 6, v0
    v_and_b32 v{VLANE}, 63, v0
    s_lshr_b32 s{s_h}, s{s_wg}, 1
    v_readfirstlane_b32 s{s_w}, v{VT}
    s_and_b32 s{s_h}, s{s_h}, 3
    s_and_b32 s{s_t0}, s{s_wg}, 1
    s_lshl_b32 s{s_t0}, s{s_t0}, 5
    s_lshr_b32 s{s_slot}, s{s_wg}, 3
    s_or_b32 s{s_slot}, s{s_slot}, s{s_t0}
    v_and_b32 v{VT+1}, 7, v{VLANE}
    v_lshlrev_b32 v{VT+1}, 2, v{VT+1}
    v_lshlrev_b32 v{VT+2}, 7, v{VLANE}
    """)
    if cfg["fused"]:
        a(f"s_memrealtime s[{s_mine}:{s_mine+1}]")
    if cfg.get("stamp"):
        a("s_memtime s[92:93]")
    if cfg.get("stamp") or cfg.get("pad_to_us"):
        a("s_memrealtime s[100:101]")
    a(f"""
    s_and_b32 s{s_t0}, s{s_w}, 1
    s_lshl_b32 s{s_t0}, s{s_t0}, 3               ; 8*(w&1)
    s_lshl_b32 s{s_t0+1}, s{s_h}, 8              ; h*256
    v_lshrrev_b32 v{t0}, 4, v{VLANE}             ; l>>4
    v_and_b32 v{t1}, 15, v{VLANE}                ; pc
    v_add_u32 v{t2}, s{s_t0}, v{t0}              ; R&15 for x=0
    v_xor_b32 v{t3}, v{t1}, v{t2}
    v_lshlrev_b32 v{t3}, 4, v{t3}
    v_lshl_add_u32 v{t3}, v{t2}, 10, v{t3}
    v_add_u32 v{VOFFK}, s{s_t0+1}, v{t3}
    v_add_u32 v{t2}, 4, v{t2}                    ; R&15 for x=1
    v_xor_b32 v{t3}, v{t1}, v{t2}
    v_lshlrev_b32 v{t3}, 4, v{t3}
    v_lshl_add_u32 v{t3}, v{t2}, 10, v{t3}
    v_add_u32 v{t3}, s{s_t0+1}, v{t3}
    v_add_u32 v{VOFFK+1}, 0xfffffc00, v{t3}
    v_lshlrev_b32 v{t3}, 2, v{t0}
    v_xor_b32 v{t3}, v{t1}, v{t3}
    v_lshlrev_b32 v{t3}, 4, v{t3}
    v_add_u32 v{t2}, s{s_t0}, v{t0}
    v_lshl_add_u32 v{t3}, v{t2}, 10, v{t3}
    v_add_u32 v{VOFFV}, s{s_t0+1}, v{t3}
    v_add_u32 v{VOFFV+1}, 0xc00, v{VOFFV}        ; +4096 -1024
    s_lshl_b32 s{s_m0k}, s{s_w}, 11
    s_add_u32 s{s_m0v}, s{s_m0k}, 0x10000
    s_mov_b32 s{s_thr[0]}, 0x{f32bits(2.0**cfg["thr_log2"]):x}
    s_mov_b32 s{s_thr[1]}, 0x{f32bits(2.0**cfg["thr_log2"]):x}
    s_mov_b32 s{s_i}, 0
    s_mov_b32 s{s_idx}, {D+1}
    v_lshrrev_b32 v{t0}, 5, v{VLANE}            ; h2
    v_lshlrev_b32 v{VH4}, 2, v{t0}
    v_lshrrev_b32 v{t2}, 4, v{VLANE}
    v_xor_b32 v{t3}, v{t1}, v{t2}
    v_lshlrev_b32 v{t3}, 4, v{t3}
    v_lshl_add_u32 v{ET}, v{t2}, 8, v{t3}        ; Q voffset (j&3 == 0)
    v_xor_b32 v{ET+1}, 64, v{ET}
    v_xor_b32 v{ET+2}, 0x80, v{ET}
    v_xor_b32 v{ET+3}, 0xc0, v{ET}
    v_lshlrev_b32 v{ET+4}, 3, v{VLANE}
    s_lshl_b32 s{s_qlds}, s{s_w}, 13
    s_add_u32 s{s_qlds}, s{s_qlds}, 0x20000      ; Q_A staging : 128K + w*8K
    s_and_b32 s{s_t0}, s{s_w}, 1
    s_lshl_b32 s{s_t0}, s{s_t0}, 13
    s_lshr_b32 s{s_t0+1}, s{s_w}, 1
    s_lshl_b32 s{s_t0+1}, s{s_t0+1}, 16
    s_add_u32 s{s_t0}, s{s_t0}, s{s_t0+1}
    s_add_u32 s{s_qlds+1}, s{s_t0}, 0xc000
    s_waitcnt lgkmcnt(0)
    """)
    emit_srd(a, SRD_X, s_cl, 32)
    a(f"buffer_load_dword v{VCL}, v{VT+1}, s[{SRD_X}:{SRD_X+3}], 0 offen")
    emit_srd(a, SRD_BT, s_bt, BT_BYTES)
    emit_srd(a, SRD_Q, s_q, Q_BYTES)
    nwarm = 0
    if cfg["warm"]:
        a(f"""
        s_lshr_b32 s{s_t0}, s{s_wg}, 3
        s_lshr_b32 s{s_t0+1}, s{s_t0}, 2
        s_lshl_b32 s{s_t0+1}, s{s_t0+1}, 18          ; b*262144
        s_and_b32 s{s_t0+2}, s{s_t0}, 3
        s_lshl_b32 s{s_t0+2}, s{s_t0+2}, 14
        s_add_u32 s{s_t0+1}, s{s_t0+1}, s{s_t0+2}
        s_lshl_b32 s{s_t0+2}, s{s_h}, 16
        s_add_u32 s{s_t0+1}, s{s_t0+1}, s{s_t0+2}
        s_lshl_b32 s{s_t0+2}, s{s_w}, 13
        s_add_u32 s{s_t0+1}, s{s_t0+1}, s{s_t0+2}
        s_lshl_b32 s{s_t0}, s{s_t0}, 9
        s_cmp_lt_u32 s{s_w}, 2
        s_cselect_b32 s{s_t0+1}, s{s_t0+1}, 0x80000000
        s_cmp_eq_u32 s{s_w}, 2
        s_cselect_b32 s{s_t0}, s{s_t0}, 0x80000000
        v_min_u32 v{VT+3}, 0x180, v{VT+2}
        buffer_load_dword v{P_[0]}, v{VT+2}, s[{SRD_Q}:{SRD_Q+3}], s{s_t0+1} offen
        buffer_load_dword v{P_[0]+1}, v{VT+3}, s[{SRD_BT}:{SRD_BT+3}], s{s_t0} offen
        """)
        nwarm = 2
    emit_srd(a, SRD_K, s_k, KV_BYTES)
    emit_srd(a, SRD_V, s_v, KV_BYTES)
    emit_srd(a, SRD_WS, s_ws, WS_BYTES)
    sstamp(88)
    a(f"""
    v_and_b32 v{t1}, 31, v{VLANE}               ; key / q
    v_and_b32 v{t2}, 15, v{VLANE}
    v_xor_b32 v{t2}, v{t2}, v{t0}               ; (key&15)^h2
    v_lshlrev_b32 v{t2}, 4, v{t2}
    v_lshl_add_u32 v{KADDR}, v{t1}, 8, v{t2}
    """)
    for s in range(1, 8):
        a(f"v_xor_b32 v{KADDR+s}, {s << 5}, v{KADDR}")
    a(f"""
    v_bfe_u32 v{t1}, v{VLANE}, 2, 2              ; r
    v_add_u32 v{t2}, v{VH4}, v{t1}               ; 4h2 + r
    v_lshlrev_b32 v{t2}, 8, v{t2}
    v_bfe_u32 v{t3}, v{VLANE}, 4, 1              ; sub
    v_lshl_add_u32 v{t2}, v{t3}, 5, v{t2}
    v_and_b32 v{t3}, 3, v{VLANE}                 ; c
    v_lshl_add_u32 v{t2}, v{t3}, 3, v{t2}
    v_add_u32 v{t2}, 0x10000, v{t2}
    v_lshl_add_u32 v{VADDR}, v{t1}, 6, v{t2}     ; dt=0 : (0^r)<<6
    """)
    for dt in range(1, 4):
        a(f"v_xor_b32 v{VADDR+dt}, {dt << 6}, v{VADDR}")
    a(f"s_waitcnt vmcnt({nwarm})")
    sstamp(89)
    st = s_t0
    R = emit_partition(a, VLANE, VCL, VT, st)
    sn, sincl, sLm1, scl, sq, sr, sj = st + 4, st + 5, st + 6, st + 7, st + 8, st + 9, st + 10
    a(f"""
    v_cmp_lt_u32 vcc, s{s_slot}, v{R['incl']}
    s_and_b64 vcc, vcc, s[{st+2}:{st+3}]
    s_cbranch_scc0 L_end
    s_ff1_i32_b64 s{st}, vcc
    s_and_b32 s{s_b}, s{st}, 7
    v_readlane_b32 s{sn}, v{R['n']}, s{st}
    v_readlane_b32 s{sincl}, v{R['incl']}, s{st}
    v_readlane_b32 s{sq}, v{R['q']}, s{st}
    v_readlane_b32 s{sr}, v{R['r']}, s{st}
    v_readlane_b32 s{sLm1}, v{R['Lm1']}, s{st}
    v_readlane_b32 s{scl}, v{VCL}, s{st}
    s_lshl_b32 s{st+2}, s{s_b}, 5
    s_lshl_b32 s{st+1}, s{s_h}, 3
    s_add_u32 s{st+2}, s{st+2}, s{st+1}
    s_lshl_b32 s{st+1}, s{s_w}, 1
    s_add_u32 s{st+2}, s{st+2}, s{st+1}
    s_lshl_b32 s{st+2}, s{st+2}, 13              ; Q base = ((b*32 + 8h + 2w)*32)*256
    s_add_u32 s{st+3}, s{st+2}, 0x2000
    s_sub_u32 s{sj}, s{sincl}, s{sn}
    s_sub_u32 s{sj}, s{s_slot}, s{sj}            ; j = slot - E_b
    s_mul_i32 s{s_start}, s{sj}, s{sq}
    s_min_u32 s{st}, s{sj}, s{sr}
    s_add_u32 s{s_start}, s{s_start}, s{st}
    s_lshl_b32 s{st}, s{s_b}, 9
    s_lshl_b32 s{st+1}, s{s_start}, 1
    s_add_u32 s{st}, s{st}, s{st+1}
    s_lshr_b32 s{st+1}, s{s_w}, 1
    s_add_u32 s{st}, s{st}, s{st+1}
    s_lshl_b32 s{st}, s{st}, 2
    buffer_load_dword v{PAGES}, v{ET+4}, s[{SRD_BT}:{SRD_BT+3}], s{st} offen
    """)
    def qload(X):
        for hf in range(2):
            a(f"s_add_u32 m0, s{s_qlds+X}, {4096*hf}")
            a(f"s_add_u32 s{s_qb+2}, s{s_qb+X}, {4096*hf}")
            for j in range(4):
                a(f"buffer_load_dwordx4 v{ET+j}, s[{SRD_Q}:{SRD_Q+3}], s{s_qb+2} offen offset:{1024*j} lds")
    a(f"""
    s_mov_b32 s{s_qb}, s{st+2}
    s_mov_b32 s{s_qb+1}, s{st+3}
    """)
    qload(0)
    a(f"""
    s_cmp_lt_u32 s{sj}, s{sr}
    s_addc_u32 s{s_n}, s{sq}, 0                  ; n = q + (j<r)
    s_min_u32 s{s_n}, s{s_n}, 54
    s_and_b32 s{s_rem}, s{sLm1}, 31
    s_add_u32 s{s_rem}, s{s_rem}, 1
    s_add_u32 s{st}, s{sj}, 1
    s_cmp_eq_u32 s{st}, s{sn}
    s_cselect_b32 s{s_rem}, s{s_rem}, 32
    s_sub_u32 s{s_patch}, s{s_n}, 2
    s_cmp_lt_u32 s{s_rem}, 32
    s_cselect_b32 s{s_patch}, s{s_patch}, 0x7fffffff
    s_mov_b32 s{s_scale}, 0x{f32bits(SCALE):x}
    s_cmp_lt_i32 s{scl}, 1
    s_cselect_b32 s{s_scale}, 0, s{s_scale}
    s_mov_b32 s{s_scale+1}, s{s_scale}
    s_lshl_b32 s{s_wgslot}, s{s_h}, 6
    s_add_u32 s{s_wgslot}, s{s_wgslot}, s{s_slot}
    s_min_u32 s{s_nb}, s{sn}, 64
    s_mov_b32 s{s_jj}, s{sj}
    s_sub_u32 s{s_E}, s{s_wgslot}, s{sj}
    """)
    sstamp(93)
    nz = cfg["zero_early"]
    for r in range(64, 64 + nz):
        a(f"v_mov_b32 v{r}, 0")
    a(f"""
    v_mov_b32 v{t2}, 0x80000000
    v_cmp_gt_u32 vcc, s{s_n}, v{VLANE}
    s_waitcnt vmcnt(8)
    v_lshlrev_b32 v{PAGES}, 14, v{PAGES}
    v_cndmask_b32 v{PAGES}, v{t2}, v{PAGES}, vcc
    s_nop 0
    """)
    for j in range(D + 1):
        a(f"v_readlane_b32 s{st+j}, v{PAGES}, {j}")
    a("s_nop 3")
    vm = ["QA"] * 8
    def vwait(tag):
        idx = max(i for i, t in enumerate(vm) if t == tag)
        a(f"s_waitcnt vmcnt({len(vm) - 1 - idx})")
    def issue(lst, tag):
        a(lst[0]); a("s_nop 0"); a(lst[2]); a(lst[3])
        vm.extend([tag, tag])
    pairs = [("K", 0)]
    for j in range(D):
        pairs += [("K", j + 1), ("V", j)]
    def pair():
        if not pairs:
            return
        kind, j = pairs.pop(0)
        issue(dma_k(None, j, st + j) if kind == "K" else dma_v(None, j, st + j), f"{kind}{j}")
    QRAW = {0: 0, 1: 128}
    def qread(X):
        for s in range(8):
            a(f"v_add_u32 v{VT+4+s}, s{s_qlds+X}, v{KADDR+s}")
        for s in range(8):
            r = QRAW[X] + 4 * s
            a(f"ds_read_b128 v[{r}:{r+3}], v{VT+4+s}")
    def prescale(X, packed):
        out = []
        for i in range(32):
            r = QRAW[X] + i
            ta, tb = VT + (i & 1) * 2, VT + (i & 1) * 2 + 1
            g = []
            if i % 4 == 0:
                g.append(f"s_waitcnt lgkmcnt({7 - i // 4})")
            g += [f"v_lshlrev_b32 v{ta}, 16, v{r}", f"v_and_b32 v{tb}, 0xffff0000, v{r}"]
            if packed(i):
                g.append(f"v_pk_mul_f32 v[{ta}:{tb}], v[{ta}:{tb}], s[{s_scale}:{s_scale+1}]")
            else:
                g += [f"v_mul_f32 v{ta}, s{s_scale}, v{ta}", f"v_mul_f32 v{tb}, s{s_scale}, v{tb}"]
            g += [f"v_cvt_pk_bf16_f32 v{ta}, v{ta}, v{tb}", f"v_accvgpr_write_b32 a{32*X+i}, v{ta}"]
            out.append(g)
        return out
    pstamp(0)
    for _ in range(cfg["pp0"]):
        pair()
    qload(1); vm.extend(["QB"] * 8)
    for _ in range(cfg["pp1"]):
        pair()
    pstamp(1)
    for r in list(range(64 + nz, 128)) + list(range(160, 208)) + list(range(32, 64)):
        a(f"v_mov_b32 v{r}, 0")
    for r in range(32):
        a(f"v_accvgpr_write_b32 a{AV+r}, 0")
    a(f"""
    v_mov_b32 v{L_[0]}, 0
    v_mov_b32 v{L_[1]}, 0
    s_cmp_eq_u32 s{s_patch}, -1
    s_cbranch_scc0 L_nopatch0
    s_call_b64 s[{s_ret}:{s_ret+1}], L_sub_patch
    """)
    a.label("L_nopatch0")
    vwait("QA")
    pstamp(10)
    qread(0)
    for i, g in enumerate(prescale(0, lambda i: cfg["pk"])):
        for t in g:
            a(t)
        if i in cfg["ppA"]:
            pair()
    pstamp(2)
    vwait("QB")
    pstamp(11)
    qread(1)
    for i, g in enumerate(prescale(1, lambda i: cfg["pk"])):
        for t in g:
            a(t)
        if i in cfg["ppB"]:
            pair()
    pstamp(3)
    vwait("K0")
    pstamp(4)
    a("s_barrier")
    pstamp(12)
    for s in range(8):
        a(k_read(s, 0))
    for s in range(8):
        a(f"s_waitcnt lgkmcnt({7-s})")
        a(mfma_qk(0, s))
        if s in cfg["ppQ"]:
            pair()
        for r in range(128 + 4 * s, 132 + 4 * s):
            a(f"v_mov_b32 v{r}, 0")
    a(mfma_qk(1, 0))
    a("s_nop 7")
    mxa = emit_rowmax(a, 0, M_[0], VT)
    mxa += [f"v_sub_f32 v{S_[0]+r}, v{S_[0]+r}, v{M_[0]}" for r in range(16)]
    mxa += [f"v_sub_f32 v{C_[0]+r}, v{C_[0]+r}, v{M_[0]}" for r in range(16)]
    for s in range(1, 8):
        a(mfma_qk(1, s))
        for _ in range(5):
            a(mxa.pop(0))
    while pairs:
        pair()
    a(f"s_mov_b32 s{s_pg[1]}, s{st+D}")
    while mxa:
        a(mxa.pop(0))
    a("s_nop 7")
    for t in emit_rowmax(a, 1, M_[1], VT):
        a(t)
    for r in range(16):
        a(f"v_sub_f32 v{C_[1]+r}, v{C_[1]+r}, v{M_[1]}")
    if cfg["fused"]:
        emit_srd(a, SRD_X, s_dbg, 256)
        a(f"""
        s_or_b32 s{s_mine}, s{s_mine}, 1
        v_mov_b32 v{VT+10}, s{s_mine}
        v_mov_b32 v{VT+11}, 0
        s_cmp_eq_u32 s{s_w}, 0
        s_cselect_b32 s{st}, 0, 0x80000000
        s_mov_b64 exec, 1
        buffer_atomic_cmpswap v[{VT+10}:{VT+11}], v{VT+11}, s[{SRD_X}:{SRD_X+3}], s{st} offen sc0
        s_mov_b64 exec, -1
        """)
    sstamp(94)
    sstamp(95)
    pre, front, valu, tail = plan_body(7, cfg)
    hd = [t for g in range(32 - cfg["delta"], 32) for _, t in valu[g]
          if not t.startswith(f"v_add_f32 v{L_[1]},")]
    for t in hd:
        a(t)
    a("s_nop 1")
    tramps = []
    for k in range(8):
        emit_body(a, k, tramps, cfg)
    a.label("L_drain")
    if cfg.get("stamp"):
        a(f"""
        s_memtime s[90:91]
        s_waitcnt lgkmcnt(0)
        s_mov_b32 s96, s90
        """)
    def conv(X, dt):
        o = O_[X] + 16 * dt
        d = 8 * (4 * X + dt)
        out = [f"v_cvt_pk_bf16_f32 v{d+j}, v{o+2*j}, v{o+2*j+1}" for j in range(8)]
        out.append(f"s_add_u32 s{st+1}, s{st}, {X*8192 + dt*2048}")
        out.append(f"buffer_store_dwordx4 v[{d}:{d+3}], v{VT+4}, s[{SRD_WS}:{SRD_WS+3}], s{st+1} offen{cfg['st_flags']}")
        out.append(f"buffer_store_dwordx4 v[{d+4}:{d+7}], v{VT+4}, s[{SRD_WS}:{SRD_WS+3}], s{st+1} offen offset:1024{cfg['st_flags']}")
        return out
    ep = f"""
    v_mov_b32 v{VT}, v{L_[0]}
    v_mov_b32 v{VT+1}, v{L_[1]}
    s_lshl_b32 s{st}, s{s_wgslot}, 16
    s_lshl_b32 s{st+1}, s{s_w}, 14
    s_add_u32 s{st}, s{st}, s{st+1}
    v_permlane32_swap_b32 v{L_[0]}, v{VT}
    v_permlane32_swap_b32 v{L_[1]}, v{VT+1}
    v_lshlrev_b32 v{VT+4}, 4, v{VLANE}
    v_mov_b32 v{VT+6}, v{M_[0]}
    v_add_f32 v{VT+7}, v{L_[0]}, v{VT}
    v_mov_b32 v{VT+8}, v{M_[1]}
    v_add_f32 v{VT+9}, v{L_[1]}, v{VT+1}
    """.strip().split("\n")
    ep += conv(0, 0) + conv(0, 1) + conv(0, 2) + conv(0, 3)
    for f in range(8):
        a(mfma_pv(1, f))
        for _ in range(6):
            a(ep.pop(0))
    while ep:
        a(ep.pop(0))
    a("s_nop 7")
    for dt in range(4):
        for t in conv(1, dt):
            a(t)
    a(f"""
    s_lshl_b32 s{st}, s{s_wgslot}, 11
    s_lshl_b32 s{st+1}, s{s_w}, 9
    s_add_u32 s{st}, s{st}, s{st+1}
    s_add_u32 s{st}, s{st}, 0x{WS_ML:x}
    v_lshlrev_b32 v{VT+4}, 3, v{VLANE}
    s_mov_b32 exec_hi, 0
    buffer_store_dwordx2 v[{VT+6}:{VT+7}], v{VT+4}, s[{SRD_WS}:{SRD_WS+3}], s{st} offen{cfg['st_flags']}
    buffer_store_dwordx2 v[{VT+8}:{VT+9}], v{VT+4}, s[{SRD_WS}:{SRD_WS+3}], s{st} offen offset:256{cfg['st_flags']}
    """)
    if cfg["fused"]:
        emit_fused_combine(a, cfg, sstamp)
    if cfg.get("stamp"):
        a(f"""
        s_mov_b64 exec, -1
        s_waitcnt vmcnt(0)
        s_memtime s[90:91]
        s_memrealtime s[86:87]
        s_getreg_b32 s98, hwreg(HW_REG_XCC_ID)
        s_waitcnt lgkmcnt(0)
        v_mov_b32 v{VT+14}, 0
        v_writelane_b32 v{VT+14}, s92, 0
        v_writelane_b32 v{VT+14}, s93, 1
        v_writelane_b32 v{VT+14}, s94, 2
        v_writelane_b32 v{VT+14}, s95, 3
        v_writelane_b32 v{VT+14}, s96, 4
        v_writelane_b32 v{VT+14}, s90, 5
        v_writelane_b32 v{VT+14}, s{s_n}, 6
        v_writelane_b32 v{VT+14}, s98, 7
        v_writelane_b32 v{VT+14}, s100, 8
        v_writelane_b32 v{VT+14}, s86, 9
        v_writelane_b32 v{VT+14}, s88, 10
        v_writelane_b32 v{VT+14}, s89, 11
        v_writelane_b32 v{VT+14}, s97, 12
        v_writelane_b32 v{VT+14}, s99, 13
        s_lshl_b32 s{st}, s{s_wg}, 12
        s_lshl_b32 s{st+1}, s{s_w}, 10
        s_add_u32 s{st}, s{st}, s{st+1}
        s_add_u32 s{st}, s{st}, 0x{WS_DBG:x}
        v_lshlrev_b32 v{VT}, 2, v{VLANE}
        buffer_store_dword v{VT+12}, v{VT}, s[{SRD_WS}:{SRD_WS+3}], s{st} offen
        buffer_store_dword v{VT+13}, v{VT}, s[{SRD_WS}:{SRD_WS+3}], s{st} offen offset:256
        buffer_store_dword v{VT+14}, v{VT}, s[{SRD_WS}:{SRD_WS+3}], s{st} offen offset:512
        """)
    if cfg.get("pad_to_us"):
        a(f"""
        s_waitcnt vmcnt(0)
        s_add_u32 s92, s100, {int(cfg["pad_to_us"]*100)}
        """)
    if cfg.get("delay_us"):
        a(f"""
        s_memrealtime s[90:91]
        s_waitcnt lgkmcnt(0)
        s_add_u32 s92, s90, {int(cfg["delay_us"]*100)}
        """)
    if cfg.get("delay_us") or cfg.get("pad_to_us"):
        a.label("L_delay")
        a(f"""
        s_sleep 4
        s_memrealtime s[90:91]
        s_waitcnt lgkmcnt(0)
        s_sub_u32 s93, s92, s90
        s_cmp_gt_i32 s93, 0
        s_cbranch_scc1 L_delay
        """)
    a.label("L_end")
    a("s_endpgm")
    for lab, sub, ret in tramps:
        a.label(lab)
        a(f"s_call_b64 s[{s_ret}:{s_ret+1}], {sub}")
        a(f"s_branch {ret}")
    emit_fallback(a, 0)
    emit_fallback(a, 1)
    emit_patch(a)


def emit_fused_combine(a, cfg, sstamp):
    st = s_t0
    ldf = cfg["cld_flags"]
    s_nonce, s_to, s_mask, s_done, s_rdy, s_r0 = 54, 55, 56, 62, 64, 78
    s_sig, s_cnt, s_step, s_o, s_ml, s_two = 66, 68, 69, 70, 72, 76
    SJ = lambda k: 44 + k
    OB = lambda k: 16 * k
    MLB = lambda k: 128 + 2 * k
    ACC = 160
    MX, DEN, MN = 192, 194, 196
    SC, W, U0, U1 = 198, 204, 200, 201
    VO, VML, VOUT, VF, VFO = 206, 207, 208, 209, 210
    WSR = f"s[{SRD_WS}:{SRD_WS+3}]"
    LA = cfg["clook"]
    def cst(n):
        if cfg.get("stamp"):
            a(f"""
            s_memtime s[90:91]
            s_waitcnt lgkmcnt(0)
            v_writelane_b32 v{VT+12}, s90, {53+n}
            """)
    a(f"""
    s_mov_b64 exec, -1
    s_waitcnt vmcnt(18)
    v_readfirstlane_b32 s{s_nonce}, v{VT+10}
    v_lshlrev_b32 v{VO}, 4, v{VLANE}
    v_and_b32 v{VML}, 31, v{VLANE}
    v_lshlrev_b32 v{VOUT}, 8, v{VML}
    v_lshl_add_u32 v{VOUT}, v{VH4}, 2, v{VOUT}   ; q*256 + h2*16
    v_lshlrev_b32 v{VML}, 3, v{VML}
    v_lshlrev_b32 v{VFO}, 2, v{VLANE}
    v_cmp_gt_u32 vcc, s{s_nb}, v{VLANE}
    s_mov_b64 s[{s_mask}:{s_mask+1}], vcc
    s_lshl_b32 s{s_step}, s{s_nb}, 2
    s_lshl_b32 s{s_sig}, s{s_jj}, 2
    s_add_u32 s{s_sig}, s{s_sig}, s{s_w}
    s_cmp_lt_u32 s{s_nb}, 8
    s_cselect_b32 s{s_two}, 1, 0
    s_lshl_b32 s{s_sig}, s{s_sig}, s{s_two}
    s_lshl_b32 s{s_step}, s{s_step}, s{s_two}
    s_cmp_eq_u32 s{s_nonce}, 0
    s_cselect_b32 s{s_nonce}, s{s_mine}, s{s_nonce}
    v_mov_b32 v{VF}, s{s_nonce}
    v_mov_b32 v{U0}, 0x20000
    s_lshl_b32 s{s_mine+1}, s{s_b}, 2
    s_add_u32 s{s_mine+1}, s{s_mine+1}, s{s_h}
    s_lshl_b32 s{s_mine+1}, s{s_mine+1}, 8
    s_add_u32 s{s_mine+1}, s{s_mine+1}, 0x{WS_FLAG:x}
    s_mov_b32 s{s_to}, {cfg["poll_max"]}
    s_cmp_lg_u32 s{s_w}, 0
    s_cbranch_scc1 L_fc_nz
    ds_write_b32 v{U0}, v{VF}
    """)
    a.label("L_fc_nz")
    emit_srd(a, SRD_X, s_out, Q_BYTES)
    a(f"""
    s_waitcnt vmcnt(0) lgkmcnt(0)
    s_barrier
    s_cmp_lg_u32 s{s_w}, 0
    s_cbranch_scc1 L_fc_nz2
    s_lshl_b32 s{st}, s{s_jj}, 2
    s_add_u32 s{st}, s{st}, s{s_mine+1}
    s_mov_b64 exec, 1
    buffer_store_dword v{VF}, v{VT+11}, {WSR}, s{st} offen sc1
    s_mov_b64 exec, -1
    """)
    a.label("L_fc_nz2")
    sstamp(97)
    a(f"""
    ds_read_b32 v{VF}, v{U0}
    s_cmp_ge_u32 s{s_sig}, 32
    s_cbranch_scc1 L_fc_end
    s_waitcnt lgkmcnt(0)
    v_readfirstlane_b32 s{s_nonce}, v{VF}
    """)
    a.label("L_fc_outer")
    a(f"""
    s_mov_b64 s[{s_done}:{s_done+1}], 0
    s_lshl_b32 s{s_o}, s{s_sig}, 11
    s_lshr_b32 s{s_ml}, s{s_sig}, 2
    s_lshl_b32 s{s_ml}, s{s_ml}, 8
    s_add_u32 s{s_ml}, s{s_ml}, 0x{WS_ML:x}
    v_mov_b32 v{MX}, 0xff800000
    v_mov_b32 v{DEN}, 0
    """)
    for r in range(32):
        a(f"v_mov_b32 v{ACC+r}, 0")
    a.label("L_fc_poll")
    a(f"""
    buffer_load_dword v{VF}, v{VFO}, {WSR}, s{s_mine+1} offen sc1
    s_waitcnt vmcnt(0)
    v_cmp_eq_u32 vcc, s{s_nonce}, v{VF}
    s_and_b64 s[{s_rdy}:{s_rdy+1}], vcc, s[{s_mask}:{s_mask+1}]
    s_andn2_b64 s[{s_rdy}:{s_rdy+1}], s[{s_rdy}:{s_rdy+1}], s[{s_done}:{s_done+1}]
    s_cbranch_scc1 L_fc_go
    s_sleep {cfg["poll_sleep"]}
    s_sub_u32 s{s_to}, s{s_to}, 1
    s_cmp_lg_u32 s{s_to}, 0
    s_cbranch_scc1 L_fc_poll
    s_branch L_fc_store
    """)
    a.label("L_fc_go")
    sstamp(99)
    a(f"""
    s_mov_b64 s[{s_r0}:{s_r0+1}], s[{s_rdy}:{s_rdy+1}]
    v_mov_b32 v{MN}, v{MX}
    """)
    for k in range(8):
        a(f"""
        s_ff1_i32_b64 s{st}, s[{s_rdy}:{s_rdy+1}]
        s_bitset0_b64 s[{s_rdy}:{s_rdy+1}], s{st}
        s_add_u32 s{st}, s{st}, s{s_E}
        s_lshl_b32 s{SJ(k)}, s{st}, 16
        s_lshl_b32 s{st}, s{st}, 11
        s_add_u32 s{st}, s{st}, s{s_ml}
        s_add_u32 s{SJ(k)}, s{SJ(k)}, s{s_o}
        s_mov_b32 s{s_cnt}, {k+1}
        buffer_load_dwordx2 v[{MLB(k)}:{MLB(k)+1}], v{VML}, {WSR}, s{st} offen{ldf}
        """)
        if k < 7:
            a(f"""
            s_cmp_eq_u64 s[{s_rdy}:{s_rdy+1}], 0
            s_cbranch_scc1 L_fc_taken
            """)
    a.label("L_fc_taken")
    a(f"""
    s_andn2_b64 s[{s_r0}:{s_r0+1}], s[{s_r0}:{s_r0+1}], s[{s_rdy}:{s_rdy+1}]
    s_or_b64 s[{s_done}:{s_done+1}], s[{s_done}:{s_done+1}], s[{s_r0}:{s_r0+1}]
    s_cmp_eq_u32 s{s_two}, 1
    s_cbranch_scc1 L_fc_r2
    """)
    for NS in (1, 2):
        tag = f"r{NS}"
        a.label(f"L_fc_{tag}")
        def oload(k):
            for c in range(2 * NS):
                a(f"buffer_load_dwordx4 v[{OB(k)+4*c}:{OB(k)+4*c+3}], v{VO}, {WSR}, s{SJ(k)} offen offset:{1024*c}{ldf}")
        for k in range(7, -1, -1):
            a(f"""
            s_cmp_le_u32 s{s_cnt}, {k}
            s_cbranch_scc1 L_fc_{tag}_p{k}
            """)
            if k + LA < 8:
                a(f"""
                s_cmp_gt_u32 s{s_cnt}, {k + LA}
                s_cbranch_scc1 L_fc_{tag}_pd
                """)
            oload(k)
            a.label(f"L_fc_{tag}_p{k}")
        a.label(f"L_fc_{tag}_pd")
        cst(0)
        for c in range(1, LA):
            a(f"""
            s_cmp_eq_u32 s{s_cnt}, {c}
            s_cbranch_scc0 L_fc_{tag}_w{c}
            s_waitcnt vmcnt({2*NS*c})
            """)
            a.label(f"L_fc_{tag}_w{c}")
        a(f"s_waitcnt vmcnt({2*NS*LA})")
        cst(1)
        for k in range(8):
            if k:
                a(f"""
                s_cmp_le_u32 s{s_cnt}, {k}
                s_cbranch_scc1 L_fc_{tag}_max
                """)
            a(f"v_max_f32 v{MN}, v{MN}, v{MLB(k)}")
        a.label(f"L_fc_{tag}_max")
        a(f"""
        v_sub_f32 v{SC}, v{MX}, v{MN}
        v_exp_f32 v{SC}, v{SC}
        v_mov_b32 v{MX}, v{MN}
        v_mul_f32 v{DEN}, v{DEN}, v{SC}
        """)
        for r in range(16 * NS):
            a(f"v_mul_f32 v{ACC+r}, v{ACC+r}, v{SC}")
        for k in range(7, -1, -1):
            if k:
                a(f"""
                s_cmp_le_u32 s{s_cnt}, {k}
                s_cbranch_scc1 L_fc_{tag}_u{k}
                """)
            if k - LA >= 0:
                oload(k - LA)
            a(f"""
            v_sub_f32 v{W}, v{MLB(k)}, v{MN}
            v_exp_f32 v{W}, v{W}
            s_waitcnt vmcnt({2*NS*min(k, LA) + 2*NS - 1})
            v_fmac_f32 v{DEN}, v{W}, v{MLB(k)+1}
            """)
            for r in range(8 * NS):
                u0, u1 = U0 + 2 * (r & 1), U1 + 2 * (r & 1)
                if r and r % 4 == 0:
                    a(f"s_waitcnt vmcnt({2*NS*min(k, LA) + 2*NS - 1 - r//4})")
                a(f"""
                v_lshlrev_b32 v{u0}, 16, v{OB(k)+r}
                v_and_b32 v{u1}, 0xffff0000, v{OB(k)+r}
                """)
                if cfg["cpk"]:
                    a(f"v_pk_fma_f32 v[{ACC+2*r}:{ACC+2*r+1}], v[{u0}:{u1}], v[{W}:{W+1}], v[{ACC+2*r}:{ACC+2*r+1}] op_sel_hi:[1,0,1]")
                else:
                    a(f"""
                    v_fmac_f32 v{ACC+2*r}, v{W}, v{u0}
                    v_fmac_f32 v{ACC+2*r+1}, v{W}, v{u1}
                    """)
            a.label(f"L_fc_{tag}_u{k}")
        cst(2)
        a(f"""
        s_cmp_lg_u64 s[{s_done}:{s_done+1}], s[{s_mask}:{s_mask+1}]
        s_cbranch_scc1 L_fc_poll
        """)
        if NS == 1:
            a("s_branch L_fc_store")
    a.label("L_fc_store")
    cst(3)
    a(f"""
    v_rcp_f32 v{SC}, v{DEN}
    s_lshl_b32 s{st}, s{s_b}, 2
    s_add_u32 s{st}, s{st}, s{s_h}
    s_lshl_b32 s{st}, s{st}, 16                  ; (b*32 + 8h)*8192
    s_lshr_b32 s{st+1}, s{s_sig}, 2
    s_lshl_b32 s{st+1}, s{st+1}, 13
    s_add_u32 s{st}, s{st}, s{st+1}
    s_and_b32 s{st+1}, s{s_sig}, 3
    s_lshl_b32 s{st+1}, s{st+1}, 6
    s_add_u32 s{st}, s{st}, s{st+1}
    """)
    for X in range(2):
        if X:
            a(f"""
            s_cmp_eq_u32 s{s_two}, 0
            s_cbranch_scc1 L_fc_end
            """)
        A0 = ACC + 16 * X
        for r in range(16):
            a(f"v_mul_f32 v{A0+r}, v{A0+r}, v{SC}")
        for r in range(8):
            a(f"v_cvt_pk_bf16_f32 v{A0+r}, v{A0+2*r}, v{A0+2*r+1}")
        a("s_nop 1")
        for pr in range(2):
            a(f"v_permlane32_swap_b32 v{A0+4*pr}, v{A0+4*pr+2}")
            a(f"v_permlane32_swap_b32 v{A0+4*pr+1}, v{A0+4*pr+3}")
        for pr in range(2):
            a(f"buffer_store_dwordx4 v[{A0+4*pr}:{A0+4*pr+3}], v{VOUT}, s[{SRD_X}:{SRD_X+3}], s{st} offen offset:{64*X + 32*pr}{cfg['out_flags']}")
    a(f"""
    s_add_u32 s{s_sig}, s{s_sig}, s{s_step}
    s_cmp_lt_u32 s{s_sig}, 32
    s_nop 1
    s_cbranch_scc1 L_fc_outer
    """)
    a.label("L_fc_end")


def emit_combine(a, cfg):
    K = "pa_combine_kernel"
    NB = 12
    a.raw(f".globl {K}\n.p2align 8\n.type {K},@function")
    a.label(K)
    VL, VCL, VT_ = 200, 201, 202
    ACC = 160
    DEN, MX, MN, SC, W = 170, 171, 172, 173, 174
    U0, U1 = 176, 177
    OB = 0
    MLB = 64
    SRD_C, SRD_W, SRD_O = 20, 24, 28
    sw, sb, sh, swx, sn, sE, sbase, sj = 40, 41, 42, 43, 44, 45, 46, 47
    st = 60
    a(f"""
    s_cmp_ge_u32 s2, 256
    s_cbranch_scc1 L_cend
    s_load_dwordx16 s[4:19], s[0:1], 0
    {"s_memrealtime s[100:101]" if cfg.get("cpad_to_us") else ""}
    v_lshrrev_b32 v{VT_}, 6, v0
    v_and_b32 v{VL}, 63, v0
    s_lshr_b32 s{sb}, s2, 5
    v_readfirstlane_b32 s{sw}, v{VT_}
    s_lshr_b32 s{sh}, s2, 3
    s_and_b32 s{sh}, s{sh}, 3
    s_and_b32 s{swx}, s2, 7
    v_and_b32 v{VT_+1}, 7, v{VL}
    v_lshlrev_b32 v{VT_+1}, 2, v{VT_+1}
    s_waitcnt lgkmcnt(0)
    """)
    emit_srd(a, SRD_C, s_cl, 32)
    a(f"buffer_load_dword v{VCL}, v{VT_+1}, s[{SRD_C}:{SRD_C+3}], 0 offen")
    emit_srd(a, SRD_W, s_ws, WS_BYTES)
    emit_srd(a, SRD_O, s_out, Q_BYTES)
    VOFF, VML, VOUT = 180, 181, 182
    a(f"""
    s_lshl_b32 s{st}, s{swx}, 13
    s_lshl_b32 s{st+1}, s{sw}, 10
    s_add_u32 s{st}, s{st}, s{st+1}
    v_lshlrev_b32 v{VOFF}, 4, v{VL}
    v_add_u32 v{VOFF}, s{st}, v{VOFF}
    s_lshl_b32 s{st}, s{swx}, 8
    s_add_u32 s{st}, s{st}, 0x{WS_ML:x}
    v_and_b32 v{VML}, 31, v{VL}
    v_lshlrev_b32 v{VOUT}, 8, v{VML}             ; q*256
    v_lshlrev_b32 v{VML}, 3, v{VML}
    v_add_u32 v{VML}, s{st}, v{VML}
    v_lshrrev_b32 v{VT_+2}, 5, v{VL}
    v_lshl_add_u32 v{VOUT}, v{VT_+2}, 3, v{VOUT} ; + h2*8
    s_lshl_b32 s{st}, s2, 13
    s_lshl_b32 s{st+1}, s{sw}, 5
    s_add_u32 s{st}, s{st}, s{st+1}
    v_add_u32 v{VOUT}, s{st}, v{VOUT}
    v_mov_b32 v{DEN}, 0
    v_mov_b32 v{MX}, 0xff800000
    """)
    for r in range(8):
        a(f"v_mov_b32 v{ACC+r}, 0")
    a("s_waitcnt vmcnt(0)")
    R = emit_partition(a, VL, VCL, VT_, st)
    a(f"""
    s_add_u32 s{st}, s{st}, s{sb}
    v_readlane_b32 s{sn}, v{R['n']}, s{st}
    v_readlane_b32 s{sE}, v{R['incl']}, s{st}
    s_nop 3
    s_sub_u32 s{sE}, s{sE}, s{sn}
    s_min_u32 s{sn}, s{sn}, 64
    s_lshl_b32 s{st}, s{sh}, 6
    s_add_u32 s{sE}, s{sE}, s{st}
    s_mov_b32 s{sbase}, 0
    """)
    a.label("L_cloop")
    for j in range(NB):
        a(f"""
        s_add_u32 s{sj}, s{sbase}, {j}
        s_add_u32 s{st}, s{sE}, s{sj}
        s_lshl_b32 s{st+1}, s{st}, 16
        s_lshl_b32 s{st}, s{st}, 11
        s_cmp_lt_u32 s{sj}, s{sn}
        s_cselect_b32 s{st+1}, s{st+1}, 0x80000000
        s_cselect_b32 s{st}, s{st}, 0x80000000
        buffer_load_dwordx2 v[{MLB+2*j}:{MLB+2*j+1}], v{VML}, s[{SRD_W}:{SRD_W+3}], s{st} offen
        buffer_load_dwordx4 v[{OB+4*j}:{OB+4*j+3}], v{VOFF}, s[{SRD_W}:{SRD_W+3}], s{st+1} offen
        """)
    a(f"v_mov_b32 v{MN}, v{MX}")
    for j in range(NB):
        a(f"""
        s_add_u32 s{sj}, s{sbase}, {j}
        s_cmp_ge_u32 s{sj}, s{sn}
        s_cbranch_scc1 L_cmaxdone
        s_waitcnt vmcnt({2*(NB-1-j)+1})
        v_max_f32 v{MN}, v{MN}, v{MLB+2*j}
        """)
    a.label("L_cmaxdone")
    a(f"""
    v_sub_f32 v{SC}, v{MX}, v{MN}
    v_exp_f32 v{SC}, v{SC}
    v_mov_b32 v{MX}, v{MN}
    v_mul_f32 v{DEN}, v{DEN}, v{SC}
    """)
    for r in range(8):
        a(f"v_mul_f32 v{ACC+r}, v{ACC+r}, v{SC}")
    for j in range(NB):
        a(f"""
        s_add_u32 s{sj}, s{sbase}, {j}
        s_cmp_ge_u32 s{sj}, s{sn}
        s_cbranch_scc1 L_cfin
        v_sub_f32 v{W}, v{MLB+2*j}, v{MX}
        v_exp_f32 v{W}, v{W}
        s_waitcnt vmcnt({2*(NB-1-j)})
        v_fmac_f32 v{DEN}, v{W}, v{MLB+2*j+1}
        """)
        for r in range(4):
            a(f"""
            v_lshlrev_b32 v{U0}, 16, v{OB+4*j+r}
            v_and_b32 v{U1}, 0xffff0000, v{OB+4*j+r}
            v_fmac_f32 v{ACC+2*r}, v{W}, v{U0}
            v_fmac_f32 v{ACC+2*r+1}, v{W}, v{U1}
            """)
    a(f"""
    s_add_u32 s{sbase}, s{sbase}, {NB}
    s_branch L_cloop
    """)
    a.label("L_cfin")
    a(f"""
    v_rcp_f32 v{SC}, v{DEN}
    s_nop 0
    """)
    for r in range(8):
        a(f"v_mul_f32 v{ACC+r}, v{ACC+r}, v{SC}")
    for r in range(4):
        a(f"v_cvt_pk_bf16_f32 v{ACC+r}, v{ACC+2*r}, v{ACC+2*r+1}")
    a(f"""
    buffer_store_dwordx2 v[{ACC}:{ACC+1}], v{VOUT}, s[{SRD_O}:{SRD_O+3}], 0 offen
    buffer_store_dwordx2 v[{ACC+2}:{ACC+3}], v{VOUT}, s[{SRD_O}:{SRD_O+3}], 0 offen offset:16
    """)
    if cfg.get("cpad_to_us"):
        a(f"""
        s_waitcnt vmcnt(0)
        s_add_u32 s92, s100, {int(cfg["cpad_to_us"]*100)}
        """)
        a.label("L_cdelay")
        a(f"""
        s_sleep 4
        s_memrealtime s[90:91]
        s_waitcnt lgkmcnt(0)
        s_sub_u32 s93, s92, s90
        s_cmp_gt_i32 s93, 0
        s_cbranch_scc1 L_cdelay
        """)
    a.label("L_cend")
    a("s_endpgm")


def descriptor(name, vgpr, accum, sgpr=102):
    return f"""
.p2align 6
.amdhsa_kernel {name}
  .amdhsa_next_free_vgpr {vgpr}
  .amdhsa_next_free_sgpr {sgpr}
  .amdhsa_accum_offset {accum}
  .amdhsa_group_segment_fixed_size 0
  .amdhsa_kernarg_size 64
  .amdhsa_user_sgpr_count 2
  .amdhsa_user_sgpr_kernarg_segment_ptr 1
  .amdhsa_system_sgpr_workgroup_id_x 1
.end_amdhsa_kernel
"""


DEFAULT_CFG = dict(
    vslots=[9, 10, 11, 12, 13, 14, 15, 16, 17, 18, 19, 20, 21, 22, 23, 24],
    rl_slot=22,
    dma_slots=[25, 26, 27, 29],
    dma_cost=12,
    patch_slot=9,
    delta=3,
    br_dist=2,
    empty_gaps=[31],
    bar_period=2,
    pp0=1, pp1=0, ppA=[7, 15], ppB=[15, 31], ppQ=[1, 3, 5, 7],
    pk=1,
    warm=1,
    zero_early=64,
    thr_log2=12,
    st_flags=" sc1",
    fused=1, cld_flags=" sc1", poll_sleep=2, poll_max=200000, cpk=0, clook=3, out_flags="",
    depth=5,
    ld_flags=" nt",
)


def generate(cfg=None, out=OUT):
    c = dict(DEFAULT_CFG)
    if cfg:
        c.update(cfg)
    global LDFLAGS
    LDFLAGS = c["ld_flags"]
    a = Asm()
    a.raw(f"""; Paged attention (GQA, split-KV) for gfx950 -- generated by gen.py (hand-scheduled)
{("; @launch grid=(256,1,1) block=(256,1,1) lds=163840" if c["fused"] else "; @launch kernel=" + NAME + "_kernel grid=(256,1,1) block=(256,1,1) lds=163840" + chr(10) + "; @launch kernel=pa_combine_kernel grid=(256,1,1) block=(512,1,1) lds=0")}
{"; @launch kernel=pa_nop_kernel grid=(1,1,1) block=(64,1,1) lds=0" + chr(10) if c.get("nop3") else ""}.amdgcn_target "amdgcn-amd-amdhsa--gfx950"
.text""")
    emit_main(a, c)
    if not c["fused"]:
        emit_combine(a, c)
    if c.get("nop3"):
        a.raw(".globl pa_nop_kernel\n.p2align 8\n.type pa_nop_kernel,@function\npa_nop_kernel:\n    s_endpgm")
    a.raw('.section .rodata,"a"')
    if c.get("nop3"):
        a.raw(descriptor("pa_nop_kernel", 8, 8))
    a.raw(descriptor(NAME + "_kernel", 384, 256))
    if not c["fused"]:
        a.raw(descriptor("pa_combine_kernel", 216, 216))
    open(out, "w").write(a.text())


if __name__ == "__main__":
    import json
    cfg = json.loads(sys.argv[1]) if len(sys.argv) > 1 else None
    generate(cfg, sys.argv[2] if len(sys.argv) > 2 else OUT)
```

```python
import sys, math

NAME = "standalone__paged_block_table_kv_pagedattention__sampling"
OUT = "cdna_kernels/%s.s" % NAME

KV_BYTES = 4100 * 16384
Q_BYTES = 8 * 32 * 32 * 128 * 2
BT_BYTES = 8 * 512 * 4
WS_ML = 0x1000000
WS_DBG = WS_ML + 256 * 2048
WS_FLAG = WS_DBG + 0x100000
WS_BYTES = WS_FLAG + 32 * 256
SCALE = math.log2(math.e) / math.sqrt(128.0)
THR_LOG2 = 12

import struct
def f32bits(x):
    return struct.unpack("<I", struct.pack("<f", x))[0]

class Asm:
    def __init__(self):
        self.lines = []
    def __call__(self, s):
        for l in s.strip("\n").split("\n"):
            self.lines.append("    " + l.strip())
    def label(self, l):
        self.lines.append(l + ":")
    def raw(self, s):
        self.lines.append(s)
    def text(self):
        return "\n".join(self.lines) + "\n"

S_ = {0: 0, 1: 16}
C_ = {0: 32, 1: 48}
O_ = {0: 64, 1: 128}
P_ = {0: 192, 1: 200}
KADDR = 208
VADDR = 216
VOFFK = 220
VOFFV = 222
PAGES = 224
L_ = {0: 225, 1: 226}
M_ = {0: 227, 1: 228}
TS_ = {0: (229, 230), 1: (231, 232)}
ET = 233
VLANE = 239
VT = 240
VH4 = 255
AQ = {0: 0, 1: 32}
AK = 64
AV = 96

s_wg = 2
s_q, s_k, s_v, s_bt, s_cl, s_out, s_dbg, s_ws = 4, 6, 8, 10, 12, 14, 16, 18
SRD_K, SRD_V, SRD_Q, SRD_X, SRD_WS, SRD_BT = 20, 24, 28, 32, 36, 76
s_w = 40
s_h = 41
s_slot = 42
s_n = 43
s_i = 44
s_patch = 45
s_rem = 46
s_idx = 47
s_pg = {0: 48, 1: 49}
s_m0k = 50
s_m0v = 51
s_thr = {0: 52, 1: 52}
s_E = 53
s_nb = 82
s_jj = 3
s_mine = 74
s_floor = {0: 54, 1: 55}
s_first = {0: 56, 1: 57}
s_ret = 58
s_t0 = 60
s_qb = 84
s_qlds = 54
s_b = 80
s_start = 81
s_scale = 56
s_wgslot = 83


def emit_srd(a, d, ptr, nbytes):
    a(f"""
    s_mov_b32 s{d}, s{ptr}
    s_and_b32 s{d+1}, s{ptr+1}, 0xffff
    s_mov_b32 s{d+2}, 0x{nbytes:x}
    s_mov_b32 s{d+3}, 0x20000
    """)


def sum8(a, dst, src, tmp):
    a(f"""
    s_nop 1
    v_add_u32_dpp v{tmp}, v{src}, v{src} quad_perm:[1,0,3,2] row_mask:0xf bank_mask:0xf
    s_nop 1
    v_add_u32_dpp v{dst}, v{tmp}, v{tmp} quad_perm:[2,3,0,1] row_mask:0xf bank_mask:0xf
    s_nop 1
    v_add_u32_dpp v{dst}, v{dst}, v{dst} row_half_mirror row_mask:0xf bank_mask:0xf
    """)


def emit_partition(a, vlane, vcl, vt, st):
    Lm1, T_, Cc, Nn, NS, INC, Qq, Rr, X0, X1 = range(vt, vt + 10)
    a(f"""
    v_add_u32 v{Lm1}, -1, v{vcl}
    v_min_u32 v{Lm1}, 0x1fff, v{Lm1}
    v_lshrrev_b32 v{T_}, 5, v{Lm1}
    v_add_u32 v{T_}, 1, v{T_}
    """)
    sum8(a, Cc, T_, X0)
    a(f"""
    v_add_u32 v{Cc}, 63, v{Cc}
    v_lshrrev_b32 v{Cc}, 6, v{Cc}
    v_lshrrev_b32 v{X0}, 3, v{vlane}
    v_add_u32 v{Cc}, v{Cc}, v{X0}
    v_cvt_f32_u32 v{X0}, v{Cc}
    v_rcp_f32 v{X0}, v{X0}
    v_add3_u32 v{X1}, v{T_}, v{Cc}, -1
    v_cvt_f32_u32 v{X1}, v{X1}
    v_add_f32 v{X1}, 0.5, v{X1}
    v_mul_f32 v{X1}, v{X1}, v{X0}
    v_cvt_u32_f32 v{Nn}, v{X1}
    """)
    sum8(a, NS, Nn, X0)
    a(f"""
    s_nop 1
    v_add_u32_dpp v{INC}, v{Nn}, v{Nn} row_shr:1 row_mask:0xf bank_mask:0xf bound_ctrl:0
    v_cvt_f32_u32 v{X0}, v{Nn}
    v_rcp_f32 v{X0}, v{X0}
    v_add_u32_dpp v{INC}, v{INC}, v{INC} row_shr:2 row_mask:0xf bank_mask:0xf bound_ctrl:0
    v_cvt_f32_u32 v{X1}, v{T_}
    v_add_f32 v{X1}, 0.5, v{X1}
    v_add_u32_dpp v{INC}, v{INC}, v{INC} row_shr:4 row_mask:0xf bank_mask:0xf bound_ctrl:0
    v_mul_f32 v{X1}, v{X1}, v{X0}
    v_cvt_u32_f32 v{Qq}, v{X1}
    v_add_u32_dpp v{INC}, v{INC}, v{INC} row_shr:8 row_mask:0xf bank_mask:0xf bound_ctrl:0
    v_mul_u32_u24 v{X0}, v{Qq}, v{Nn}
    v_sub_u32 v{Rr}, v{T_}, v{X0}
    v_mov_b32_dpp v{X1}, v{NS} row_shr:8 row_mask:0xf bank_mask:0xf bound_ctrl:0
    v_sub_u32 v{INC}, v{INC}, v{X1}
    v_cmp_ge_u32 vcc, 64, v{NS}
    s_ff1_i32_b64 s{st}, vcc
    s_mov_b64 s[{st+2}:{st+3}], 0xff
    s_lshl_b64 s[{st+2}:{st+3}], s[{st+2}:{st+3}], s{st}
    """)
    return dict(Lm1=Lm1, t=T_, n=Nn, incl=INC, q=Qq, r=Rr)


def sm_stream(X, et=None):
    S = S_[X]; P = P_[X]
    TS0, TS1 = TS_[X]
    et = ET if et is None else et
    def tmp(j):
        if j == 0:
            return TS0, TS1
        k = (j - 1) % 3
        return et + 2 * k, et + 2 * k + 1
    E = lambda j, h: (8, f"v_exp_f32 v{tmp(j)[h]}, v{S + 2 * j + h}")
    A = lambda j, h: (4, f"v_add_f32 v{(TS0, TS1)[h]}, v{(TS0, TS1)[h]}, v{tmp(j)[h]}")
    C = lambda j: (4, f"v_cvt_pk_bf16_f32 v{P + j}, v{tmp(j)[0]}, v{tmp(j)[1]}")
    st = [E(0, 0), E(0, 1), E(1, 0), C(0), E(1, 1)]
    for j in range(1, 7):
        st += [A(j, 0), E(j + 1, 0), A(j, 1), C(j), E(j + 1, 1)]
    st += [A(7, 0), A(7, 1), C(7), (4, f"v_add_f32 v{TS0}, v{TS0}, v{TS1}")]
    return st


def mfma_qk(X, s):
    c = C_[X] if s == 0 else S_[X]
    return (f"v_mfma_f32_32x32x16_bf16 v[{S_[X]}:{S_[X]+15}], a[{AK+4*s}:{AK+4*s+3}], "
            f"a[{AQ[X]+4*s}:{AQ[X]+4*s+3}], v[{c}:{c+15}]")


def mfma_pv(X, f):
    t, dt = f >> 2, f & 3
    o = O_[X] + 16 * dt
    return (f"v_mfma_f32_32x32x16_bf16 v[{o}:{o+15}], a[{AV+4*f}:{AV+4*f+3}], "
            f"v[{P_[X]+4*t}:{P_[X]+4*t+3}], v[{o}:{o+15}]")


def k_read(s, slot):
    return f"ds_read_b128 a[{AK+4*s}:{AK+4*s+3}], v{KADDR+s} offset:{slot*8192}"


def v_read(f, y, slot):
    t, dt = f >> 2, f & 3
    return (f"ds_read_b64_tr_b16 a[{AV+4*f+2*y}:{AV+4*f+2*y+1}], v{VADDR+dt} "
            f"offset:{slot*8192 + (16*t+8*y)*256}")


LDFLAGS = ""
def dma_k(a_list, slot, spg):
    return [f"s_add_u32 m0, s{s_m0k}, {slot*8192}",
            None,
            f"buffer_load_dwordx4 v{VOFFK}, s[{SRD_K}:{SRD_K+3}], s{spg} offen{LDFLAGS} lds",
            f"buffer_load_dwordx4 v{VOFFK+1}, s[{SRD_K}:{SRD_K+3}], s{spg} offen offset:1024{LDFLAGS} lds"]


def dma_v(a_list, slot, spg):
    return [f"s_add_u32 m0, s{s_m0v}, {slot*8192}",
            None,
            f"buffer_load_dwordx4 v{VOFFV}, s[{SRD_V}:{SRD_V+3}], s{spg} offen{LDFLAGS} lds",
            f"buffer_load_dwordx4 v{VOFFV+1}, s[{SRD_V}:{SRD_V+3}], s{spg} offen offset:1024{LDFLAGS} lds"]


def plan_body(k, cfg, tramps=None, peel=None):
    kn = (k + 1) % 8
    kl = k if peel is None else f"p{k}"
    D = cfg["depth"]
    pgn = s_pg[k & 1]
    pgo = s_pg[(k & 1) ^ 1]
    tramps = [] if tramps is None else tramps
    pre = {i: [] for i in range(32)}
    front = {i: [] for i in range(32)}
    valu = {i: [] for i in range(32)}
    tail = {i: [] for i in range(32)}
    for s in range(8):
        front[s + 1].append((4, k_read(s, kn)))
    vslots = cfg["vslots"]
    vr = [(f, y) for f in range(8) for y in range(2)]
    for (f, y), sl in zip(vr, vslots):
        assert sl >= 9 + f, (f, sl)
        front[sl].append((4, v_read(f, y, k)))
    def vr_before(m):
        return sum(1 for sl in vslots if sl < m)
    pre[16].append(f"s_waitcnt lgkmcnt({vr_before(16)})")
    assert vr_before(24) >= 8
    pre[24].append(f"s_waitcnt lgkmcnt({vr_before(24) - 8})")
    assert vr_before(28) == 16
    pre[28].append("s_waitcnt lgkmcnt(0)")
    ds = cfg["dma_slots"]
    dcost = cfg["dma_cost"]
    if peel is None:
        valu[cfg["rl_slot"]].append((4, f"v_readlane_b32 s{pgn}, v{PAGES}, s{s_idx}"))
        tail[cfg["rl_slot"]].append(f"s_add_u32 s{s_idx}, s{s_idx}, 1")
        dk = dma_k(None, (k + D + 1) % 8, pgn)
        dv = dma_v(None, (k + D) % 8, pgo)
        tail[ds[0] - 1].append(dv[0])
        front[ds[0]].append((dcost, dv[2]))
        front[ds[1]].append((dcost, dv[3]))
        assert ds[2] - 1 >= ds[1]
        tail[ds[2] - 1].append(dk[0])
        front[ds[2]].append((dcost, dk[2]))
        front[ds[3]].append((dcost, dk[3]))
        assert ds[2] > cfg["rl_slot"] + 1
    else:
        g, pb = peel
        seq = [dma_k(None, (g + 1) % 8, pb + g + 1), dma_v(None, g % 8, pb + g),
               dma_k(None, (g + 2) % 8, pb + g + 2), dma_v(None, (g + 1) % 8, pb + g + 1)]
        for d_, sl in zip(seq, cfg["peel_slots"]):
            tail[sl - 1].append(d_[0])
            front[sl].append((dcost, d_[2]))
            front[sl + 1].append((dcost, d_[3]))
    ps = cfg["patch_slot"]
    tail[ps - 1].append(f"s_cmp_eq_u32 s{s_i}, s{s_patch}")
    front[ps].insert(0, (8, f"s_cbranch_scc1 L_patch_{kl}"))
    front[ps].insert(1, (0, f"L_patch_ret_{kl}:"))
    tramps.append((f"L_patch_{kl}", "L_sub_patch", f"L_patch_ret_{kl}"))
    assert max(ds) < 30
    tail[30].append(f"s_add_u32 s{s_i}, s{s_i}, 1")
    tail[30].append(f"s_cmp_ge_u32 s{s_i}, s{s_n}")
    front[31].append((8, "s_cbranch_scc1 L_drain"))
    dl = cfg["delta"]
    for X, lo in ((0, 32 - dl), (1, 16 - dl)):
        hi = lo + 15
        bs = (hi + cfg["br_dist"]) % 32
        front[bs].insert(0, (8, f"s_cbranch_vccnz L_fb{X}_{kl}"))
        front[bs].insert(1, (0, f"L_fb{X}_ret_{kl}:"))
        valu[bs].insert(0, (4, f"v_add_f32 v{L_[X]}, v{L_[X]}, v{TS_[X][0]}"))
        tramps.append((f"L_fb{X}_{kl}", f"L_sub_fb{X}", f"L_fb{X}_ret_{kl}"))
    if peel is not None:
        _, _, valu_r, _ = plan_body(k, cfg)
        for g_ in range(32):
            valu[g_] = [x for x in valu_r[g_] if not x[1].startswith("v_readlane")]
        return pre, front, valu, tail
    for X, lo in ((0, 32 - dl), (1, 16 - dl)):
        gaps = [(lo + j) % 32 for j in range(16)]
        st = sm_stream(X) + [(4, f"v_cmp_lt_f32 vcc, s{s_thr[X]}, v{TS_[X][0]}")]
        tot = sum(c for c, _ in st)
        free = [max(0, 24 - sum(c for c, _ in front[g]) - sum(c for c, _ in valu[g])) for g in gaps]
        for n_, g in enumerate(gaps):
            if g in cfg["empty_gaps"]:
                free[n_] = 0
        ftot = sum(free)
        assert ftot >= tot, (ftot, tot)
        acc = 0.0; done = 0; idx = 0
        for n_, g in enumerate(gaps):
            acc += free[n_] * tot / ftot
            used = 0
            while idx < len(st) and used + st[idx][0] <= free[n_] and len(valu[g]) < 5 and \
                    (done + st[idx][0] / 2.0 <= acc or n_ == 15):
                valu[g].append(st[idx]); done += st[idx][0]; used += st[idx][0]; idx += 1
        assert idx == len(st), (X, idx, len(st))
    return pre, front, valu, tail


def skip(t, cfg):
    if cfg.get("no_dma") and t.startswith("buffer_load"): return True
    if cfg.get("no_lds") and t.startswith("ds_read"): return True
    if cfg.get("no_sm") and (t.startswith("v_exp") or t.startswith("v_add_f32") or t.startswith("v_cvt")): return True
    if cfg.get("no_mfma") and t.startswith("v_mfma"): return True
    return False


def emit_body(a, k, tramps, cfg, peel=None, vm=None):
    D = cfg["depth"]
    mf = [mfma_qk(1, s) for s in range(8)] + [mfma_pv(1, f) for f in range(8)] + \
         [mfma_qk(0, s) for s in range(8)] + [mfma_pv(0, f) for f in range(8)]
    pre, front, valu, tail = plan_body(k, cfg, tramps, peel)
    a.label(f"L_body_{k}" if peel is None else f"L_body_p{k}")
    if cfg.get("stamp"):
        a(f"""
        s_memtime s[90:91]
        s_mov_b32 m0, s{s_i}
        s_waitcnt lgkmcnt(0)
        v_writelane_b32 v{VT+12}, s90, m0
        """)
    bp = cfg["bar_period"]
    if k % bp == 0:
        a(f"s_waitcnt vmcnt({4*(D-bp) if vm is None else vm})")
        if not cfg.get("no_bar"):
            a("s_barrier")
    if cfg.get("stamp"):
        a(f"""
        s_memtime s[90:91]
        s_waitcnt lgkmcnt(0)
        v_writelane_b32 v{VT+13}, s90, m0
        """)
    for i in range(32):
        seq = pre[i] + [mf[i]] + [t for _, t in front[i]] + [t for _, t in valu[i]] + tail[i]
        for t in seq:
            if t.endswith(":"):
                a.label(t[:-1])
            elif not skip(t, cfg):
                a(t)
    if k == 7 and peel is None:
        a("s_branch L_body_0")


def emit_rowmax(a, X, mx, t1):
    S = S_[X]
    out = [f"v_max3_f32 v{mx}, v{S}, v{S+1}, v{S+2}"]
    for r in range(3, 15, 2):
        out.append(f"v_max3_f32 v{mx}, v{mx}, v{S+r}, v{S+r+1}")
    out += [f"v_max_f32 v{mx}, v{mx}, v{S+15}", f"v_mov_b32 v{t1}, v{mx}", "s_nop 1",
            f"v_permlane32_swap_b32 v{mx}, v{t1}", "s_nop 1", f"v_max_f32 v{mx}, v{mx}, v{t1}"]
    return out


def emit_fallback(a, X):
    S = S_[X]; C = C_[X]; O = O_[X]; P = P_[X]
    mx, t1, f = VT, VT + 1, VT + 3
    a.label(f"L_sub_fb{X}")
    a("s_nop 7")
    for t in emit_rowmax(a, X, mx, t1):
        a(t)
    a(f"""
    v_max_f32 v{mx}, 0, v{mx}
    v_exp_f32 v{f}, -v{mx}
    v_add_f32 v{M_[X]}, v{M_[X]}, v{mx}
    """)
    for r in range(16):
        a(f"v_sub_f32 v{C+r}, v{C+r}, v{mx}")
        a(f"v_sub_f32 v{S+r}, v{S+r}, v{mx}")
    a(f"v_mul_f32 v{L_[X]}, v{L_[X]}, v{f}")
    for r in range(64):
        a(f"v_mul_f32 v{O+r}, v{O+r}, v{f}")
    for c, t in sm_stream(X, VT + 4):
        a(t)
    a(f"""
    s_nop 3
    s_setpc_b64 s[{s_ret}:{s_ret+1}]
    """)


def emit_patch(a):
    ninf = VT
    a.label("L_sub_patch")
    a(f"""
    s_nop 7
    v_mov_b32 v{ninf}, 0xff800000
    """)
    for r in range(16):
        cst = 8 * (r >> 2) + (r & 3)
        a(f"""
        s_sub_i32 s{s_mine+1}, s{s_rem}, {cst}
        v_cmp_gt_i32 vcc, s{s_mine+1}, v{VH4}
        s_nop 1
        v_cndmask_b32 v{C_[0]+r}, v{ninf}, v{C_[0]+r}, vcc
        v_cndmask_b32 v{C_[1]+r}, v{ninf}, v{C_[1]+r}, vcc
        """)
    a(f"""
    s_nop 3
    s_setpc_b64 s[{s_ret}:{s_ret+1}]
    """)


MAPS = {
    0: f"""s_lshr_b32 s{s_h}, s{s_wg}, 1
    s_and_b32 s{s_h}, s{s_h}, 3
    s_and_b32 s{s_t0}, s{s_wg}, 1
    s_lshl_b32 s{s_t0}, s{s_t0}, 5
    s_lshr_b32 s{s_slot}, s{s_wg}, 3
    s_or_b32 s{s_slot}, s{s_slot}, s{s_t0}""",
    1: f"""s_lshr_b32 s{s_h}, s{s_wg}, 3
    s_and_b32 s{s_h}, s{s_h}, 3
    s_and_b32 s{s_t0}, s{s_wg}, 7
    s_lshl_b32 s{s_t0}, s{s_t0}, 3
    s_lshr_b32 s{s_slot}, s{s_wg}, 5
    s_or_b32 s{s_slot}, s{s_slot}, s{s_t0}""",
}


def emit_main(a, cfg):
    K = NAME + "_kernel"
    D = cfg["depth"]
    assert D <= 7
    a.raw(f".globl {K}\n.p2align 8\n.type {K},@function")
    a.label(K)
    t0, t1, t2, t3 = VT + 11, VT + 12, VT + 13, VT + 14
    VCL = VT + 10
    def sstamp(n):
        if cfg.get("stamp"):
            a(f"""
            s_memtime s[90:91]
            s_waitcnt lgkmcnt(0)
            s_mov_b32 s{n}, s90
            """)
    def pstamp(n):
        if cfg.get("stamp"):
            a(f"""
            s_memtime s[90:91]
            s_waitcnt lgkmcnt(0)
            v_writelane_b32 v{VT+12}, s90, {40+n}
            """)
    a(f"""
    s_cmp_ge_u32 s{s_wg}, 256
    s_cbranch_scc1 L_end
    s_load_dwordx16 s[4:19], s[0:1], 0
    v_lshrrev_b32 v{VT}, 6, v0
    v_and_b32 v{VLANE}, 63, v0
    v_readfirstlane_b32 s{s_w}, v{VT}
    {MAPS[cfg["map"]]}
    v_and_b32 v{VT+1}, 7, v{VLANE}
    v_lshlrev_b32 v{VT+1}, 2, v{VT+1}
    v_lshlrev_b32 v{VT+2}, 7, v{VLANE}
    """)
    if cfg["fused"]:
        a(f"s_memrealtime s[{s_mine}:{s_mine+1}]")
    if cfg.get("stamp"):
        a("s_memtime s[92:93]")
    if cfg.get("stamp") or cfg.get("pad_to_us"):
        a("s_memrealtime s[100:101]")
    a(f"""
    s_and_b32 s{s_t0}, s{s_w}, 1
    s_lshl_b32 s{s_t0}, s{s_t0}, 3               ; 8*(w&1)
    s_lshl_b32 s{s_t0+1}, s{s_h}, 8              ; h*256
    v_lshrrev_b32 v{t0}, 4, v{VLANE}             ; l>>4
    v_and_b32 v{t1}, 15, v{VLANE}                ; pc
    v_add_u32 v{t2}, s{s_t0}, v{t0}              ; R&15 for x=0
    v_xor_b32 v{t3}, v{t1}, v{t2}
    v_lshlrev_b32 v{t3}, 4, v{t3}
    v_lshl_add_u32 v{t3}, v{t2}, 10, v{t3}
    v_add_u32 v{VOFFK}, s{s_t0+1}, v{t3}
    v_add_u32 v{t2}, 4, v{t2}                    ; R&15 for x=1
    v_xor_b32 v{t3}, v{t1}, v{t2}
    v_lshlrev_b32 v{t3}, 4, v{t3}
    v_lshl_add_u32 v{t3}, v{t2}, 10, v{t3}
    v_add_u32 v{t3}, s{s_t0+1}, v{t3}
    v_add_u32 v{VOFFK+1}, 0xfffffc00, v{t3}
    v_lshlrev_b32 v{t3}, 2, v{t0}
    v_xor_b32 v{t3}, v{t1}, v{t3}
    v_lshlrev_b32 v{t3}, 4, v{t3}
    v_add_u32 v{t2}, s{s_t0}, v{t0}
    v_lshl_add_u32 v{t3}, v{t2}, 10, v{t3}
    v_add_u32 v{VOFFV}, s{s_t0+1}, v{t3}
    v_add_u32 v{VOFFV+1}, 0xc00, v{VOFFV}        ; +4096 -1024
    s_lshl_b32 s{s_m0k}, s{s_w}, 11
    s_add_u32 s{s_m0v}, s{s_m0k}, 0x10000
    s_mov_b32 s{s_thr[0]}, 0x{f32bits(2.0**cfg["thr_log2"]):x}
    s_mov_b32 s{s_thr[1]}, 0x{f32bits(2.0**cfg["thr_log2"]):x}
    s_mov_b32 s{s_i}, 0
    s_mov_b32 s{s_idx}, {D+1+cfg["peel"]}
    v_lshrrev_b32 v{t0}, 5, v{VLANE}            ; h2
    v_lshlrev_b32 v{VH4}, 2, v{t0}
    v_lshrrev_b32 v{t2}, 4, v{VLANE}
    v_xor_b32 v{t3}, v{t1}, v{t2}
    v_lshlrev_b32 v{t3}, 4, v{t3}
    v_lshl_add_u32 v{ET}, v{t2}, 8, v{t3}        ; Q voffset (j&3 == 0)
    v_xor_b32 v{ET+1}, 64, v{ET}
    v_xor_b32 v{ET+2}, 0x80, v{ET}
    v_xor_b32 v{ET+3}, 0xc0, v{ET}
    v_lshlrev_b32 v{ET+4}, 3, v{VLANE}
    s_lshl_b32 s{s_qlds}, s{s_w}, 13
    s_add_u32 s{s_qlds}, s{s_qlds}, 0x20000      ; Q_A staging : 128K + w*8K
    s_and_b32 s{s_t0}, s{s_w}, 1
    s_lshl_b32 s{s_t0}, s{s_t0}, 13
    s_lshr_b32 s{s_t0+1}, s{s_w}, 1
    s_lshl_b32 s{s_t0+1}, s{s_t0+1}, 16
    s_add_u32 s{s_t0}, s{s_t0}, s{s_t0+1}
    s_add_u32 s{s_qlds+1}, s{s_t0}, 0xc000
    s_waitcnt lgkmcnt(0)
    """)
    emit_srd(a, SRD_X, s_cl, 32)
    a(f"buffer_load_dword v{VCL}, v{VT+1}, s[{SRD_X}:{SRD_X+3}], 0 offen")
    emit_srd(a, SRD_BT, s_bt, BT_BYTES)
    emit_srd(a, SRD_Q, s_q, Q_BYTES)
    nwarm = 0
    if cfg["warm"]:
        a(f"""
        s_lshr_b32 s{s_t0}, s{s_wg}, 3
        s_lshr_b32 s{s_t0+1}, s{s_t0}, 2
        s_lshl_b32 s{s_t0+1}, s{s_t0+1}, 18          ; b*262144
        s_and_b32 s{s_t0+2}, s{s_t0}, 3
        s_lshl_b32 s{s_t0+2}, s{s_t0+2}, 14
        s_add_u32 s{s_t0+1}, s{s_t0+1}, s{s_t0+2}
        s_lshl_b32 s{s_t0+2}, s{s_h}, 16
        s_add_u32 s{s_t0+1}, s{s_t0+1}, s{s_t0+2}
        s_lshl_b32 s{s_t0+2}, s{s_w}, 13
        s_add_u32 s{s_t0+1}, s{s_t0+1}, s{s_t0+2}
        s_lshl_b32 s{s_t0}, s{s_t0}, 9
        s_cmp_lt_u32 s{s_w}, 2
        s_cselect_b32 s{s_t0+1}, s{s_t0+1}, 0x80000000
        s_cmp_eq_u32 s{s_w}, 2
        s_cselect_b32 s{s_t0}, s{s_t0}, 0x80000000
        v_min_u32 v{VT+3}, 0x180, v{VT+2}
        buffer_load_dword v{P_[0]}, v{VT+2}, s[{SRD_Q}:{SRD_Q+3}], s{s_t0+1} offen
        buffer_load_dword v{P_[0]+1}, v{VT+3}, s[{SRD_BT}:{SRD_BT+3}], s{s_t0} offen
        """)
        nwarm = 2
    emit_srd(a, SRD_K, s_k, KV_BYTES)
    emit_srd(a, SRD_V, s_v, KV_BYTES)
    emit_srd(a, SRD_WS, s_ws, WS_BYTES)
    sstamp(88)
    a(f"""
    v_and_b32 v{t1}, 31, v{VLANE}               ; key / q
    v_and_b32 v{t2}, 15, v{VLANE}
    v_xor_b32 v{t2}, v{t2}, v{t0}               ; (key&15)^h2
    v_lshlrev_b32 v{t2}, 4, v{t2}
    v_lshl_add_u32 v{KADDR}, v{t1}, 8, v{t2}
    """)
    for s in range(1, 8):
        a(f"v_xor_b32 v{KADDR+s}, {s << 5}, v{KADDR}")
    a(f"""
    v_bfe_u32 v{t1}, v{VLANE}, 2, 2              ; r
    v_add_u32 v{t2}, v{VH4}, v{t1}               ; 4h2 + r
    v_lshlrev_b32 v{t2}, 8, v{t2}
    v_bfe_u32 v{t3}, v{VLANE}, 4, 1              ; sub
    v_lshl_add_u32 v{t2}, v{t3}, 5, v{t2}
    v_and_b32 v{t3}, 3, v{VLANE}                 ; c
    v_lshl_add_u32 v{t2}, v{t3}, 3, v{t2}
    v_add_u32 v{t2}, 0x10000, v{t2}
    v_lshl_add_u32 v{VADDR}, v{t1}, 6, v{t2}     ; dt=0 : (0^r)<<6
    """)
    for dt in range(1, 4):
        a(f"v_xor_b32 v{VADDR+dt}, {dt << 6}, v{VADDR}")
    a(f"s_waitcnt vmcnt({nwarm})")
    sstamp(89)
    st = s_t0
    R = emit_partition(a, VLANE, VCL, VT, st)
    sn, sincl, sLm1, scl, sq, sr, sj = st + 4, st + 5, st + 6, st + 7, st + 8, st + 9, st + 10
    SKEW1 = SKEW2 = ""
    if cfg.get("skew"):
        sh = cfg["skew"]
        g0, g1 = st + 11, st + 12
        SKEW1 = f"""s_sub_u32 s{g0}, s{sn}, s{sj}
    s_mul_i32 s{g1}, s{g0}, s{sj}                ; j*(nb-j)
    s_add_u32 s{st}, s{g1}, s{g0}
    s_sub_u32 s{st}, s{st}, s{sj}
    s_sub_u32 s{st}, s{st}, 1                    ; (j+1)*(nb-j-1)
    s_lshr_b32 s{g0}, s{g1}, {sh}
    s_lshr_b32 s{g1}, s{st}, {sh}
    s_cmp_gt_u32 s{sq}, s{sn}
    s_cselect_b32 s{g0}, s{g0}, 0
    s_cselect_b32 s{g1}, s{g1}, 0
    s_sub_u32 s{s_start}, s{s_start}, s{g0}"""
        SKEW2 = f"""s_add_u32 s{s_n}, s{s_n}, s{g0}
    s_sub_u32 s{s_n}, s{s_n}, s{g1}"""
    a(f"""
    v_cmp_lt_u32 vcc, s{s_slot}, v{R['incl']}
    s_and_b64 vcc, vcc, s[{st+2}:{st+3}]
    s_cbranch_scc0 L_end
    s_ff1_i32_b64 s{st}, vcc
    s_and_b32 s{s_b}, s{st}, 7
    v_readlane_b32 s{sn}, v{R['n']}, s{st}
    v_readlane_b32 s{sincl}, v{R['incl']}, s{st}
    v_readlane_b32 s{sq}, v{R['q']}, s{st}
    v_readlane_b32 s{sr}, v{R['r']}, s{st}
    v_readlane_b32 s{sLm1}, v{R['Lm1']}, s{st}
    v_readlane_b32 s{scl}, v{VCL}, s{st}
    s_lshl_b32 s{st+2}, s{s_b}, 5
    s_lshl_b32 s{st+1}, s{s_h}, 3
    s_add_u32 s{st+2}, s{st+2}, s{st+1}
    s_lshl_b32 s{st+1}, s{s_w}, 1
    s_add_u32 s{st+2}, s{st+2}, s{st+1}
    s_lshl_b32 s{st+2}, s{st+2}, 13              ; Q base = ((b*32 + 8h + 2w)*32)*256
    s_add_u32 s{st+3}, s{st+2}, 0x2000
    s_sub_u32 s{sj}, s{sincl}, s{sn}
    s_sub_u32 s{sj}, s{s_slot}, s{sj}            ; j = slot - E_b
    s_mul_i32 s{s_start}, s{sj}, s{sq}
    s_min_u32 s{st}, s{sj}, s{sr}
    s_add_u32 s{s_start}, s{s_start}, s{st}
    {SKEW1}
    s_lshl_b32 s{st}, s{s_b}, 9
    s_lshl_b32 s{st+1}, s{s_start}, 1
    s_add_u32 s{st}, s{st}, s{st+1}
    s_lshr_b32 s{st+1}, s{s_w}, 1
    s_add_u32 s{st}, s{st}, s{st+1}
    s_lshl_b32 s{st}, s{st}, 2
    buffer_load_dword v{PAGES}, v{ET+4}, s[{SRD_BT}:{SRD_BT+3}], s{st} offen
    """)
    def qload(X):
        for hf in range(2):
            a(f"s_add_u32 m0, s{s_qlds+X}, {4096*hf}")
            a(f"s_add_u32 s{s_qb+2}, s{s_qb+X}, {4096*hf}")
            for j in range(4):
                a(f"buffer_load_dwordx4 v{ET+j}, s[{SRD_Q}:{SRD_Q+3}], s{s_qb+2} offen offset:{1024*j} lds")
    a(f"""
    s_mov_b32 s{s_qb}, s{st+2}
    s_mov_b32 s{s_qb+1}, s{st+3}
    """)
    qload(0)
    a(f"""
    s_cmp_lt_u32 s{sj}, s{sr}
    s_addc_u32 s{s_n}, s{sq}, 0                  ; n = q + (j<r)
    {SKEW2}
    s_min_u32 s{s_n}, s{s_n}, 54
    s_and_b32 s{s_rem}, s{sLm1}, 31
    s_add_u32 s{s_rem}, s{s_rem}, 1
    s_add_u32 s{st}, s{sj}, 1
    s_cmp_eq_u32 s{st}, s{sn}
    s_cselect_b32 s{s_rem}, s{s_rem}, 32
    s_sub_u32 s{s_patch}, s{s_n}, 2
    s_cmp_lt_u32 s{s_rem}, 32
    s_cselect_b32 s{s_patch}, s{s_patch}, 0x7fffffff
    s_mov_b32 s{s_scale}, 0x{f32bits(SCALE):x}
    s_cmp_lt_i32 s{scl}, 1
    s_cselect_b32 s{s_scale}, 0, s{s_scale}
    s_mov_b32 s{s_scale+1}, s{s_scale}
    s_lshl_b32 s{s_wgslot}, s{s_h}, 6
    s_add_u32 s{s_wgslot}, s{s_wgslot}, s{s_slot}
    s_min_u32 s{s_nb}, s{sn}, 64
    s_mov_b32 s{s_jj}, s{sj}
    s_sub_u32 s{s_E}, s{s_wgslot}, s{sj}
    """)
    sstamp(93)
    nz = cfg["zero_early"]
    for r in range(64, 64 + nz):
        a(f"v_mov_b32 v{r}, 0")
    a(f"""
    v_mov_b32 v{t2}, 0x80000000
    v_cmp_gt_u32 vcc, s{s_n}, v{VLANE}
    s_waitcnt vmcnt(8)
    v_lshlrev_b32 v{PAGES}, 14, v{PAGES}
    v_cndmask_b32 v{PAGES}, v{t2}, v{PAGES}, vcc
    s_nop 0
    """)
    PEEL = cfg["peel"]
    NPRE = D - PEEL
    for j in range(D + 1 + PEEL):
        a(f"v_readlane_b32 s{st+j}, v{PAGES}, {j}")
    a("s_nop 3")
    vm = ["QA"] * 8
    def vwait(tag):
        idx = max(i for i, t in enumerate(vm) if t == tag)
        a(f"s_waitcnt vmcnt({len(vm) - 1 - idx})")
    def issue(lst, tag):
        a(lst[0]); a("s_nop 0"); a(lst[2]); a(lst[3])
        vm.extend([tag, tag])
    pairs = [("K", 0)]
    for j in range(NPRE):
        pairs += [("K", j + 1), ("V", j)]
    def pair():
        if not pairs:
            return
        kind, j = pairs.pop(0)
        issue(dma_k(None, j, st + j) if kind == "K" else dma_v(None, j, st + j), f"{kind}{j}")
    QRAW = {0: 0, 1: 128}
    def qread(X):
        for s in range(8):
            a(f"v_add_u32 v{VT+4+s}, s{s_qlds+X}, v{KADDR+s}")
        for s in range(8):
            r = QRAW[X] + 4 * s
            a(f"ds_read_b128 v[{r}:{r+3}], v{VT+4+s}")
    def prescale(X, packed):
        out = []
        for i in range(32):
            r = QRAW[X] + i
            ta, tb = VT + (i & 1) * 2, VT + (i & 1) * 2 + 1
            g = []
            if i % 4 == 0:
                g.append(f"s_waitcnt lgkmcnt({7 - i // 4})")
            g += [f"v_lshlrev_b32 v{ta}, 16, v{r}", f"v_and_b32 v{tb}, 0xffff0000, v{r}"]
            if packed(i):
                g.append(f"v_pk_mul_f32 v[{ta}:{tb}], v[{ta}:{tb}], s[{s_scale}:{s_scale+1}]")
            else:
                g += [f"v_mul_f32 v{ta}, s{s_scale}, v{ta}", f"v_mul_f32 v{tb}, s{s_scale}, v{tb}"]
            g += [f"v_cvt_pk_bf16_f32 v{ta}, v{ta}, v{tb}", f"v_accvgpr_write_b32 a{32*X+i}, v{ta}"]
            out.append(g)
        return out
    pstamp(0)
    for _ in range(cfg["pp0"]):
        pair()
    qload(1); vm.extend(["QB"] * 8)
    for _ in range(cfg["pp1"]):
        pair()
    pstamp(1)
    for r in list(range(64 + nz, 128)) + list(range(160, 208)) + list(range(32, 64)):
        a(f"v_mov_b32 v{r}, 0")
    for r in range(32):
        a(f"v_accvgpr_write_b32 a{AV+r}, 0")
    a(f"""
    v_mov_b32 v{L_[0]}, 0
    v_mov_b32 v{L_[1]}, 0
    s_cmp_eq_u32 s{s_patch}, -1
    s_cbranch_scc0 L_nopatch0
    s_call_b64 s[{s_ret}:{s_ret+1}], L_sub_patch
    """)
    a.label("L_nopatch0")
    vwait("QA")
    pstamp(10)
    qread(0)
    for i, g in enumerate(prescale(0, lambda i: cfg["pk"])):
        for t in g:
            a(t)
        if i in cfg["ppA"]:
            pair()
    pstamp(2)
    vwait("QB")
    pstamp(11)
    qread(1)
    for i, g in enumerate(prescale(1, lambda i: cfg["pk"])):
        for t in g:
            a(t)
        if i in cfg["ppB"]:
            pair()
    pstamp(3)
    vwait("K0")
    pstamp(4)
    a("s_barrier")
    pstamp(12)
    for s in range(8):
        a(k_read(s, 0))
    for s in range(8):
        a(f"s_waitcnt lgkmcnt({7-s})")
        a(mfma_qk(0, s))
        if s in cfg["ppQ"]:
            pair()
        for r in range(128 + 4 * s, 132 + 4 * s):
            a(f"v_mov_b32 v{r}, 0")
    a(mfma_qk(1, 0))
    a("s_nop 7")
    mxa = emit_rowmax(a, 0, M_[0], VT)
    mxa += [f"v_sub_f32 v{S_[0]+r}, v{S_[0]+r}, v{M_[0]}" for r in range(16)]
    mxa += [f"v_sub_f32 v{C_[0]+r}, v{C_[0]+r}, v{M_[0]}" for r in range(16)]
    for s in range(1, 8):
        a(mfma_qk(1, s))
        for _ in range(5):
            a(mxa.pop(0))
    while pairs:
        pair()
    a(f"s_mov_b32 s{s_pg[(PEEL & 1) ^ 1]}, s{st+D+PEEL}")
    while mxa:
        a(mxa.pop(0))
    a("s_nop 7")
    for t in emit_rowmax(a, 1, M_[1], VT):
        a(t)
    for r in range(16):
        a(f"v_sub_f32 v{C_[1]+r}, v{C_[1]+r}, v{M_[1]}")
    if cfg["fused"]:
        emit_srd(a, SRD_X, s_dbg, 256)
        a(f"""
        s_or_b32 s{s_mine}, s{s_mine}, 1
        v_mov_b32 v{VT+10}, s{s_mine}
        v_mov_b32 v{VT+11}, 0
        s_cmp_eq_u32 s{s_w}, 0
        s_cselect_b32 s{s_mine+1}, 0, 0x80000000
        s_mov_b64 exec, 1
        buffer_atomic_cmpswap v[{VT+10}:{VT+11}], v{VT+11}, s[{SRD_X}:{SRD_X+3}], s{s_mine+1} offen sc0
        s_mov_b64 exec, -1
        """)
    sstamp(94)
    sstamp(95)
    pre, front, valu, tail = plan_body(7, cfg)
    hd = [t for g in range(32 - cfg["delta"], 32) for _, t in valu[g]
          if not t.startswith(f"v_add_f32 v{L_[1]},")]
    for t in hd:
        a(t)
    a("s_nop 1")
    tramps = []
    for k in range(PEEL):
        issued = NPRE + 2 * k
        need = k + cfg["bar_period"]
        assert issued >= need
        emit_body(a, k, tramps, cfg, peel=(NPRE + 2 * k, st), vm=4 * (issued - need))
    if PEEL:
        a(f"s_branch L_body_{PEEL}")
    for k in range(8):
        emit_body(a, k, tramps, cfg)
    a.label("L_drain")
    if cfg.get("stamp"):
        a(f"""
        s_memtime s[90:91]
        s_waitcnt lgkmcnt(0)
        s_mov_b32 s96, s90
        """)
    def conv(X, dt):
        o = O_[X] + 16 * dt
        d = 8 * (4 * X + dt)
        out = [f"v_cvt_pk_bf16_f32 v{d+j}, v{o+2*j}, v{o+2*j+1}" for j in range(8)]
        out.append(f"s_add_u32 s{st+1}, s{st}, {X*8192 + dt*2048}")
        out.append(f"buffer_store_dwordx4 v[{d}:{d+3}], v{VT+4}, s[{SRD_WS}:{SRD_WS+3}], s{st+1} offen{cfg['st_flags']}")
        out.append(f"buffer_store_dwordx4 v[{d+4}:{d+7}], v{VT+4}, s[{SRD_WS}:{SRD_WS+3}], s{st+1} offen offset:1024{cfg['st_flags']}")
        return out
    ep = f"""
    v_mov_b32 v{VT}, v{L_[0]}
    v_mov_b32 v{VT+1}, v{L_[1]}
    s_lshl_b32 s{st}, s{s_wgslot}, 16
    s_lshl_b32 s{st+1}, s{s_w}, 14
    s_add_u32 s{st}, s{st}, s{st+1}
    v_permlane32_swap_b32 v{L_[0]}, v{VT}
    v_permlane32_swap_b32 v{L_[1]}, v{VT+1}
    v_lshlrev_b32 v{VT+4}, 4, v{VLANE}
    v_mov_b32 v{VT+6}, v{M_[0]}
    v_add_f32 v{VT+7}, v{L_[0]}, v{VT}
    v_mov_b32 v{VT+8}, v{M_[1]}
    v_add_f32 v{VT+9}, v{L_[1]}, v{VT+1}
    """.strip().split("\n")
    ep += conv(0, 0) + conv(0, 1) + conv(0, 2) + conv(0, 3)
    for f in range(8):
        a(mfma_pv(1, f))
        for _ in range(6):
            a(ep.pop(0))
    while ep:
        a(ep.pop(0))
    a("s_nop 7")
    for dt in range(4):
        for t in conv(1, dt):
            a(t)
    a(f"""
    s_lshl_b32 s{st}, s{s_wgslot}, 11
    s_lshl_b32 s{st+1}, s{s_w}, 9
    s_add_u32 s{st}, s{st}, s{st+1}
    s_add_u32 s{st}, s{st}, 0x{WS_ML:x}
    v_lshlrev_b32 v{VT+4}, 3, v{VLANE}
    s_mov_b32 exec_hi, 0
    buffer_store_dwordx2 v[{VT+6}:{VT+7}], v{VT+4}, s[{SRD_WS}:{SRD_WS+3}], s{st} offen{cfg['st_flags']}
    buffer_store_dwordx2 v[{VT+8}:{VT+9}], v{VT+4}, s[{SRD_WS}:{SRD_WS+3}], s{st} offen offset:256{cfg['st_flags']}
    """)
    if cfg["fused"]:
        emit_fused_combine(a, cfg, sstamp)
    if cfg.get("stamp"):
        a(f"""
        s_mov_b64 exec, -1
        s_waitcnt vmcnt(0)
        s_memtime s[90:91]
        s_memrealtime s[86:87]
        s_getreg_b32 s98, hwreg(HW_REG_XCC_ID)
        s_waitcnt lgkmcnt(0)
        v_mov_b32 v{VT+14}, 0
        v_writelane_b32 v{VT+14}, s92, 0
        v_writelane_b32 v{VT+14}, s93, 1
        v_writelane_b32 v{VT+14}, s94, 2
        v_writelane_b32 v{VT+14}, s95, 3
        v_writelane_b32 v{VT+14}, s96, 4
        v_writelane_b32 v{VT+14}, s90, 5
        v_writelane_b32 v{VT+14}, s{s_n}, 6
        v_writelane_b32 v{VT+14}, s98, 7
        v_writelane_b32 v{VT+14}, s100, 8
        v_writelane_b32 v{VT+14}, s86, 9
        v_writelane_b32 v{VT+14}, s88, 10
        v_writelane_b32 v{VT+14}, s89, 11
        v_writelane_b32 v{VT+14}, s97, 12
        v_writelane_b32 v{VT+14}, s99, 13
        v_writelane_b32 v{VT+14}, s{s_h}, 14
        s_lshl_b32 s{st}, s{s_wg}, 12
        s_lshl_b32 s{st+1}, s{s_w}, 10
        s_add_u32 s{st}, s{st}, s{st+1}
        s_add_u32 s{st}, s{st}, 0x{WS_DBG:x}
        v_lshlrev_b32 v{VT}, 2, v{VLANE}
        buffer_store_dword v{VT+12}, v{VT}, s[{SRD_WS}:{SRD_WS+3}], s{st} offen
        buffer_store_dword v{VT+13}, v{VT}, s[{SRD_WS}:{SRD_WS+3}], s{st} offen offset:256
        buffer_store_dword v{VT+14}, v{VT}, s[{SRD_WS}:{SRD_WS+3}], s{st} offen offset:512
        """)
    if cfg.get("pad_to_us"):
        a(f"""
        s_waitcnt vmcnt(0)
        s_add_u32 s92, s100, {int(cfg["pad_to_us"]*100)}
        """)
    if cfg.get("delay_us"):
        a(f"""
        s_memrealtime s[90:91]
        s_waitcnt lgkmcnt(0)
        s_add_u32 s92, s90, {int(cfg["delay_us"]*100)}
        """)
    if cfg.get("delay_us") or cfg.get("pad_to_us"):
        a.label("L_delay")
        a(f"""
        s_sleep 4
        s_memrealtime s[90:91]
        s_waitcnt lgkmcnt(0)
        s_sub_u32 s93, s92, s90
        s_cmp_gt_i32 s93, 0
        s_cbranch_scc1 L_delay
        """)
    a.label("L_end")
    a("s_endpgm")
    for lab, sub, ret in tramps:
        a.label(lab)
        a(f"s_call_b64 s[{s_ret}:{s_ret+1}], {sub}")
        a(f"s_branch {ret}")
    emit_fallback(a, 0)
    emit_fallback(a, 1)
    emit_patch(a)


def emit_fused_combine(a, cfg, sstamp):
    st = s_t0
    ldf = cfg["cld_flags"]
    s_nonce, s_to, s_mask, s_done, s_rdy, s_r0 = 54, 55, 56, 62, 64, 78
    s_sig, s_cnt, s_step, s_o, s_ml, s_two = 66, 68, 69, 70, 72, 76
    SJ = lambda k: 44 + k
    OB = lambda k: 16 * k
    MLB = lambda k: 128 + 2 * k
    ACC = 160
    MX, DEN, MN = 192, 194, 196
    SC, W, U0, U1 = 198, 204, 200, 201
    VO, VML, VOUT, VF, VFO = 206, 207, 208, 209, 210
    WSR = f"s[{SRD_WS}:{SRD_WS+3}]"
    LA = cfg["clook"]
    def cst(n):
        if cfg.get("stamp"):
            a(f"""
            s_memtime s[90:91]
            s_waitcnt lgkmcnt(0)
            v_writelane_b32 v{VT+12}, s90, {53+n}
            """)
    a(f"""
    s_mov_b64 exec, -1
    s_waitcnt vmcnt(18)
    v_readfirstlane_b32 s{s_nonce}, v{VT+10}
    v_lshlrev_b32 v{VO}, 4, v{VLANE}
    v_and_b32 v{VML}, 31, v{VLANE}
    v_lshlrev_b32 v{VOUT}, 8, v{VML}
    v_lshl_add_u32 v{VOUT}, v{VH4}, 2, v{VOUT}   ; q*256 + h2*16
    v_lshlrev_b32 v{VML}, 3, v{VML}
    v_lshlrev_b32 v{VFO}, 2, v{VLANE}
    v_cmp_gt_u32 vcc, s{s_nb}, v{VLANE}
    s_mov_b64 s[{s_mask}:{s_mask+1}], vcc
    s_lshl_b32 s{s_step}, s{s_nb}, 2
    s_lshl_b32 s{s_sig}, s{s_jj}, 2
    s_add_u32 s{s_sig}, s{s_sig}, s{s_w}
    s_cmp_lt_u32 s{s_nb}, 8
    s_cselect_b32 s{s_two}, 1, 0
    s_lshl_b32 s{s_sig}, s{s_sig}, s{s_two}
    s_lshl_b32 s{s_step}, s{s_step}, s{s_two}
    s_cmp_eq_u32 s{s_nonce}, 0
    s_cselect_b32 s{s_nonce}, s{s_mine}, s{s_nonce}
    v_mov_b32 v{VF}, s{s_nonce}
    v_mov_b32 v{U0}, 0x20000
    s_lshl_b32 s{s_mine+1}, s{s_b}, 2
    s_add_u32 s{s_mine+1}, s{s_mine+1}, s{s_h}
    s_lshl_b32 s{s_mine+1}, s{s_mine+1}, 8
    s_add_u32 s{s_mine+1}, s{s_mine+1}, 0x{WS_FLAG:x}
    s_mov_b32 s{s_to}, {cfg["poll_max"]}
    s_cmp_lg_u32 s{s_w}, 0
    s_cbranch_scc1 L_fc_nz
    ds_write_b32 v{U0}, v{VF}
    """)
    a.label("L_fc_nz")
    emit_srd(a, SRD_X, s_out, Q_BYTES)
    a(f"""
    s_waitcnt vmcnt(0) lgkmcnt(0)
    s_barrier
    s_cmp_lg_u32 s{s_w}, 0
    s_cbranch_scc1 L_fc_nz2
    s_lshl_b32 s{st}, s{s_jj}, 2
    s_add_u32 s{st}, s{st}, s{s_mine+1}
    s_mov_b64 exec, 1
    buffer_store_dword v{VF}, v{VT+11}, {WSR}, s{st} offen sc1
    s_mov_b64 exec, -1
    """)
    a.label("L_fc_nz2")
    sstamp(97)
    a(f"""
    ds_read_b32 v{VF}, v{U0}
    s_cmp_ge_u32 s{s_sig}, 32
    s_cbranch_scc1 L_fc_end
    s_waitcnt lgkmcnt(0)
    v_readfirstlane_b32 s{s_nonce}, v{VF}
    """)
    a.label("L_fc_outer")
    a(f"""
    s_mov_b64 s[{s_done}:{s_done+1}], 0
    s_lshl_b32 s{s_o}, s{s_sig}, 11
    s_lshr_b32 s{s_ml}, s{s_sig}, 2
    s_lshl_b32 s{s_ml}, s{s_ml}, 8
    s_add_u32 s{s_ml}, s{s_ml}, 0x{WS_ML:x}
    v_mov_b32 v{MX}, 0xff800000
    v_mov_b32 v{DEN}, 0
    """)
    for r in range(32):
        a(f"v_mov_b32 v{ACC+r}, 0")
    a.label("L_fc_poll")
    a(f"""
    buffer_load_dword v{VF}, v{VFO}, {WSR}, s{s_mine+1} offen sc1
    s_waitcnt vmcnt(0)
    v_cmp_eq_u32 vcc, s{s_nonce}, v{VF}
    s_and_b64 s[{s_rdy}:{s_rdy+1}], vcc, s[{s_mask}:{s_mask+1}]
    s_andn2_b64 s[{s_rdy}:{s_rdy+1}], s[{s_rdy}:{s_rdy+1}], s[{s_done}:{s_done+1}]
    s_cbranch_scc1 L_fc_go
    s_sleep {cfg["poll_sleep"]}
    s_sub_u32 s{s_to}, s{s_to}, 1
    s_cmp_lg_u32 s{s_to}, 0
    s_cbranch_scc1 L_fc_poll
    s_branch L_fc_store
    """)
    a.label("L_fc_go")
    sstamp(99)
    a(f"""
    s_mov_b64 s[{s_r0}:{s_r0+1}], s[{s_rdy}:{s_rdy+1}]
    v_mov_b32 v{MN}, v{MX}
    """)
    for k in range(8):
        a(f"""
        s_ff1_i32_b64 s{st}, s[{s_rdy}:{s_rdy+1}]
        s_bitset0_b64 s[{s_rdy}:{s_rdy+1}], s{st}
        s_add_u32 s{st}, s{st}, s{s_E}
        s_lshl_b32 s{SJ(k)}, s{st}, 16
        s_lshl_b32 s{st}, s{st}, 11
        s_add_u32 s{st}, s{st}, s{s_ml}
        s_add_u32 s{SJ(k)}, s{SJ(k)}, s{s_o}
        s_mov_b32 s{s_cnt}, {k+1}
        buffer_load_dwordx2 v[{MLB(k)}:{MLB(k)+1}], v{VML}, {WSR}, s{st} offen{ldf}
        """)
        if k < 7:
            a(f"""
            s_cmp_eq_u64 s[{s_rdy}:{s_rdy+1}], 0
            s_cbranch_scc1 L_fc_taken
            """)
    a.label("L_fc_taken")
    a(f"""
    s_andn2_b64 s[{s_r0}:{s_r0+1}], s[{s_r0}:{s_r0+1}], s[{s_rdy}:{s_rdy+1}]
    s_or_b64 s[{s_done}:{s_done+1}], s[{s_done}:{s_done+1}], s[{s_r0}:{s_r0+1}]
    s_cmp_eq_u32 s{s_two}, 1
    s_cbranch_scc1 L_fc_r2
    """)
    for NS in (1, 2):
        tag = f"r{NS}"
        a.label(f"L_fc_{tag}")
        def oload(k):
            for c in range(2 * NS):
                a(f"buffer_load_dwordx4 v[{OB(k)+4*c}:{OB(k)+4*c+3}], v{VO}, {WSR}, s{SJ(k)} offen offset:{1024*c}{ldf}")
        for k in range(7, -1, -1):
            a(f"""
            s_cmp_le_u32 s{s_cnt}, {k}
            s_cbranch_scc1 L_fc_{tag}_p{k}
            """)
            if k + LA < 8:
                a(f"""
                s_cmp_gt_u32 s{s_cnt}, {k + LA}
                s_cbranch_scc1 L_fc_{tag}_pd
                """)
            oload(k)
            a.label(f"L_fc_{tag}_p{k}")
        a.label(f"L_fc_{tag}_pd")
        cst(0)
        for c in range(1, LA):
            a(f"""
            s_cmp_eq_u32 s{s_cnt}, {c}
            s_cbranch_scc0 L_fc_{tag}_w{c}
            s_waitcnt vmcnt({2*NS*c})
            """)
            a.label(f"L_fc_{tag}_w{c}")
        a(f"s_waitcnt vmcnt({2*NS*LA})")
        cst(1)
        for k in range(8):
            if k:
                a(f"""
                s_cmp_le_u32 s{s_cnt}, {k}
                s_cbranch_scc1 L_fc_{tag}_max
                """)
            a(f"v_max_f32 v{MN}, v{MN}, v{MLB(k)}")
        a.label(f"L_fc_{tag}_max")
        a(f"""
        v_sub_f32 v{SC}, v{MX}, v{MN}
        v_exp_f32 v{SC}, v{SC}
        v_mov_b32 v{MX}, v{MN}
        v_mul_f32 v{DEN}, v{DEN}, v{SC}
        """)
        for r in range(16 * NS):
            a(f"v_mul_f32 v{ACC+r}, v{ACC+r}, v{SC}")
        for k in range(7, -1, -1):
            if k:
                a(f"""
                s_cmp_le_u32 s{s_cnt}, {k}
                s_cbranch_scc1 L_fc_{tag}_u{k}
                """)
            if k - LA >= 0:
                oload(k - LA)
            a(f"""
            v_sub_f32 v{W}, v{MLB(k)}, v{MN}
            v_exp_f32 v{W}, v{W}
            s_waitcnt vmcnt({2*NS*min(k, LA) + 2*NS - 1})
            v_fmac_f32 v{DEN}, v{W}, v{MLB(k)+1}
            """)
            for r in range(8 * NS):
                u0, u1 = U0 + 2 * (r & 1), U1 + 2 * (r & 1)
                if r and r % 4 == 0:
                    a(f"s_waitcnt vmcnt({2*NS*min(k, LA) + 2*NS - 1 - r//4})")
                a(f"""
                v_lshlrev_b32 v{u0}, 16, v{OB(k)+r}
                v_and_b32 v{u1}, 0xffff0000, v{OB(k)+r}
                """)
                if cfg["cpk"]:
                    a(f"v_pk_fma_f32 v[{ACC+2*r}:{ACC+2*r+1}], v[{u0}:{u1}], v[{W}:{W+1}], v[{ACC+2*r}:{ACC+2*r+1}] op_sel_hi:[1,0,1]")
                else:
                    a(f"""
                    v_fmac_f32 v{ACC+2*r}, v{W}, v{u0}
                    v_fmac_f32 v{ACC+2*r+1}, v{W}, v{u1}
                    """)
            a.label(f"L_fc_{tag}_u{k}")
        cst(2)
        a(f"""
        s_cmp_lg_u64 s[{s_done}:{s_done+1}], s[{s_mask}:{s_mask+1}]
        s_cbranch_scc1 L_fc_poll
        """)
        if NS == 1:
            a("s_branch L_fc_store")
    a.label("L_fc_store")
    cst(3)
    a(f"""
    v_rcp_f32 v{SC}, v{DEN}
    s_lshl_b32 s{st}, s{s_b}, 2
    s_add_u32 s{st}, s{st}, s{s_h}
    s_lshl_b32 s{st}, s{st}, 16                  ; (b*32 + 8h)*8192
    s_lshr_b32 s{st+1}, s{s_sig}, 2
    s_lshl_b32 s{st+1}, s{st+1}, 13
    s_add_u32 s{st}, s{st}, s{st+1}
    s_and_b32 s{st+1}, s{s_sig}, 3
    s_lshl_b32 s{st+1}, s{st+1}, 6
    s_add_u32 s{st}, s{st}, s{st+1}
    """)
    for X in range(2):
        if X:
            a(f"""
            s_cmp_eq_u32 s{s_two}, 0
            s_cbranch_scc1 L_fc_end
            """)
        A0 = ACC + 16 * X
        for r in range(16):
            a(f"v_mul_f32 v{A0+r}, v{A0+r}, v{SC}")
        for r in range(8):
            a(f"v_cvt_pk_bf16_f32 v{A0+r}, v{A0+2*r}, v{A0+2*r+1}")
        a("s_nop 1")
        for pr in range(2):
            a(f"v_permlane32_swap_b32 v{A0+4*pr}, v{A0+4*pr+2}")
            a(f"v_permlane32_swap_b32 v{A0+4*pr+1}, v{A0+4*pr+3}")
        for pr in range(2):
            a(f"buffer_store_dwordx4 v[{A0+4*pr}:{A0+4*pr+3}], v{VOUT}, s[{SRD_X}:{SRD_X+3}], s{st} offen offset:{64*X + 32*pr}{cfg['out_flags']}")
    a(f"""
    s_add_u32 s{s_sig}, s{s_sig}, s{s_step}
    s_cmp_lt_u32 s{s_sig}, 32
    s_nop 1
    s_cbranch_scc1 L_fc_outer
    """)
    a.label("L_fc_end")


def emit_combine(a, cfg):
    K = "pa_combine_kernel"
    NB = 12
    a.raw(f".globl {K}\n.p2align 8\n.type {K},@function")
    a.label(K)
    VL, VCL, VT_ = 200, 201, 202
    ACC = 160
    DEN, MX, MN, SC, W = 170, 171, 172, 173, 174
    U0, U1 = 176, 177
    OB = 0
    MLB = 64
    SRD_C, SRD_W, SRD_O = 20, 24, 28
    sw, sb, sh, swx, sn, sE, sbase, sj = 40, 41, 42, 43, 44, 45, 46, 47
    st = 60
    a(f"""
    s_cmp_ge_u32 s2, 256
    s_cbranch_scc1 L_cend
    s_load_dwordx16 s[4:19], s[0:1], 0
    {"s_memrealtime s[100:101]" if cfg.get("cpad_to_us") else ""}
    v_lshrrev_b32 v{VT_}, 6, v0
    v_and_b32 v{VL}, 63, v0
    s_lshr_b32 s{sb}, s2, 5
    v_readfirstlane_b32 s{sw}, v{VT_}
    s_lshr_b32 s{sh}, s2, 3
    s_and_b32 s{sh}, s{sh}, 3
    s_and_b32 s{swx}, s2, 7
    v_and_b32 v{VT_+1}, 7, v{VL}
    v_lshlrev_b32 v{VT_+1}, 2, v{VT_+1}
    s_waitcnt lgkmcnt(0)
    """)
    emit_srd(a, SRD_C, s_cl, 32)
    a(f"buffer_load_dword v{VCL}, v{VT_+1}, s[{SRD_C}:{SRD_C+3}], 0 offen")
    emit_srd(a, SRD_W, s_ws, WS_BYTES)
    emit_srd(a, SRD_O, s_out, Q_BYTES)
    VOFF, VML, VOUT = 180, 181, 182
    a(f"""
    s_lshl_b32 s{st}, s{swx}, 13
    s_lshl_b32 s{st+1}, s{sw}, 10
    s_add_u32 s{st}, s{st}, s{st+1}
    v_lshlrev_b32 v{VOFF}, 4, v{VL}
    v_add_u32 v{VOFF}, s{st}, v{VOFF}
    s_lshl_b32 s{st}, s{swx}, 8
    s_add_u32 s{st}, s{st}, 0x{WS_ML:x}
    v_and_b32 v{VML}, 31, v{VL}
    v_lshlrev_b32 v{VOUT}, 8, v{VML}             ; q*256
    v_lshlrev_b32 v{VML}, 3, v{VML}
    v_add_u32 v{VML}, s{st}, v{VML}
    v_lshrrev_b32 v{VT_+2}, 5, v{VL}
    v_lshl_add_u32 v{VOUT}, v{VT_+2}, 3, v{VOUT} ; + h2*8
    s_lshl_b32 s{st}, s2, 13
    s_lshl_b32 s{st+1}, s{sw}, 5
    s_add_u32 s{st}, s{st}, s{st+1}
    v_add_u32 v{VOUT}, s{st}, v{VOUT}
    v_mov_b32 v{DEN}, 0
    v_mov_b32 v{MX}, 0xff800000
    """)
    for r in range(8):
        a(f"v_mov_b32 v{ACC+r}, 0")
    a("s_waitcnt vmcnt(0)")
    R = emit_partition(a, VL, VCL, VT_, st)
    a(f"""
    s_add_u32 s{st}, s{st}, s{sb}
    v_readlane_b32 s{sn}, v{R['n']}, s{st}
    v_readlane_b32 s{sE}, v{R['incl']}, s{st}
    s_nop 3
    s_sub_u32 s{sE}, s{sE}, s{sn}
    s_min_u32 s{sn}, s{sn}, 64
    s_lshl_b32 s{st}, s{sh}, 6
    s_add_u32 s{sE}, s{sE}, s{st}
    s_mov_b32 s{sbase}, 0
    """)
    a.label("L_cloop")
    for j in range(NB):
        a(f"""
        s_add_u32 s{sj}, s{sbase}, {j}
        s_add_u32 s{st}, s{sE}, s{sj}
        s_lshl_b32 s{st+1}, s{st}, 16
        s_lshl_b32 s{st}, s{st}, 11
        s_cmp_lt_u32 s{sj}, s{sn}
        s_cselect_b32 s{st+1}, s{st+1}, 0x80000000
        s_cselect_b32 s{st}, s{st}, 0x80000000
        buffer_load_dwordx2 v[{MLB+2*j}:{MLB+2*j+1}], v{VML}, s[{SRD_W}:{SRD_W+3}], s{st} offen
        buffer_load_dwordx4 v[{OB+4*j}:{OB+4*j+3}], v{VOFF}, s[{SRD_W}:{SRD_W+3}], s{st+1} offen
        """)
    a(f"v_mov_b32 v{MN}, v{MX}")
    for j in range(NB):
        a(f"""
        s_add_u32 s{sj}, s{sbase}, {j}
        s_cmp_ge_u32 s{sj}, s{sn}
        s_cbranch_scc1 L_cmaxdone
        s_waitcnt vmcnt({2*(NB-1-j)+1})
        v_max_f32 v{MN}, v{MN}, v{MLB+2*j}
        """)
    a.label("L_cmaxdone")
    a(f"""
    v_sub_f32 v{SC}, v{MX}, v{MN}
    v_exp_f32 v{SC}, v{SC}
    v_mov_b32 v{MX}, v{MN}
    v_mul_f32 v{DEN}, v{DEN}, v{SC}
    """)
    for r in range(8):
        a(f"v_mul_f32 v{ACC+r}, v{ACC+r}, v{SC}")
    for j in range(NB):
        a(f"""
        s_add_u32 s{sj}, s{sbase}, {j}
        s_cmp_ge_u32 s{sj}, s{sn}
        s_cbranch_scc1 L_cfin
        v_sub_f32 v{W}, v{MLB+2*j}, v{MX}
        v_exp_f32 v{W}, v{W}
        s_waitcnt vmcnt({2*(NB-1-j)})
        v_fmac_f32 v{DEN}, v{W}, v{MLB+2*j+1}
        """)
        for r in range(4):
            a(f"""
            v_lshlrev_b32 v{U0}, 16, v{OB+4*j+r}
            v_and_b32 v{U1}, 0xffff0000, v{OB+4*j+r}
            v_fmac_f32 v{ACC+2*r}, v{W}, v{U0}
            v_fmac_f32 v{ACC+2*r+1}, v{W}, v{U1}
            """)
    a(f"""
    s_add_u32 s{sbase}, s{sbase}, {NB}
    s_branch L_cloop
    """)
    a.label("L_cfin")
    a(f"""
    v_rcp_f32 v{SC}, v{DEN}
    s_nop 0
    """)
    for r in range(8):
        a(f"v_mul_f32 v{ACC+r}, v{ACC+r}, v{SC}")
    for r in range(4):
        a(f"v_cvt_pk_bf16_f32 v{ACC+r}, v{ACC+2*r}, v{ACC+2*r+1}")
    a(f"""
    buffer_store_dwordx2 v[{ACC}:{ACC+1}], v{VOUT}, s[{SRD_O}:{SRD_O+3}], 0 offen
    buffer_store_dwordx2 v[{ACC+2}:{ACC+3}], v{VOUT}, s[{SRD_O}:{SRD_O+3}], 0 offen offset:16
    """)
    if cfg.get("cpad_to_us"):
        a(f"""
        s_waitcnt vmcnt(0)
        s_add_u32 s92, s100, {int(cfg["cpad_to_us"]*100)}
        """)
        a.label("L_cdelay")
        a(f"""
        s_sleep 4
        s_memrealtime s[90:91]
        s_waitcnt lgkmcnt(0)
        s_sub_u32 s93, s92, s90
        s_cmp_gt_i32 s93, 0
        s_cbranch_scc1 L_cdelay
        """)
    a.label("L_cend")
    a("s_endpgm")


def descriptor(name, vgpr, accum, sgpr=102):
    return f"""
.p2align 6
.amdhsa_kernel {name}
  .amdhsa_next_free_vgpr {vgpr}
  .amdhsa_next_free_sgpr {sgpr}
  .amdhsa_accum_offset {accum}
  .amdhsa_group_segment_fixed_size 0
  .amdhsa_kernarg_size 64
  .amdhsa_user_sgpr_count 2
  .amdhsa_user_sgpr_kernarg_segment_ptr 1
  .amdhsa_system_sgpr_workgroup_id_x 1
.end_amdhsa_kernel
"""


DEFAULT_CFG = dict(
    vslots=[9, 10, 11, 12, 13, 14, 15, 16, 17, 18, 19, 20, 21, 22, 23, 24],
    rl_slot=22,
    dma_slots=[25, 26, 27, 29],
    dma_cost=12,
    patch_slot=9,
    delta=3,
    br_dist=2,
    empty_gaps=[31],
    bar_period=2,
    pp0=1, pp1=0, ppA=[7, 15], ppB=[15, 31], ppQ=[1, 3, 5, 7],
    pk=1,
    warm=1,
    zero_early=64,
    thr_log2=12,
    st_flags=" sc1",
    fused=1, cld_flags=" sc1", poll_sleep=2, poll_max=200000, cpk=0, clook=3, out_flags="",
    depth=6, map=0, peel=3, peel_slots=[19, 22, 25, 27],
    ld_flags=" nt",
)


def generate(cfg=None, out=OUT):
    c = dict(DEFAULT_CFG)
    if cfg:
        c.update(cfg)
    global LDFLAGS
    LDFLAGS = c["ld_flags"]
    a = Asm()
    a.raw(f"""; Paged attention (GQA, split-KV) for gfx950 -- generated by gen.py (hand-scheduled)
{("; @launch grid=(256,1,1) block=(256,1,1) lds=163840" if c["fused"] else "; @launch kernel=" + NAME + "_kernel grid=(256,1,1) block=(256,1,1) lds=163840" + chr(10) + "; @launch kernel=pa_combine_kernel grid=(256,1,1) block=(512,1,1) lds=0")}
{"; @launch kernel=pa_nop_kernel grid=(1,1,1) block=(64,1,1) lds=0" + chr(10) if c.get("nop3") else ""}.amdgcn_target "amdgcn-amd-amdhsa--gfx950"
.text""")
    emit_main(a, c)
    if not c["fused"]:
        emit_combine(a, c)
    if c.get("nop3"):
        a.raw(".globl pa_nop_kernel\n.p2align 8\n.type pa_nop_kernel,@function\npa_nop_kernel:\n    s_endpgm")
    a.raw('.section .rodata,"a"')
    if c.get("nop3"):
        a.raw(descriptor("pa_nop_kernel", 8, 8))
    a.raw(descriptor(NAME + "_kernel", 384, 256))
    if not c["fused"]:
        a.raw(descriptor("pa_combine_kernel", 216, 216))
    open(out, "w").write(a.text())


if __name__ == "__main__":
    import json
    cfg = json.loads(sys.argv[1]) if len(sys.argv) > 1 else None
    generate(cfg, sys.argv[2] if len(sys.argv) > 2 else OUT)
```

```python
import sys, math

NAME = "standalone__paged_block_table_kv_pagedattention__sampling"
OUT = "cdna_kernels/%s.s" % NAME

KV_BYTES = 4100 * 16384
Q_BYTES = 8 * 32 * 32 * 128 * 2
BT_BYTES = 8 * 512 * 4
WS_ML = 0x1000000
WS_DBG = WS_ML + 256 * 2048
WS_FLAG = WS_DBG + 0x100000
WS_BYTES = WS_FLAG + 32 * 256
SCALE = math.log2(math.e) / math.sqrt(128.0)
THR_LOG2 = 12

import struct
def f32bits(x):
    return struct.unpack("<I", struct.pack("<f", x))[0]

class Asm:
    def __init__(self):
        self.lines = []
    def __call__(self, s):
        for l in s.strip("\n").split("\n"):
            self.lines.append("    " + l.strip())
    def label(self, l):
        self.lines.append(l + ":")
    def raw(self, s):
        self.lines.append(s)
    def text(self):
        return "\n".join(self.lines) + "\n"

S_ = {0: 0, 1: 16}
C_ = {0: 32, 1: 48}
O_ = {0: 64, 1: 128}
P_ = {0: 192, 1: 200}
KADDR = 208
VADDR = 216
VOFFK = 220
VOFFV = 222
PAGES = 224
L_ = {0: 225, 1: 226}
M_ = {0: 227, 1: 228}
TS_ = {0: (229, 230), 1: (231, 232)}
ET = 233
VLANE = 239
VT = 240
VH4 = 255
AQ = {0: 0, 1: 32}
AK = 64
AV = 96

s_wg = 2
s_q, s_k, s_v, s_bt, s_cl, s_out, s_dbg, s_ws = 4, 6, 8, 10, 12, 14, 16, 18
SRD_K, SRD_V, SRD_Q, SRD_X, SRD_WS, SRD_BT = 20, 24, 28, 32, 36, 76
s_w = 40
s_h = 41
s_slot = 42
s_n = 43
s_i = 44
s_patch = 45
s_rem = 46
s_idx = 47
s_pg = {0: 48, 1: 49}
s_m0k = 50
s_m0v = 51
s_thr = {0: 52, 1: 52}
s_E = 53
s_nb = 82
s_jj = 3
s_mine = 74
s_floor = {0: 54, 1: 55}
s_first = {0: 56, 1: 57}
s_ret = 58
s_t0 = 60
s_qb = 84
s_qlds = 54
s_b = 80
s_start = 81
s_scale = 56
s_wgslot = 83


def emit_srd(a, d, ptr, nbytes):
    a(f"""
    s_mov_b32 s{d}, s{ptr}
    s_and_b32 s{d+1}, s{ptr+1}, 0xffff
    s_mov_b32 s{d+2}, 0x{nbytes:x}
    s_mov_b32 s{d+3}, 0x20000
    """)


def sum8(a, dst, src, tmp):
    a(f"""
    s_nop 1
    v_add_u32_dpp v{tmp}, v{src}, v{src} quad_perm:[1,0,3,2] row_mask:0xf bank_mask:0xf
    s_nop 1
    v_add_u32_dpp v{dst}, v{tmp}, v{tmp} quad_perm:[2,3,0,1] row_mask:0xf bank_mask:0xf
    s_nop 1
    v_add_u32_dpp v{dst}, v{dst}, v{dst} row_half_mirror row_mask:0xf bank_mask:0xf
    """)


def emit_partition(a, vlane, vcl, vt, st):
    Lm1, T_, Cc, Nn, NS, INC, Qq, Rr, X0, X1 = range(vt, vt + 10)
    a(f"""
    v_add_u32 v{Lm1}, -1, v{vcl}
    v_min_u32 v{Lm1}, 0x1fff, v{Lm1}
    v_lshrrev_b32 v{T_}, 5, v{Lm1}
    v_add_u32 v{T_}, 1, v{T_}
    """)
    sum8(a, Cc, T_, X0)
    a(f"""
    v_add_u32 v{Cc}, 63, v{Cc}
    v_lshrrev_b32 v{Cc}, 6, v{Cc}
    v_lshrrev_b32 v{X0}, 3, v{vlane}
    v_add_u32 v{Cc}, v{Cc}, v{X0}
    v_cvt_f32_u32 v{X0}, v{Cc}
    v_rcp_f32 v{X0}, v{X0}
    v_add3_u32 v{X1}, v{T_}, v{Cc}, -1
    v_cvt_f32_u32 v{X1}, v{X1}
    v_add_f32 v{X1}, 0.5, v{X1}
    v_mul_f32 v{X1}, v{X1}, v{X0}
    v_cvt_u32_f32 v{Nn}, v{X1}
    """)
    sum8(a, NS, Nn, X0)
    a(f"""
    s_nop 1
    v_add_u32_dpp v{INC}, v{Nn}, v{Nn} row_shr:1 row_mask:0xf bank_mask:0xf bound_ctrl:0
    v_cvt_f32_u32 v{X0}, v{Nn}
    v_rcp_f32 v{X0}, v{X0}
    v_add_u32_dpp v{INC}, v{INC}, v{INC} row_shr:2 row_mask:0xf bank_mask:0xf bound_ctrl:0
    v_cvt_f32_u32 v{X1}, v{T_}
    v_add_f32 v{X1}, 0.5, v{X1}
    v_add_u32_dpp v{INC}, v{INC}, v{INC} row_shr:4 row_mask:0xf bank_mask:0xf bound_ctrl:0
    v_mul_f32 v{X1}, v{X1}, v{X0}
    v_cvt_u32_f32 v{Qq}, v{X1}
    v_add_u32_dpp v{INC}, v{INC}, v{INC} row_shr:8 row_mask:0xf bank_mask:0xf bound_ctrl:0
    v_mul_u32_u24 v{X0}, v{Qq}, v{Nn}
    v_sub_u32 v{Rr}, v{T_}, v{X0}
    v_mov_b32_dpp v{X1}, v{NS} row_shr:8 row_mask:0xf bank_mask:0xf bound_ctrl:0
    v_sub_u32 v{INC}, v{INC}, v{X1}
    v_cmp_ge_u32 vcc, 64, v{NS}
    s_ff1_i32_b64 s{st}, vcc
    s_mov_b64 s[{st+2}:{st+3}], 0xff
    s_lshl_b64 s[{st+2}:{st+3}], s[{st+2}:{st+3}], s{st}
    """)
    return dict(Lm1=Lm1, t=T_, n=Nn, incl=INC, q=Qq, r=Rr)


def sm_stream(X, et=None):
    S = S_[X]; P = P_[X]
    TS0, TS1 = TS_[X]
    et = ET if et is None else et
    def tmp(j):
        if j == 0:
            return TS0, TS1
        k = (j - 1) % 3
        return et + 2 * k, et + 2 * k + 1
    E = lambda j, h: (8, f"v_exp_f32 v{tmp(j)[h]}, v{S + 2 * j + h}")
    A = lambda j, h: (4, f"v_add_f32 v{(TS0, TS1)[h]}, v{(TS0, TS1)[h]}, v{tmp(j)[h]}")
    C = lambda j: (4, f"v_cvt_pk_bf16_f32 v{P + j}, v{tmp(j)[0]}, v{tmp(j)[1]}")
    st = [E(0, 0), E(0, 1), E(1, 0), C(0), E(1, 1)]
    for j in range(1, 7):
        st += [A(j, 0), E(j + 1, 0), A(j, 1), C(j), E(j + 1, 1)]
    st += [A(7, 0), A(7, 1), C(7), (4, f"v_add_f32 v{TS0}, v{TS0}, v{TS1}")]
    return st


def mfma_qk(X, s):
    c = C_[X] if s == 0 else S_[X]
    return (f"v_mfma_f32_32x32x16_bf16 v[{S_[X]}:{S_[X]+15}], a[{AK+4*s}:{AK+4*s+3}], "
            f"a[{AQ[X]+4*s}:{AQ[X]+4*s+3}], v[{c}:{c+15}]")


def mfma_pv(X, f):
    t, dt = f >> 2, f & 3
    o = O_[X] + 16 * dt
    return (f"v_mfma_f32_32x32x16_bf16 v[{o}:{o+15}], a[{AV+4*f}:{AV+4*f+3}], "
            f"v[{P_[X]+4*t}:{P_[X]+4*t+3}], v[{o}:{o+15}]")


def k_read(s, slot):
    return f"ds_read_b128 a[{AK+4*s}:{AK+4*s+3}], v{KADDR+s} offset:{slot*8192}"


def v_read(f, y, slot):
    t, dt = f >> 2, f & 3
    return (f"ds_read_b64_tr_b16 a[{AV+4*f+2*y}:{AV+4*f+2*y+1}], v{VADDR+dt} "
            f"offset:{slot*8192 + (16*t+8*y)*256}")


LDFLAGS = ""
def dma_k(a_list, slot, spg):
    return [f"s_add_u32 m0, s{s_m0k}, {slot*8192}",
            None,
            f"buffer_load_dwordx4 v{VOFFK}, s[{SRD_K}:{SRD_K+3}], s{spg} offen{LDFLAGS} lds",
            f"buffer_load_dwordx4 v{VOFFK+1}, s[{SRD_K}:{SRD_K+3}], s{spg} offen offset:1024{LDFLAGS} lds"]


def dma_v(a_list, slot, spg):
    return [f"s_add_u32 m0, s{s_m0v}, {slot*8192}",
            None,
            f"buffer_load_dwordx4 v{VOFFV}, s[{SRD_V}:{SRD_V+3}], s{spg} offen{LDFLAGS} lds",
            f"buffer_load_dwordx4 v{VOFFV+1}, s[{SRD_V}:{SRD_V+3}], s{spg} offen offset:1024{LDFLAGS} lds"]


def plan_body(k, cfg, tramps=None, peel=None):
    kn = (k + 1) % 8
    kl = k if peel is None else f"p{k}"
    D = cfg["depth"]
    pgn = s_pg[k & 1]
    pgo = s_pg[(k & 1) ^ 1]
    tramps = [] if tramps is None else tramps
    pre = {i: [] for i in range(32)}
    front = {i: [] for i in range(32)}
    valu = {i: [] for i in range(32)}
    tail = {i: [] for i in range(32)}
    for s in range(8):
        front[s + 1].append((4, k_read(s, kn)))
    vslots = cfg["vslots"]
    vr = [(f, y) for f in range(8) for y in range(2)]
    for (f, y), sl in zip(vr, vslots):
        assert sl >= 9 + f, (f, sl)
        front[sl].append((4, v_read(f, y, k)))
    def vr_before(m):
        return sum(1 for sl in vslots if sl < m)
    pre[16].append(f"s_waitcnt lgkmcnt({vr_before(16)})")
    assert vr_before(24) >= 8
    pre[24].append(f"s_waitcnt lgkmcnt({vr_before(24) - 8})")
    assert vr_before(28) == 16
    pre[28].append("s_waitcnt lgkmcnt(0)")
    ds = cfg["dma_slots"]
    dcost = cfg["dma_cost"]
    if peel is None:
        valu[cfg["rl_slot"]].append((4, f"v_readlane_b32 s{pgn}, v{PAGES}, s{s_idx}"))
        tail[cfg["rl_slot"]].append(f"s_add_u32 s{s_idx}, s{s_idx}, 1")
        dk = dma_k(None, (k + D + 1) % 8, pgn)
        dv = dma_v(None, (k + D) % 8, pgo)
        tail[ds[0] - 1].append(dv[0])
        front[ds[0]].append((dcost, dv[2]))
        front[ds[1]].append((dcost, dv[3]))
        assert ds[2] - 1 >= ds[1]
        tail[ds[2] - 1].append(dk[0])
        front[ds[2]].append((dcost, dk[2]))
        front[ds[3]].append((dcost, dk[3]))
        assert ds[2] > cfg["rl_slot"] + 1
    else:
        g, pb = peel
        seq = [dma_k(None, (g + 1) % 8, pb + g + 1), dma_v(None, g % 8, pb + g),
               dma_k(None, (g + 2) % 8, pb + g + 2), dma_v(None, (g + 1) % 8, pb + g + 1)]
        for d_, sl in zip(seq, cfg["peel_slots"]):
            tail[sl - 1].append(d_[0])
            front[sl].append((dcost, d_[2]))
            front[sl + 1].append((dcost, d_[3]))
    ps = cfg["patch_slot"]
    tail[ps - 1].append(f"s_cmp_eq_u32 s{s_i}, s{s_patch}")
    front[ps].insert(0, (8, f"s_cbranch_scc1 L_patch_{kl}"))
    front[ps].insert(1, (0, f"L_patch_ret_{kl}:"))
    tramps.append((f"L_patch_{kl}", "L_sub_patch", f"L_patch_ret_{kl}"))
    assert max(ds) < 30
    tail[30].append(f"s_add_u32 s{s_i}, s{s_i}, 1")
    tail[30].append(f"s_cmp_ge_u32 s{s_i}, s{s_n}")
    front[31].append((8, "s_cbranch_scc1 L_drain"))
    dl = cfg["delta"]
    for X, lo in ((0, 32 - dl), (1, 16 - dl)):
        hi = lo + 15
        bs = (hi + cfg["br_dist"]) % 32
        front[bs].insert(0, (8, f"s_cbranch_vccnz L_fb{X}_{kl}"))
        front[bs].insert(1, (0, f"L_fb{X}_ret_{kl}:"))
        valu[bs].insert(0, (4, f"v_add_f32 v{L_[X]}, v{L_[X]}, v{TS_[X][0]}"))
        tramps.append((f"L_fb{X}_{kl}", f"L_sub_fb{X}", f"L_fb{X}_ret_{kl}"))
    if peel is not None:
        _, _, valu_r, _ = plan_body(k, cfg)
        for g_ in range(32):
            valu[g_] = [x for x in valu_r[g_] if not x[1].startswith("v_readlane")]
        return pre, front, valu, tail
    for X, lo in ((0, 32 - dl), (1, 16 - dl)):
        gaps = [(lo + j) % 32 for j in range(16)]
        st = sm_stream(X) + [(4, f"v_cmp_lt_f32 vcc, s{s_thr[X]}, v{TS_[X][0]}")]
        tot = sum(c for c, _ in st)
        free = [max(0, 24 - sum(c for c, _ in front[g]) - sum(c for c, _ in valu[g])) for g in gaps]
        for n_, g in enumerate(gaps):
            if g in cfg["empty_gaps"]:
                free[n_] = 0
        ftot = sum(free)
        assert ftot >= tot, (ftot, tot)
        acc = 0.0; done = 0; idx = 0
        for n_, g in enumerate(gaps):
            acc += free[n_] * tot / ftot
            used = 0
            while idx < len(st) and used + st[idx][0] <= free[n_] and len(valu[g]) < 5 and \
                    (done + st[idx][0] / 2.0 <= acc or n_ == 15):
                valu[g].append(st[idx]); done += st[idx][0]; used += st[idx][0]; idx += 1
        assert idx == len(st), (X, idx, len(st))
    return pre, front, valu, tail


def skip(t, cfg):
    if cfg.get("no_dma") and t.startswith("buffer_load"): return True
    if cfg.get("no_lds") and t.startswith("ds_read"): return True
    if cfg.get("no_sm") and (t.startswith("v_exp") or t.startswith("v_add_f32") or t.startswith("v_cvt")): return True
    if cfg.get("no_mfma") and t.startswith("v_mfma"): return True
    return False


def emit_body(a, k, tramps, cfg, peel=None, vm=None):
    D = cfg["depth"]
    mf = [mfma_qk(1, s) for s in range(8)] + [mfma_pv(1, f) for f in range(8)] + \
         [mfma_qk(0, s) for s in range(8)] + [mfma_pv(0, f) for f in range(8)]
    pre, front, valu, tail = plan_body(k, cfg, tramps, peel)
    a.label(f"L_body_{k}" if peel is None else f"L_body_p{k}")
    if cfg.get("stamp"):
        a(f"""
        s_memtime s[90:91]
        s_mov_b32 m0, s{s_i}
        s_waitcnt lgkmcnt(0)
        v_writelane_b32 v{VT+12}, s90, m0
        """)
    bp = cfg["bar_period"]
    if k % bp == 0:
        a(f"s_waitcnt vmcnt({4*(D-bp) if vm is None else vm})")
        if not cfg.get("no_bar"):
            a("s_barrier")
    if cfg.get("stamp"):
        a(f"""
        s_memtime s[90:91]
        s_waitcnt lgkmcnt(0)
        v_writelane_b32 v{VT+13}, s90, m0
        """)
    for i in range(32):
        seq = pre[i] + [mf[i]] + [t for _, t in front[i]] + [t for _, t in valu[i]] + tail[i]
        for t in seq:
            if t.endswith(":"):
                a.label(t[:-1])
            elif not skip(t, cfg):
                a(t)
    if k == 7 and peel is None:
        a("s_branch L_body_0")


def emit_rowmax(a, X, mx, t1):
    S = S_[X]
    out = [f"v_max3_f32 v{mx}, v{S}, v{S+1}, v{S+2}"]
    for r in range(3, 15, 2):
        out.append(f"v_max3_f32 v{mx}, v{mx}, v{S+r}, v{S+r+1}")
    out += [f"v_max_f32 v{mx}, v{mx}, v{S+15}", f"v_mov_b32 v{t1}, v{mx}", "s_nop 1",
            f"v_permlane32_swap_b32 v{mx}, v{t1}", "s_nop 1", f"v_max_f32 v{mx}, v{mx}, v{t1}"]
    return out


def emit_fallback(a, X):
    S = S_[X]; C = C_[X]; O = O_[X]; P = P_[X]
    mx, t1, f = VT, VT + 1, VT + 3
    a.label(f"L_sub_fb{X}")
    a("s_nop 7")
    for t in emit_rowmax(a, X, mx, t1):
        a(t)
    a(f"""
    v_max_f32 v{mx}, 0, v{mx}
    v_exp_f32 v{f}, -v{mx}
    v_add_f32 v{M_[X]}, v{M_[X]}, v{mx}
    """)
    for r in range(16):
        a(f"v_sub_f32 v{C+r}, v{C+r}, v{mx}")
        a(f"v_sub_f32 v{S+r}, v{S+r}, v{mx}")
    a(f"v_mul_f32 v{L_[X]}, v{L_[X]}, v{f}")
    for r in range(64):
        a(f"v_mul_f32 v{O+r}, v{O+r}, v{f}")
    for c, t in sm_stream(X, VT + 4):
        a(t)
    a(f"""
    s_nop 3
    s_setpc_b64 s[{s_ret}:{s_ret+1}]
    """)


def emit_patch(a):
    ninf = VT
    a.label("L_sub_patch")
    a(f"""
    s_nop 7
    v_mov_b32 v{ninf}, 0xff800000
    """)
    for r in range(16):
        cst = 8 * (r >> 2) + (r & 3)
        a(f"""
        s_sub_i32 s{s_mine+1}, s{s_rem}, {cst}
        v_cmp_gt_i32 vcc, s{s_mine+1}, v{VH4}
        s_nop 1
        v_cndmask_b32 v{C_[0]+r}, v{ninf}, v{C_[0]+r}, vcc
        v_cndmask_b32 v{C_[1]+r}, v{ninf}, v{C_[1]+r}, vcc
        """)
    a(f"""
    s_nop 3
    s_setpc_b64 s[{s_ret}:{s_ret+1}]
    """)


MAPS = {
    0: f"""s_lshr_b32 s{s_h}, s{s_wg}, 1
    s_and_b32 s{s_h}, s{s_h}, 3
    s_and_b32 s{s_t0}, s{s_wg}, 1
    s_lshl_b32 s{s_t0}, s{s_t0}, 5
    s_lshr_b32 s{s_slot}, s{s_wg}, 3
    s_or_b32 s{s_slot}, s{s_slot}, s{s_t0}""",
    1: f"""s_lshr_b32 s{s_h}, s{s_wg}, 3
    s_and_b32 s{s_h}, s{s_h}, 3
    s_and_b32 s{s_t0}, s{s_wg}, 7
    s_lshl_b32 s{s_t0}, s{s_t0}, 3
    s_lshr_b32 s{s_slot}, s{s_wg}, 5
    s_or_b32 s{s_slot}, s{s_slot}, s{s_t0}""",
}


def emit_pad(a, us, tag):
    a(f"s_add_u32 s92, s100, {int(us*100)}")
    a.label(f"L_pad_{tag}")
    a(f"""
    s_sleep 2
    s_memrealtime s[90:91]
    s_waitcnt lgkmcnt(0)
    s_sub_u32 s93, s92, s90
    s_cmp_gt_i32 s93, 0
    s_cbranch_scc1 L_pad_{tag}
    """)


def emit_main(a, cfg):
    K = NAME + "_kernel"
    D = cfg["depth"]
    assert D <= 7
    a.raw(f".globl {K}\n.p2align 8\n.type {K},@function")
    a.label(K)
    t0, t1, t2, t3 = VT + 11, VT + 12, VT + 13, VT + 14
    VCL = VT + 10
    def sstamp(n):
        if cfg.get("stamp"):
            a(f"""
            s_memtime s[90:91]
            s_waitcnt lgkmcnt(0)
            s_mov_b32 s{n}, s90
            """)
    def pstamp(n):
        if cfg.get("stamp"):
            a(f"""
            s_memtime s[90:91]
            s_waitcnt lgkmcnt(0)
            v_writelane_b32 v{VT+12}, s90, {40+n}
            """)
    a(f"""
    s_cmp_ge_u32 s{s_wg}, 256
    s_cbranch_scc1 L_end
    s_load_dwordx16 s[4:19], s[0:1], 0
    v_lshrrev_b32 v{VT}, 6, v0
    v_and_b32 v{VLANE}, 63, v0
    v_readfirstlane_b32 s{s_w}, v{VT}
    {MAPS[cfg["map"]]}
    v_and_b32 v{VT+1}, 7, v{VLANE}
    v_lshlrev_b32 v{VT+1}, 2, v{VT+1}
    v_lshlrev_b32 v{VT+2}, 7, v{VLANE}
    """)
    if cfg["fused"]:
        a(f"s_memrealtime s[{s_mine}:{s_mine+1}]")
    if cfg.get("stamp"):
        a("s_memtime s[92:93]")
    if cfg.get("stamp") or cfg.get("pad_to_us") or cfg.get("pad_le") or cfg.get("pad_ls") or cfg.get("pad_pub"):
        a("s_memrealtime s[100:101]")
    a(f"""
    s_and_b32 s{s_t0}, s{s_w}, 1
    s_lshl_b32 s{s_t0}, s{s_t0}, 3               ; 8*(w&1)
    s_lshl_b32 s{s_t0+1}, s{s_h}, 8              ; h*256
    v_lshrrev_b32 v{t0}, 4, v{VLANE}             ; l>>4
    v_and_b32 v{t1}, 15, v{VLANE}                ; pc
    v_add_u32 v{t2}, s{s_t0}, v{t0}              ; R&15 for x=0
    v_xor_b32 v{t3}, v{t1}, v{t2}
    v_lshlrev_b32 v{t3}, 4, v{t3}
    v_lshl_add_u32 v{t3}, v{t2}, 10, v{t3}
    v_add_u32 v{VOFFK}, s{s_t0+1}, v{t3}
    v_add_u32 v{t2}, 4, v{t2}                    ; R&15 for x=1
    v_xor_b32 v{t3}, v{t1}, v{t2}
    v_lshlrev_b32 v{t3}, 4, v{t3}
    v_lshl_add_u32 v{t3}, v{t2}, 10, v{t3}
    v_add_u32 v{t3}, s{s_t0+1}, v{t3}
    v_add_u32 v{VOFFK+1}, 0xfffffc00, v{t3}
    v_lshlrev_b32 v{t3}, 2, v{t0}
    v_xor_b32 v{t3}, v{t1}, v{t3}
    v_lshlrev_b32 v{t3}, 4, v{t3}
    v_add_u32 v{t2}, s{s_t0}, v{t0}
    v_lshl_add_u32 v{t3}, v{t2}, 10, v{t3}
    v_add_u32 v{VOFFV}, s{s_t0+1}, v{t3}
    v_add_u32 v{VOFFV+1}, 0xc00, v{VOFFV}        ; +4096 -1024
    s_lshl_b32 s{s_m0k}, s{s_w}, 11
    s_add_u32 s{s_m0v}, s{s_m0k}, 0x10000
    s_mov_b32 s{s_thr[0]}, 0x{f32bits(2.0**cfg["thr_log2"]):x}
    s_mov_b32 s{s_thr[1]}, 0x{f32bits(2.0**cfg["thr_log2"]):x}
    s_mov_b32 s{s_i}, 0
    s_mov_b32 s{s_idx}, {D+1+cfg["peel"]}
    v_lshrrev_b32 v{t0}, 5, v{VLANE}            ; h2
    v_lshlrev_b32 v{VH4}, 2, v{t0}
    v_lshrrev_b32 v{t2}, 4, v{VLANE}
    v_xor_b32 v{t3}, v{t1}, v{t2}
    v_lshlrev_b32 v{t3}, 4, v{t3}
    v_lshl_add_u32 v{ET}, v{t2}, 8, v{t3}        ; Q voffset (j&3 == 0)
    v_xor_b32 v{ET+1}, 64, v{ET}
    v_xor_b32 v{ET+2}, 0x80, v{ET}
    v_xor_b32 v{ET+3}, 0xc0, v{ET}
    v_lshlrev_b32 v{ET+4}, 3, v{VLANE}
    s_lshl_b32 s{s_qlds}, s{s_w}, 13
    s_add_u32 s{s_qlds}, s{s_qlds}, 0x20000      ; Q_A staging : 128K + w*8K
    s_and_b32 s{s_t0}, s{s_w}, 1
    s_lshl_b32 s{s_t0}, s{s_t0}, 13
    s_lshr_b32 s{s_t0+1}, s{s_w}, 1
    s_lshl_b32 s{s_t0+1}, s{s_t0+1}, 16
    s_add_u32 s{s_t0}, s{s_t0}, s{s_t0+1}
    s_add_u32 s{s_qlds+1}, s{s_t0}, 0xc000
    s_waitcnt lgkmcnt(0)
    """)
    emit_srd(a, SRD_X, s_cl, 32)
    a(f"buffer_load_dword v{VCL}, v{VT+1}, s[{SRD_X}:{SRD_X+3}], 0 offen")
    emit_srd(a, SRD_BT, s_bt, BT_BYTES)
    emit_srd(a, SRD_Q, s_q, Q_BYTES)
    nwarm = 0
    if cfg["warm"]:
        a(f"""
        s_lshr_b32 s{s_t0}, s{s_wg}, 3
        s_lshr_b32 s{s_t0+1}, s{s_t0}, 2
        s_lshl_b32 s{s_t0+1}, s{s_t0+1}, 18          ; b*262144
        s_and_b32 s{s_t0+2}, s{s_t0}, 3
        s_lshl_b32 s{s_t0+2}, s{s_t0+2}, 14
        s_add_u32 s{s_t0+1}, s{s_t0+1}, s{s_t0+2}
        s_lshl_b32 s{s_t0+2}, s{s_h}, 16
        s_add_u32 s{s_t0+1}, s{s_t0+1}, s{s_t0+2}
        s_lshl_b32 s{s_t0+2}, s{s_w}, 13
        s_add_u32 s{s_t0+1}, s{s_t0+1}, s{s_t0+2}
        s_lshl_b32 s{s_t0}, s{s_t0}, 9
        s_cmp_lt_u32 s{s_w}, 2
        s_cselect_b32 s{s_t0+1}, s{s_t0+1}, 0x80000000
        s_cmp_eq_u32 s{s_w}, 2
        s_cselect_b32 s{s_t0}, s{s_t0}, 0x80000000
        v_min_u32 v{VT+3}, 0x180, v{VT+2}
        buffer_load_dword v{P_[0]}, v{VT+2}, s[{SRD_Q}:{SRD_Q+3}], s{s_t0+1} offen
        buffer_load_dword v{P_[0]+1}, v{VT+3}, s[{SRD_BT}:{SRD_BT+3}], s{s_t0} offen
        """)
        nwarm = 2
    emit_srd(a, SRD_K, s_k, KV_BYTES)
    emit_srd(a, SRD_V, s_v, KV_BYTES)
    emit_srd(a, SRD_WS, s_ws, WS_BYTES)
    sstamp(88)
    a(f"""
    v_and_b32 v{t1}, 31, v{VLANE}               ; key / q
    v_and_b32 v{t2}, 15, v{VLANE}
    v_xor_b32 v{t2}, v{t2}, v{t0}               ; (key&15)^h2
    v_lshlrev_b32 v{t2}, 4, v{t2}
    v_lshl_add_u32 v{KADDR}, v{t1}, 8, v{t2}
    """)
    for s in range(1, 8):
        a(f"v_xor_b32 v{KADDR+s}, {s << 5}, v{KADDR}")
    a(f"""
    v_bfe_u32 v{t1}, v{VLANE}, 2, 2              ; r
    v_add_u32 v{t2}, v{VH4}, v{t1}               ; 4h2 + r
    v_lshlrev_b32 v{t2}, 8, v{t2}
    v_bfe_u32 v{t3}, v{VLANE}, 4, 1              ; sub
    v_lshl_add_u32 v{t2}, v{t3}, 5, v{t2}
    v_and_b32 v{t3}, 3, v{VLANE}                 ; c
    v_lshl_add_u32 v{t2}, v{t3}, 3, v{t2}
    v_add_u32 v{t2}, 0x10000, v{t2}
    v_lshl_add_u32 v{VADDR}, v{t1}, 6, v{t2}     ; dt=0 : (0^r)<<6
    """)
    for dt in range(1, 4):
        a(f"v_xor_b32 v{VADDR+dt}, {dt << 6}, v{VADDR}")
    a(f"s_waitcnt vmcnt({nwarm})")
    sstamp(89)
    st = s_t0
    R = emit_partition(a, VLANE, VCL, VT, st)
    sn, sincl, sLm1, scl, sq, sr, sj = st + 4, st + 5, st + 6, st + 7, st + 8, st + 9, st + 10
    SKEW1 = SKEW2 = ""
    if cfg.get("skew"):
        sh = cfg["skew"]
        g0, g1 = st + 11, st + 12
        SKEW1 = f"""s_sub_u32 s{g0}, s{sn}, s{sj}
    s_mul_i32 s{g1}, s{g0}, s{sj}                ; j*(nb-j)
    s_add_u32 s{st}, s{g1}, s{g0}
    s_sub_u32 s{st}, s{st}, s{sj}
    s_sub_u32 s{st}, s{st}, 1                    ; (j+1)*(nb-j-1)
    s_lshr_b32 s{g0}, s{g1}, {sh}
    s_lshr_b32 s{g1}, s{st}, {sh}
    s_cmp_gt_u32 s{sq}, s{sn}
    s_cselect_b32 s{g0}, s{g0}, 0
    s_cselect_b32 s{g1}, s{g1}, 0
    s_sub_u32 s{s_start}, s{s_start}, s{g0}"""
        SKEW2 = f"""s_add_u32 s{s_n}, s{s_n}, s{g0}
    s_sub_u32 s{s_n}, s{s_n}, s{g1}"""
    a(f"""
    v_cmp_lt_u32 vcc, s{s_slot}, v{R['incl']}
    s_and_b64 vcc, vcc, s[{st+2}:{st+3}]
    s_cbranch_scc0 L_end
    s_ff1_i32_b64 s{st}, vcc
    s_and_b32 s{s_b}, s{st}, 7
    v_readlane_b32 s{sn}, v{R['n']}, s{st}
    v_readlane_b32 s{sincl}, v{R['incl']}, s{st}
    v_readlane_b32 s{sq}, v{R['q']}, s{st}
    v_readlane_b32 s{sr}, v{R['r']}, s{st}
    v_readlane_b32 s{sLm1}, v{R['Lm1']}, s{st}
    v_readlane_b32 s{scl}, v{VCL}, s{st}
    s_lshl_b32 s{st+2}, s{s_b}, 5
    s_lshl_b32 s{st+1}, s{s_h}, 3
    s_add_u32 s{st+2}, s{st+2}, s{st+1}
    s_lshl_b32 s{st+1}, s{s_w}, 1
    s_add_u32 s{st+2}, s{st+2}, s{st+1}
    s_lshl_b32 s{st+2}, s{st+2}, 13              ; Q base = ((b*32 + 8h + 2w)*32)*256
    s_add_u32 s{st+3}, s{st+2}, 0x2000
    s_sub_u32 s{sj}, s{sincl}, s{sn}
    s_sub_u32 s{sj}, s{s_slot}, s{sj}            ; j = slot - E_b
    s_mul_i32 s{s_start}, s{sj}, s{sq}
    s_min_u32 s{st}, s{sj}, s{sr}
    s_add_u32 s{s_start}, s{s_start}, s{st}
    {SKEW1}
    s_lshl_b32 s{st}, s{s_b}, 9
    s_lshl_b32 s{st+1}, s{s_start}, 1
    s_add_u32 s{st}, s{st}, s{st+1}
    s_lshr_b32 s{st+1}, s{s_w}, 1
    s_add_u32 s{st}, s{st}, s{st+1}
    s_lshl_b32 s{st}, s{st}, 2
    buffer_load_dword v{PAGES}, v{ET+4}, s[{SRD_BT}:{SRD_BT+3}], s{st} offen
    """)
    def qload(X):
        for hf in range(2):
            a(f"s_add_u32 m0, s{s_qlds+X}, {4096*hf}")
            a(f"s_add_u32 s{s_qb+2}, s{s_qb+X}, {4096*hf}")
            for j in range(4):
                a(f"buffer_load_dwordx4 v{ET+j}, s[{SRD_Q}:{SRD_Q+3}], s{s_qb+2} offen offset:{1024*j} lds")
    a(f"""
    s_mov_b32 s{s_qb}, s{st+2}
    s_mov_b32 s{s_qb+1}, s{st+3}
    """)
    qload(0)
    a(f"""
    s_cmp_lt_u32 s{sj}, s{sr}
    s_addc_u32 s{s_n}, s{sq}, 0                  ; n = q + (j<r)
    {SKEW2}
    s_min_u32 s{s_n}, s{s_n}, 54
    s_and_b32 s{s_rem}, s{sLm1}, 31
    s_add_u32 s{s_rem}, s{s_rem}, 1
    s_add_u32 s{st}, s{sj}, 1
    s_cmp_eq_u32 s{st}, s{sn}
    s_cselect_b32 s{s_rem}, s{s_rem}, 32
    s_sub_u32 s{s_patch}, s{s_n}, 2
    s_cmp_lt_u32 s{s_rem}, 32
    s_cselect_b32 s{s_patch}, s{s_patch}, 0x7fffffff
    s_mov_b32 s{s_scale}, 0x{f32bits(SCALE):x}
    s_cmp_lt_i32 s{scl}, 1
    s_cselect_b32 s{s_scale}, 0, s{s_scale}
    s_mov_b32 s{s_scale+1}, s{s_scale}
    s_lshl_b32 s{s_wgslot}, s{s_h}, 6
    s_add_u32 s{s_wgslot}, s{s_wgslot}, s{s_slot}
    s_min_u32 s{s_nb}, s{sn}, 64
    s_mov_b32 s{s_jj}, s{sj}
    s_sub_u32 s{s_E}, s{s_wgslot}, s{sj}
    """)
    sstamp(93)
    nz = cfg["zero_early"]
    for r in range(64, 64 + nz):
        a(f"v_mov_b32 v{r}, 0")
    a(f"""
    v_mov_b32 v{t2}, 0x80000000
    v_cmp_gt_u32 vcc, s{s_n}, v{VLANE}
    s_waitcnt vmcnt(8)
    v_lshlrev_b32 v{PAGES}, 14, v{PAGES}
    v_cndmask_b32 v{PAGES}, v{t2}, v{PAGES}, vcc
    s_nop 0
    """)
    PEEL = cfg["peel"]
    NPRE = D - PEEL
    for j in range(D + 1 + PEEL):
        a(f"v_readlane_b32 s{st+j}, v{PAGES}, {j}")
    a("s_nop 3")
    vm = ["QA"] * 8
    def vwait(tag):
        idx = max(i for i, t in enumerate(vm) if t == tag)
        a(f"s_waitcnt vmcnt({len(vm) - 1 - idx})")
    def issue(lst, tag):
        a(lst[0]); a("s_nop 0"); a(lst[2]); a(lst[3])
        vm.extend([tag, tag])
    pairs = [("K", 0)]
    for j in range(NPRE):
        pairs += [("K", j + 1), ("V", j)]
    def pair():
        if not pairs:
            return
        kind, j = pairs.pop(0)
        issue(dma_k(None, j, st + j) if kind == "K" else dma_v(None, j, st + j), f"{kind}{j}")
    QRAW = {0: 0, 1: 128}
    def qread(X):
        for s in range(8):
            a(f"v_add_u32 v{VT+4+s}, s{s_qlds+X}, v{KADDR+s}")
        for s in range(8):
            r = QRAW[X] + 4 * s
            a(f"ds_read_b128 v[{r}:{r+3}], v{VT+4+s}")
    def prescale(X, packed):
        out = []
        for i in range(32):
            r = QRAW[X] + i
            ta, tb = VT + (i & 1) * 2, VT + (i & 1) * 2 + 1
            g = []
            if i % 4 == 0:
                g.append(f"s_waitcnt lgkmcnt({7 - i // 4})")
            g += [f"v_lshlrev_b32 v{ta}, 16, v{r}", f"v_and_b32 v{tb}, 0xffff0000, v{r}"]
            if packed(i):
                g.append(f"v_pk_mul_f32 v[{ta}:{tb}], v[{ta}:{tb}], s[{s_scale}:{s_scale+1}]")
            else:
                g += [f"v_mul_f32 v{ta}, s{s_scale}, v{ta}", f"v_mul_f32 v{tb}, s{s_scale}, v{tb}"]
            g += [f"v_cvt_pk_bf16_f32 v{ta}, v{ta}, v{tb}", f"v_accvgpr_write_b32 a{32*X+i}, v{ta}"]
            out.append(g)
        return out
    pstamp(0)
    for _ in range(cfg["pp0"]):
        pair()
    qload(1); vm.extend(["QB"] * 8)
    for _ in range(cfg["pp1"]):
        pair()
    pstamp(1)
    for r in list(range(64 + nz, 128)) + list(range(160, 208)) + list(range(32, 64)):
        a(f"v_mov_b32 v{r}, 0")
    for r in range(32):
        a(f"v_accvgpr_write_b32 a{AV+r}, 0")
    a(f"""
    v_mov_b32 v{L_[0]}, 0
    v_mov_b32 v{L_[1]}, 0
    s_cmp_eq_u32 s{s_patch}, -1
    s_cbranch_scc0 L_nopatch0
    s_call_b64 s[{s_ret}:{s_ret+1}], L_sub_patch
    """)
    a.label("L_nopatch0")
    vwait("QA")
    pstamp(10)
    qread(0)
    for i, g in enumerate(prescale(0, lambda i: cfg["pk"])):
        for t in g:
            a(t)
        if i in cfg["ppA"]:
            pair()
    pstamp(2)
    vwait("QB")
    pstamp(11)
    qread(1)
    for i, g in enumerate(prescale(1, lambda i: cfg["pk"])):
        for t in g:
            a(t)
        if i in cfg["ppB"]:
            pair()
    pstamp(3)
    vwait("K0")
    pstamp(4)
    a("s_barrier")
    pstamp(12)
    for s in range(8):
        a(k_read(s, 0))
    for s in range(8):
        a(f"s_waitcnt lgkmcnt({7-s})")
        a(mfma_qk(0, s))
        if s in cfg["ppQ"]:
            pair()
        for r in range(128 + 4 * s, 132 + 4 * s):
            a(f"v_mov_b32 v{r}, 0")
    a(mfma_qk(1, 0))
    a("s_nop 7")
    mxa = emit_rowmax(a, 0, M_[0], VT)
    mxa += [f"v_sub_f32 v{S_[0]+r}, v{S_[0]+r}, v{M_[0]}" for r in range(16)]
    mxa += [f"v_sub_f32 v{C_[0]+r}, v{C_[0]+r}, v{M_[0]}" for r in range(16)]
    for s in range(1, 8):
        a(mfma_qk(1, s))
        for _ in range(5):
            a(mxa.pop(0))
    while pairs:
        pair()
    a(f"s_mov_b32 s{s_pg[(PEEL & 1) ^ 1]}, s{st+D+PEEL}")
    while mxa:
        a(mxa.pop(0))
    a("s_nop 7")
    for t in emit_rowmax(a, 1, M_[1], VT):
        a(t)
    for r in range(16):
        a(f"v_sub_f32 v{C_[1]+r}, v{C_[1]+r}, v{M_[1]}")
    if cfg["fused"]:
        emit_srd(a, SRD_X, s_dbg, 256)
        a(f"""
        s_or_b32 s{s_mine}, s{s_mine}, 1
        v_mov_b32 v{VT+10}, s{s_mine}
        v_mov_b32 v{VT+11}, 0
        s_cmp_eq_u32 s{s_w}, 0
        s_cselect_b32 s{s_mine+1}, 0, 0x80000000
        s_mov_b64 exec, 1
        buffer_atomic_cmpswap v[{VT+10}:{VT+11}], v{VT+11}, s[{SRD_X}:{SRD_X+3}], s{s_mine+1} offen sc0
        s_mov_b64 exec, -1
        """)
    sstamp(94)
    sstamp(95)
    if cfg.get("pad_ls"):
        emit_pad(a, cfg["pad_ls"], "ls")
    pre, front, valu, tail = plan_body(7, cfg)
    hd = [t for g in range(32 - cfg["delta"], 32) for _, t in valu[g]
          if not t.startswith(f"v_add_f32 v{L_[1]},")]
    for t in hd:
        a(t)
    a("s_nop 1")
    tramps = []
    for k in range(PEEL):
        issued = NPRE + 2 * k
        need = k + cfg["bar_period"]
        assert issued >= need
        emit_body(a, k, tramps, cfg, peel=(NPRE + 2 * k, st), vm=4 * (issued - need))
    if PEEL:
        a(f"s_branch L_body_{PEEL}")
    for k in range(8):
        emit_body(a, k, tramps, cfg)
    a.label("L_drain")
    if cfg.get("pad_le"):
        emit_pad(a, cfg["pad_le"], "le")
    if cfg.get("stamp"):
        a(f"""
        s_memtime s[90:91]
        s_waitcnt lgkmcnt(0)
        s_mov_b32 s96, s90
        """)
    def conv(X, dt):
        o = O_[X] + 16 * dt
        d = 8 * (4 * X + dt)
        out = [f"v_cvt_pk_bf16_f32 v{d+j}, v{o+2*j}, v{o+2*j+1}" for j in range(8)]
        out.append(f"s_add_u32 s{st+1}, s{st}, {X*8192 + dt*2048}")
        out.append(f"buffer_store_dwordx4 v[{d}:{d+3}], v{VT+4}, s[{SRD_WS}:{SRD_WS+3}], s{st+1} offen{cfg['st_flags']}")
        out.append(f"buffer_store_dwordx4 v[{d+4}:{d+7}], v{VT+4}, s[{SRD_WS}:{SRD_WS+3}], s{st+1} offen offset:1024{cfg['st_flags']}")
        return out
    ep = f"""
    v_mov_b32 v{VT}, v{L_[0]}
    v_mov_b32 v{VT+1}, v{L_[1]}
    s_lshl_b32 s{st}, s{s_wgslot}, 16
    s_lshl_b32 s{st+1}, s{s_w}, 14
    s_add_u32 s{st}, s{st}, s{st+1}
    v_permlane32_swap_b32 v{L_[0]}, v{VT}
    v_permlane32_swap_b32 v{L_[1]}, v{VT+1}
    v_lshlrev_b32 v{VT+4}, 4, v{VLANE}
    v_mov_b32 v{VT+6}, v{M_[0]}
    v_add_f32 v{VT+7}, v{L_[0]}, v{VT}
    v_mov_b32 v{VT+8}, v{M_[1]}
    v_add_f32 v{VT+9}, v{L_[1]}, v{VT+1}
    """.strip().split("\n")
    ep += conv(0, 0) + conv(0, 1) + conv(0, 2) + conv(0, 3)
    for f in range(8):
        a(mfma_pv(1, f))
        for _ in range(6):
            a(ep.pop(0))
    while ep:
        a(ep.pop(0))
    a("s_nop 7")
    for dt in range(4):
        for t in conv(1, dt):
            a(t)
    a(f"""
    s_lshl_b32 s{st}, s{s_wgslot}, 11
    s_lshl_b32 s{st+1}, s{s_w}, 9
    s_add_u32 s{st}, s{st}, s{st+1}
    s_add_u32 s{st}, s{st}, 0x{WS_ML:x}
    v_lshlrev_b32 v{VT+4}, 3, v{VLANE}
    s_mov_b32 exec_hi, 0
    buffer_store_dwordx2 v[{VT+6}:{VT+7}], v{VT+4}, s[{SRD_WS}:{SRD_WS+3}], s{st} offen{cfg['st_flags']}
    buffer_store_dwordx2 v[{VT+8}:{VT+9}], v{VT+4}, s[{SRD_WS}:{SRD_WS+3}], s{st} offen offset:256{cfg['st_flags']}
    """)
    if cfg["fused"]:
        emit_fused_combine(a, cfg, sstamp)
    if cfg.get("stamp"):
        a(f"""
        s_mov_b64 exec, -1
        s_waitcnt vmcnt(0)
        s_memtime s[90:91]
        s_memrealtime s[86:87]
        s_getreg_b32 s98, hwreg(HW_REG_XCC_ID)
        s_waitcnt lgkmcnt(0)
        v_mov_b32 v{VT+14}, 0
        v_writelane_b32 v{VT+14}, s92, 0
        v_writelane_b32 v{VT+14}, s93, 1
        v_writelane_b32 v{VT+14}, s94, 2
        v_writelane_b32 v{VT+14}, s95, 3
        v_writelane_b32 v{VT+14}, s96, 4
        v_writelane_b32 v{VT+14}, s90, 5
        v_writelane_b32 v{VT+14}, s{s_n}, 6
        v_writelane_b32 v{VT+14}, s98, 7
        v_writelane_b32 v{VT+14}, s100, 8
        v_writelane_b32 v{VT+14}, s86, 9
        v_writelane_b32 v{VT+14}, s88, 10
        v_writelane_b32 v{VT+14}, s89, 11
        v_writelane_b32 v{VT+14}, s97, 12
        v_writelane_b32 v{VT+14}, s99, 13
        v_writelane_b32 v{VT+14}, s{s_h}, 14
        s_lshl_b32 s{st}, s{s_wg}, 12
        s_lshl_b32 s{st+1}, s{s_w}, 10
        s_add_u32 s{st}, s{st}, s{st+1}
        s_add_u32 s{st}, s{st}, 0x{WS_DBG:x}
        v_lshlrev_b32 v{VT}, 2, v{VLANE}
        buffer_store_dword v{VT+12}, v{VT}, s[{SRD_WS}:{SRD_WS+3}], s{st} offen
        buffer_store_dword v{VT+13}, v{VT}, s[{SRD_WS}:{SRD_WS+3}], s{st} offen offset:256
        buffer_store_dword v{VT+14}, v{VT}, s[{SRD_WS}:{SRD_WS+3}], s{st} offen offset:512
        """)
    if cfg.get("pad_to_us"):
        a(f"""
        s_waitcnt vmcnt(0)
        s_add_u32 s92, s100, {int(cfg["pad_to_us"]*100)}
        """)
    if cfg.get("delay_us"):
        a(f"""
        s_memrealtime s[90:91]
        s_waitcnt lgkmcnt(0)
        s_add_u32 s92, s90, {int(cfg["delay_us"]*100)}
        """)
    if cfg.get("delay_us") or cfg.get("pad_to_us"):
        a.label("L_delay")
        a(f"""
        s_sleep 4
        s_memrealtime s[90:91]
        s_waitcnt lgkmcnt(0)
        s_sub_u32 s93, s92, s90
        s_cmp_gt_i32 s93, 0
        s_cbranch_scc1 L_delay
        """)
    a.label("L_end")
    a("s_endpgm")
    for lab, sub, ret in tramps:
        a.label(lab)
        a(f"s_call_b64 s[{s_ret}:{s_ret+1}], {sub}")
        a(f"s_branch {ret}")
    emit_fallback(a, 0)
    emit_fallback(a, 1)
    emit_patch(a)


def emit_fused_combine(a, cfg, sstamp):
    st = s_t0
    ldf = cfg["cld_flags"]
    s_nonce, s_to, s_mask, s_done, s_rdy, s_r0 = 54, 55, 56, 62, 64, 78
    s_sig, s_cnt, s_step, s_o, s_ml, s_two = 66, 68, 69, 70, 72, 76
    SJ = lambda k: 44 + k
    OB = lambda k: 16 * k
    MLB = lambda k: 128 + 2 * k
    ACC = 160
    MX, DEN, MN = 192, 194, 196
    SC, W, U0, U1 = 198, 204, 200, 201
    VO, VML, VOUT, VF, VFO = 206, 207, 208, 209, 210
    WSR = f"s[{SRD_WS}:{SRD_WS+3}]"
    LA = cfg["clook"]
    def cst(n):
        if cfg.get("stamp"):
            a(f"""
            s_memtime s[90:91]
            s_waitcnt lgkmcnt(0)
            v_writelane_b32 v{VT+12}, s90, {53+n}
            """)
    a(f"""
    s_mov_b64 exec, -1
    s_waitcnt vmcnt(18)
    v_readfirstlane_b32 s{s_nonce}, v{VT+10}
    v_lshlrev_b32 v{VO}, 4, v{VLANE}
    v_and_b32 v{VML}, 31, v{VLANE}
    v_lshlrev_b32 v{VOUT}, 8, v{VML}
    v_lshl_add_u32 v{VOUT}, v{VH4}, 2, v{VOUT}   ; q*256 + h2*16
    v_lshlrev_b32 v{VML}, 3, v{VML}
    v_lshlrev_b32 v{VFO}, 2, v{VLANE}
    v_cmp_gt_u32 vcc, s{s_nb}, v{VLANE}
    s_mov_b64 s[{s_mask}:{s_mask+1}], vcc
    s_lshl_b32 s{s_step}, s{s_nb}, 2
    s_lshl_b32 s{s_sig}, s{s_jj}, 2
    s_add_u32 s{s_sig}, s{s_sig}, s{s_w}
    s_cmp_lt_u32 s{s_nb}, 8
    s_cselect_b32 s{s_two}, 1, 0
    s_lshl_b32 s{s_sig}, s{s_sig}, s{s_two}
    s_lshl_b32 s{s_step}, s{s_step}, s{s_two}
    s_cmp_eq_u32 s{s_nonce}, 0
    s_cselect_b32 s{s_nonce}, s{s_mine}, s{s_nonce}
    v_mov_b32 v{VF}, s{s_nonce}
    v_mov_b32 v{U0}, 0x20000
    s_lshl_b32 s{s_mine+1}, s{s_b}, 2
    s_add_u32 s{s_mine+1}, s{s_mine+1}, s{s_h}
    s_lshl_b32 s{s_mine+1}, s{s_mine+1}, 8
    s_add_u32 s{s_mine+1}, s{s_mine+1}, 0x{WS_FLAG:x}
    s_mov_b32 s{s_to}, {cfg["poll_max"]}
    s_cmp_lg_u32 s{s_w}, 0
    s_cbranch_scc1 L_fc_nz
    ds_write_b32 v{U0}, v{VF}
    """)
    a.label("L_fc_nz")
    emit_srd(a, SRD_X, s_out, Q_BYTES)
    if cfg.get("pad_pub"):
        a("s_waitcnt vmcnt(0) lgkmcnt(0)")
        emit_pad(a, cfg["pad_pub"], "pub")
    a(f"""
    s_waitcnt vmcnt(0) lgkmcnt(0)
    s_barrier
    s_cmp_lg_u32 s{s_w}, 0
    s_cbranch_scc1 L_fc_nz2
    s_lshl_b32 s{st}, s{s_jj}, 2
    s_add_u32 s{st}, s{st}, s{s_mine+1}
    s_mov_b64 exec, 1
    buffer_store_dword v{VF}, v{VT+11}, {WSR}, s{st} offen sc1
    s_mov_b64 exec, -1
    """)
    a.label("L_fc_nz2")
    sstamp(97)
    a(f"""
    ds_read_b32 v{VF}, v{U0}
    s_cmp_ge_u32 s{s_sig}, 32
    s_cbranch_scc1 L_fc_end
    s_waitcnt lgkmcnt(0)
    v_readfirstlane_b32 s{s_nonce}, v{VF}
    """)
    a.label("L_fc_outer")
    a(f"""
    s_mov_b64 s[{s_done}:{s_done+1}], 0
    s_lshl_b32 s{s_o}, s{s_sig}, 11
    s_lshr_b32 s{s_ml}, s{s_sig}, 2
    s_lshl_b32 s{s_ml}, s{s_ml}, 8
    s_add_u32 s{s_ml}, s{s_ml}, 0x{WS_ML:x}
    v_mov_b32 v{MX}, 0xff800000
    v_mov_b32 v{DEN}, 0
    """)
    for r in range(32):
        a(f"v_mov_b32 v{ACC+r}, 0")
    a.label("L_fc_poll")
    a(f"""
    buffer_load_dword v{VF}, v{VFO}, {WSR}, s{s_mine+1} offen sc1
    s_waitcnt vmcnt(0)
    v_cmp_eq_u32 vcc, s{s_nonce}, v{VF}
    s_and_b64 s[{s_rdy}:{s_rdy+1}], vcc, s[{s_mask}:{s_mask+1}]
    s_andn2_b64 s[{s_rdy}:{s_rdy+1}], s[{s_rdy}:{s_rdy+1}], s[{s_done}:{s_done+1}]
    s_cbranch_scc1 L_fc_go
    s_sleep {cfg["poll_sleep"]}
    s_sub_u32 s{s_to}, s{s_to}, 1
    s_cmp_lg_u32 s{s_to}, 0
    s_cbranch_scc1 L_fc_poll
    s_branch L_fc_store
    """)
    a.label("L_fc_go")
    sstamp(99)
    a(f"""
    s_mov_b64 s[{s_r0}:{s_r0+1}], s[{s_rdy}:{s_rdy+1}]
    v_mov_b32 v{MN}, v{MX}
    """)
    for k in range(8):
        a(f"""
        s_ff1_i32_b64 s{st}, s[{s_rdy}:{s_rdy+1}]
        s_bitset0_b64 s[{s_rdy}:{s_rdy+1}], s{st}
        s_add_u32 s{st}, s{st}, s{s_E}
        s_lshl_b32 s{SJ(k)}, s{st}, 16
        s_lshl_b32 s{st}, s{st}, 11
        s_add_u32 s{st}, s{st}, s{s_ml}
        s_add_u32 s{SJ(k)}, s{SJ(k)}, s{s_o}
        s_mov_b32 s{s_cnt}, {k+1}
        buffer_load_dwordx2 v[{MLB(k)}:{MLB(k)+1}], v{VML}, {WSR}, s{st} offen{ldf}
        """)
        if k < 7:
            a(f"""
            s_cmp_eq_u64 s[{s_rdy}:{s_rdy+1}], 0
            s_cbranch_scc1 L_fc_taken
            """)
    a.label("L_fc_taken")
    a(f"""
    s_andn2_b64 s[{s_r0}:{s_r0+1}], s[{s_r0}:{s_r0+1}], s[{s_rdy}:{s_rdy+1}]
    s_or_b64 s[{s_done}:{s_done+1}], s[{s_done}:{s_done+1}], s[{s_r0}:{s_r0+1}]
    s_cmp_eq_u32 s{s_two}, 1
    s_cbranch_scc1 L_fc_r2
    """)
    for NS in (1, 2):
        tag = f"r{NS}"
        a.label(f"L_fc_{tag}")
        def oload(k):
            for c in range(2 * NS):
                a(f"buffer_load_dwordx4 v[{OB(k)+4*c}:{OB(k)+4*c+3}], v{VO}, {WSR}, s{SJ(k)} offen offset:{1024*c}{ldf}")
        for k in range(7, -1, -1):
            a(f"""
            s_cmp_le_u32 s{s_cnt}, {k}
            s_cbranch_scc1 L_fc_{tag}_p{k}
            """)
            if k + LA < 8:
                a(f"""
                s_cmp_gt_u32 s{s_cnt}, {k + LA}
                s_cbranch_scc1 L_fc_{tag}_pd
                """)
            oload(k)
            a.label(f"L_fc_{tag}_p{k}")
        a.label(f"L_fc_{tag}_pd")
        cst(0)
        for c in range(1, LA):
            a(f"""
            s_cmp_eq_u32 s{s_cnt}, {c}
            s_cbranch_scc0 L_fc_{tag}_w{c}
            s_waitcnt vmcnt({2*NS*c})
            """)
            a.label(f"L_fc_{tag}_w{c}")
        a(f"s_waitcnt vmcnt({2*NS*LA})")
        cst(1)
        for k in range(8):
            if k:
                a(f"""
                s_cmp_le_u32 s{s_cnt}, {k}
                s_cbranch_scc1 L_fc_{tag}_max
                """)
            a(f"v_max_f32 v{MN}, v{MN}, v{MLB(k)}")
        a.label(f"L_fc_{tag}_max")
        a(f"""
        v_sub_f32 v{SC}, v{MX}, v{MN}
        v_exp_f32 v{SC}, v{SC}
        v_mov_b32 v{MX}, v{MN}
        v_mul_f32 v{DEN}, v{DEN}, v{SC}
        """)
        for r in range(16 * NS):
            a(f"v_mul_f32 v{ACC+r}, v{ACC+r}, v{SC}")
        for k in range(7, -1, -1):
            if k:
                a(f"""
                s_cmp_le_u32 s{s_cnt}, {k}
                s_cbranch_scc1 L_fc_{tag}_u{k}
                """)
            if k - LA >= 0:
                oload(k - LA)
            a(f"""
            v_sub_f32 v{W}, v{MLB(k)}, v{MN}
            v_exp_f32 v{W}, v{W}
            s_waitcnt vmcnt({2*NS*min(k, LA) + 2*NS - 1})
            v_fmac_f32 v{DEN}, v{W}, v{MLB(k)+1}
            """)
            for r in range(8 * NS):
                u0, u1 = U0 + 2 * (r & 1), U1 + 2 * (r & 1)
                if r and r % 4 == 0:
                    a(f"s_waitcnt vmcnt({2*NS*min(k, LA) + 2*NS - 1 - r//4})")
                a(f"""
                v_lshlrev_b32 v{u0}, 16, v{OB(k)+r}
                v_and_b32 v{u1}, 0xffff0000, v{OB(k)+r}
                """)
                if cfg["cpk"]:
                    a(f"v_pk_fma_f32 v[{ACC+2*r}:{ACC+2*r+1}], v[{u0}:{u1}], v[{W}:{W+1}], v[{ACC+2*r}:{ACC+2*r+1}] op_sel_hi:[1,0,1]")
                else:
                    a(f"""
                    v_fmac_f32 v{ACC+2*r}, v{W}, v{u0}
                    v_fmac_f32 v{ACC+2*r+1}, v{W}, v{u1}
                    """)
            a.label(f"L_fc_{tag}_u{k}")
        cst(2)
        a(f"""
        s_cmp_lg_u64 s[{s_done}:{s_done+1}], s[{s_mask}:{s_mask+1}]
        s_cbranch_scc1 L_fc_poll
        """)
        if NS == 1:
            a("s_branch L_fc_store")
    a.label("L_fc_store")
    cst(3)
    a(f"""
    v_rcp_f32 v{SC}, v{DEN}
    s_lshl_b32 s{st}, s{s_b}, 2
    s_add_u32 s{st}, s{st}, s{s_h}
    s_lshl_b32 s{st}, s{st}, 16                  ; (b*32 + 8h)*8192
    s_lshr_b32 s{st+1}, s{s_sig}, 2
    s_lshl_b32 s{st+1}, s{st+1}, 13
    s_add_u32 s{st}, s{st}, s{st+1}
    s_and_b32 s{st+1}, s{s_sig}, 3
    s_lshl_b32 s{st+1}, s{st+1}, 6
    s_add_u32 s{st}, s{st}, s{st+1}
    """)
    for X in range(2):
        if X:
            a(f"""
            s_cmp_eq_u32 s{s_two}, 0
            s_cbranch_scc1 L_fc_end
            """)
        A0 = ACC + 16 * X
        for r in range(16):
            a(f"v_mul_f32 v{A0+r}, v{A0+r}, v{SC}")
        for r in range(8):
            a(f"v_cvt_pk_bf16_f32 v{A0+r}, v{A0+2*r}, v{A0+2*r+1}")
        a("s_nop 1")
        for pr in range(2):
            a(f"v_permlane32_swap_b32 v{A0+4*pr}, v{A0+4*pr+2}")
            a(f"v_permlane32_swap_b32 v{A0+4*pr+1}, v{A0+4*pr+3}")
        for pr in range(2):
            a(f"buffer_store_dwordx4 v[{A0+4*pr}:{A0+4*pr+3}], v{VOUT}, s[{SRD_X}:{SRD_X+3}], s{st} offen offset:{64*X + 32*pr}{cfg['out_flags']}")
    a(f"""
    s_add_u32 s{s_sig}, s{s_sig}, s{s_step}
    s_cmp_lt_u32 s{s_sig}, 32
    s_nop 1
    s_cbranch_scc1 L_fc_outer
    """)
    a.label("L_fc_end")


def emit_combine(a, cfg):
    K = "pa_combine_kernel"
    NB = 12
    a.raw(f".globl {K}\n.p2align 8\n.type {K},@function")
    a.label(K)
    VL, VCL, VT_ = 200, 201, 202
    ACC = 160
    DEN, MX, MN, SC, W = 170, 171, 172, 173, 174
    U0, U1 = 176, 177
    OB = 0
    MLB = 64
    SRD_C, SRD_W, SRD_O = 20, 24, 28
    sw, sb, sh, swx, sn, sE, sbase, sj = 40, 41, 42, 43, 44, 45, 46, 47
    st = 60
    a(f"""
    s_cmp_ge_u32 s2, 256
    s_cbranch_scc1 L_cend
    s_load_dwordx16 s[4:19], s[0:1], 0
    {"s_memrealtime s[100:101]" if cfg.get("cpad_to_us") else ""}
    v_lshrrev_b32 v{VT_}, 6, v0
    v_and_b32 v{VL}, 63, v0
    s_lshr_b32 s{sb}, s2, 5
    v_readfirstlane_b32 s{sw}, v{VT_}
    s_lshr_b32 s{sh}, s2, 3
    s_and_b32 s{sh}, s{sh}, 3
    s_and_b32 s{swx}, s2, 7
    v_and_b32 v{VT_+1}, 7, v{VL}
    v_lshlrev_b32 v{VT_+1}, 2, v{VT_+1}
    s_waitcnt lgkmcnt(0)
    """)
    emit_srd(a, SRD_C, s_cl, 32)
    a(f"buffer_load_dword v{VCL}, v{VT_+1}, s[{SRD_C}:{SRD_C+3}], 0 offen")
    emit_srd(a, SRD_W, s_ws, WS_BYTES)
    emit_srd(a, SRD_O, s_out, Q_BYTES)
    VOFF, VML, VOUT = 180, 181, 182
    a(f"""
    s_lshl_b32 s{st}, s{swx}, 13
    s_lshl_b32 s{st+1}, s{sw}, 10
    s_add_u32 s{st}, s{st}, s{st+1}
    v_lshlrev_b32 v{VOFF}, 4, v{VL}
    v_add_u32 v{VOFF}, s{st}, v{VOFF}
    s_lshl_b32 s{st}, s{swx}, 8
    s_add_u32 s{st}, s{st}, 0x{WS_ML:x}
    v_and_b32 v{VML}, 31, v{VL}
    v_lshlrev_b32 v{VOUT}, 8, v{VML}             ; q*256
    v_lshlrev_b32 v{VML}, 3, v{VML}
    v_add_u32 v{VML}, s{st}, v{VML}
    v_lshrrev_b32 v{VT_+2}, 5, v{VL}
    v_lshl_add_u32 v{VOUT}, v{VT_+2}, 3, v{VOUT} ; + h2*8
    s_lshl_b32 s{st}, s2, 13
    s_lshl_b32 s{st+1}, s{sw}, 5
    s_add_u32 s{st}, s{st}, s{st+1}
    v_add_u32 v{VOUT}, s{st}, v{VOUT}
    v_mov_b32 v{DEN}, 0
    v_mov_b32 v{MX}, 0xff800000
    """)
    for r in range(8):
        a(f"v_mov_b32 v{ACC+r}, 0")
    a("s_waitcnt vmcnt(0)")
    R = emit_partition(a, VL, VCL, VT_, st)
    a(f"""
    s_add_u32 s{st}, s{st}, s{sb}
    v_readlane_b32 s{sn}, v{R['n']}, s{st}
    v_readlane_b32 s{sE}, v{R['incl']}, s{st}
    s_nop 3
    s_sub_u32 s{sE}, s{sE}, s{sn}
    s_min_u32 s{sn}, s{sn}, 64
    s_lshl_b32 s{st}, s{sh}, 6
    s_add_u32 s{sE}, s{sE}, s{st}
    s_mov_b32 s{sbase}, 0
    """)
    a.label("L_cloop")
    for j in range(NB):
        a(f"""
        s_add_u32 s{sj}, s{sbase}, {j}
        s_add_u32 s{st}, s{sE}, s{sj}
        s_lshl_b32 s{st+1}, s{st}, 16
        s_lshl_b32 s{st}, s{st}, 11
        s_cmp_lt_u32 s{sj}, s{sn}
        s_cselect_b32 s{st+1}, s{st+1}, 0x80000000
        s_cselect_b32 s{st}, s{st}, 0x80000000
        buffer_load_dwordx2 v[{MLB+2*j}:{MLB+2*j+1}], v{VML}, s[{SRD_W}:{SRD_W+3}], s{st} offen
        buffer_load_dwordx4 v[{OB+4*j}:{OB+4*j+3}], v{VOFF}, s[{SRD_W}:{SRD_W+3}], s{st+1} offen
        """)
    a(f"v_mov_b32 v{MN}, v{MX}")
    for j in range(NB):
        a(f"""
        s_add_u32 s{sj}, s{sbase}, {j}
        s_cmp_ge_u32 s{sj}, s{sn}
        s_cbranch_scc1 L_cmaxdone
        s_waitcnt vmcnt({2*(NB-1-j)+1})
        v_max_f32 v{MN}, v{MN}, v{MLB+2*j}
        """)
    a.label("L_cmaxdone")
    a(f"""
    v_sub_f32 v{SC}, v{MX}, v{MN}
    v_exp_f32 v{SC}, v{SC}
    v_mov_b32 v{MX}, v{MN}
    v_mul_f32 v{DEN}, v{DEN}, v{SC}
    """)
    for r in range(8):
        a(f"v_mul_f32 v{ACC+r}, v{ACC+r}, v{SC}")
    for j in range(NB):
        a(f"""
        s_add_u32 s{sj}, s{sbase}, {j}
        s_cmp_ge_u32 s{sj}, s{sn}
        s_cbranch_scc1 L_cfin
        v_sub_f32 v{W}, v{MLB+2*j}, v{MX}
        v_exp_f32 v{W}, v{W}
        s_waitcnt vmcnt({2*(NB-1-j)})
        v_fmac_f32 v{DEN}, v{W}, v{MLB+2*j+1}
        """)
        for r in range(4):
            a(f"""
            v_lshlrev_b32 v{U0}, 16, v{OB+4*j+r}
            v_and_b32 v{U1}, 0xffff0000, v{OB+4*j+r}
            v_fmac_f32 v{ACC+2*r}, v{W}, v{U0}
            v_fmac_f32 v{ACC+2*r+1}, v{W}, v{U1}
            """)
    a(f"""
    s_add_u32 s{sbase}, s{sbase}, {NB}
    s_branch L_cloop
    """)
    a.label("L_cfin")
    a(f"""
    v_rcp_f32 v{SC}, v{DEN}
    s_nop 0
    """)
    for r in range(8):
        a(f"v_mul_f32 v{ACC+r}, v{ACC+r}, v{SC}")
    for r in range(4):
        a(f"v_cvt_pk_bf16_f32 v{ACC+r}, v{ACC+2*r}, v{ACC+2*r+1}")
    a(f"""
    buffer_store_dwordx2 v[{ACC}:{ACC+1}], v{VOUT}, s[{SRD_O}:{SRD_O+3}], 0 offen
    buffer_store_dwordx2 v[{ACC+2}:{ACC+3}], v{VOUT}, s[{SRD_O}:{SRD_O+3}], 0 offen offset:16
    """)
    if cfg.get("cpad_to_us"):
        a(f"""
        s_waitcnt vmcnt(0)
        s_add_u32 s92, s100, {int(cfg["cpad_to_us"]*100)}
        """)
        a.label("L_cdelay")
        a(f"""
        s_sleep 4
        s_memrealtime s[90:91]
        s_waitcnt lgkmcnt(0)
        s_sub_u32 s93, s92, s90
        s_cmp_gt_i32 s93, 0
        s_cbranch_scc1 L_cdelay
        """)
    a.label("L_cend")
    a("s_endpgm")


def descriptor(name, vgpr, accum, sgpr=102):
    return f"""
.p2align 6
.amdhsa_kernel {name}
  .amdhsa_next_free_vgpr {vgpr}
  .amdhsa_next_free_sgpr {sgpr}
  .amdhsa_accum_offset {accum}
  .amdhsa_group_segment_fixed_size 0
  .amdhsa_kernarg_size 64
  .amdhsa_user_sgpr_count 2
  .amdhsa_user_sgpr_kernarg_segment_ptr 1
  .amdhsa_system_sgpr_workgroup_id_x 1
.end_amdhsa_kernel
"""


DEFAULT_CFG = dict(
    vslots=[9, 10, 11, 12, 13, 14, 15, 16, 17, 18, 19, 20, 21, 22, 23, 24],
    rl_slot=22,
    dma_slots=[25, 26, 27, 29],
    dma_cost=12,
    patch_slot=9,
    delta=3,
    br_dist=2,
    empty_gaps=[31],
    bar_period=2,
    pp0=1, pp1=0, ppA=[7, 15], ppB=[15, 31], ppQ=[1, 3, 5, 7],
    pk=1,
    warm=1,
    zero_early=64,
    thr_log2=12,
    st_flags=" sc1",
    fused=1, cld_flags=" sc1", poll_sleep=2, poll_max=200000, cpk=0, clook=3, out_flags="",
    depth=6, map=0, peel=0, peel_slots=[19, 22, 25, 27],
    ld_flags=" nt",
)


def generate(cfg=None, out=OUT):
    c = dict(DEFAULT_CFG)
    if cfg:
        c.update(cfg)
    global LDFLAGS
    LDFLAGS = c["ld_flags"]
    a = Asm()
    a.raw(f"""; Paged attention (GQA, split-KV) for gfx950 -- generated by gen.py (hand-scheduled)
{("; @launch grid=(256,1,1) block=(256,1,1) lds=163840" if c["fused"] else "; @launch kernel=" + NAME + "_kernel grid=(256,1,1) block=(256,1,1) lds=163840" + chr(10) + "; @launch kernel=pa_combine_kernel grid=(256,1,1) block=(512,1,1) lds=0")}
{"; @launch kernel=pa_nop_kernel grid=(1,1,1) block=(64,1,1) lds=0" + chr(10) if c.get("nop3") else ""}.amdgcn_target "amdgcn-amd-amdhsa--gfx950"
.text""")
    emit_main(a, c)
    if not c["fused"]:
        emit_combine(a, c)
    if c.get("nop3"):
        a.raw(".globl pa_nop_kernel\n.p2align 8\n.type pa_nop_kernel,@function\npa_nop_kernel:\n    s_endpgm")
    a.raw('.section .rodata,"a"')
    if c.get("nop3"):
        a.raw(descriptor("pa_nop_kernel", 8, 8))
    a.raw(descriptor(NAME + "_kernel", 384, 256))
    if not c["fused"]:
        a.raw(descriptor("pa_combine_kernel", 216, 216))
    open(out, "w").write(a.text())


if __name__ == "__main__":
    import json
    cfg = json.loads(sys.argv[1]) if len(sys.argv) > 1 else None
    generate(cfg, sys.argv[2] if len(sys.argv) > 2 else OUT)
```

```python
import sys, math

NAME = "standalone__paged_block_table_kv_pagedattention__sampling"
OUT = "cdna_kernels/%s.s" % NAME

KV_BYTES = 4100 * 16384
Q_BYTES = 8 * 32 * 32 * 128 * 2
BT_BYTES = 8 * 512 * 4
WS_ML = 0x1000000
LDS_ML = 0x27000
LDS_NONCE = 0x27ff0
WS_DBG = WS_ML + 256 * 2048
WS_FLAG = WS_DBG + 0x100000
WS_BYTES = WS_FLAG + 32 * 256
SCALE = math.log2(math.e) / math.sqrt(128.0)
THR_LOG2 = 12

import struct
def f32bits(x):
    return struct.unpack("<I", struct.pack("<f", x))[0]

class Asm:
    def __init__(self):
        self.lines = []
    def __call__(self, s):
        for l in s.strip("\n").split("\n"):
            self.lines.append("    " + l.strip())
    def label(self, l):
        self.lines.append(l + ":")
    def raw(self, s):
        self.lines.append(s)
    def text(self):
        return "\n".join(self.lines) + "\n"

S_ = {0: 0, 1: 16}
C_ = {0: 32, 1: 48}
O_ = {0: 64, 1: 128}
P_ = {0: 192, 1: 200}
KADDR = 208
VADDR = 216
VOFFK = 220
VOFFV = 222
PAGES = 224
L_ = {0: 225, 1: 226}
M_ = {0: 227, 1: 228}
TS_ = {0: (229, 230), 1: (231, 232)}
ET = 233
VLANE = 239
VT = 240
VH4 = 255
AQ = {0: 0, 1: 32}
AK = 64
AV = 96

s_wg = 2
s_q, s_k, s_v, s_bt, s_cl, s_out, s_dbg, s_ws = 4, 6, 8, 10, 12, 14, 16, 18
SRD_K, SRD_V, SRD_Q, SRD_X, SRD_WS, SRD_BT = 20, 24, 28, 32, 36, 76
s_w = 40
s_h = 41
s_slot = 42
s_n = 43
s_i = 44
s_patch = 45
s_rem = 46
s_idx = 47
s_pg = {0: 48, 1: 49}
s_m0k = 50
s_m0v = 51
s_thr = {0: 52, 1: 52}
s_E = 53
s_nb = 82
s_jj = 3
s_mine = 74
s_floor = {0: 54, 1: 55}
s_first = {0: 56, 1: 57}
s_ret = 58
s_t0 = 60
s_qb = 84
s_qlds = 54
s_b = 80
s_start = 81
s_scale = 56
s_wgslot = 83


def emit_srd(a, d, ptr, nbytes):
    a(f"""
    s_mov_b32 s{d}, s{ptr}
    s_and_b32 s{d+1}, s{ptr+1}, 0xffff
    s_mov_b32 s{d+2}, 0x{nbytes:x}
    s_mov_b32 s{d+3}, 0x20000
    """)


def sum8(a, dst, src, tmp):
    a(f"""
    s_nop 1
    v_add_u32_dpp v{tmp}, v{src}, v{src} quad_perm:[1,0,3,2] row_mask:0xf bank_mask:0xf
    s_nop 1
    v_add_u32_dpp v{dst}, v{tmp}, v{tmp} quad_perm:[2,3,0,1] row_mask:0xf bank_mask:0xf
    s_nop 1
    v_add_u32_dpp v{dst}, v{dst}, v{dst} row_half_mirror row_mask:0xf bank_mask:0xf
    """)


def emit_partition(a, vlane, vcl, vt, st):
    Lm1, T_, Cc, Nn, NS, INC, Qq, Rr, X0, X1 = range(vt, vt + 10)
    a(f"""
    v_add_u32 v{Lm1}, -1, v{vcl}
    v_min_u32 v{Lm1}, 0x1fff, v{Lm1}
    v_lshrrev_b32 v{T_}, 5, v{Lm1}
    v_add_u32 v{T_}, 1, v{T_}
    """)
    sum8(a, Cc, T_, X0)
    a(f"""
    v_add_u32 v{Cc}, 63, v{Cc}
    v_lshrrev_b32 v{Cc}, 6, v{Cc}
    v_lshrrev_b32 v{X0}, 3, v{vlane}
    v_add_u32 v{Cc}, v{Cc}, v{X0}
    v_cvt_f32_u32 v{X0}, v{Cc}
    v_rcp_f32 v{X0}, v{X0}
    v_add3_u32 v{X1}, v{T_}, v{Cc}, -1
    v_cvt_f32_u32 v{X1}, v{X1}
    v_add_f32 v{X1}, 0.5, v{X1}
    v_mul_f32 v{X1}, v{X1}, v{X0}
    v_cvt_u32_f32 v{Nn}, v{X1}
    """)
    sum8(a, NS, Nn, X0)
    a(f"""
    s_nop 1
    v_add_u32_dpp v{INC}, v{Nn}, v{Nn} row_shr:1 row_mask:0xf bank_mask:0xf bound_ctrl:0
    v_cvt_f32_u32 v{X0}, v{Nn}
    v_rcp_f32 v{X0}, v{X0}
    v_add_u32_dpp v{INC}, v{INC}, v{INC} row_shr:2 row_mask:0xf bank_mask:0xf bound_ctrl:0
    v_cvt_f32_u32 v{X1}, v{T_}
    v_add_f32 v{X1}, 0.5, v{X1}
    v_add_u32_dpp v{INC}, v{INC}, v{INC} row_shr:4 row_mask:0xf bank_mask:0xf bound_ctrl:0
    v_mul_f32 v{X1}, v{X1}, v{X0}
    v_cvt_u32_f32 v{Qq}, v{X1}
    v_add_u32_dpp v{INC}, v{INC}, v{INC} row_shr:8 row_mask:0xf bank_mask:0xf bound_ctrl:0
    v_mul_u32_u24 v{X0}, v{Qq}, v{Nn}
    v_sub_u32 v{Rr}, v{T_}, v{X0}
    v_mov_b32_dpp v{X1}, v{NS} row_shr:8 row_mask:0xf bank_mask:0xf bound_ctrl:0
    v_sub_u32 v{INC}, v{INC}, v{X1}
    v_cmp_ge_u32 vcc, 64, v{NS}
    s_ff1_i32_b64 s{st}, vcc
    s_mov_b64 s[{st+2}:{st+3}], 0xff
    s_lshl_b64 s[{st+2}:{st+3}], s[{st+2}:{st+3}], s{st}
    """)
    return dict(Lm1=Lm1, t=T_, n=Nn, incl=INC, q=Qq, r=Rr)


def sm_stream(X, et=None):
    S = S_[X]; P = P_[X]
    TS0, TS1 = TS_[X]
    et = ET if et is None else et
    def tmp(j):
        if j == 0:
            return TS0, TS1
        k = (j - 1) % 3
        return et + 2 * k, et + 2 * k + 1
    E = lambda j, h: (8, f"v_exp_f32 v{tmp(j)[h]}, v{S + 2 * j + h}")
    A = lambda j, h: (4, f"v_add_f32 v{(TS0, TS1)[h]}, v{(TS0, TS1)[h]}, v{tmp(j)[h]}")
    C = lambda j: (4, f"v_cvt_pk_bf16_f32 v{P + j}, v{tmp(j)[0]}, v{tmp(j)[1]}")
    st = [E(0, 0), E(0, 1), E(1, 0), C(0), E(1, 1)]
    for j in range(1, 7):
        st += [A(j, 0), E(j + 1, 0), A(j, 1), C(j), E(j + 1, 1)]
    st += [A(7, 0), A(7, 1), C(7), (4, f"v_add_f32 v{TS0}, v{TS0}, v{TS1}")]
    return st


def mfma_qk(X, s):
    c = C_[X] if s == 0 else S_[X]
    return (f"v_mfma_f32_32x32x16_bf16 v[{S_[X]}:{S_[X]+15}], a[{AK+4*s}:{AK+4*s+3}], "
            f"a[{AQ[X]+4*s}:{AQ[X]+4*s+3}], v[{c}:{c+15}]")


def mfma_pv(X, f):
    t, dt = f >> 2, f & 3
    o = O_[X] + 16 * dt
    return (f"v_mfma_f32_32x32x16_bf16 v[{o}:{o+15}], a[{AV+4*f}:{AV+4*f+3}], "
            f"v[{P_[X]+4*t}:{P_[X]+4*t+3}], v[{o}:{o+15}]")


def k_read(s, slot):
    return f"ds_read_b128 a[{AK+4*s}:{AK+4*s+3}], v{KADDR+s} offset:{slot*8192}"


def v_read(f, y, slot):
    t, dt = f >> 2, f & 3
    return (f"ds_read_b64_tr_b16 a[{AV+4*f+2*y}:{AV+4*f+2*y+1}], v{VADDR+dt} "
            f"offset:{slot*8192 + (16*t+8*y)*256}")


LDFLAGS = ""
def dma_k(a_list, slot, spg):
    return [f"s_add_u32 m0, s{s_m0k}, {slot*8192}",
            None,
            f"buffer_load_dwordx4 v{VOFFK}, s[{SRD_K}:{SRD_K+3}], s{spg} offen{LDFLAGS} lds",
            f"buffer_load_dwordx4 v{VOFFK+1}, s[{SRD_K}:{SRD_K+3}], s{spg} offen offset:1024{LDFLAGS} lds"]


def dma_v(a_list, slot, spg):
    return [f"s_add_u32 m0, s{s_m0v}, {slot*8192}",
            None,
            f"buffer_load_dwordx4 v{VOFFV}, s[{SRD_V}:{SRD_V+3}], s{spg} offen{LDFLAGS} lds",
            f"buffer_load_dwordx4 v{VOFFV+1}, s[{SRD_V}:{SRD_V+3}], s{spg} offen offset:1024{LDFLAGS} lds"]


def plan_body(k, cfg, tramps=None, peel=None):
    kn = (k + 1) % 8
    kl = k if peel is None else f"p{k}"
    D = cfg["depth"]
    pgn = s_pg[k & 1]
    pgo = s_pg[(k & 1) ^ 1]
    tramps = [] if tramps is None else tramps
    pre = {i: [] for i in range(32)}
    front = {i: [] for i in range(32)}
    valu = {i: [] for i in range(32)}
    tail = {i: [] for i in range(32)}
    for s in range(8):
        front[s + 1].append((4, k_read(s, kn)))
    vslots = cfg["vslots"]
    vr = [(f, y) for f in range(8) for y in range(2)]
    for (f, y), sl in zip(vr, vslots):
        assert sl >= 9 + f, (f, sl)
        front[sl].append((4, v_read(f, y, k)))
    def vr_before(m):
        return sum(1 for sl in vslots if sl < m)
    pre[16].append(f"s_waitcnt lgkmcnt({vr_before(16)})")
    assert vr_before(24) >= 8
    pre[24].append(f"s_waitcnt lgkmcnt({vr_before(24) - 8})")
    assert vr_before(28) == 16
    pre[28].append("s_waitcnt lgkmcnt(0)")
    ds = cfg["dma_slots"]
    dcost = cfg["dma_cost"]
    if peel is None:
        valu[cfg["rl_slot"]].append((4, f"v_readlane_b32 s{pgn}, v{PAGES}, s{s_idx}"))
        tail[cfg["rl_slot"]].append(f"s_add_u32 s{s_idx}, s{s_idx}, 1")
        dk = dma_k(None, (k + D + 1) % 8, pgn)
        dv = dma_v(None, (k + D) % 8, pgo)
        tail[ds[0] - 1].append(dv[0])
        front[ds[0]].append((dcost, dv[2]))
        front[ds[1]].append((dcost, dv[3]))
        assert ds[2] - 1 >= ds[1]
        tail[ds[2] - 1].append(dk[0])
        front[ds[2]].append((dcost, dk[2]))
        front[ds[3]].append((dcost, dk[3]))
        assert ds[2] > cfg["rl_slot"] + 1
    else:
        g, pb = peel
        seq = [dma_k(None, (g + 1) % 8, pb + g + 1), dma_v(None, g % 8, pb + g),
               dma_k(None, (g + 2) % 8, pb + g + 2), dma_v(None, (g + 1) % 8, pb + g + 1)]
        for d_, sl in zip(seq, cfg["peel_slots"]):
            tail[sl - 1].append(d_[0])
            front[sl].append((dcost, d_[2]))
            front[sl + 1].append((dcost, d_[3]))
    ps = cfg["patch_slot"]
    tail[ps - 1].append(f"s_cmp_eq_u32 s{s_i}, s{s_patch}")
    front[ps].insert(0, (8, f"s_cbranch_scc1 L_patch_{kl}"))
    front[ps].insert(1, (0, f"L_patch_ret_{kl}:"))
    tramps.append((f"L_patch_{kl}", "L_sub_patch", f"L_patch_ret_{kl}"))
    assert max(ds) < 30
    tail[30].append(f"s_add_u32 s{s_i}, s{s_i}, 1")
    tail[30].append(f"s_cmp_ge_u32 s{s_i}, s{s_n}")
    front[31].append((8, "s_cbranch_scc1 L_drain"))
    dl = cfg["delta"]
    for X, lo in ((0, 32 - dl), (1, 16 - dl)):
        hi = lo + 15
        bs = (hi + cfg["br_dist"]) % 32
        front[bs].insert(0, (8, f"s_cbranch_vccnz L_fb{X}_{kl}"))
        front[bs].insert(1, (0, f"L_fb{X}_ret_{kl}:"))
        valu[bs].insert(0, (4, f"v_add_f32 v{L_[X]}, v{L_[X]}, v{TS_[X][0]}"))
        tramps.append((f"L_fb{X}_{kl}", f"L_sub_fb{X}", f"L_fb{X}_ret_{kl}"))
    if peel is not None:
        _, _, valu_r, _ = plan_body(k, cfg)
        for g_ in range(32):
            valu[g_] = [x for x in valu_r[g_] if not x[1].startswith("v_readlane")]
        return pre, front, valu, tail
    for X, lo in ((0, 32 - dl), (1, 16 - dl)):
        gaps = [(lo + j) % 32 for j in range(16)]
        st = sm_stream(X) + [(4, f"v_cmp_lt_f32 vcc, s{s_thr[X]}, v{TS_[X][0]}")]
        tot = sum(c for c, _ in st)
        free = [max(0, 24 - sum(c for c, _ in front[g]) - sum(c for c, _ in valu[g])) for g in gaps]
        for n_, g in enumerate(gaps):
            if g in cfg["empty_gaps"]:
                free[n_] = 0
        ftot = sum(free)
        assert ftot >= tot, (ftot, tot)
        acc = 0.0; done = 0; idx = 0
        for n_, g in enumerate(gaps):
            acc += free[n_] * tot / ftot
            used = 0
            while idx < len(st) and used + st[idx][0] <= free[n_] and len(valu[g]) < 5 and \
                    (done + st[idx][0] / 2.0 <= acc or n_ == 15):
                valu[g].append(st[idx]); done += st[idx][0]; used += st[idx][0]; idx += 1
        assert idx == len(st), (X, idx, len(st))
    return pre, front, valu, tail


def skip(t, cfg):
    if cfg.get("no_dma") and t.startswith("buffer_load"): return True
    if cfg.get("no_lds") and t.startswith("ds_read"): return True
    if cfg.get("no_sm") and (t.startswith("v_exp") or t.startswith("v_add_f32") or t.startswith("v_cvt")): return True
    if cfg.get("no_mfma") and t.startswith("v_mfma"): return True
    return False


def emit_body(a, k, tramps, cfg, peel=None, vm=None):
    D = cfg["depth"]
    mf = [mfma_qk(1, s) for s in range(8)] + [mfma_pv(1, f) for f in range(8)] + \
         [mfma_qk(0, s) for s in range(8)] + [mfma_pv(0, f) for f in range(8)]
    pre, front, valu, tail = plan_body(k, cfg, tramps, peel)
    a.label(f"L_body_{k}" if peel is None else f"L_body_p{k}")
    if cfg.get("stamp"):
        a(f"""
        s_memtime s[90:91]
        s_mov_b32 m0, s{s_i}
        s_waitcnt lgkmcnt(0)
        v_writelane_b32 v{VT+12}, s90, m0
        """)
    bp = cfg["bar_period"]
    if k % bp == 0:
        a(f"s_waitcnt vmcnt({4*(D-bp) if vm is None else vm})")
        if not cfg.get("no_bar"):
            a("s_barrier")
    if cfg.get("stamp"):
        a(f"""
        s_memtime s[90:91]
        s_waitcnt lgkmcnt(0)
        v_writelane_b32 v{VT+13}, s90, m0
        """)
    for i in range(32):
        seq = pre[i] + [mf[i]] + [t for _, t in front[i]] + [t for _, t in valu[i]] + tail[i]
        for t in seq:
            if t.endswith(":"):
                a.label(t[:-1])
            elif not skip(t, cfg):
                a(t)
    if k == 7 and peel is None:
        a("s_branch L_body_0")


def emit_rowmax(a, X, mx, t1):
    S = S_[X]
    out = [f"v_max3_f32 v{mx}, v{S}, v{S+1}, v{S+2}"]
    for r in range(3, 15, 2):
        out.append(f"v_max3_f32 v{mx}, v{mx}, v{S+r}, v{S+r+1}")
    out += [f"v_max_f32 v{mx}, v{mx}, v{S+15}", f"v_mov_b32 v{t1}, v{mx}", "s_nop 1",
            f"v_permlane32_swap_b32 v{mx}, v{t1}", "s_nop 1", f"v_max_f32 v{mx}, v{mx}, v{t1}"]
    return out


def emit_fallback(a, X):
    S = S_[X]; C = C_[X]; O = O_[X]; P = P_[X]
    mx, t1, f = VT, VT + 1, VT + 3
    a.label(f"L_sub_fb{X}")
    a("s_nop 7")
    for t in emit_rowmax(a, X, mx, t1):
        a(t)
    a(f"""
    v_max_f32 v{mx}, 0, v{mx}
    v_exp_f32 v{f}, -v{mx}
    v_add_f32 v{M_[X]}, v{M_[X]}, v{mx}
    """)
    for r in range(16):
        a(f"v_sub_f32 v{C+r}, v{C+r}, v{mx}")
        a(f"v_sub_f32 v{S+r}, v{S+r}, v{mx}")
    a(f"v_mul_f32 v{L_[X]}, v{L_[X]}, v{f}")
    for r in range(64):
        a(f"v_mul_f32 v{O+r}, v{O+r}, v{f}")
    for c, t in sm_stream(X, VT + 4):
        a(t)
    a(f"""
    s_nop 3
    s_setpc_b64 s[{s_ret}:{s_ret+1}]
    """)


def emit_patch(a):
    ninf = VT
    a.label("L_sub_patch")
    a(f"""
    s_nop 7
    v_mov_b32 v{ninf}, 0xff800000
    """)
    for r in range(16):
        cst = 8 * (r >> 2) + (r & 3)
        a(f"""
        s_sub_i32 s{s_mine+1}, s{s_rem}, {cst}
        v_cmp_gt_i32 vcc, s{s_mine+1}, v{VH4}
        s_nop 1
        v_cndmask_b32 v{C_[0]+r}, v{ninf}, v{C_[0]+r}, vcc
        v_cndmask_b32 v{C_[1]+r}, v{ninf}, v{C_[1]+r}, vcc
        """)
    a(f"""
    s_nop 3
    s_setpc_b64 s[{s_ret}:{s_ret+1}]
    """)


MAPS = {
    0: f"""s_lshr_b32 s{s_h}, s{s_wg}, 1
    s_and_b32 s{s_h}, s{s_h}, 3
    s_and_b32 s{s_t0}, s{s_wg}, 1
    s_lshl_b32 s{s_t0}, s{s_t0}, 5
    s_lshr_b32 s{s_slot}, s{s_wg}, 3
    s_or_b32 s{s_slot}, s{s_slot}, s{s_t0}""",
    2: f"""s_lshr_b32 s{s_h}, s{s_wg}, 1
    s_and_b32 s{s_h}, s{s_h}, 3
    s_lshr_b32 s{s_slot}, s{s_wg}, 3
    s_cmp_lt_u32 s{s_slot}, 30
    s_cselect_b32 s{s_t0}, s{s_slot}, 63
    s_add_u32 s{s_slot}, s{s_slot}, 30
    s_and_b32 s{s_t0+1}, s{s_wg}, 1
    s_cmp_eq_u32 s{s_t0+1}, 0
    s_cselect_b32 s{s_slot}, s{s_t0}, s{s_slot}""",
    1: f"""s_lshr_b32 s{s_h}, s{s_wg}, 3
    s_and_b32 s{s_h}, s{s_h}, 3
    s_and_b32 s{s_t0}, s{s_wg}, 7
    s_lshl_b32 s{s_t0}, s{s_t0}, 3
    s_lshr_b32 s{s_slot}, s{s_wg}, 5
    s_or_b32 s{s_slot}, s{s_slot}, s{s_t0}""",
}


def emit_pad(a, us, tag):
    a(f"s_add_u32 s92, s100, {int(us*100)}")
    a.label(f"L_pad_{tag}")
    a(f"""
    s_sleep 2
    s_memrealtime s[90:91]
    s_waitcnt lgkmcnt(0)
    s_sub_u32 s93, s92, s90
    s_cmp_gt_i32 s93, 0
    s_cbranch_scc1 L_pad_{tag}
    """)


def emit_main(a, cfg):
    K = NAME + "_kernel"
    D = cfg["depth"]
    assert D <= 7
    a.raw(f".globl {K}\n.p2align 8\n.type {K},@function")
    a.label(K)
    t0, t1, t2, t3 = VT + 11, VT + 12, VT + 13, VT + 14
    VCL = VT + 10
    def sstamp(n):
        if cfg.get("stamp"):
            a(f"""
            s_memtime s[90:91]
            s_waitcnt lgkmcnt(0)
            s_mov_b32 s{n}, s90
            """)
    def pstamp(n):
        if cfg.get("stamp"):
            a(f"""
            s_memtime s[90:91]
            s_waitcnt lgkmcnt(0)
            v_writelane_b32 v{VT+12}, s90, {40+n}
            """)
    a(f"""
    s_cmp_ge_u32 s{s_wg}, 256
    s_cbranch_scc1 L_end
    s_load_dwordx16 s[4:19], s[0:1], 0
    v_lshrrev_b32 v{VT}, 6, v0
    v_and_b32 v{VLANE}, 63, v0
    v_readfirstlane_b32 s{s_w}, v{VT}
    {MAPS[cfg["map"]]}
    v_and_b32 v{VT+1}, 7, v{VLANE}
    v_lshlrev_b32 v{VT+1}, 2, v{VT+1}
    v_lshlrev_b32 v{VT+2}, 7, v{VLANE}
    """)
    if cfg["fused"]:
        a(f"s_memrealtime s[{s_mine}:{s_mine+1}]")
    if cfg.get("stamp"):
        a("s_memtime s[92:93]")
    if cfg.get("stamp") or cfg.get("pad_to_us") or cfg.get("pad_le") or cfg.get("pad_ls") or cfg.get("pad_pub"):
        a("s_memrealtime s[100:101]")
    a(f"""
    s_and_b32 s{s_t0}, s{s_w}, 1
    s_lshl_b32 s{s_t0}, s{s_t0}, 3               ; 8*(w&1)
    s_lshl_b32 s{s_t0+1}, s{s_h}, 8              ; h*256
    v_lshrrev_b32 v{t0}, 4, v{VLANE}             ; l>>4
    v_and_b32 v{t1}, 15, v{VLANE}                ; pc
    v_add_u32 v{t2}, s{s_t0}, v{t0}              ; R&15 for x=0
    v_xor_b32 v{t3}, v{t1}, v{t2}
    v_lshlrev_b32 v{t3}, 4, v{t3}
    v_lshl_add_u32 v{t3}, v{t2}, 10, v{t3}
    v_add_u32 v{VOFFK}, s{s_t0+1}, v{t3}
    v_add_u32 v{t2}, 4, v{t2}                    ; R&15 for x=1
    v_xor_b32 v{t3}, v{t1}, v{t2}
    v_lshlrev_b32 v{t3}, 4, v{t3}
    v_lshl_add_u32 v{t3}, v{t2}, 10, v{t3}
    v_add_u32 v{t3}, s{s_t0+1}, v{t3}
    v_add_u32 v{VOFFK+1}, 0xfffffc00, v{t3}
    v_lshlrev_b32 v{t3}, 2, v{t0}
    v_xor_b32 v{t3}, v{t1}, v{t3}
    v_lshlrev_b32 v{t3}, 4, v{t3}
    v_add_u32 v{t2}, s{s_t0}, v{t0}
    v_lshl_add_u32 v{t3}, v{t2}, 10, v{t3}
    v_add_u32 v{VOFFV}, s{s_t0+1}, v{t3}
    v_add_u32 v{VOFFV+1}, 0xc00, v{VOFFV}        ; +4096 -1024
    s_lshl_b32 s{s_m0k}, s{s_w}, 11
    s_add_u32 s{s_m0v}, s{s_m0k}, 0x10000
    s_mov_b32 s{s_thr[0]}, 0x{f32bits(2.0**cfg["thr_log2"]):x}
    s_mov_b32 s{s_thr[1]}, 0x{f32bits(2.0**cfg["thr_log2"]):x}
    s_mov_b32 s{s_i}, 0
    s_mov_b32 s{s_idx}, {D+1+cfg["peel"]}
    v_lshrrev_b32 v{t0}, 5, v{VLANE}            ; h2
    v_lshlrev_b32 v{VH4}, 2, v{t0}
    v_lshrrev_b32 v{t2}, 4, v{VLANE}
    v_xor_b32 v{t3}, v{t1}, v{t2}
    v_lshlrev_b32 v{t3}, 4, v{t3}
    v_lshl_add_u32 v{ET}, v{t2}, 8, v{t3}        ; Q voffset (j&3 == 0)
    v_xor_b32 v{ET+1}, 64, v{ET}
    v_xor_b32 v{ET+2}, 0x80, v{ET}
    v_xor_b32 v{ET+3}, 0xc0, v{ET}
    v_lshlrev_b32 v{ET+4}, 3, v{VLANE}
    s_lshl_b32 s{s_qlds}, s{s_w}, 13
    s_add_u32 s{s_qlds}, s{s_qlds}, 0x20000      ; Q_A staging : 128K + w*8K
    s_and_b32 s{s_t0}, s{s_w}, 1
    s_lshl_b32 s{s_t0}, s{s_t0}, 13
    s_lshr_b32 s{s_t0+1}, s{s_w}, 1
    s_lshl_b32 s{s_t0+1}, s{s_t0+1}, 16
    s_add_u32 s{s_t0}, s{s_t0}, s{s_t0+1}
    s_add_u32 s{s_qlds+1}, s{s_t0}, 0xc000
    s_waitcnt lgkmcnt(0)
    """)
    emit_srd(a, SRD_X, s_cl, 32)
    a(f"buffer_load_dword v{VCL}, v{VT+1}, s[{SRD_X}:{SRD_X+3}], 0 offen")
    emit_srd(a, SRD_BT, s_bt, BT_BYTES)
    emit_srd(a, SRD_Q, s_q, Q_BYTES)
    nwarm = 0
    if cfg["warm"]:
        a(f"""
        s_lshr_b32 s{s_t0}, s{s_wg}, 3
        s_lshr_b32 s{s_t0+1}, s{s_t0}, 2
        s_lshl_b32 s{s_t0+1}, s{s_t0+1}, 18          ; b*262144
        s_and_b32 s{s_t0+2}, s{s_t0}, 3
        s_lshl_b32 s{s_t0+2}, s{s_t0+2}, 14
        s_add_u32 s{s_t0+1}, s{s_t0+1}, s{s_t0+2}
        s_lshl_b32 s{s_t0+2}, s{s_h}, 16
        s_add_u32 s{s_t0+1}, s{s_t0+1}, s{s_t0+2}
        s_lshl_b32 s{s_t0+2}, s{s_w}, 13
        s_add_u32 s{s_t0+1}, s{s_t0+1}, s{s_t0+2}
        s_lshl_b32 s{s_t0}, s{s_t0}, 9
        s_cmp_lt_u32 s{s_w}, 2
        s_cselect_b32 s{s_t0+1}, s{s_t0+1}, 0x80000000
        s_cmp_eq_u32 s{s_w}, 2
        s_cselect_b32 s{s_t0}, s{s_t0}, 0x80000000
        v_min_u32 v{VT+3}, 0x180, v{VT+2}
        buffer_load_dword v{P_[0]}, v{VT+2}, s[{SRD_Q}:{SRD_Q+3}], s{s_t0+1} offen
        buffer_load_dword v{P_[0]+1}, v{VT+3}, s[{SRD_BT}:{SRD_BT+3}], s{s_t0} offen
        """)
        nwarm = 2
    emit_srd(a, SRD_K, s_k, KV_BYTES)
    emit_srd(a, SRD_V, s_v, KV_BYTES)
    emit_srd(a, SRD_WS, s_ws, WS_BYTES)
    sstamp(88)
    a(f"""
    v_and_b32 v{t1}, 31, v{VLANE}               ; key / q
    v_and_b32 v{t2}, 15, v{VLANE}
    v_xor_b32 v{t2}, v{t2}, v{t0}               ; (key&15)^h2
    v_lshlrev_b32 v{t2}, 4, v{t2}
    v_lshl_add_u32 v{KADDR}, v{t1}, 8, v{t2}
    """)
    for s in range(1, 8):
        a(f"v_xor_b32 v{KADDR+s}, {s << 5}, v{KADDR}")
    a(f"""
    v_bfe_u32 v{t1}, v{VLANE}, 2, 2              ; r
    v_add_u32 v{t2}, v{VH4}, v{t1}               ; 4h2 + r
    v_lshlrev_b32 v{t2}, 8, v{t2}
    v_bfe_u32 v{t3}, v{VLANE}, 4, 1              ; sub
    v_lshl_add_u32 v{t2}, v{t3}, 5, v{t2}
    v_and_b32 v{t3}, 3, v{VLANE}                 ; c
    v_lshl_add_u32 v{t2}, v{t3}, 3, v{t2}
    v_add_u32 v{t2}, 0x10000, v{t2}
    v_lshl_add_u32 v{VADDR}, v{t1}, 6, v{t2}     ; dt=0 : (0^r)<<6
    """)
    for dt in range(1, 4):
        a(f"v_xor_b32 v{VADDR+dt}, {dt << 6}, v{VADDR}")
    a(f"s_waitcnt vmcnt({nwarm})")
    sstamp(89)
    st = s_t0
    R = emit_partition(a, VLANE, VCL, VT, st)
    sn, sincl, sLm1, scl, sq, sr, sj = st + 4, st + 5, st + 6, st + 7, st + 8, st + 9, st + 10
    SKEW1 = SKEW2 = ""
    if cfg.get("skew"):
        sh = cfg["skew"]
        g0, g1 = st + 11, st + 12
        SKEW1 = f"""s_sub_u32 s{g0}, s{sn}, s{sj}
    s_mul_i32 s{g1}, s{g0}, s{sj}                ; j*(nb-j)
    s_add_u32 s{st}, s{g1}, s{g0}
    s_sub_u32 s{st}, s{st}, s{sj}
    s_sub_u32 s{st}, s{st}, 1                    ; (j+1)*(nb-j-1)
    s_lshr_b32 s{g0}, s{g1}, {sh}
    s_lshr_b32 s{g1}, s{st}, {sh}
    s_cmp_gt_u32 s{sq}, s{sn}
    s_cselect_b32 s{g0}, s{g0}, 0
    s_cselect_b32 s{g1}, s{g1}, 0
    s_sub_u32 s{s_start}, s{s_start}, s{g0}"""
        SKEW2 = f"""s_add_u32 s{s_n}, s{s_n}, s{g0}
    s_sub_u32 s{s_n}, s{s_n}, s{g1}"""
    a(f"""
    v_cmp_lt_u32 vcc, s{s_slot}, v{R['incl']}
    s_and_b64 vcc, vcc, s[{st+2}:{st+3}]
    s_cbranch_scc0 L_end
    s_ff1_i32_b64 s{st}, vcc
    s_and_b32 s{s_b}, s{st}, 7
    v_readlane_b32 s{sn}, v{R['n']}, s{st}
    v_readlane_b32 s{sincl}, v{R['incl']}, s{st}
    v_readlane_b32 s{sq}, v{R['q']}, s{st}
    v_readlane_b32 s{sr}, v{R['r']}, s{st}
    v_readlane_b32 s{sLm1}, v{R['Lm1']}, s{st}
    v_readlane_b32 s{scl}, v{VCL}, s{st}
    s_lshl_b32 s{st+2}, s{s_b}, 5
    s_lshl_b32 s{st+1}, s{s_h}, 3
    s_add_u32 s{st+2}, s{st+2}, s{st+1}
    s_lshl_b32 s{st+1}, s{s_w}, 1
    s_add_u32 s{st+2}, s{st+2}, s{st+1}
    s_lshl_b32 s{st+2}, s{st+2}, 13              ; Q base = ((b*32 + 8h + 2w)*32)*256
    s_add_u32 s{st+3}, s{st+2}, 0x2000
    s_sub_u32 s{sj}, s{sincl}, s{sn}
    s_sub_u32 s{sj}, s{s_slot}, s{sj}            ; j = slot - E_b
    s_mul_i32 s{s_start}, s{sj}, s{sq}
    s_min_u32 s{st}, s{sj}, s{sr}
    s_add_u32 s{s_start}, s{s_start}, s{st}
    {SKEW1}
    s_lshl_b32 s{st}, s{s_b}, 9
    s_lshl_b32 s{st+1}, s{s_start}, 1
    s_add_u32 s{st}, s{st}, s{st+1}
    s_lshr_b32 s{st+1}, s{s_w}, 1
    s_add_u32 s{st}, s{st}, s{st+1}
    s_lshl_b32 s{st}, s{st}, 2
    buffer_load_dword v{PAGES}, v{ET+4}, s[{SRD_BT}:{SRD_BT+3}], s{st} offen
    """)
    def qload(X):
        for hf in range(2):
            a(f"s_add_u32 m0, s{s_qlds+X}, {4096*hf}")
            a(f"s_add_u32 s{s_qb+2}, s{s_qb+X}, {4096*hf}")
            for j in range(4):
                a(f"buffer_load_dwordx4 v{ET+j}, s[{SRD_Q}:{SRD_Q+3}], s{s_qb+2} offen offset:{1024*j} lds")
    a(f"""
    s_mov_b32 s{s_qb}, s{st+2}
    s_mov_b32 s{s_qb+1}, s{st+3}
    """)
    qload(0)
    a(f"""
    s_cmp_lt_u32 s{sj}, s{sr}
    s_addc_u32 s{s_n}, s{sq}, 0                  ; n = q + (j<r)
    {SKEW2}
    s_min_u32 s{s_n}, s{s_n}, 54
    s_and_b32 s{s_rem}, s{sLm1}, 31
    s_add_u32 s{s_rem}, s{s_rem}, 1
    s_add_u32 s{st}, s{sj}, 1
    s_cmp_eq_u32 s{st}, s{sn}
    s_cselect_b32 s{s_rem}, s{s_rem}, 32
    s_sub_u32 s{s_patch}, s{s_n}, 2
    s_cmp_lt_u32 s{s_rem}, 32
    s_cselect_b32 s{s_patch}, s{s_patch}, 0x7fffffff
    s_mov_b32 s{s_scale}, 0x{f32bits(SCALE):x}
    s_cmp_lt_i32 s{scl}, 1
    s_cselect_b32 s{s_scale}, 0, s{s_scale}
    s_mov_b32 s{s_scale+1}, s{s_scale}
    s_lshl_b32 s{s_wgslot}, s{s_h}, 6
    s_add_u32 s{s_wgslot}, s{s_wgslot}, s{s_slot}
    s_min_u32 s{s_nb}, s{sn}, 64
    s_mov_b32 s{s_jj}, s{sj}
    s_sub_u32 s{s_E}, s{s_wgslot}, s{sj}
    """)
    sstamp(93)
    nz = cfg["zero_early"]
    for r in range(64, 64 + nz):
        a(f"v_mov_b32 v{r}, 0")
    a(f"""
    v_mov_b32 v{t2}, 0x80000000
    v_cmp_gt_u32 vcc, s{s_n}, v{VLANE}
    s_waitcnt vmcnt(8)
    v_lshlrev_b32 v{PAGES}, 14, v{PAGES}
    v_cndmask_b32 v{PAGES}, v{t2}, v{PAGES}, vcc
    s_nop 0
    """)
    PEEL = cfg["peel"]
    NPRE = D - PEEL
    for j in range(D + 1 + PEEL):
        a(f"v_readlane_b32 s{st+j}, v{PAGES}, {j}")
    a("s_nop 3")
    vm = ["QA"] * 8
    def vwait(tag):
        idx = max(i for i, t in enumerate(vm) if t == tag)
        a(f"s_waitcnt vmcnt({len(vm) - 1 - idx})")
    def issue(lst, tag):
        a(lst[0]); a("s_nop 0"); a(lst[2]); a(lst[3])
        vm.extend([tag, tag])
    pairs = [("K", 0)]
    for j in range(NPRE):
        pairs += [("K", j + 1), ("V", j)]
    def pair():
        if not pairs:
            return
        kind, j = pairs.pop(0)
        issue(dma_k(None, j, st + j) if kind == "K" else dma_v(None, j, st + j), f"{kind}{j}")
    QRAW = {0: 0, 1: 128}
    def qread(X):
        for s in range(8):
            a(f"v_add_u32 v{VT+4+s}, s{s_qlds+X}, v{KADDR+s}")
        for s in range(8):
            r = QRAW[X] + 4 * s
            a(f"ds_read_b128 v[{r}:{r+3}], v{VT+4+s}")
    def prescale(X, packed):
        out = []
        for i in range(32):
            r = QRAW[X] + i
            ta, tb = VT + (i & 1) * 2, VT + (i & 1) * 2 + 1
            g = []
            if i % 4 == 0:
                g.append(f"s_waitcnt lgkmcnt({7 - i // 4})")
            g += [f"v_lshlrev_b32 v{ta}, 16, v{r}", f"v_and_b32 v{tb}, 0xffff0000, v{r}"]
            if packed(i):
                g.append(f"v_pk_mul_f32 v[{ta}:{tb}], v[{ta}:{tb}], s[{s_scale}:{s_scale+1}]")
            else:
                g += [f"v_mul_f32 v{ta}, s{s_scale}, v{ta}", f"v_mul_f32 v{tb}, s{s_scale}, v{tb}"]
            g += [f"v_cvt_pk_bf16_f32 v{ta}, v{ta}, v{tb}", f"v_accvgpr_write_b32 a{32*X+i}, v{ta}"]
            out.append(g)
        return out
    pstamp(0)
    for _ in range(cfg["pp0"]):
        pair()
    qload(1); vm.extend(["QB"] * 8)
    for _ in range(cfg["pp1"]):
        pair()
    pstamp(1)
    for r in list(range(64 + nz, 128)) + list(range(160, 208)) + list(range(32, 64)):
        a(f"v_mov_b32 v{r}, 0")
    for r in range(32):
        a(f"v_accvgpr_write_b32 a{AV+r}, 0")
    a(f"""
    v_mov_b32 v{L_[0]}, 0
    v_mov_b32 v{L_[1]}, 0
    s_cmp_eq_u32 s{s_patch}, -1
    s_cbranch_scc0 L_nopatch0
    s_call_b64 s[{s_ret}:{s_ret+1}], L_sub_patch
    """)
    a.label("L_nopatch0")
    vwait("QA")
    pstamp(10)
    qread(0)
    for i, g in enumerate(prescale(0, lambda i: cfg["pk"])):
        for t in g:
            a(t)
        if i in cfg["ppA"]:
            pair()
    pstamp(2)
    vwait("QB")
    pstamp(11)
    qread(1)
    for i, g in enumerate(prescale(1, lambda i: cfg["pk"])):
        for t in g:
            a(t)
        if i in cfg["ppB"]:
            pair()
    pstamp(3)
    vwait("K0")
    pstamp(4)
    a("s_barrier")
    pstamp(12)
    for s in range(8):
        a(k_read(s, 0))
    for s in range(8):
        a(f"s_waitcnt lgkmcnt({7-s})")
        a(mfma_qk(0, s))
        if s in cfg["ppQ"]:
            pair()
        for r in range(128 + 4 * s, 132 + 4 * s):
            a(f"v_mov_b32 v{r}, 0")
    a(mfma_qk(1, 0))
    a("s_nop 7")
    mxa = emit_rowmax(a, 0, M_[0], VT)
    mxa += [f"v_sub_f32 v{S_[0]+r}, v{S_[0]+r}, v{M_[0]}" for r in range(16)]
    mxa += [f"v_sub_f32 v{C_[0]+r}, v{C_[0]+r}, v{M_[0]}" for r in range(16)]
    for s in range(1, 8):
        a(mfma_qk(1, s))
        for _ in range(5):
            a(mxa.pop(0))
    while pairs:
        pair()
    a(f"s_mov_b32 s{s_pg[(PEEL & 1) ^ 1]}, s{st+D+PEEL}")
    while mxa:
        a(mxa.pop(0))
    a("s_nop 7")
    for t in emit_rowmax(a, 1, M_[1], VT):
        a(t)
    for r in range(16):
        a(f"v_sub_f32 v{C_[1]+r}, v{C_[1]+r}, v{M_[1]}")
    if cfg["fused"]:
        emit_srd(a, SRD_X, s_dbg, 256)
        a(f"""
        s_or_b32 s{s_mine}, s{s_mine}, 1
        v_mov_b32 v{VT+10}, s{s_mine}
        v_mov_b32 v{VT+11}, 0
        s_cmp_eq_u32 s{s_w}, 0
        s_cselect_b32 s{s_mine+1}, 0, 0x80000000
        s_mov_b64 exec, 1
        buffer_atomic_cmpswap v[{VT+10}:{VT+11}], v{VT+11}, s[{SRD_X}:{SRD_X+3}], s{s_mine+1} offen sc0
        s_mov_b64 exec, -1
        """)
    sstamp(94)
    sstamp(95)
    if cfg.get("pad_ls"):
        emit_pad(a, cfg["pad_ls"], "ls")
    pre, front, valu, tail = plan_body(7, cfg)
    hd = [t for g in range(32 - cfg["delta"], 32) for _, t in valu[g]
          if not t.startswith(f"v_add_f32 v{L_[1]},")]
    for t in hd:
        a(t)
    a("s_nop 1")
    tramps = []
    for k in range(PEEL):
        issued = NPRE + 2 * k
        need = k + cfg["bar_period"]
        assert issued >= need
        emit_body(a, k, tramps, cfg, peel=(NPRE + 2 * k, st), vm=4 * (issued - need))
    if PEEL:
        a(f"s_branch L_body_{PEEL}")
    for k in range(8):
        emit_body(a, k, tramps, cfg)
    a.label("L_drain")
    if cfg.get("pad_le"):
        emit_pad(a, cfg["pad_le"], "le")
    if cfg.get("stamp"):
        a(f"""
        s_memtime s[90:91]
        s_waitcnt lgkmcnt(0)
        s_mov_b32 s96, s90
        """)
    stf = cfg['st_flags']
    s_own, s_wlo, s_lo, s_hi = 44, 45, 46, 47
    VLD = VT + 5
    def conv(X, dt):
        o = O_[X] + 16 * dt
        d = 8 * (4 * X + dt)
        out = [f"v_cvt_pk_bf16_f32 v{d+j}, v{o+2*j}, v{o+2*j+1}" for j in range(8)]
        out.append(f"s_add_u32 s{st+1}, s{st}, {X*8192 + dt*2048}")
        for kp in range(2):
            f = 8 * X + 2 * dt + kp
            gs = f"buffer_store_dwordx4 v[{d+4*kp}:{d+4*kp+3}], v{VT+4}, s[{SRD_WS}:{SRD_WS+3}], s{st+1} offen offset:{1024*kp}{stf}"
            if cfg["fused"]:
                out.append(f"""s_bitcmp1_b32 s{s_own}, {f}
                s_cbranch_scc1 L_own_{f}
                {gs}
                s_branch L_own_r{f}
                L_own_{f}:
                ds_write_b128 v{VLD}, v[{d+4*kp}:{d+4*kp+3}] offset:{1024*f}
                L_own_r{f}:""")
            else:
                out.append(gs)
        return out
    def put(t):
        for l in t.split("\n"):
            l = l.strip()
            if l.endswith(":"):
                a.label(l[:-1])
            elif l:
                a(l)
    ep = f"""
    v_mov_b32 v{VT}, v{L_[0]}
    v_mov_b32 v{VT+1}, v{L_[1]}
    s_lshl_b32 s{st}, s{s_wgslot}, 16
    s_lshl_b32 s{st+1}, s{s_w}, 14
    s_add_u32 s{st}, s{st}, s{st+1}
    v_permlane32_swap_b32 v{L_[0]}, v{VT}
    v_permlane32_swap_b32 v{L_[1]}, v{VT+1}
    v_lshlrev_b32 v{VT+4}, 4, v{VLANE}
    v_mov_b32 v{VT+6}, v{M_[0]}
    v_add_f32 v{VT+7}, v{L_[0]}, v{VT}
    v_mov_b32 v{VT+8}, v{M_[1]}
    v_add_f32 v{VT+9}, v{L_[1]}, v{VT+1}
    """.strip().split("\n")
    if cfg["fused"]:
        ep += f"""
    s_lshl_b32 s{s_lo}, s{s_jj}, 2
    v_add_u32 v{VT}, s{s_lo}, v{VLANE}
    v_lshlrev_b32 v{VT}, 4, v{VT}
    v_cvt_f32_u32 v{VT}, v{VT}
    v_cvt_f32_u32 v{VT+1}, s{s_nb}
    v_rcp_f32 v{VT+1}, v{VT+1}
    v_add_f32 v{VT}, 0.5, v{VT}
    s_add_u32 s{s_hi}, s{s_w}, 1
    v_mul_f32 v{VT}, v{VT}, v{VT+1}
    v_cvt_u32_f32 v{VT}, v{VT}
    s_lshl_b32 s{st+2}, s{s_w}, 4
    v_readlane_b32 s{s_wlo}, v{VT}, 0
    v_readlane_b32 s{s_own}, v{VT}, 4
    v_readlane_b32 s{s_hi}, v{VT}, s{s_hi}
    v_readlane_b32 s{s_lo}, v{VT}, s{s_w}
    s_sub_u32 s{s_own}, s{s_own}, s{s_wlo}
    s_bfm_b64 s[{st+4}:{st+5}], s{s_own}, s{s_wlo}
    s_lshr_b64 s[{st+4}:{st+5}], s[{st+4}:{st+5}], s{st+2}
    s_cmp_ge_u32 s{s_nb}, 3
    s_cselect_b32 s{s_own}, s{st+4}, 0
    s_sub_u32 s{st+2}, s{st+2}, s{s_wlo}
    s_lshl_b32 s{st+2}, s{st+2}, 10
    s_add_u32 s{st+2}, s{st+2}, 0x20000
    v_add_u32 v{VLD}, s{st+2}, v{VT+4}
    """.strip().split("\n")
    ep += conv(0, 0) + conv(0, 1) + conv(0, 2) + conv(0, 3)
    for f in range(8):
        a(mfma_pv(1, f))
        for _ in range(8):
            put(ep.pop(0))
    while ep:
        put(ep.pop(0))
    a("s_nop 7")
    for dt in range(4):
        for t in conv(1, dt):
            put(t)
    if cfg["fused"]:
        a(f"""
        s_lshl_b32 s{st}, s{s_wgslot}, 11
        s_lshl_b32 s{st+1}, s{s_w}, 4
        s_add_u32 s{st}, s{st}, s{st+1}
        s_add_u32 s{st}, s{st}, 0x{WS_ML:x}
        v_lshlrev_b32 v{VT+4}, 6, v{VLANE}
        v_add_u32 v{VLD}, s{st+1}, v{VT+4}
        v_mov_b32 v{VT}, v{VT+6}
        v_mov_b32 v{VT+1}, v{VT+7}
        v_mov_b32 v{VT+2}, v{VT+8}
        v_mov_b32 v{VT+3}, v{VT+9}
        v_add_u32 v{VLD}, 0x{LDS_ML:x}, v{VLD}
        s_mov_b32 exec_hi, 0
        buffer_store_dwordx4 v[{VT}:{VT+3}], v{VT+4}, s[{SRD_WS}:{SRD_WS+3}], s{st} offen{stf}
        ds_write_b128 v{VLD}, v[{VT}:{VT+3}]
        """)
    else:
        a(f"""
        s_lshl_b32 s{st}, s{s_wgslot}, 11
        s_lshl_b32 s{st+1}, s{s_w}, 9
        s_add_u32 s{st}, s{st}, s{st+1}
        s_add_u32 s{st}, s{st}, 0x{WS_ML:x}
        v_lshlrev_b32 v{VT+4}, 3, v{VLANE}
        s_mov_b32 exec_hi, 0
        buffer_store_dwordx2 v[{VT+6}:{VT+7}], v{VT+4}, s[{SRD_WS}:{SRD_WS+3}], s{st} offen{stf}
        buffer_store_dwordx2 v[{VT+8}:{VT+9}], v{VT+4}, s[{SRD_WS}:{SRD_WS+3}], s{st} offen offset:256{stf}
        """)
    if cfg["fused"]:
        emit_fused_combine(a, cfg, sstamp)
    if cfg.get("stamp"):
        a(f"""
        s_mov_b64 exec, -1
        s_waitcnt vmcnt(0)
        s_memtime s[90:91]
        s_memrealtime s[86:87]
        s_getreg_b32 s98, hwreg(HW_REG_XCC_ID)
        s_waitcnt lgkmcnt(0)
        v_mov_b32 v{VT+14}, 0
        v_writelane_b32 v{VT+14}, s92, 0
        v_writelane_b32 v{VT+14}, s93, 1
        v_writelane_b32 v{VT+14}, s94, 2
        v_writelane_b32 v{VT+14}, s95, 3
        v_writelane_b32 v{VT+14}, s96, 4
        v_writelane_b32 v{VT+14}, s90, 5
        v_writelane_b32 v{VT+14}, s{s_n}, 6
        v_writelane_b32 v{VT+14}, s98, 7
        v_writelane_b32 v{VT+14}, s100, 8
        v_writelane_b32 v{VT+14}, s86, 9
        v_writelane_b32 v{VT+14}, s88, 10
        v_writelane_b32 v{VT+14}, s89, 11
        v_writelane_b32 v{VT+14}, s97, 12
        v_writelane_b32 v{VT+14}, s99, 13
        v_writelane_b32 v{VT+14}, s{s_h}, 14
        s_lshl_b32 s{st}, s{s_wg}, 12
        s_lshl_b32 s{st+1}, s{s_w}, 10
        s_add_u32 s{st}, s{st}, s{st+1}
        s_add_u32 s{st}, s{st}, 0x{WS_DBG:x}
        v_lshlrev_b32 v{VT}, 2, v{VLANE}
        buffer_store_dword v{VT+12}, v{VT}, s[{SRD_WS}:{SRD_WS+3}], s{st} offen
        buffer_store_dword v{VT+13}, v{VT}, s[{SRD_WS}:{SRD_WS+3}], s{st} offen offset:256
        buffer_store_dword v{VT+14}, v{VT}, s[{SRD_WS}:{SRD_WS+3}], s{st} offen offset:512
        """)
    if cfg.get("pad_to_us"):
        a(f"""
        s_waitcnt vmcnt(0)
        s_add_u32 s92, s100, {int(cfg["pad_to_us"]*100)}
        """)
    if cfg.get("delay_us"):
        a(f"""
        s_memrealtime s[90:91]
        s_waitcnt lgkmcnt(0)
        s_add_u32 s92, s90, {int(cfg["delay_us"]*100)}
        """)
    if cfg.get("delay_us") or cfg.get("pad_to_us"):
        a.label("L_delay")
        a(f"""
        s_sleep 4
        s_memrealtime s[90:91]
        s_waitcnt lgkmcnt(0)
        s_sub_u32 s93, s92, s90
        s_cmp_gt_i32 s93, 0
        s_cbranch_scc1 L_delay
        """)
    a.label("L_end")
    a("s_endpgm")
    for lab, sub, ret in tramps:
        a.label(lab)
        a(f"s_call_b64 s[{s_ret}:{s_ret+1}], {sub}")
        a(f"s_branch {ret}")
    emit_fallback(a, 0)
    emit_fallback(a, 1)
    emit_patch(a)


def emit_fused_combine(a, cfg, sstamp):
    st = s_t0
    ldf = cfg["cld_flags"]
    s_own, s_wlo, s_lo, s_hi = 44, 45, 46, 47
    s_nonce, s_to, s_mask, s_done, s_rdy, s_r0 = 54, 55, 56, 62, 64, 78
    s_cnt, s_ni, s_o, s_ml = 68, 69, 70, 72
    s_sel = (None, 66, 76)
    SJ = lambda k: (48, 49, 50, 51, 71, 73, 84, 85)[k]
    OB = lambda k: 12 * k
    MLB = lambda k: 96 + 4 * k
    ACC = 160
    MX, DEN, MN, SC, W = (192, 193), (194, 195), (196, 197), (198, 199), (204, 205)
    U0, U1, WT = 200, 201, 211
    VO, VML, VOUT, VF, VFO, VA = 206, 207, 208, 209, 210, 212
    WSR = f"s[{SRD_WS}:{SRD_WS+3}]"
    LA = cfg["clook"]
    def cst(n):
        if cfg.get("stamp"):
            a(f"""
            s_memtime s[90:91]
            s_waitcnt lgkmcnt(0)
            v_writelane_b32 v{VT+12}, s90, {53+n}
            """)
    a(f"""
    s_mov_b64 exec, -1
    v_lshlrev_b32 v{VO}, 4, v{VLANE}
    v_and_b32 v{VML}, 31, v{VLANE}
    v_lshlrev_b32 v{VOUT}, 8, v{VML}
    v_lshl_add_u32 v{VOUT}, v{VH4}, 2, v{VOUT}   ; q*256 + h2*16
    v_lshlrev_b32 v{VML}, 6, v{VML}
    v_lshlrev_b32 v{VFO}, 2, v{VLANE}
    v_cmp_gt_u32 vcc, s{s_nb}, v{VLANE}
    s_mov_b64 s[{s_mask}:{s_mask+1}], vcc
    v_mov_b32 v{U0}, 0x{LDS_NONCE:x}
    s_lshl_b32 s{s_mine+1}, s{s_b}, 2
    s_add_u32 s{s_mine+1}, s{s_mine+1}, s{s_h}
    s_lshl_b32 s{s_mine+1}, s{s_mine+1}, 8
    s_add_u32 s{s_mine+1}, s{s_mine+1}, 0x{WS_FLAG:x}
    s_mov_b32 s{s_to}, {cfg["poll_max"]}
    """)
    emit_srd(a, SRD_X, s_out, Q_BYTES)
    if cfg.get("pad_pub"):
        a("s_waitcnt vmcnt(0) lgkmcnt(0)")
        emit_pad(a, cfg["pad_pub"], "pub")
    a(f"""
    s_waitcnt vmcnt(0)
    s_cmp_lg_u32 s{s_w}, 0
    s_cbranch_scc1 L_fc_nz
    v_readfirstlane_b32 s{s_nonce}, v{VT+10}
    s_lshl_b32 s{st}, s{s_jj}, 2
    s_add_u32 s{st}, s{st}, s{s_mine+1}
    s_cmp_eq_u32 s{s_nonce}, 0
    s_cselect_b32 s{s_nonce}, s{s_mine}, s{s_nonce}
    v_mov_b32 v{VF}, s{s_nonce}
    ds_write_b32 v{U0}, v{VF}
    """)
    a.label("L_fc_nz")
    a(f"""
    s_waitcnt lgkmcnt(0)
    s_barrier
    s_cmp_lg_u32 s{s_w}, 0
    s_cbranch_scc1 L_fc_nz2
    s_mov_b64 exec, 1
    buffer_store_dword v{VF}, v{VT+11}, {WSR}, s{st} offen sc1
    s_mov_b64 exec, -1
    """)
    a.label("L_fc_nz2")
    sstamp(97)
    a(f"""
    ds_read_b32 v{VF}, v{U0}
    s_cmp_ge_u32 s{s_lo}, s{s_hi}
    s_cbranch_scc1 L_fc_end
    s_waitcnt lgkmcnt(0)
    v_readfirstlane_b32 s{s_nonce}, v{VF}
    """)
    a.label("L_fc_outer")
    a(f"""
    s_sub_u32 s{s_ni}, s{s_hi}, s{s_lo}
    s_min_u32 s{s_ni}, s{s_ni}, 3
    s_lshl_b32 s{s_o}, s{s_lo}, 10
    s_lshr_b32 s{st}, s{s_lo}, 3                 ; u0
    s_lshl_b32 s{s_ml}, s{st}, 3
    s_mov_b64 s[{s_done}:{s_done+1}], 0
    """)
    for t in (1, 2):
        a(f"""
        s_add_u32 s{st+1}, s{s_lo}, {t}
        s_lshr_b32 s{st+1}, s{st+1}, 3
        s_cmp_lg_u32 s{st+1}, s{st}
        s_cselect_b64 s[{s_sel[t]}:{s_sel[t]+1}], -1, 0
        """)
    a(f"""
    s_cmp_lt_u32 s{s_nb}, 3
    s_cbranch_scc1 L_fc_zero
    s_sub_u32 s{st}, s{s_lo}, s{s_wlo}
    s_lshl_b32 s{st}, s{st}, 10
    s_add_u32 s{st}, s{st}, 0x20000
    v_add_u32 v{VA}, s{st}, v{VO}
    s_add_u32 s{st}, s{s_ml}, 0x{LDS_ML:x}
    v_add_u32 v{VA+1}, s{st}, v{VML}
    ds_read_b128 v[0:3], v{VA}
    ds_read_b128 v[4:7], v{VA} offset:1024
    ds_read_b128 v[8:11], v{VA} offset:2048
    ds_read_b64 v[{MLB(0)}:{MLB(0)+1}], v{VA+1}
    ds_read_b64 v[{MLB(0)+2}:{MLB(0)+3}], v{VA+1} offset:8
    s_bitset1_b64 s[{s_done}:{s_done+1}], s{s_jj}
    s_waitcnt lgkmcnt(0)
    v_mov_b32 v{MX[0]}, v{MLB(0)}
    v_mov_b32 v{DEN[0]}, v{MLB(0)+1}
    v_mov_b32 v{MX[1]}, v{MLB(0)+2}
    v_mov_b32 v{DEN[1]}, v{MLB(0)+3}
    """)
    for r in range(12):
        a(f"""
        v_lshlrev_b32 v{ACC+2*r}, 16, v{r}
        v_and_b32 v{ACC+2*r+1}, 0xffff0000, v{r}
        """)
    a("s_branch L_fc_init")
    a.label("L_fc_zero")
    for X in range(2):
        a(f"v_mov_b32 v{MX[X]}, 0xff800000")
        a(f"v_mov_b32 v{DEN[X]}, 0")
    for r in range(24):
        a(f"v_mov_b32 v{ACC+r}, 0")
    a.label("L_fc_init")
    a(f"s_add_u32 s{s_ml}, s{s_ml}, 0x{WS_ML:x}")
    a.label("L_fc_poll")
    a(f"""
    buffer_load_dword v{VF}, v{VFO}, {WSR}, s{s_mine+1} offen sc1
    s_waitcnt vmcnt(0)
    v_cmp_eq_u32 vcc, s{s_nonce}, v{VF}
    s_and_b64 s[{s_rdy}:{s_rdy+1}], vcc, s[{s_mask}:{s_mask+1}]
    s_andn2_b64 s[{s_rdy}:{s_rdy+1}], s[{s_rdy}:{s_rdy+1}], s[{s_done}:{s_done+1}]
    s_cbranch_scc1 L_fc_go
    s_sleep {cfg["poll_sleep"]}
    s_sub_u32 s{s_to}, s{s_to}, 1
    s_cmp_lg_u32 s{s_to}, 0
    s_cbranch_scc1 L_fc_poll
    s_branch L_fc_store
    """)
    a.label("L_fc_go")
    sstamp(99)
    a(f"""
    s_mov_b64 s[{s_r0}:{s_r0+1}], s[{s_rdy}:{s_rdy+1}]
    v_mov_b32 v{MN[0]}, v{MX[0]}
    v_mov_b32 v{MN[1]}, v{MX[1]}
    """)
    for k in range(8):
        a(f"""
        s_ff1_i32_b64 s{st}, s[{s_rdy}:{s_rdy+1}]
        s_bitset0_b64 s[{s_rdy}:{s_rdy+1}], s{st}
        s_add_u32 s{st}, s{st}, s{s_E}
        s_lshl_b32 s{SJ(k)}, s{st}, 16
        s_lshl_b32 s{st}, s{st}, 11
        s_add_u32 s{st}, s{st}, s{s_ml}
        s_add_u32 s{SJ(k)}, s{SJ(k)}, s{s_o}
        s_mov_b32 s{s_cnt}, {k+1}
        buffer_load_dwordx4 v[{MLB(k)}:{MLB(k)+3}], v{VML}, {WSR}, s{st} offen{ldf}
        """)
        if k < 7:
            a(f"""
            s_cmp_eq_u64 s[{s_rdy}:{s_rdy+1}], 0
            s_cbranch_scc1 L_fc_taken
            """)
    a.label("L_fc_taken")
    a(f"""
    s_andn2_b64 s[{s_r0}:{s_r0+1}], s[{s_r0}:{s_r0+1}], s[{s_rdy}:{s_rdy+1}]
    s_or_b64 s[{s_done}:{s_done+1}], s[{s_done}:{s_done+1}], s[{s_r0}:{s_r0+1}]
    s_cmp_eq_u32 s{s_ni}, 2
    s_cbranch_scc1 L_fc_r2
    s_cmp_eq_u32 s{s_ni}, 3
    s_cbranch_scc1 L_fc_r3
    """)
    def sel(dst, pair, t):
        if t == 0:
            return None
        return f"v_cndmask_b32 v{dst}, v{pair[0]}, v{pair[1]}, s[{s_sel[t]}:{s_sel[t]+1}]"
    for NI in (1, 2, 3):
        tag = f"r{NI}"
        a.label(f"L_fc_{tag}")
        def oload(k):
            for c in range(NI):
                a(f"buffer_load_dwordx4 v[{OB(k)+4*c}:{OB(k)+4*c+3}], v{VO}, {WSR}, s{SJ(k)} offen offset:{1024*c}{ldf}")
        for k in range(7, -1, -1):
            a(f"""
            s_cmp_le_u32 s{s_cnt}, {k}
            s_cbranch_scc1 L_fc_{tag}_p{k}
            """)
            if k + LA < 8:
                a(f"""
                s_cmp_gt_u32 s{s_cnt}, {k + LA}
                s_cbranch_scc1 L_fc_{tag}_pd
                """)
            oload(k)
            a.label(f"L_fc_{tag}_p{k}")
        a.label(f"L_fc_{tag}_pd")
        cst(0)
        for c in range(1, LA):
            a(f"""
            s_cmp_eq_u32 s{s_cnt}, {c}
            s_cbranch_scc0 L_fc_{tag}_w{c}
            s_waitcnt vmcnt({NI*c})
            """)
            a.label(f"L_fc_{tag}_w{c}")
        a(f"s_waitcnt vmcnt({NI*LA})")
        cst(1)
        NSET = 1 if NI == 1 else 2
        for k in range(8):
            if k:
                a(f"""
                s_cmp_le_u32 s{s_cnt}, {k}
                s_cbranch_scc1 L_fc_{tag}_max
                """)
            for X in range(NSET):
                a(f"v_max_f32 v{MN[X]}, v{MN[X]}, v{MLB(k)+2*X}")
        a.label(f"L_fc_{tag}_max")
        for X in range(NSET):
            a(f"""
            v_sub_f32 v{SC[X]}, v{MX[X]}, v{MN[X]}
            v_exp_f32 v{SC[X]}, v{SC[X]}
            v_mov_b32 v{MX[X]}, v{MN[X]}
            """)
        for X in range(NSET):
            a(f"v_mul_f32 v{DEN[X]}, v{DEN[X]}, v{SC[X]}")
        for t in range(NI):
            if t:
                a(sel(WT, SC, t))
            for r in range(8):
                a(f"v_mul_f32 v{ACC+8*t+r}, v{ACC+8*t+r}, v{WT if t else SC[0]}")
        for k in range(7, -1, -1):
            if k:
                a(f"""
                s_cmp_le_u32 s{s_cnt}, {k}
                s_cbranch_scc1 L_fc_{tag}_u{k}
                """)
            if k - LA >= 0:
                oload(k - LA)
            for X in range(NSET):
                a(f"v_sub_f32 v{W[X]}, v{MLB(k)+2*X}, v{MN[X]}")
            for X in range(NSET):
                a(f"v_exp_f32 v{W[X]}, v{W[X]}")
            a("s_nop 0")
            for X in range(NSET):
                a(f"v_fmac_f32 v{DEN[X]}, v{W[X]}, v{MLB(k)+2*X+1}")
            for t in range(NI):
                if t:
                    a(sel(WT, W, t))
                a(f"s_waitcnt vmcnt({NI*min(k, LA) + NI - 1 - t})")
                for r in range(4):
                    u0, u1 = U0 + 2 * (r & 1), U1 + 2 * (r & 1)
                    a(f"""
                    v_lshlrev_b32 v{u0}, 16, v{OB(k)+4*t+r}
                    v_and_b32 v{u1}, 0xffff0000, v{OB(k)+4*t+r}
                    v_fmac_f32 v{ACC+8*t+2*r}, v{WT if t else W[0]}, v{u0}
                    v_fmac_f32 v{ACC+8*t+2*r+1}, v{WT if t else W[0]}, v{u1}
                    """)
            a.label(f"L_fc_{tag}_u{k}")
        cst(2)
        a(f"""
        s_cmp_lg_u64 s[{s_done}:{s_done+1}], s[{s_mask}:{s_mask+1}]
        s_cbranch_scc1 L_fc_poll
        """)
        if NI < 3:
            a("s_branch L_fc_store")
    a.label("L_fc_store")
    cst(3)
    a(f"""
    v_rcp_f32 v{SC[0]}, v{DEN[0]}
    v_rcp_f32 v{SC[1]}, v{DEN[1]}
    s_lshl_b32 s{st}, s{s_b}, 2
    s_add_u32 s{st}, s{st}, s{s_h}
    s_lshl_b32 s{st}, s{st}, 16                  ; (b*32 + 8h)*8192
    """)
    for t in range(3):
        if t:
            a(f"""
            s_cmp_le_u32 s{s_ni}, {t}
            s_cbranch_scc1 L_fc_next
            {sel(WT, SC, t)}
            """)
        A0 = ACC + 8 * t
        a(f"""
        s_add_u32 s{st+1}, s{s_lo}, {t}
        s_lshr_b32 s{st+2}, s{st+1}, 3
        s_lshl_b32 s{st+2}, s{st+2}, 13
        s_and_b32 s{st+1}, s{st+1}, 7
        s_lshl_b32 s{st+1}, s{st+1}, 5
        s_add_u32 s{st+1}, s{st+1}, s{st+2}
        s_add_u32 s{st+1}, s{st+1}, s{st}
        """)
        for r in range(8):
            a(f"v_mul_f32 v{A0+r}, v{A0+r}, v{WT if t else SC[0]}")
        for r in range(4):
            a(f"v_cvt_pk_bf16_f32 v{A0+r}, v{A0+2*r}, v{A0+2*r+1}")
        a(f"""
        s_nop 1
        v_permlane32_swap_b32 v{A0}, v{A0+2}
        v_permlane32_swap_b32 v{A0+1}, v{A0+3}
        buffer_store_dwordx4 v[{A0}:{A0+3}], v{VOUT}, s[{SRD_X}:{SRD_X+3}], s{st+1} offen{cfg['out_flags']}
        """)
    a.label("L_fc_next")
    a(f"""
    s_add_u32 s{s_lo}, s{s_lo}, 3
    s_cmp_lt_u32 s{s_lo}, s{s_hi}
    s_nop 1
    s_cbranch_scc1 L_fc_outer
    """)
    a.label("L_fc_end")


def emit_combine(a, cfg):
    K = "pa_combine_kernel"
    NB = 12
    a.raw(f".globl {K}\n.p2align 8\n.type {K},@function")
    a.label(K)
    VL, VCL, VT_ = 200, 201, 202
    ACC = 160
    DEN, MX, MN, SC, W = 170, 171, 172, 173, 174
    U0, U1 = 176, 177
    OB = 0
    MLB = 64
    SRD_C, SRD_W, SRD_O = 20, 24, 28
    sw, sb, sh, swx, sn, sE, sbase, sj = 40, 41, 42, 43, 44, 45, 46, 47
    st = 60
    a(f"""
    s_cmp_ge_u32 s2, 256
    s_cbranch_scc1 L_cend
    s_load_dwordx16 s[4:19], s[0:1], 0
    {"s_memrealtime s[100:101]" if cfg.get("cpad_to_us") else ""}
    v_lshrrev_b32 v{VT_}, 6, v0
    v_and_b32 v{VL}, 63, v0
    s_lshr_b32 s{sb}, s2, 5
    v_readfirstlane_b32 s{sw}, v{VT_}
    s_lshr_b32 s{sh}, s2, 3
    s_and_b32 s{sh}, s{sh}, 3
    s_and_b32 s{swx}, s2, 7
    v_and_b32 v{VT_+1}, 7, v{VL}
    v_lshlrev_b32 v{VT_+1}, 2, v{VT_+1}
    s_waitcnt lgkmcnt(0)
    """)
    emit_srd(a, SRD_C, s_cl, 32)
    a(f"buffer_load_dword v{VCL}, v{VT_+1}, s[{SRD_C}:{SRD_C+3}], 0 offen")
    emit_srd(a, SRD_W, s_ws, WS_BYTES)
    emit_srd(a, SRD_O, s_out, Q_BYTES)
    VOFF, VML, VOUT = 180, 181, 182
    a(f"""
    s_lshl_b32 s{st}, s{swx}, 13
    s_lshl_b32 s{st+1}, s{sw}, 10
    s_add_u32 s{st}, s{st}, s{st+1}
    v_lshlrev_b32 v{VOFF}, 4, v{VL}
    v_add_u32 v{VOFF}, s{st}, v{VOFF}
    s_lshl_b32 s{st}, s{swx}, 8
    s_add_u32 s{st}, s{st}, 0x{WS_ML:x}
    v_and_b32 v{VML}, 31, v{VL}
    v_lshlrev_b32 v{VOUT}, 8, v{VML}             ; q*256
    v_lshlrev_b32 v{VML}, 3, v{VML}
    v_add_u32 v{VML}, s{st}, v{VML}
    v_lshrrev_b32 v{VT_+2}, 5, v{VL}
    v_lshl_add_u32 v{VOUT}, v{VT_+2}, 3, v{VOUT} ; + h2*8
    s_lshl_b32 s{st}, s2, 13
    s_lshl_b32 s{st+1}, s{sw}, 5
    s_add_u32 s{st}, s{st}, s{st+1}
    v_add_u32 v{VOUT}, s{st}, v{VOUT}
    v_mov_b32 v{DEN}, 0
    v_mov_b32 v{MX}, 0xff800000
    """)
    for r in range(8):
        a(f"v_mov_b32 v{ACC+r}, 0")
    a("s_waitcnt vmcnt(0)")
    R = emit_partition(a, VL, VCL, VT_, st)
    a(f"""
    s_add_u32 s{st}, s{st}, s{sb}
    v_readlane_b32 s{sn}, v{R['n']}, s{st}
    v_readlane_b32 s{sE}, v{R['incl']}, s{st}
    s_nop 3
    s_sub_u32 s{sE}, s{sE}, s{sn}
    s_min_u32 s{sn}, s{sn}, 64
    s_lshl_b32 s{st}, s{sh}, 6
    s_add_u32 s{sE}, s{sE}, s{st}
    s_mov_b32 s{sbase}, 0
    """)
    a.label("L_cloop")
    for j in range(NB):
        a(f"""
        s_add_u32 s{sj}, s{sbase}, {j}
        s_add_u32 s{st}, s{sE}, s{sj}
        s_lshl_b32 s{st+1}, s{st}, 16
        s_lshl_b32 s{st}, s{st}, 11
        s_cmp_lt_u32 s{sj}, s{sn}
        s_cselect_b32 s{st+1}, s{st+1}, 0x80000000
        s_cselect_b32 s{st}, s{st}, 0x80000000
        buffer_load_dwordx2 v[{MLB+2*j}:{MLB+2*j+1}], v{VML}, s[{SRD_W}:{SRD_W+3}], s{st} offen
        buffer_load_dwordx4 v[{OB+4*j}:{OB+4*j+3}], v{VOFF}, s[{SRD_W}:{SRD_W+3}], s{st+1} offen
        """)
    a(f"v_mov_b32 v{MN}, v{MX}")
    for j in range(NB):
        a(f"""
        s_add_u32 s{sj}, s{sbase}, {j}
        s_cmp_ge_u32 s{sj}, s{sn}
        s_cbranch_scc1 L_cmaxdone
        s_waitcnt vmcnt({2*(NB-1-j)+1})
        v_max_f32 v{MN}, v{MN}, v{MLB+2*j}
        """)
    a.label("L_cmaxdone")
    a(f"""
    v_sub_f32 v{SC}, v{MX}, v{MN}
    v_exp_f32 v{SC}, v{SC}
    v_mov_b32 v{MX}, v{MN}
    v_mul_f32 v{DEN}, v{DEN}, v{SC}
    """)
    for r in range(8):
        a(f"v_mul_f32 v{ACC+r}, v{ACC+r}, v{SC}")
    for j in range(NB):
        a(f"""
        s_add_u32 s{sj}, s{sbase}, {j}
        s_cmp_ge_u32 s{sj}, s{sn}
        s_cbranch_scc1 L_cfin
        v_sub_f32 v{W}, v{MLB+2*j}, v{MX}
        v_exp_f32 v{W}, v{W}
        s_waitcnt vmcnt({2*(NB-1-j)})
        v_fmac_f32 v{DEN}, v{W}, v{MLB+2*j+1}
        """)
        for r in range(4):
            a(f"""
            v_lshlrev_b32 v{U0}, 16, v{OB+4*j+r}
            v_and_b32 v{U1}, 0xffff0000, v{OB+4*j+r}
            v_fmac_f32 v{ACC+2*r}, v{W}, v{U0}
            v_fmac_f32 v{ACC+2*r+1}, v{W}, v{U1}
            """)
    a(f"""
    s_add_u32 s{sbase}, s{sbase}, {NB}
    s_branch L_cloop
    """)
    a.label("L_cfin")
    a(f"""
    v_rcp_f32 v{SC}, v{DEN}
    s_nop 0
    """)
    for r in range(8):
        a(f"v_mul_f32 v{ACC+r}, v{ACC+r}, v{SC}")
    for r in range(4):
        a(f"v_cvt_pk_bf16_f32 v{ACC+r}, v{ACC+2*r}, v{ACC+2*r+1}")
    a(f"""
    buffer_store_dwordx2 v[{ACC}:{ACC+1}], v{VOUT}, s[{SRD_O}:{SRD_O+3}], 0 offen
    buffer_store_dwordx2 v[{ACC+2}:{ACC+3}], v{VOUT}, s[{SRD_O}:{SRD_O+3}], 0 offen offset:16
    """)
    if cfg.get("cpad_to_us"):
        a(f"""
        s_waitcnt vmcnt(0)
        s_add_u32 s92, s100, {int(cfg["cpad_to_us"]*100)}
        """)
        a.label("L_cdelay")
        a(f"""
        s_sleep 4
        s_memrealtime s[90:91]
        s_waitcnt lgkmcnt(0)
        s_sub_u32 s93, s92, s90
        s_cmp_gt_i32 s93, 0
        s_cbranch_scc1 L_cdelay
        """)
    a.label("L_cend")
    a("s_endpgm")


def descriptor(name, vgpr, accum, sgpr=102):
    return f"""
.p2align 6
.amdhsa_kernel {name}
  .amdhsa_next_free_vgpr {vgpr}
  .amdhsa_next_free_sgpr {sgpr}
  .amdhsa_accum_offset {accum}
  .amdhsa_group_segment_fixed_size 0
  .amdhsa_kernarg_size 64
  .amdhsa_user_sgpr_count 2
  .amdhsa_user_sgpr_kernarg_segment_ptr 1
  .amdhsa_system_sgpr_workgroup_id_x 1
.end_amdhsa_kernel
"""


DEFAULT_CFG = dict(
    vslots=[9, 10, 11, 12, 13, 14, 15, 16, 17, 18, 19, 20, 21, 22, 23, 24],
    rl_slot=22,
    dma_slots=[25, 26, 27, 29],
    dma_cost=12,
    patch_slot=9,
    delta=3,
    br_dist=2,
    empty_gaps=[31],
    bar_period=2,
    pp0=1, pp1=0, ppA=[7, 15], ppB=[15, 31], ppQ=[1, 3, 5, 7],
    pk=1,
    warm=1,
    zero_early=64,
    thr_log2=12,
    st_flags=" sc1",
    fused=1, cld_flags=" sc1", poll_sleep=2, poll_max=200000, cpk=0, clook=3, out_flags="",
    depth=6, map=0, peel=0, peel_slots=[19, 22, 25, 27],
    ld_flags=" nt",
)


def generate(cfg=None, out=OUT):
    c = dict(DEFAULT_CFG)
    if cfg:
        c.update(cfg)
    global LDFLAGS
    LDFLAGS = c["ld_flags"]
    a = Asm()
    a.raw(f"""; Paged attention (GQA, split-KV) for gfx950 -- generated by gen.py (hand-scheduled)
{("; @launch grid=(256,1,1) block=(256,1,1) lds=163840" if c["fused"] else "; @launch kernel=" + NAME + "_kernel grid=(256,1,1) block=(256,1,1) lds=163840" + chr(10) + "; @launch kernel=pa_combine_kernel grid=(256,1,1) block=(512,1,1) lds=0")}
{"; @launch kernel=pa_nop_kernel grid=(1,1,1) block=(64,1,1) lds=0" + chr(10) if c.get("nop3") else ""}.amdgcn_target "amdgcn-amd-amdhsa--gfx950"
.text""")
    emit_main(a, c)
    if not c["fused"]:
        emit_combine(a, c)
    if c.get("nop3"):
        a.raw(".globl pa_nop_kernel\n.p2align 8\n.type pa_nop_kernel,@function\npa_nop_kernel:\n    s_endpgm")
    a.raw('.section .rodata,"a"')
    if c.get("nop3"):
        a.raw(descriptor("pa_nop_kernel", 8, 8))
    a.raw(descriptor(NAME + "_kernel", 384, 256))
    if not c["fused"]:
        a.raw(descriptor("pa_combine_kernel", 216, 216))
    open(out, "w").write(a.text())


if __name__ == "__main__":
    import json
    cfg = json.loads(sys.argv[1]) if len(sys.argv) > 1 else None
    generate(cfg, sys.argv[2] if len(sys.argv) > 2 else OUT)
```

```python
import sys, math

NAME = "standalone__paged_block_table_kv_pagedattention__sampling"
OUT = "cdna_kernels/%s.s" % NAME

KV_BYTES = 4100 * 16384
Q_BYTES = 8 * 32 * 32 * 128 * 2
BT_BYTES = 8 * 512 * 4
WS_ML = 0x1000000
LDS_ML = 0x27000
LDS_NONCE = 0x27ff0
WS_DBG = WS_ML + 256 * 2048
WS_FLAG = WS_DBG + 0x100000
WS_BYTES = WS_FLAG + 32 * 256
SCALE = math.log2(math.e) / math.sqrt(128.0)
THR_LOG2 = 12

import struct
def f32bits(x):
    return struct.unpack("<I", struct.pack("<f", x))[0]

class Asm:
    def __init__(self):
        self.lines = []
    def __call__(self, s):
        for l in s.strip("\n").split("\n"):
            self.lines.append("    " + l.strip())
    def label(self, l):
        self.lines.append(l + ":")
    def raw(self, s):
        self.lines.append(s)
    def text(self):
        return "\n".join(self.lines) + "\n"

S_ = {0: 0, 1: 16}
C_ = {0: 32, 1: 48}
O_ = {0: 64, 1: 128}
P_ = {0: 192, 1: 200}
KADDR = 208
VADDR = 216
VOFFK = 220
VOFFV = 222
PAGES = 224
L_ = {0: 225, 1: 226}
M_ = {0: 227, 1: 228}
TS_ = {0: (229, 230), 1: (231, 232)}
ET = 233
VLANE = 239
VT = 240
VH4 = 255
AQ = {0: 0, 1: 32}
AK = 64
AV = 96

s_wg = 2
s_q, s_k, s_v, s_bt, s_cl, s_out, s_dbg, s_ws = 4, 6, 8, 10, 12, 14, 16, 18
SRD_K, SRD_V, SRD_Q, SRD_X, SRD_WS, SRD_BT = 20, 24, 28, 32, 36, 76
s_w = 40
s_h = 41
s_slot = 42
s_n = 43
s_i = 44
s_patch = 45
s_rem = 46
s_idx = 47
s_pg = {0: 48, 1: 49}
s_m0k = 50
s_m0v = 51
s_thr = {0: 52, 1: 52}
s_E = 53
s_nb = 82
s_jj = 3
s_mine = 74
s_floor = {0: 54, 1: 55}
s_first = {0: 56, 1: 57}
s_ret = 58
s_t0 = 60
s_qb = 84
s_qlds = 54
s_b = 80
s_start = 81
s_scale = 56
s_wgslot = 83


def emit_srd(a, d, ptr, nbytes):
    a(f"""
    s_mov_b32 s{d}, s{ptr}
    s_and_b32 s{d+1}, s{ptr+1}, 0xffff
    s_mov_b32 s{d+2}, 0x{nbytes:x}
    s_mov_b32 s{d+3}, 0x20000
    """)


def sum8(a, dst, src, tmp):
    a(f"""
    s_nop 1
    v_add_u32_dpp v{tmp}, v{src}, v{src} quad_perm:[1,0,3,2] row_mask:0xf bank_mask:0xf
    s_nop 1
    v_add_u32_dpp v{dst}, v{tmp}, v{tmp} quad_perm:[2,3,0,1] row_mask:0xf bank_mask:0xf
    s_nop 1
    v_add_u32_dpp v{dst}, v{dst}, v{dst} row_half_mirror row_mask:0xf bank_mask:0xf
    """)


def emit_partition(a, vlane, vcl, vt, st):
    Lm1, T_, Cc, Nn, NS, INC, Qq, Rr, X0, X1 = range(vt, vt + 10)
    a(f"""
    v_add_u32 v{Lm1}, -1, v{vcl}
    v_min_u32 v{Lm1}, 0x1fff, v{Lm1}
    v_lshrrev_b32 v{T_}, 5, v{Lm1}
    v_add_u32 v{T_}, 1, v{T_}
    """)
    sum8(a, Cc, T_, X0)
    a(f"""
    v_add_u32 v{Cc}, 63, v{Cc}
    v_lshrrev_b32 v{Cc}, 6, v{Cc}
    v_lshrrev_b32 v{X0}, 3, v{vlane}
    v_add_u32 v{Cc}, v{Cc}, v{X0}
    v_cvt_f32_u32 v{X0}, v{Cc}
    v_rcp_f32 v{X0}, v{X0}
    v_add3_u32 v{X1}, v{T_}, v{Cc}, -1
    v_cvt_f32_u32 v{X1}, v{X1}
    v_add_f32 v{X1}, 0.5, v{X1}
    v_mul_f32 v{X1}, v{X1}, v{X0}
    v_cvt_u32_f32 v{Nn}, v{X1}
    """)
    sum8(a, NS, Nn, X0)
    a(f"""
    s_nop 1
    v_add_u32_dpp v{INC}, v{Nn}, v{Nn} row_shr:1 row_mask:0xf bank_mask:0xf bound_ctrl:0
    v_cvt_f32_u32 v{X0}, v{Nn}
    v_rcp_f32 v{X0}, v{X0}
    v_add_u32_dpp v{INC}, v{INC}, v{INC} row_shr:2 row_mask:0xf bank_mask:0xf bound_ctrl:0
    v_cvt_f32_u32 v{X1}, v{T_}
    v_add_f32 v{X1}, 0.5, v{X1}
    v_add_u32_dpp v{INC}, v{INC}, v{INC} row_shr:4 row_mask:0xf bank_mask:0xf bound_ctrl:0
    v_mul_f32 v{X1}, v{X1}, v{X0}
    v_cvt_u32_f32 v{Qq}, v{X1}
    v_add_u32_dpp v{INC}, v{INC}, v{INC} row_shr:8 row_mask:0xf bank_mask:0xf bound_ctrl:0
    v_mul_u32_u24 v{X0}, v{Qq}, v{Nn}
    v_sub_u32 v{Rr}, v{T_}, v{X0}
    v_mov_b32_dpp v{X1}, v{NS} row_shr:8 row_mask:0xf bank_mask:0xf bound_ctrl:0
    v_sub_u32 v{INC}, v{INC}, v{X1}
    v_cmp_ge_u32 vcc, 64, v{NS}
    s_ff1_i32_b64 s{st}, vcc
    s_mov_b64 s[{st+2}:{st+3}], 0xff
    s_lshl_b64 s[{st+2}:{st+3}], s[{st+2}:{st+3}], s{st}
    """)
    return dict(Lm1=Lm1, t=T_, n=Nn, incl=INC, q=Qq, r=Rr)


def sm_stream(X, et=None):
    S = S_[X]; P = P_[X]
    TS0, TS1 = TS_[X]
    et = ET if et is None else et
    def tmp(j):
        if j == 0:
            return TS0, TS1
        k = (j - 1) % 3
        return et + 2 * k, et + 2 * k + 1
    E = lambda j, h: (8, f"v_exp_f32 v{tmp(j)[h]}, v{S + 2 * j + h}")
    A = lambda j, h: (4, f"v_add_f32 v{(TS0, TS1)[h]}, v{(TS0, TS1)[h]}, v{tmp(j)[h]}")
    C = lambda j: (4, f"v_cvt_pk_bf16_f32 v{P + j}, v{tmp(j)[0]}, v{tmp(j)[1]}")
    st = [E(0, 0), E(0, 1), E(1, 0), C(0), E(1, 1)]
    for j in range(1, 7):
        st += [A(j, 0), E(j + 1, 0), A(j, 1), C(j), E(j + 1, 1)]
    st += [A(7, 0), A(7, 1), C(7), (4, f"v_add_f32 v{TS0}, v{TS0}, v{TS1}")]
    return st


def mfma_qk(X, s):
    c = C_[X] if s == 0 else S_[X]
    return (f"v_mfma_f32_32x32x16_bf16 v[{S_[X]}:{S_[X]+15}], a[{AK+4*s}:{AK+4*s+3}], "
            f"a[{AQ[X]+4*s}:{AQ[X]+4*s+3}], v[{c}:{c+15}]")


def mfma_pv(X, f):
    t, dt = f >> 2, f & 3
    o = O_[X] + 16 * dt
    return (f"v_mfma_f32_32x32x16_bf16 v[{o}:{o+15}], a[{AV+4*f}:{AV+4*f+3}], "
            f"v[{P_[X]+4*t}:{P_[X]+4*t+3}], v[{o}:{o+15}]")


def k_read(s, slot):
    return f"ds_read_b128 a[{AK+4*s}:{AK+4*s+3}], v{KADDR+s} offset:{slot*8192}"


def v_read(f, y, slot):
    t, dt = f >> 2, f & 3
    return (f"ds_read_b64_tr_b16 a[{AV+4*f+2*y}:{AV+4*f+2*y+1}], v{VADDR+dt} "
            f"offset:{slot*8192 + (16*t+8*y)*256}")


LDFLAGS = ""
def dma_k(a_list, slot, spg):
    return [f"s_add_u32 m0, s{s_m0k}, {slot*8192}",
            None,
            f"buffer_load_dwordx4 v{VOFFK}, s[{SRD_K}:{SRD_K+3}], s{spg} offen{LDFLAGS} lds",
            f"buffer_load_dwordx4 v{VOFFK+1}, s[{SRD_K}:{SRD_K+3}], s{spg} offen offset:1024{LDFLAGS} lds"]


def dma_v(a_list, slot, spg):
    return [f"s_add_u32 m0, s{s_m0v}, {slot*8192}",
            None,
            f"buffer_load_dwordx4 v{VOFFV}, s[{SRD_V}:{SRD_V+3}], s{spg} offen{LDFLAGS} lds",
            f"buffer_load_dwordx4 v{VOFFV+1}, s[{SRD_V}:{SRD_V+3}], s{spg} offen offset:1024{LDFLAGS} lds"]


def plan_body(k, cfg, tramps=None, peel=None):
    kn = (k + 1) % 8
    kl = k if peel is None else f"p{k}"
    D = cfg["depth"]
    pgn = s_pg[k & 1]
    pgo = s_pg[(k & 1) ^ 1]
    tramps = [] if tramps is None else tramps
    pre = {i: [] for i in range(32)}
    front = {i: [] for i in range(32)}
    valu = {i: [] for i in range(32)}
    tail = {i: [] for i in range(32)}
    for s in range(8):
        front[s + 1].append((4, k_read(s, kn)))
    vslots = cfg["vslots"]
    vr = [(f, y) for f in range(8) for y in range(2)]
    for (f, y), sl in zip(vr, vslots):
        assert sl >= 9 + f, (f, sl)
        front[sl].append((4, v_read(f, y, k)))
    def vr_before(m):
        return sum(1 for sl in vslots if sl < m)
    pre[16].append(f"s_waitcnt lgkmcnt({vr_before(16)})")
    assert vr_before(24) >= 8
    pre[24].append(f"s_waitcnt lgkmcnt({vr_before(24) - 8})")
    assert vr_before(28) == 16
    pre[28].append("s_waitcnt lgkmcnt(0)")
    ds = cfg["dma_slots"]
    dcost = cfg["dma_cost"]
    if peel is None:
        valu[cfg["rl_slot"]].append((4, f"v_readlane_b32 s{pgn}, v{PAGES}, s{s_idx}"))
        tail[cfg["rl_slot"]].append(f"s_add_u32 s{s_idx}, s{s_idx}, 1")
        dk = dma_k(None, (k + D + 1) % 8, pgn)
        dv = dma_v(None, (k + D) % 8, pgo)
        tail[ds[0] - 1].append(dv[0])
        front[ds[0]].append((dcost, dv[2]))
        front[ds[1]].append((dcost, dv[3]))
        assert ds[2] - 1 >= ds[1]
        tail[ds[2] - 1].append(dk[0])
        front[ds[2]].append((dcost, dk[2]))
        front[ds[3]].append((dcost, dk[3]))
        assert ds[2] > cfg["rl_slot"] + 1
    else:
        g, pb = peel
        seq = [dma_k(None, (g + 1) % 8, pb + g + 1), dma_v(None, g % 8, pb + g),
               dma_k(None, (g + 2) % 8, pb + g + 2), dma_v(None, (g + 1) % 8, pb + g + 1)]
        for d_, sl in zip(seq, cfg["peel_slots"]):
            tail[sl - 1].append(d_[0])
            front[sl].append((dcost, d_[2]))
            front[sl + 1].append((dcost, d_[3]))
    ps = cfg["patch_slot"]
    tail[ps - 1].append(f"s_cmp_eq_u32 s{s_i}, s{s_patch}")
    front[ps].insert(0, (8, f"s_cbranch_scc1 L_patch_{kl}"))
    front[ps].insert(1, (0, f"L_patch_ret_{kl}:"))
    tramps.append((f"L_patch_{kl}", "L_sub_patch", f"L_patch_ret_{kl}"))
    assert max(ds) < 30
    tail[30].append(f"s_add_u32 s{s_i}, s{s_i}, 1")
    tail[30].append(f"s_cmp_ge_u32 s{s_i}, s{s_n}")
    front[31].append((8, "s_cbranch_scc1 L_drain"))
    dl = cfg["delta"]
    for X, lo in ((0, 32 - dl), (1, 16 - dl)):
        hi = lo + 15
        bs = (hi + cfg["br_dist"]) % 32
        front[bs].insert(0, (8, f"s_cbranch_vccnz L_fb{X}_{kl}"))
        front[bs].insert(1, (0, f"L_fb{X}_ret_{kl}:"))
        valu[bs].insert(0, (4, f"v_add_f32 v{L_[X]}, v{L_[X]}, v{TS_[X][0]}"))
        tramps.append((f"L_fb{X}_{kl}", f"L_sub_fb{X}", f"L_fb{X}_ret_{kl}"))
    if peel is not None:
        _, _, valu_r, _ = plan_body(k, cfg)
        for g_ in range(32):
            valu[g_] = [x for x in valu_r[g_] if not x[1].startswith("v_readlane")]
        return pre, front, valu, tail
    for X, lo in ((0, 32 - dl), (1, 16 - dl)):
        gaps = [(lo + j) % 32 for j in range(16)]
        st = sm_stream(X) + [(4, f"v_cmp_lt_f32 vcc, s{s_thr[X]}, v{TS_[X][0]}")]
        tot = sum(c for c, _ in st)
        free = [max(0, 24 - sum(c for c, _ in front[g]) - sum(c for c, _ in valu[g])) for g in gaps]
        for n_, g in enumerate(gaps):
            if g in cfg["empty_gaps"]:
                free[n_] = 0
        ftot = sum(free)
        assert ftot >= tot, (ftot, tot)
        acc = 0.0; done = 0; idx = 0
        for n_, g in enumerate(gaps):
            acc += free[n_] * tot / ftot
            used = 0
            while idx < len(st) and used + st[idx][0] <= free[n_] and len(valu[g]) < 5 and \
                    (done + st[idx][0] / 2.0 <= acc or n_ == 15):
                valu[g].append(st[idx]); done += st[idx][0]; used += st[idx][0]; idx += 1
        assert idx == len(st), (X, idx, len(st))
    return pre, front, valu, tail


def skip(t, cfg):
    if cfg.get("no_dma") and t.startswith("buffer_load"): return True
    if cfg.get("no_lds") and t.startswith("ds_read"): return True
    if cfg.get("no_sm") and (t.startswith("v_exp") or t.startswith("v_add_f32") or t.startswith("v_cvt")): return True
    if cfg.get("no_mfma") and t.startswith("v_mfma"): return True
    return False


def emit_body(a, k, tramps, cfg, peel=None, vm=None):
    D = cfg["depth"]
    mf = [mfma_qk(1, s) for s in range(8)] + [mfma_pv(1, f) for f in range(8)] + \
         [mfma_qk(0, s) for s in range(8)] + [mfma_pv(0, f) for f in range(8)]
    pre, front, valu, tail = plan_body(k, cfg, tramps, peel)
    a.label(f"L_body_{k}" if peel is None else f"L_body_p{k}")
    if cfg.get("stamp"):
        a(f"""
        s_memtime s[90:91]
        s_mov_b32 m0, s{s_i}
        s_waitcnt lgkmcnt(0)
        v_writelane_b32 v{VT+12}, s90, m0
        """)
    bp = cfg["bar_period"]
    if k % bp == 0:
        a(f"s_waitcnt vmcnt({4*(D-bp) if vm is None else vm})")
        if not cfg.get("no_bar"):
            a("s_barrier")
    if cfg.get("stamp"):
        a(f"""
        s_memtime s[90:91]
        s_waitcnt lgkmcnt(0)
        v_writelane_b32 v{VT+13}, s90, m0
        """)
    for i in range(32):
        seq = pre[i] + [mf[i]] + [t for _, t in front[i]] + [t for _, t in valu[i]] + tail[i]
        for t in seq:
            if t.endswith(":"):
                a.label(t[:-1])
            elif not skip(t, cfg):
                a(t)
    if k == 7 and peel is None:
        a("s_branch L_body_0")


def emit_rowmax(a, X, mx, t1):
    S = S_[X]
    out = [f"v_max3_f32 v{mx}, v{S}, v{S+1}, v{S+2}"]
    for r in range(3, 15, 2):
        out.append(f"v_max3_f32 v{mx}, v{mx}, v{S+r}, v{S+r+1}")
    out += [f"v_max_f32 v{mx}, v{mx}, v{S+15}", f"v_mov_b32 v{t1}, v{mx}", "s_nop 1",
            f"v_permlane32_swap_b32 v{mx}, v{t1}", "s_nop 1", f"v_max_f32 v{mx}, v{mx}, v{t1}"]
    return out


def emit_fallback(a, X):
    S = S_[X]; C = C_[X]; O = O_[X]; P = P_[X]
    mx, t1, f = VT, VT + 1, VT + 3
    a.label(f"L_sub_fb{X}")
    a("s_nop 7")
    for t in emit_rowmax(a, X, mx, t1):
        a(t)
    a(f"""
    v_max_f32 v{mx}, 0, v{mx}
    v_exp_f32 v{f}, -v{mx}
    v_add_f32 v{M_[X]}, v{M_[X]}, v{mx}
    """)
    for r in range(16):
        a(f"v_sub_f32 v{C+r}, v{C+r}, v{mx}")
        a(f"v_sub_f32 v{S+r}, v{S+r}, v{mx}")
    a(f"v_mul_f32 v{L_[X]}, v{L_[X]}, v{f}")
    for r in range(64):
        a(f"v_mul_f32 v{O+r}, v{O+r}, v{f}")
    for c, t in sm_stream(X, VT + 4):
        a(t)
    a(f"""
    s_nop 3
    s_setpc_b64 s[{s_ret}:{s_ret+1}]
    """)


def emit_patch(a):
    ninf = VT
    a.label("L_sub_patch")
    a(f"""
    s_nop 7
    v_mov_b32 v{ninf}, 0xff800000
    """)
    for r in range(16):
        cst = 8 * (r >> 2) + (r & 3)
        a(f"""
        s_sub_i32 s{s_mine+1}, s{s_rem}, {cst}
        v_cmp_gt_i32 vcc, s{s_mine+1}, v{VH4}
        s_nop 1
        v_cndmask_b32 v{C_[0]+r}, v{ninf}, v{C_[0]+r}, vcc
        v_cndmask_b32 v{C_[1]+r}, v{ninf}, v{C_[1]+r}, vcc
        """)
    a(f"""
    s_nop 3
    s_setpc_b64 s[{s_ret}:{s_ret+1}]
    """)


MAPS = {
    0: f"""s_lshr_b32 s{s_h}, s{s_wg}, 1
    s_and_b32 s{s_h}, s{s_h}, 3
    s_and_b32 s{s_t0}, s{s_wg}, 1
    s_lshl_b32 s{s_t0}, s{s_t0}, 5
    s_lshr_b32 s{s_slot}, s{s_wg}, 3
    s_or_b32 s{s_slot}, s{s_slot}, s{s_t0}""",
    2: f"""s_lshr_b32 s{s_h}, s{s_wg}, 1
    s_and_b32 s{s_h}, s{s_h}, 3
    s_lshr_b32 s{s_slot}, s{s_wg}, 3
    s_cmp_lt_u32 s{s_slot}, 30
    s_cselect_b32 s{s_t0}, s{s_slot}, 63
    s_add_u32 s{s_slot}, s{s_slot}, 30
    s_and_b32 s{s_t0+1}, s{s_wg}, 1
    s_cmp_eq_u32 s{s_t0+1}, 0
    s_cselect_b32 s{s_slot}, s{s_t0}, s{s_slot}""",
    1: f"""s_lshr_b32 s{s_h}, s{s_wg}, 3
    s_and_b32 s{s_h}, s{s_h}, 3
    s_and_b32 s{s_t0}, s{s_wg}, 7
    s_lshl_b32 s{s_t0}, s{s_t0}, 3
    s_lshr_b32 s{s_slot}, s{s_wg}, 5
    s_or_b32 s{s_slot}, s{s_slot}, s{s_t0}""",
}


def emit_pad(a, us, tag):
    a(f"s_add_u32 s92, s100, {int(us*100)}")
    a.label(f"L_pad_{tag}")
    a(f"""
    s_sleep 2
    s_memrealtime s[90:91]
    s_waitcnt lgkmcnt(0)
    s_sub_u32 s93, s92, s90
    s_cmp_gt_i32 s93, 0
    s_cbranch_scc1 L_pad_{tag}
    """)


def emit_main(a, cfg):
    K = NAME + "_kernel"
    D = cfg["depth"]
    assert D <= 7
    a.raw(f".globl {K}\n.p2align 8\n.type {K},@function")
    a.label(K)
    t0, t1, t2, t3 = VT + 11, VT + 12, VT + 13, VT + 14
    VCL = VT + 10
    def sstamp(n):
        if cfg.get("stamp"):
            a(f"""
            s_memtime s[90:91]
            s_waitcnt lgkmcnt(0)
            s_mov_b32 s{n}, s90
            """)
    def pstamp(n):
        if cfg.get("stamp"):
            a(f"""
            s_memtime s[90:91]
            s_waitcnt lgkmcnt(0)
            v_writelane_b32 v{VT+12}, s90, {40+n}
            """)
    a(f"""
    s_cmp_ge_u32 s{s_wg}, 256
    s_cbranch_scc1 L_end
    s_load_dwordx16 s[4:19], s[0:1], 0
    v_lshrrev_b32 v{VT}, 6, v0
    v_and_b32 v{VLANE}, 63, v0
    v_readfirstlane_b32 s{s_w}, v{VT}
    {MAPS[cfg["map"]]}
    v_and_b32 v{VT+1}, 7, v{VLANE}
    v_lshlrev_b32 v{VT+1}, 2, v{VT+1}
    v_lshlrev_b32 v{VT+2}, 7, v{VLANE}
    """)
    if cfg["fused"]:
        a(f"s_memrealtime s[{s_mine}:{s_mine+1}]")
    if cfg.get("stamp"):
        a("s_memtime s[92:93]")
    if cfg.get("stamp") or cfg.get("pad_to_us") or cfg.get("pad_le") or cfg.get("pad_ls") or cfg.get("pad_pub"):
        a("s_memrealtime s[100:101]")
    a(f"""
    s_and_b32 s{s_t0}, s{s_w}, 1
    s_lshl_b32 s{s_t0}, s{s_t0}, 3               ; 8*(w&1)
    s_lshl_b32 s{s_t0+1}, s{s_h}, 8              ; h*256
    v_lshrrev_b32 v{t0}, 4, v{VLANE}             ; l>>4
    v_and_b32 v{t1}, 15, v{VLANE}                ; pc
    v_add_u32 v{t2}, s{s_t0}, v{t0}              ; R&15 for x=0
    v_xor_b32 v{t3}, v{t1}, v{t2}
    v_lshlrev_b32 v{t3}, 4, v{t3}
    v_lshl_add_u32 v{t3}, v{t2}, 10, v{t3}
    v_add_u32 v{VOFFK}, s{s_t0+1}, v{t3}
    v_add_u32 v{t2}, 4, v{t2}                    ; R&15 for x=1
    v_xor_b32 v{t3}, v{t1}, v{t2}
    v_lshlrev_b32 v{t3}, 4, v{t3}
    v_lshl_add_u32 v{t3}, v{t2}, 10, v{t3}
    v_add_u32 v{t3}, s{s_t0+1}, v{t3}
    v_add_u32 v{VOFFK+1}, 0xfffffc00, v{t3}
    v_lshlrev_b32 v{t3}, 2, v{t0}
    v_xor_b32 v{t3}, v{t1}, v{t3}
    v_lshlrev_b32 v{t3}, 4, v{t3}
    v_add_u32 v{t2}, s{s_t0}, v{t0}
    v_lshl_add_u32 v{t3}, v{t2}, 10, v{t3}
    v_add_u32 v{VOFFV}, s{s_t0+1}, v{t3}
    v_add_u32 v{VOFFV+1}, 0xc00, v{VOFFV}        ; +4096 -1024
    s_lshl_b32 s{s_m0k}, s{s_w}, 11
    s_add_u32 s{s_m0v}, s{s_m0k}, 0x10000
    s_mov_b32 s{s_thr[0]}, 0x{f32bits(2.0**cfg["thr_log2"]):x}
    s_mov_b32 s{s_thr[1]}, 0x{f32bits(2.0**cfg["thr_log2"]):x}
    s_mov_b32 s{s_i}, 0
    s_mov_b32 s{s_idx}, {D+1+cfg["peel"]}
    v_lshrrev_b32 v{t0}, 5, v{VLANE}            ; h2
    v_lshlrev_b32 v{VH4}, 2, v{t0}
    v_lshrrev_b32 v{t2}, 4, v{VLANE}
    v_xor_b32 v{t3}, v{t1}, v{t2}
    v_lshlrev_b32 v{t3}, 4, v{t3}
    v_lshl_add_u32 v{ET}, v{t2}, 8, v{t3}        ; Q voffset (j&3 == 0)
    v_xor_b32 v{ET+1}, 64, v{ET}
    v_xor_b32 v{ET+2}, 0x80, v{ET}
    v_xor_b32 v{ET+3}, 0xc0, v{ET}
    v_lshlrev_b32 v{ET+4}, 3, v{VLANE}
    s_lshl_b32 s{s_qlds}, s{s_w}, 13
    s_add_u32 s{s_qlds}, s{s_qlds}, 0x20000      ; Q_A staging : 128K + w*8K
    s_and_b32 s{s_t0}, s{s_w}, 1
    s_lshl_b32 s{s_t0}, s{s_t0}, 13
    s_lshr_b32 s{s_t0+1}, s{s_w}, 1
    s_lshl_b32 s{s_t0+1}, s{s_t0+1}, 16
    s_add_u32 s{s_t0}, s{s_t0}, s{s_t0+1}
    s_add_u32 s{s_qlds+1}, s{s_t0}, 0xc000
    s_waitcnt lgkmcnt(0)
    """)
    emit_srd(a, SRD_X, s_cl, 32)
    a(f"buffer_load_dword v{VCL}, v{VT+1}, s[{SRD_X}:{SRD_X+3}], 0 offen")
    emit_srd(a, SRD_BT, s_bt, BT_BYTES)
    emit_srd(a, SRD_Q, s_q, Q_BYTES)
    nwarm = 0
    if cfg["warm"]:
        a(f"""
        s_lshr_b32 s{s_t0}, s{s_wg}, 3
        s_lshr_b32 s{s_t0+1}, s{s_t0}, 2
        s_lshl_b32 s{s_t0+1}, s{s_t0+1}, 18          ; b*262144
        s_and_b32 s{s_t0+2}, s{s_t0}, 3
        s_lshl_b32 s{s_t0+2}, s{s_t0+2}, 14
        s_add_u32 s{s_t0+1}, s{s_t0+1}, s{s_t0+2}
        s_lshl_b32 s{s_t0+2}, s{s_h}, 16
        s_add_u32 s{s_t0+1}, s{s_t0+1}, s{s_t0+2}
        s_lshl_b32 s{s_t0+2}, s{s_w}, 13
        s_add_u32 s{s_t0+1}, s{s_t0+1}, s{s_t0+2}
        s_lshl_b32 s{s_t0}, s{s_t0}, 9
        s_cmp_lt_u32 s{s_w}, 2
        s_cselect_b32 s{s_t0+1}, s{s_t0+1}, 0x80000000
        s_cmp_eq_u32 s{s_w}, 2
        s_cselect_b32 s{s_t0}, s{s_t0}, 0x80000000
        v_min_u32 v{VT+3}, 0x180, v{VT+2}
        buffer_load_dword v{P_[0]}, v{VT+2}, s[{SRD_Q}:{SRD_Q+3}], s{s_t0+1} offen
        buffer_load_dword v{P_[0]+1}, v{VT+3}, s[{SRD_BT}:{SRD_BT+3}], s{s_t0} offen
        """)
        nwarm = 2
    if cfg["cwarm"]:
        a(f"""
        s_getpc_b64 s[{SRD_K}:{SRD_K+1}]
        """)
        a.label("L_pc0")
        a(f"""
        s_and_b32 s{SRD_K+1}, s{SRD_K+1}, 0xffff
        s_mov_b32 s{SRD_K+2}, L_code_end-L_pc0
        s_mov_b32 s{SRD_K+3}, 0x20000
        s_lshl_b32 s{s_t0}, s{s_w}, 13
        buffer_load_dword v{P_[0]+2}, v{VT+2}, s[{SRD_K}:{SRD_K+3}], s{s_t0} offen
        """)
        nwarm += 1
    emit_srd(a, SRD_K, s_k, KV_BYTES)
    emit_srd(a, SRD_V, s_v, KV_BYTES)
    emit_srd(a, SRD_WS, s_ws, WS_BYTES)
    sstamp(88)
    a(f"""
    v_and_b32 v{t1}, 31, v{VLANE}               ; key / q
    v_and_b32 v{t2}, 15, v{VLANE}
    v_xor_b32 v{t2}, v{t2}, v{t0}               ; (key&15)^h2
    v_lshlrev_b32 v{t2}, 4, v{t2}
    v_lshl_add_u32 v{KADDR}, v{t1}, 8, v{t2}
    """)
    for s in range(1, 8):
        a(f"v_xor_b32 v{KADDR+s}, {s << 5}, v{KADDR}")
    a(f"""
    v_bfe_u32 v{t1}, v{VLANE}, 2, 2              ; r
    v_add_u32 v{t2}, v{VH4}, v{t1}               ; 4h2 + r
    v_lshlrev_b32 v{t2}, 8, v{t2}
    v_bfe_u32 v{t3}, v{VLANE}, 4, 1              ; sub
    v_lshl_add_u32 v{t2}, v{t3}, 5, v{t2}
    v_and_b32 v{t3}, 3, v{VLANE}                 ; c
    v_lshl_add_u32 v{t2}, v{t3}, 3, v{t2}
    v_add_u32 v{t2}, 0x10000, v{t2}
    v_lshl_add_u32 v{VADDR}, v{t1}, 6, v{t2}     ; dt=0 : (0^r)<<6
    """)
    for dt in range(1, 4):
        a(f"v_xor_b32 v{VADDR+dt}, {dt << 6}, v{VADDR}")
    a(f"s_waitcnt vmcnt({nwarm})")
    sstamp(89)
    st = s_t0
    R = emit_partition(a, VLANE, VCL, VT, st)
    sn, sincl, sLm1, scl, sq, sr, sj = st + 4, st + 5, st + 6, st + 7, st + 8, st + 9, st + 10
    SKEW1 = SKEW2 = ""
    if cfg.get("skew"):
        sh = cfg["skew"]
        g0, g1 = st + 11, st + 12
        SKEW1 = f"""s_sub_u32 s{g0}, s{sn}, s{sj}
    s_mul_i32 s{g1}, s{g0}, s{sj}                ; j*(nb-j)
    s_add_u32 s{st}, s{g1}, s{g0}
    s_sub_u32 s{st}, s{st}, s{sj}
    s_sub_u32 s{st}, s{st}, 1                    ; (j+1)*(nb-j-1)
    s_lshr_b32 s{g0}, s{g1}, {sh}
    s_lshr_b32 s{g1}, s{st}, {sh}
    s_cmp_gt_u32 s{sq}, s{sn}
    s_cselect_b32 s{g0}, s{g0}, 0
    s_cselect_b32 s{g1}, s{g1}, 0
    s_sub_u32 s{s_start}, s{s_start}, s{g0}"""
        SKEW2 = f"""s_add_u32 s{s_n}, s{s_n}, s{g0}
    s_sub_u32 s{s_n}, s{s_n}, s{g1}"""
    a(f"""
    v_cmp_lt_u32 vcc, s{s_slot}, v{R['incl']}
    s_and_b64 vcc, vcc, s[{st+2}:{st+3}]
    s_cbranch_scc0 L_end
    s_ff1_i32_b64 s{st}, vcc
    s_and_b32 s{s_b}, s{st}, 7
    v_readlane_b32 s{sn}, v{R['n']}, s{st}
    v_readlane_b32 s{sincl}, v{R['incl']}, s{st}
    v_readlane_b32 s{sq}, v{R['q']}, s{st}
    v_readlane_b32 s{sr}, v{R['r']}, s{st}
    v_readlane_b32 s{sLm1}, v{R['Lm1']}, s{st}
    v_readlane_b32 s{scl}, v{VCL}, s{st}
    s_lshl_b32 s{st+2}, s{s_b}, 5
    s_lshl_b32 s{st+1}, s{s_h}, 3
    s_add_u32 s{st+2}, s{st+2}, s{st+1}
    s_lshl_b32 s{st+1}, s{s_w}, 1
    s_add_u32 s{st+2}, s{st+2}, s{st+1}
    s_lshl_b32 s{st+2}, s{st+2}, 13              ; Q base = ((b*32 + 8h + 2w)*32)*256
    s_add_u32 s{st+3}, s{st+2}, 0x2000
    s_sub_u32 s{sj}, s{sincl}, s{sn}
    s_sub_u32 s{sj}, s{s_slot}, s{sj}            ; j = slot - E_b
    s_mul_i32 s{s_start}, s{sj}, s{sq}
    s_min_u32 s{st}, s{sj}, s{sr}
    s_add_u32 s{s_start}, s{s_start}, s{st}
    {SKEW1}
    s_lshl_b32 s{st}, s{s_b}, 9
    s_lshl_b32 s{st+1}, s{s_start}, 1
    s_add_u32 s{st}, s{st}, s{st+1}
    s_lshr_b32 s{st+1}, s{s_w}, 1
    s_add_u32 s{st}, s{st}, s{st+1}
    s_lshl_b32 s{st}, s{st}, 2
    buffer_load_dword v{PAGES}, v{ET+4}, s[{SRD_BT}:{SRD_BT+3}], s{st} offen
    """)
    def qload(X):
        for hf in range(2):
            a(f"s_add_u32 m0, s{s_qlds+X}, {4096*hf}")
            a(f"s_add_u32 s{s_qb+2}, s{s_qb+X}, {4096*hf}")
            for j in range(4):
                a(f"buffer_load_dwordx4 v{ET+j}, s[{SRD_Q}:{SRD_Q+3}], s{s_qb+2} offen offset:{1024*j} lds")
    a(f"""
    s_mov_b32 s{s_qb}, s{st+2}
    s_mov_b32 s{s_qb+1}, s{st+3}
    """)
    qload(0)
    a(f"""
    s_cmp_lt_u32 s{sj}, s{sr}
    s_addc_u32 s{s_n}, s{sq}, 0                  ; n = q + (j<r)
    {SKEW2}
    s_min_u32 s{s_n}, s{s_n}, 54
    s_and_b32 s{s_rem}, s{sLm1}, 31
    s_add_u32 s{s_rem}, s{s_rem}, 1
    s_add_u32 s{st}, s{sj}, 1
    s_cmp_eq_u32 s{st}, s{sn}
    s_cselect_b32 s{s_rem}, s{s_rem}, 32
    s_sub_u32 s{s_patch}, s{s_n}, 2
    s_cmp_lt_u32 s{s_rem}, 32
    s_cselect_b32 s{s_patch}, s{s_patch}, 0x7fffffff
    s_mov_b32 s{s_scale}, 0x{f32bits(SCALE):x}
    s_cmp_lt_i32 s{scl}, 1
    s_cselect_b32 s{s_scale}, 0, s{s_scale}
    s_mov_b32 s{s_scale+1}, s{s_scale}
    s_lshl_b32 s{s_wgslot}, s{s_h}, 6
    s_add_u32 s{s_wgslot}, s{s_wgslot}, s{s_slot}
    s_min_u32 s{s_nb}, s{sn}, 64
    s_mov_b32 s{s_jj}, s{sj}
    s_sub_u32 s{s_E}, s{s_wgslot}, s{sj}
    """)
    sstamp(93)
    nz = cfg["zero_early"]
    for r in range(64, 64 + nz):
        a(f"v_mov_b32 v{r}, 0")
    a(f"""
    v_mov_b32 v{t2}, 0x80000000
    v_cmp_gt_u32 vcc, s{s_n}, v{VLANE}
    s_waitcnt vmcnt(8)
    v_lshlrev_b32 v{PAGES}, 14, v{PAGES}
    v_cndmask_b32 v{PAGES}, v{t2}, v{PAGES}, vcc
    s_nop 0
    """)
    PEEL = cfg["peel"]
    NPRE = D - PEEL
    for j in range(D + 1 + PEEL):
        a(f"v_readlane_b32 s{st+j}, v{PAGES}, {j}")
    a("s_nop 3")
    vm = ["QA"] * 8
    def vwait(tag):
        idx = max(i for i, t in enumerate(vm) if t == tag)
        a(f"s_waitcnt vmcnt({len(vm) - 1 - idx})")
    def issue(lst, tag):
        a(lst[0]); a("s_nop 0"); a(lst[2]); a(lst[3])
        vm.extend([tag, tag])
    pairs = [("K", 0)]
    for j in range(NPRE):
        pairs += [("K", j + 1), ("V", j)]
    def pair():
        if not pairs:
            return
        kind, j = pairs.pop(0)
        issue(dma_k(None, j, st + j) if kind == "K" else dma_v(None, j, st + j), f"{kind}{j}")
    QRAW = {0: 0, 1: 128}
    def qread(X):
        for s in range(8):
            a(f"v_add_u32 v{VT+4+s}, s{s_qlds+X}, v{KADDR+s}")
        for s in range(8):
            r = QRAW[X] + 4 * s
            a(f"ds_read_b128 v[{r}:{r+3}], v{VT+4+s}")
    def prescale(X, packed):
        out = []
        for i in range(32):
            r = QRAW[X] + i
            ta, tb = VT + (i & 1) * 2, VT + (i & 1) * 2 + 1
            g = []
            if i % 4 == 0:
                g.append(f"s_waitcnt lgkmcnt({7 - i // 4})")
            g += [f"v_lshlrev_b32 v{ta}, 16, v{r}", f"v_and_b32 v{tb}, 0xffff0000, v{r}"]
            if packed(i):
                g.append(f"v_pk_mul_f32 v[{ta}:{tb}], v[{ta}:{tb}], s[{s_scale}:{s_scale+1}]")
            else:
                g += [f"v_mul_f32 v{ta}, s{s_scale}, v{ta}", f"v_mul_f32 v{tb}, s{s_scale}, v{tb}"]
            g += [f"v_cvt_pk_bf16_f32 v{ta}, v{ta}, v{tb}", f"v_accvgpr_write_b32 a{32*X+i}, v{ta}"]
            out.append(g)
        return out
    pstamp(0)
    for _ in range(cfg["pp0"]):
        pair()
    qload(1); vm.extend(["QB"] * 8)
    for _ in range(cfg["pp1"]):
        pair()
    pstamp(1)
    for r in list(range(64 + nz, 128)) + list(range(160, 208)) + list(range(32, 64)):
        a(f"v_mov_b32 v{r}, 0")
    for r in range(32):
        a(f"v_accvgpr_write_b32 a{AV+r}, 0")
    a(f"""
    v_mov_b32 v{L_[0]}, 0
    v_mov_b32 v{L_[1]}, 0
    s_cmp_eq_u32 s{s_patch}, -1
    s_cbranch_scc0 L_nopatch0
    s_call_b64 s[{s_ret}:{s_ret+1}], L_sub_patch
    """)
    a.label("L_nopatch0")
    vwait("QA")
    pstamp(10)
    qread(0)
    for i, g in enumerate(prescale(0, lambda i: cfg["pk"])):
        for t in g:
            a(t)
        if i in cfg["ppA"]:
            pair()
    pstamp(2)
    vwait("QB")
    pstamp(11)
    qread(1)
    for i, g in enumerate(prescale(1, lambda i: cfg["pk"])):
        for t in g:
            a(t)
        if i in cfg["ppB"]:
            pair()
    pstamp(3)
    vwait("K0")
    pstamp(4)
    a("s_barrier")
    pstamp(12)
    for s in range(8):
        a(k_read(s, 0))
    for s in range(8):
        a(f"s_waitcnt lgkmcnt({7-s})")
        a(mfma_qk(0, s))
        if s in cfg["ppQ"]:
            pair()
        for r in range(128 + 4 * s, 132 + 4 * s):
            a(f"v_mov_b32 v{r}, 0")
    a(mfma_qk(1, 0))
    a("s_nop 7")
    mxa = emit_rowmax(a, 0, M_[0], VT)
    mxa += [f"v_sub_f32 v{S_[0]+r}, v{S_[0]+r}, v{M_[0]}" for r in range(16)]
    mxa += [f"v_sub_f32 v{C_[0]+r}, v{C_[0]+r}, v{M_[0]}" for r in range(16)]
    for s in range(1, 8):
        a(mfma_qk(1, s))
        for _ in range(5):
            a(mxa.pop(0))
    while pairs:
        pair()
    a(f"s_mov_b32 s{s_pg[(PEEL & 1) ^ 1]}, s{st+D+PEEL}")
    while mxa:
        a(mxa.pop(0))
    a("s_nop 7")
    for t in emit_rowmax(a, 1, M_[1], VT):
        a(t)
    for r in range(16):
        a(f"v_sub_f32 v{C_[1]+r}, v{C_[1]+r}, v{M_[1]}")
    if cfg["fused"]:
        emit_srd(a, SRD_X, s_dbg, 256)
        a(f"""
        s_or_b32 s{s_mine}, s{s_mine}, 1
        v_mov_b32 v{VT+10}, s{s_mine}
        v_mov_b32 v{VT+11}, 0
        s_cmp_eq_u32 s{s_w}, 0
        s_cselect_b32 s{s_mine+1}, 0, 0x80000000
        s_mov_b64 exec, 1
        buffer_atomic_cmpswap v[{VT+10}:{VT+11}], v{VT+11}, s[{SRD_X}:{SRD_X+3}], s{s_mine+1} offen sc0
        s_mov_b64 exec, -1
        """)
    sstamp(94)
    sstamp(95)
    if cfg.get("pad_ls"):
        emit_pad(a, cfg["pad_ls"], "ls")
    pre, front, valu, tail = plan_body(7, cfg)
    hd = [t for g in range(32 - cfg["delta"], 32) for _, t in valu[g]
          if not t.startswith(f"v_add_f32 v{L_[1]},")]
    for t in hd:
        a(t)
    a("s_nop 1")
    tramps = []
    for k in range(PEEL):
        issued = NPRE + 2 * k
        need = k + cfg["bar_period"]
        assert issued >= need
        emit_body(a, k, tramps, cfg, peel=(NPRE + 2 * k, st), vm=4 * (issued - need))
    if PEEL:
        a(f"s_branch L_body_{PEEL}")
    for k in range(8):
        emit_body(a, k, tramps, cfg)
    a.label("L_drain")
    if cfg.get("pad_le"):
        emit_pad(a, cfg["pad_le"], "le")
    if cfg.get("stamp"):
        a(f"""
        s_memtime s[90:91]
        s_waitcnt lgkmcnt(0)
        s_mov_b32 s96, s90
        """)
    stf = cfg['st_flags']
    s_own, s_wlo, s_lo, s_hi = 44, 45, 46, 47
    VLD = VT + 5
    def conv(X, dt):
        o = O_[X] + 16 * dt
        d = 8 * (4 * X + dt)
        out = [f"v_cvt_pk_bf16_f32 v{d+j}, v{o+2*j}, v{o+2*j+1}" for j in range(8)]
        out.append(f"s_add_u32 s{st+1}, s{st}, {X*8192 + dt*2048}")
        for kp in range(2):
            f = 8 * X + 2 * dt + kp
            gs = f"buffer_store_dwordx4 v[{d+4*kp}:{d+4*kp+3}], v{VT+4}, s[{SRD_WS}:{SRD_WS+3}], s{st+1} offen offset:{1024*kp}{stf}"
            if cfg["fused"]:
                out.append(f"""s_bitcmp1_b32 s{s_own}, {f}
                s_cbranch_scc1 L_own_{f}
                {gs}
                s_branch L_own_r{f}
                L_own_{f}:
                ds_write_b128 v{VLD}, v[{d+4*kp}:{d+4*kp+3}] offset:{1024*f}
                L_own_r{f}:""")
            else:
                out.append(gs)
        return out
    def put(t):
        for l in t.split("\n"):
            l = l.strip()
            if l.endswith(":"):
                a.label(l[:-1])
            elif l:
                a(l)
    ep = f"""
    v_mov_b32 v{VT}, v{L_[0]}
    v_mov_b32 v{VT+1}, v{L_[1]}
    s_lshl_b32 s{st}, s{s_wgslot}, 16
    s_lshl_b32 s{st+1}, s{s_w}, 14
    s_add_u32 s{st}, s{st}, s{st+1}
    v_permlane32_swap_b32 v{L_[0]}, v{VT}
    v_permlane32_swap_b32 v{L_[1]}, v{VT+1}
    v_lshlrev_b32 v{VT+4}, 4, v{VLANE}
    v_mov_b32 v{VT+6}, v{M_[0]}
    v_add_f32 v{VT+7}, v{L_[0]}, v{VT}
    v_mov_b32 v{VT+8}, v{M_[1]}
    v_add_f32 v{VT+9}, v{L_[1]}, v{VT+1}
    """.strip().split("\n")
    if cfg["fused"]:
        ep += f"""
    s_lshl_b32 s{s_lo}, s{s_jj}, 2
    v_add_u32 v{VT}, s{s_lo}, v{VLANE}
    v_lshlrev_b32 v{VT}, 4, v{VT}
    v_cvt_f32_u32 v{VT}, v{VT}
    v_cvt_f32_u32 v{VT+1}, s{s_nb}
    v_rcp_f32 v{VT+1}, v{VT+1}
    v_add_f32 v{VT}, 0.5, v{VT}
    s_add_u32 s{s_hi}, s{s_w}, 1
    v_mul_f32 v{VT}, v{VT}, v{VT+1}
    v_cvt_u32_f32 v{VT}, v{VT}
    s_lshl_b32 s{st+2}, s{s_w}, 4
    v_readlane_b32 s{s_wlo}, v{VT}, 0
    v_readlane_b32 s{s_own}, v{VT}, 4
    v_readlane_b32 s{s_hi}, v{VT}, s{s_hi}
    v_readlane_b32 s{s_lo}, v{VT}, s{s_w}
    s_sub_u32 s{s_own}, s{s_own}, s{s_wlo}
    s_bfm_b64 s[{st+4}:{st+5}], s{s_own}, s{s_wlo}
    s_lshr_b64 s[{st+4}:{st+5}], s[{st+4}:{st+5}], s{st+2}
    s_cmp_ge_u32 s{s_nb}, 3
    s_cselect_b32 s{s_own}, s{st+4}, 0
    s_sub_u32 s{st+2}, s{st+2}, s{s_wlo}
    s_lshl_b32 s{st+2}, s{st+2}, 10
    s_add_u32 s{st+2}, s{st+2}, 0x20000
    v_add_u32 v{VLD}, s{st+2}, v{VT+4}
    """.strip().split("\n")
    ep += conv(0, 0) + conv(0, 1) + conv(0, 2) + conv(0, 3)
    for f in range(8):
        a(mfma_pv(1, f))
        for _ in range(8):
            put(ep.pop(0))
    while ep:
        put(ep.pop(0))
    a("s_nop 7")
    for dt in range(4):
        for t in conv(1, dt):
            put(t)
    if cfg["fused"]:
        a(f"""
        s_lshl_b32 s{st}, s{s_wgslot}, 11
        s_lshl_b32 s{st+1}, s{s_w}, 4
        s_add_u32 s{st}, s{st}, s{st+1}
        s_add_u32 s{st}, s{st}, 0x{WS_ML:x}
        v_lshlrev_b32 v{VT+4}, 6, v{VLANE}
        v_add_u32 v{VLD}, s{st+1}, v{VT+4}
        v_mov_b32 v{VT}, v{VT+6}
        v_mov_b32 v{VT+1}, v{VT+7}
        v_mov_b32 v{VT+2}, v{VT+8}
        v_mov_b32 v{VT+3}, v{VT+9}
        v_add_u32 v{VLD}, 0x{LDS_ML:x}, v{VLD}
        s_mov_b32 exec_hi, 0
        buffer_store_dwordx4 v[{VT}:{VT+3}], v{VT+4}, s[{SRD_WS}:{SRD_WS+3}], s{st} offen{stf}
        ds_write_b128 v{VLD}, v[{VT}:{VT+3}]
        """)
    else:
        a(f"""
        s_lshl_b32 s{st}, s{s_wgslot}, 11
        s_lshl_b32 s{st+1}, s{s_w}, 9
        s_add_u32 s{st}, s{st}, s{st+1}
        s_add_u32 s{st}, s{st}, 0x{WS_ML:x}
        v_lshlrev_b32 v{VT+4}, 3, v{VLANE}
        s_mov_b32 exec_hi, 0
        buffer_store_dwordx2 v[{VT+6}:{VT+7}], v{VT+4}, s[{SRD_WS}:{SRD_WS+3}], s{st} offen{stf}
        buffer_store_dwordx2 v[{VT+8}:{VT+9}], v{VT+4}, s[{SRD_WS}:{SRD_WS+3}], s{st} offen offset:256{stf}
        """)
    if cfg["fused"]:
        emit_fused_combine(a, cfg, sstamp)
    if cfg.get("stamp"):
        a(f"""
        s_mov_b64 exec, -1
        s_waitcnt vmcnt(0)
        s_memtime s[90:91]
        s_memrealtime s[86:87]
        s_getreg_b32 s98, hwreg(HW_REG_XCC_ID)
        s_waitcnt lgkmcnt(0)
        v_mov_b32 v{VT+14}, 0
        v_writelane_b32 v{VT+14}, s92, 0
        v_writelane_b32 v{VT+14}, s93, 1
        v_writelane_b32 v{VT+14}, s94, 2
        v_writelane_b32 v{VT+14}, s95, 3
        v_writelane_b32 v{VT+14}, s96, 4
        v_writelane_b32 v{VT+14}, s90, 5
        v_writelane_b32 v{VT+14}, s{s_n}, 6
        v_writelane_b32 v{VT+14}, s98, 7
        v_writelane_b32 v{VT+14}, s100, 8
        v_writelane_b32 v{VT+14}, s86, 9
        v_writelane_b32 v{VT+14}, s88, 10
        v_writelane_b32 v{VT+14}, s89, 11
        v_writelane_b32 v{VT+14}, s97, 12
        v_writelane_b32 v{VT+14}, s99, 13
        v_writelane_b32 v{VT+14}, s{s_h}, 14
        s_lshl_b32 s{st}, s{s_wg}, 12
        s_lshl_b32 s{st+1}, s{s_w}, 10
        s_add_u32 s{st}, s{st}, s{st+1}
        s_add_u32 s{st}, s{st}, 0x{WS_DBG:x}
        v_lshlrev_b32 v{VT}, 2, v{VLANE}
        buffer_store_dword v{VT+12}, v{VT}, s[{SRD_WS}:{SRD_WS+3}], s{st} offen
        buffer_store_dword v{VT+13}, v{VT}, s[{SRD_WS}:{SRD_WS+3}], s{st} offen offset:256
        buffer_store_dword v{VT+14}, v{VT}, s[{SRD_WS}:{SRD_WS+3}], s{st} offen offset:512
        """)
    if cfg.get("pad_to_us"):
        a(f"""
        s_waitcnt vmcnt(0)
        s_add_u32 s92, s100, {int(cfg["pad_to_us"]*100)}
        """)
    if cfg.get("delay_us"):
        a(f"""
        s_memrealtime s[90:91]
        s_waitcnt lgkmcnt(0)
        s_add_u32 s92, s90, {int(cfg["delay_us"]*100)}
        """)
    if cfg.get("delay_us") or cfg.get("pad_to_us"):
        a.label("L_delay")
        a(f"""
        s_sleep 4
        s_memrealtime s[90:91]
        s_waitcnt lgkmcnt(0)
        s_sub_u32 s93, s92, s90
        s_cmp_gt_i32 s93, 0
        s_cbranch_scc1 L_delay
        """)
    a.label("L_end")
    a("s_endpgm")
    for lab, sub, ret in tramps:
        a.label(lab)
        a(f"s_call_b64 s[{s_ret}:{s_ret+1}], {sub}")
        a(f"s_branch {ret}")
    a.label("L_code_end")
    emit_fallback(a, 0)
    emit_fallback(a, 1)
    emit_patch(a)


def emit_fused_combine(a, cfg, sstamp):
    st = s_t0
    ldf = cfg["cld_flags"]
    s_own, s_wlo, s_lo, s_hi = 44, 45, 46, 47
    s_nonce, s_to, s_mask, s_done, s_rdy, s_r0 = 54, 55, 56, 62, 64, 78
    s_cnt, s_ni, s_o, s_ml = 68, 69, 70, 72
    s_sel = (None, 66, 76)
    SJ = lambda k: (48, 49, 50, 51, 71, 73, 84, 85)[k]
    OB = lambda k: 12 * k
    MLB = lambda k: 96 + 4 * k
    ACC = 160
    MX, DEN, MN, SC, W = (192, 193), (194, 195), (196, 197), (198, 199), (204, 205)
    U0, U1, WT = 200, 201, 211
    VO, VML, VOUT, VF, VFO, VA = 206, 207, 208, 209, 210, 212
    WSR = f"s[{SRD_WS}:{SRD_WS+3}]"
    LA = cfg["clook"]
    def cst(n):
        if cfg.get("stamp"):
            a(f"""
            s_memtime s[90:91]
            s_waitcnt lgkmcnt(0)
            v_writelane_b32 v{VT+12}, s90, {53+n}
            """)
    a(f"""
    s_mov_b64 exec, -1
    v_lshlrev_b32 v{VO}, 4, v{VLANE}
    v_and_b32 v{VML}, 31, v{VLANE}
    v_lshlrev_b32 v{VOUT}, 8, v{VML}
    v_lshl_add_u32 v{VOUT}, v{VH4}, 2, v{VOUT}   ; q*256 + h2*16
    v_lshlrev_b32 v{VML}, 6, v{VML}
    v_lshlrev_b32 v{VFO}, 2, v{VLANE}
    v_cmp_gt_u32 vcc, s{s_nb}, v{VLANE}
    s_mov_b64 s[{s_mask}:{s_mask+1}], vcc
    v_mov_b32 v{U0}, 0x{LDS_NONCE:x}
    s_lshl_b32 s{s_mine+1}, s{s_b}, 2
    s_add_u32 s{s_mine+1}, s{s_mine+1}, s{s_h}
    s_lshl_b32 s{s_mine+1}, s{s_mine+1}, 8
    s_add_u32 s{s_mine+1}, s{s_mine+1}, 0x{WS_FLAG:x}
    s_mov_b32 s{s_to}, {cfg["poll_max"]}
    """)
    emit_srd(a, SRD_X, s_out, Q_BYTES)
    if cfg.get("pad_pub"):
        a("s_waitcnt vmcnt(0) lgkmcnt(0)")
        emit_pad(a, cfg["pad_pub"], "pub")
    a(f"""
    s_waitcnt vmcnt(0)
    s_cmp_lg_u32 s{s_w}, 0
    s_cbranch_scc1 L_fc_nz
    v_readfirstlane_b32 s{s_nonce}, v{VT+10}
    s_lshl_b32 s{st}, s{s_jj}, 2
    s_add_u32 s{st}, s{st}, s{s_mine+1}
    s_cmp_eq_u32 s{s_nonce}, 0
    s_cselect_b32 s{s_nonce}, s{s_mine}, s{s_nonce}
    v_mov_b32 v{VF}, s{s_nonce}
    ds_write_b32 v{U0}, v{VF}
    """)
    a.label("L_fc_nz")
    a(f"""
    s_waitcnt lgkmcnt(0)
    s_barrier
    s_cmp_lg_u32 s{s_w}, 0
    s_cbranch_scc1 L_fc_nz2
    s_mov_b64 exec, 1
    buffer_store_dword v{VF}, v{VT+11}, {WSR}, s{st} offen sc1
    s_mov_b64 exec, -1
    """)
    a.label("L_fc_nz2")
    sstamp(97)
    a(f"""
    ds_read_b32 v{VF}, v{U0}
    s_cmp_ge_u32 s{s_lo}, s{s_hi}
    s_cbranch_scc1 L_fc_end
    s_waitcnt lgkmcnt(0)
    v_readfirstlane_b32 s{s_nonce}, v{VF}
    """)
    a.label("L_fc_outer")
    a(f"""
    s_sub_u32 s{s_ni}, s{s_hi}, s{s_lo}
    s_min_u32 s{s_ni}, s{s_ni}, 3
    s_lshl_b32 s{s_o}, s{s_lo}, 10
    s_lshr_b32 s{st}, s{s_lo}, 3                 ; u0
    s_lshl_b32 s{s_ml}, s{st}, 3
    s_mov_b64 s[{s_done}:{s_done+1}], 0
    """)
    for t in (1, 2):
        a(f"""
        s_add_u32 s{st+1}, s{s_lo}, {t}
        s_lshr_b32 s{st+1}, s{st+1}, 3
        s_cmp_lg_u32 s{st+1}, s{st}
        s_cselect_b64 s[{s_sel[t]}:{s_sel[t]+1}], -1, 0
        """)
    a(f"""
    s_cmp_lt_u32 s{s_nb}, 3
    s_cbranch_scc1 L_fc_zero
    s_sub_u32 s{st}, s{s_lo}, s{s_wlo}
    s_lshl_b32 s{st}, s{st}, 10
    s_add_u32 s{st}, s{st}, 0x20000
    v_add_u32 v{VA}, s{st}, v{VO}
    s_add_u32 s{st}, s{s_ml}, 0x{LDS_ML:x}
    v_add_u32 v{VA+1}, s{st}, v{VML}
    ds_read_b128 v[0:3], v{VA}
    ds_read_b128 v[4:7], v{VA} offset:1024
    ds_read_b128 v[8:11], v{VA} offset:2048
    ds_read_b64 v[{MLB(0)}:{MLB(0)+1}], v{VA+1}
    ds_read_b64 v[{MLB(0)+2}:{MLB(0)+3}], v{VA+1} offset:8
    s_bitset1_b64 s[{s_done}:{s_done+1}], s{s_jj}
    s_waitcnt lgkmcnt(0)
    v_mov_b32 v{MX[0]}, v{MLB(0)}
    v_mov_b32 v{DEN[0]}, v{MLB(0)+1}
    v_mov_b32 v{MX[1]}, v{MLB(0)+2}
    v_mov_b32 v{DEN[1]}, v{MLB(0)+3}
    """)
    for r in range(12):
        a(f"""
        v_lshlrev_b32 v{ACC+2*r}, 16, v{r}
        v_and_b32 v{ACC+2*r+1}, 0xffff0000, v{r}
        """)
    a("s_branch L_fc_init")
    a.label("L_fc_zero")
    for X in range(2):
        a(f"v_mov_b32 v{MX[X]}, 0xff800000")
        a(f"v_mov_b32 v{DEN[X]}, 0")
    for r in range(24):
        a(f"v_mov_b32 v{ACC+r}, 0")
    a.label("L_fc_init")
    a(f"s_add_u32 s{s_ml}, s{s_ml}, 0x{WS_ML:x}")
    a.label("L_fc_poll")
    a(f"""
    buffer_load_dword v{VF}, v{VFO}, {WSR}, s{s_mine+1} offen sc1
    s_waitcnt vmcnt(0)
    v_cmp_eq_u32 vcc, s{s_nonce}, v{VF}
    s_and_b64 s[{s_rdy}:{s_rdy+1}], vcc, s[{s_mask}:{s_mask+1}]
    s_andn2_b64 s[{s_rdy}:{s_rdy+1}], s[{s_rdy}:{s_rdy+1}], s[{s_done}:{s_done+1}]
    s_cbranch_scc1 L_fc_go
    s_sleep {cfg["poll_sleep"]}
    s_sub_u32 s{s_to}, s{s_to}, 1
    s_cmp_lg_u32 s{s_to}, 0
    s_cbranch_scc1 L_fc_poll
    s_branch L_fc_store
    """)
    a.label("L_fc_go")
    sstamp(99)
    a(f"""
    s_mov_b64 s[{s_r0}:{s_r0+1}], s[{s_rdy}:{s_rdy+1}]
    v_mov_b32 v{MN[0]}, v{MX[0]}
    v_mov_b32 v{MN[1]}, v{MX[1]}
    """)
    for k in range(8):
        a(f"""
        s_ff1_i32_b64 s{st}, s[{s_rdy}:{s_rdy+1}]
        s_bitset0_b64 s[{s_rdy}:{s_rdy+1}], s{st}
        s_add_u32 s{st}, s{st}, s{s_E}
        s_lshl_b32 s{SJ(k)}, s{st}, 16
        s_lshl_b32 s{st}, s{st}, 11
        s_add_u32 s{st}, s{st}, s{s_ml}
        s_add_u32 s{SJ(k)}, s{SJ(k)}, s{s_o}
        s_mov_b32 s{s_cnt}, {k+1}
        buffer_load_dwordx4 v[{MLB(k)}:{MLB(k)+3}], v{VML}, {WSR}, s{st} offen{ldf}
        """)
        if k < 7:
            a(f"""
            s_cmp_eq_u64 s[{s_rdy}:{s_rdy+1}], 0
            s_cbranch_scc1 L_fc_taken
            """)
    a.label("L_fc_taken")
    a(f"""
    s_andn2_b64 s[{s_r0}:{s_r0+1}], s[{s_r0}:{s_r0+1}], s[{s_rdy}:{s_rdy+1}]
    s_or_b64 s[{s_done}:{s_done+1}], s[{s_done}:{s_done+1}], s[{s_r0}:{s_r0+1}]
    s_cmp_eq_u32 s{s_ni}, 2
    s_cbranch_scc1 L_fc_r2
    s_cmp_eq_u32 s{s_ni}, 3
    s_cbranch_scc1 L_fc_r3
    """)
    def sel(dst, pair, t):
        if t == 0:
            return None
        return f"v_cndmask_b32 v{dst}, v{pair[0]}, v{pair[1]}, s[{s_sel[t]}:{s_sel[t]+1}]"
    for NI in (1, 2, 3):
        tag = f"r{NI}"
        a.label(f"L_fc_{tag}")
        def oload(k):
            for c in range(NI):
                a(f"buffer_load_dwordx4 v[{OB(k)+4*c}:{OB(k)+4*c+3}], v{VO}, {WSR}, s{SJ(k)} offen offset:{1024*c}{ldf}")
        for k in range(7, -1, -1):
            a(f"""
            s_cmp_le_u32 s{s_cnt}, {k}
            s_cbranch_scc1 L_fc_{tag}_p{k}
            """)
            if k + LA < 8:
                a(f"""
                s_cmp_gt_u32 s{s_cnt}, {k + LA}
                s_cbranch_scc1 L_fc_{tag}_pd
                """)
            oload(k)
            a.label(f"L_fc_{tag}_p{k}")
        a.label(f"L_fc_{tag}_pd")
        cst(0)
        for c in range(1, LA):
            a(f"""
            s_cmp_eq_u32 s{s_cnt}, {c}
            s_cbranch_scc0 L_fc_{tag}_w{c}
            s_waitcnt vmcnt({NI*c})
            """)
            a.label(f"L_fc_{tag}_w{c}")
        a(f"s_waitcnt vmcnt({NI*LA})")
        cst(1)
        NSET = 1 if NI == 1 else 2
        for k in range(8):
            if k:
                a(f"""
                s_cmp_le_u32 s{s_cnt}, {k}
                s_cbranch_scc1 L_fc_{tag}_max
                """)
            for X in range(NSET):
                a(f"v_max_f32 v{MN[X]}, v{MN[X]}, v{MLB(k)+2*X}")
        a.label(f"L_fc_{tag}_max")
        for X in range(NSET):
            a(f"""
            v_sub_f32 v{SC[X]}, v{MX[X]}, v{MN[X]}
            v_exp_f32 v{SC[X]}, v{SC[X]}
            v_mov_b32 v{MX[X]}, v{MN[X]}
            """)
        for X in range(NSET):
            a(f"v_mul_f32 v{DEN[X]}, v{DEN[X]}, v{SC[X]}")
        for t in range(NI):
            if t:
                a(sel(WT, SC, t))
            for r in range(8):
                a(f"v_mul_f32 v{ACC+8*t+r}, v{ACC+8*t+r}, v{WT if t else SC[0]}")
        for k in range(7, -1, -1):
            if k:
                a(f"""
                s_cmp_le_u32 s{s_cnt}, {k}
                s_cbranch_scc1 L_fc_{tag}_u{k}
                """)
            if k - LA >= 0:
                oload(k - LA)
            for X in range(NSET):
                a(f"v_sub_f32 v{W[X]}, v{MLB(k)+2*X}, v{MN[X]}")
            for X in range(NSET):
                a(f"v_exp_f32 v{W[X]}, v{W[X]}")
            a("s_nop 0")
            for X in range(NSET):
                a(f"v_fmac_f32 v{DEN[X]}, v{W[X]}, v{MLB(k)+2*X+1}")
            for t in range(NI):
                if t:
                    a(sel(WT, W, t))
                a(f"s_waitcnt vmcnt({NI*min(k, LA) + NI - 1 - t})")
                for r in range(4):
                    u0, u1 = U0 + 2 * (r & 1), U1 + 2 * (r & 1)
                    a(f"""
                    v_lshlrev_b32 v{u0}, 16, v{OB(k)+4*t+r}
                    v_and_b32 v{u1}, 0xffff0000, v{OB(k)+4*t+r}
                    v_fmac_f32 v{ACC+8*t+2*r}, v{WT if t else W[0]}, v{u0}
                    v_fmac_f32 v{ACC+8*t+2*r+1}, v{WT if t else W[0]}, v{u1}
                    """)
            a.label(f"L_fc_{tag}_u{k}")
        cst(2)
        a(f"""
        s_cmp_lg_u64 s[{s_done}:{s_done+1}], s[{s_mask}:{s_mask+1}]
        s_cbranch_scc1 L_fc_poll
        """)
        if NI < 3:
            a("s_branch L_fc_store")
    a.label("L_fc_store")
    cst(3)
    a(f"""
    v_rcp_f32 v{SC[0]}, v{DEN[0]}
    v_rcp_f32 v{SC[1]}, v{DEN[1]}
    s_lshl_b32 s{st}, s{s_b}, 2
    s_add_u32 s{st}, s{st}, s{s_h}
    s_lshl_b32 s{st}, s{st}, 16                  ; (b*32 + 8h)*8192
    """)
    for t in range(3):
        if t:
            a(f"""
            s_cmp_le_u32 s{s_ni}, {t}
            s_cbranch_scc1 L_fc_next
            {sel(WT, SC, t)}
            """)
        A0 = ACC + 8 * t
        a(f"""
        s_add_u32 s{st+1}, s{s_lo}, {t}
        s_lshr_b32 s{st+2}, s{st+1}, 3
        s_lshl_b32 s{st+2}, s{st+2}, 13
        s_and_b32 s{st+1}, s{st+1}, 7
        s_lshl_b32 s{st+1}, s{st+1}, 5
        s_add_u32 s{st+1}, s{st+1}, s{st+2}
        s_add_u32 s{st+1}, s{st+1}, s{st}
        """)
        for r in range(8):
            a(f"v_mul_f32 v{A0+r}, v{A0+r}, v{WT if t else SC[0]}")
        for r in range(4):
            a(f"v_cvt_pk_bf16_f32 v{A0+r}, v{A0+2*r}, v{A0+2*r+1}")
        a(f"""
        s_nop 1
        v_permlane32_swap_b32 v{A0}, v{A0+2}
        v_permlane32_swap_b32 v{A0+1}, v{A0+3}
        buffer_store_dwordx4 v[{A0}:{A0+3}], v{VOUT}, s[{SRD_X}:{SRD_X+3}], s{st+1} offen{cfg['out_flags']}
        """)
    a.label("L_fc_next")
    a(f"""
    s_add_u32 s{s_lo}, s{s_lo}, 3
    s_cmp_lt_u32 s{s_lo}, s{s_hi}
    s_nop 1
    s_cbranch_scc1 L_fc_outer
    """)
    a.label("L_fc_end")


def emit_combine(a, cfg):
    K = "pa_combine_kernel"
    NB = 12
    a.raw(f".globl {K}\n.p2align 8\n.type {K},@function")
    a.label(K)
    VL, VCL, VT_ = 200, 201, 202
    ACC = 160
    DEN, MX, MN, SC, W = 170, 171, 172, 173, 174
    U0, U1 = 176, 177
    OB = 0
    MLB = 64
    SRD_C, SRD_W, SRD_O = 20, 24, 28
    sw, sb, sh, swx, sn, sE, sbase, sj = 40, 41, 42, 43, 44, 45, 46, 47
    st = 60
    a(f"""
    s_cmp_ge_u32 s2, 256
    s_cbranch_scc1 L_cend
    s_load_dwordx16 s[4:19], s[0:1], 0
    {"s_memrealtime s[100:101]" if cfg.get("cpad_to_us") else ""}
    v_lshrrev_b32 v{VT_}, 6, v0
    v_and_b32 v{VL}, 63, v0
    s_lshr_b32 s{sb}, s2, 5
    v_readfirstlane_b32 s{sw}, v{VT_}
    s_lshr_b32 s{sh}, s2, 3
    s_and_b32 s{sh}, s{sh}, 3
    s_and_b32 s{swx}, s2, 7
    v_and_b32 v{VT_+1}, 7, v{VL}
    v_lshlrev_b32 v{VT_+1}, 2, v{VT_+1}
    s_waitcnt lgkmcnt(0)
    """)
    emit_srd(a, SRD_C, s_cl, 32)
    a(f"buffer_load_dword v{VCL}, v{VT_+1}, s[{SRD_C}:{SRD_C+3}], 0 offen")
    emit_srd(a, SRD_W, s_ws, WS_BYTES)
    emit_srd(a, SRD_O, s_out, Q_BYTES)
    VOFF, VML, VOUT = 180, 181, 182
    a(f"""
    s_lshl_b32 s{st}, s{swx}, 13
    s_lshl_b32 s{st+1}, s{sw}, 10
    s_add_u32 s{st}, s{st}, s{st+1}
    v_lshlrev_b32 v{VOFF}, 4, v{VL}
    v_add_u32 v{VOFF}, s{st}, v{VOFF}
    s_lshl_b32 s{st}, s{swx}, 8
    s_add_u32 s{st}, s{st}, 0x{WS_ML:x}
    v_and_b32 v{VML}, 31, v{VL}
    v_lshlrev_b32 v{VOUT}, 8, v{VML}             ; q*256
    v_lshlrev_b32 v{VML}, 3, v{VML}
    v_add_u32 v{VML}, s{st}, v{VML}
    v_lshrrev_b32 v{VT_+2}, 5, v{VL}
    v_lshl_add_u32 v{VOUT}, v{VT_+2}, 3, v{VOUT} ; + h2*8
    s_lshl_b32 s{st}, s2, 13
    s_lshl_b32 s{st+1}, s{sw}, 5
    s_add_u32 s{st}, s{st}, s{st+1}
    v_add_u32 v{VOUT}, s{st}, v{VOUT}
    v_mov_b32 v{DEN}, 0
    v_mov_b32 v{MX}, 0xff800000
    """)
    for r in range(8):
        a(f"v_mov_b32 v{ACC+r}, 0")
    a("s_waitcnt vmcnt(0)")
    R = emit_partition(a, VL, VCL, VT_, st)
    a(f"""
    s_add_u32 s{st}, s{st}, s{sb}
    v_readlane_b32 s{sn}, v{R['n']}, s{st}
    v_readlane_b32 s{sE}, v{R['incl']}, s{st}
    s_nop 3
    s_sub_u32 s{sE}, s{sE}, s{sn}
    s_min_u32 s{sn}, s{sn}, 64
    s_lshl_b32 s{st}, s{sh}, 6
    s_add_u32 s{sE}, s{sE}, s{st}
    s_mov_b32 s{sbase}, 0
    """)
    a.label("L_cloop")
    for j in range(NB):
        a(f"""
        s_add_u32 s{sj}, s{sbase}, {j}
        s_add_u32 s{st}, s{sE}, s{sj}
        s_lshl_b32 s{st+1}, s{st}, 16
        s_lshl_b32 s{st}, s{st}, 11
        s_cmp_lt_u32 s{sj}, s{sn}
        s_cselect_b32 s{st+1}, s{st+1}, 0x80000000
        s_cselect_b32 s{st}, s{st}, 0x80000000
        buffer_load_dwordx2 v[{MLB+2*j}:{MLB+2*j+1}], v{VML}, s[{SRD_W}:{SRD_W+3}], s{st} offen
        buffer_load_dwordx4 v[{OB+4*j}:{OB+4*j+3}], v{VOFF}, s[{SRD_W}:{SRD_W+3}], s{st+1} offen
        """)
    a(f"v_mov_b32 v{MN}, v{MX}")
    for j in range(NB):
        a(f"""
        s_add_u32 s{sj}, s{sbase}, {j}
        s_cmp_ge_u32 s{sj}, s{sn}
        s_cbranch_scc1 L_cmaxdone
        s_waitcnt vmcnt({2*(NB-1-j)+1})
        v_max_f32 v{MN}, v{MN}, v{MLB+2*j}
        """)
    a.label("L_cmaxdone")
    a(f"""
    v_sub_f32 v{SC}, v{MX}, v{MN}
    v_exp_f32 v{SC}, v{SC}
    v_mov_b32 v{MX}, v{MN}
    v_mul_f32 v{DEN}, v{DEN}, v{SC}
    """)
    for r in range(8):
        a(f"v_mul_f32 v{ACC+r}, v{ACC+r}, v{SC}")
    for j in range(NB):
        a(f"""
        s_add_u32 s{sj}, s{sbase}, {j}
        s_cmp_ge_u32 s{sj}, s{sn}
        s_cbranch_scc1 L_cfin
        v_sub_f32 v{W}, v{MLB+2*j}, v{MX}
        v_exp_f32 v{W}, v{W}
        s_waitcnt vmcnt({2*(NB-1-j)})
        v_fmac_f32 v{DEN}, v{W}, v{MLB+2*j+1}
        """)
        for r in range(4):
            a(f"""
            v_lshlrev_b32 v{U0}, 16, v{OB+4*j+r}
            v_and_b32 v{U1}, 0xffff0000, v{OB+4*j+r}
            v_fmac_f32 v{ACC+2*r}, v{W}, v{U0}
            v_fmac_f32 v{ACC+2*r+1}, v{W}, v{U1}
            """)
    a(f"""
    s_add_u32 s{sbase}, s{sbase}, {NB}
    s_branch L_cloop
    """)
    a.label("L_cfin")
    a(f"""
    v_rcp_f32 v{SC}, v{DEN}
    s_nop 0
    """)
    for r in range(8):
        a(f"v_mul_f32 v{ACC+r}, v{ACC+r}, v{SC}")
    for r in range(4):
        a(f"v_cvt_pk_bf16_f32 v{ACC+r}, v{ACC+2*r}, v{ACC+2*r+1}")
    a(f"""
    buffer_store_dwordx2 v[{ACC}:{ACC+1}], v{VOUT}, s[{SRD_O}:{SRD_O+3}], 0 offen
    buffer_store_dwordx2 v[{ACC+2}:{ACC+3}], v{VOUT}, s[{SRD_O}:{SRD_O+3}], 0 offen offset:16
    """)
    if cfg.get("cpad_to_us"):
        a(f"""
        s_waitcnt vmcnt(0)
        s_add_u32 s92, s100, {int(cfg["cpad_to_us"]*100)}
        """)
        a.label("L_cdelay")
        a(f"""
        s_sleep 4
        s_memrealtime s[90:91]
        s_waitcnt lgkmcnt(0)
        s_sub_u32 s93, s92, s90
        s_cmp_gt_i32 s93, 0
        s_cbranch_scc1 L_cdelay
        """)
    a.label("L_cend")
    a("s_endpgm")


def descriptor(name, vgpr, accum, sgpr=102):
    return f"""
.p2align 6
.amdhsa_kernel {name}
  .amdhsa_next_free_vgpr {vgpr}
  .amdhsa_next_free_sgpr {sgpr}
  .amdhsa_accum_offset {accum}
  .amdhsa_group_segment_fixed_size 0
  .amdhsa_kernarg_size 64
  .amdhsa_user_sgpr_count 2
  .amdhsa_user_sgpr_kernarg_segment_ptr 1
  .amdhsa_system_sgpr_workgroup_id_x 1
.end_amdhsa_kernel
"""


DEFAULT_CFG = dict(
    vslots=[9, 10, 11, 12, 13, 14, 15, 16, 17, 18, 19, 20, 21, 22, 23, 24],
    rl_slot=22,
    dma_slots=[25, 26, 27, 29],
    dma_cost=12,
    patch_slot=9,
    delta=3,
    br_dist=2,
    empty_gaps=[31],
    bar_period=2,
    pp0=1, pp1=0, ppA=[7, 15], ppB=[15, 31], ppQ=[1, 3, 5, 7],
    pk=1,
    warm=1,
    zero_early=64,
    thr_log2=12,
    st_flags=" sc1",
    fused=1, cld_flags=" sc1", poll_sleep=2, poll_max=200000, cpk=0, clook=3, out_flags="",
    depth=6, map=0, cwarm=0, peel=0, peel_slots=[19, 22, 25, 27],
    ld_flags=" nt",
)


def generate(cfg=None, out=OUT):
    c = dict(DEFAULT_CFG)
    if cfg:
        c.update(cfg)
    global LDFLAGS
    LDFLAGS = c["ld_flags"]
    a = Asm()
    a.raw(f"""; Paged attention (GQA, split-KV) for gfx950 -- generated by gen.py (hand-scheduled)
{("; @launch grid=(256,1,1) block=(256,1,1) lds=163840" if c["fused"] else "; @launch kernel=" + NAME + "_kernel grid=(256,1,1) block=(256,1,1) lds=163840" + chr(10) + "; @launch kernel=pa_combine_kernel grid=(256,1,1) block=(512,1,1) lds=0")}
{"; @launch kernel=pa_nop_kernel grid=(1,1,1) block=(64,1,1) lds=0" + chr(10) if c.get("nop3") else ""}.amdgcn_target "amdgcn-amd-amdhsa--gfx950"
.text""")
    emit_main(a, c)
    if not c["fused"]:
        emit_combine(a, c)
    if c.get("nop3"):
        a.raw(".globl pa_nop_kernel\n.p2align 8\n.type pa_nop_kernel,@function\npa_nop_kernel:\n    s_endpgm")
    a.raw('.section .rodata,"a"')
    if c.get("nop3"):
        a.raw(descriptor("pa_nop_kernel", 8, 8))
    a.raw(descriptor(NAME + "_kernel", 384, 256))
    if not c["fused"]:
        a.raw(descriptor("pa_combine_kernel", 216, 216))
    open(out, "w").write(a.text())


if __name__ == "__main__":
    import json
    cfg = json.loads(sys.argv[1]) if len(sys.argv) > 1 else None
    generate(cfg, sys.argv[2] if len(sys.argv) > 2 else OUT)
```

```python
import sys, math

NAME = "standalone__paged_block_table_kv_pagedattention__sampling"
OUT = "cdna_kernels/%s.s" % NAME

KV_BYTES = 4100 * 16384
Q_BYTES = 8 * 32 * 32 * 128 * 2
BT_BYTES = 8 * 512 * 4
WS_ML = 0x1000000
LDS_ML = 0x27000
LDS_NONCE = 0x27ff0
WS_DBG = WS_ML + 256 * 2048
WS_FLAG = WS_DBG + 0x100000
WS_BYTES = WS_FLAG + 32 * 256
SCALE = math.log2(math.e) / math.sqrt(128.0)
THR_LOG2 = 12

import struct
def f32bits(x):
    return struct.unpack("<I", struct.pack("<f", x))[0]

class Asm:
    def __init__(self):
        self.lines = []
    def __call__(self, s):
        for l in s.strip("\n").split("\n"):
            self.lines.append("    " + l.strip())
    def label(self, l):
        self.lines.append(l + ":")
    def raw(self, s):
        self.lines.append(s)
    def text(self):
        return "\n".join(self.lines) + "\n"

S_ = {0: 0, 1: 16}
C_ = {0: 32, 1: 48}
O_ = {0: 64, 1: 128}
P_ = {0: 192, 1: 200}
KADDR = 208
VADDR = 216
VOFFK = 220
VOFFV = 222
PAGES = 224
L_ = {0: 225, 1: 226}
M_ = {0: 227, 1: 228}
TS_ = {0: (229, 230), 1: (231, 232)}
ET = 233
VLANE = 239
VT = 240
VH4 = 255
AQ = {0: 0, 1: 32}
AK = 64
AV = 96

s_wg = 2
s_q, s_k, s_v, s_bt, s_cl, s_out, s_dbg, s_ws = 4, 6, 8, 10, 12, 14, 16, 18
SRD_K, SRD_V, SRD_Q, SRD_X, SRD_WS, SRD_BT = 20, 24, 28, 32, 36, 76
s_w = 40
s_h = 41
s_slot = 42
s_n = 43
s_i = 44
s_patch = 45
s_rem = 46
s_idx = 47
s_pg = {0: 48, 1: 49}
s_m0k = 50
s_m0v = 51
s_thr = {0: 52, 1: 52}
s_E = 53
s_nb = 82
s_jj = 3
s_mine = 74
s_floor = {0: 54, 1: 55}
s_first = {0: 56, 1: 57}
s_ret = 58
s_t0 = 60
s_qb = 84
s_qlds = 54
s_b = 80
s_start = 81
s_scale = 56
s_wgslot = 83


def emit_srd(a, d, ptr, nbytes):
    a(f"""
    s_mov_b32 s{d}, s{ptr}
    s_and_b32 s{d+1}, s{ptr+1}, 0xffff
    s_mov_b32 s{d+2}, 0x{nbytes:x}
    s_mov_b32 s{d+3}, 0x20000
    """)


def sum8(a, dst, src, tmp):
    a(f"""
    s_nop 1
    v_add_u32_dpp v{tmp}, v{src}, v{src} quad_perm:[1,0,3,2] row_mask:0xf bank_mask:0xf
    s_nop 1
    v_add_u32_dpp v{dst}, v{tmp}, v{tmp} quad_perm:[2,3,0,1] row_mask:0xf bank_mask:0xf
    s_nop 1
    v_add_u32_dpp v{dst}, v{dst}, v{dst} row_half_mirror row_mask:0xf bank_mask:0xf
    """)


def emit_partition(a, vlane, vcl, vt, st):
    Lm1, T_, Cc, Nn, NS, INC, Qq, Rr, X0, X1 = range(vt, vt + 10)
    a(f"""
    v_add_u32 v{Lm1}, -1, v{vcl}
    v_min_u32 v{Lm1}, 0x1fff, v{Lm1}
    v_lshrrev_b32 v{T_}, 5, v{Lm1}
    v_add_u32 v{T_}, 1, v{T_}
    """)
    sum8(a, Cc, T_, X0)
    a(f"""
    v_add_u32 v{Cc}, 63, v{Cc}
    v_lshrrev_b32 v{Cc}, 6, v{Cc}
    v_lshrrev_b32 v{X0}, 3, v{vlane}
    v_add_u32 v{Cc}, v{Cc}, v{X0}
    v_cvt_f32_u32 v{X0}, v{Cc}
    v_rcp_f32 v{X0}, v{X0}
    v_add3_u32 v{X1}, v{T_}, v{Cc}, -1
    v_cvt_f32_u32 v{X1}, v{X1}
    v_add_f32 v{X1}, 0.5, v{X1}
    v_mul_f32 v{X1}, v{X1}, v{X0}
    v_cvt_u32_f32 v{Nn}, v{X1}
    """)
    sum8(a, NS, Nn, X0)
    a(f"""
    s_nop 1
    v_add_u32_dpp v{INC}, v{Nn}, v{Nn} row_shr:1 row_mask:0xf bank_mask:0xf bound_ctrl:0
    v_cvt_f32_u32 v{X0}, v{Nn}
    v_rcp_f32 v{X0}, v{X0}
    v_add_u32_dpp v{INC}, v{INC}, v{INC} row_shr:2 row_mask:0xf bank_mask:0xf bound_ctrl:0
    v_cvt_f32_u32 v{X1}, v{T_}
    v_add_f32 v{X1}, 0.5, v{X1}
    v_add_u32_dpp v{INC}, v{INC}, v{INC} row_shr:4 row_mask:0xf bank_mask:0xf bound_ctrl:0
    v_mul_f32 v{X1}, v{X1}, v{X0}
    v_cvt_u32_f32 v{Qq}, v{X1}
    v_add_u32_dpp v{INC}, v{INC}, v{INC} row_shr:8 row_mask:0xf bank_mask:0xf bound_ctrl:0
    v_mul_u32_u24 v{X0}, v{Qq}, v{Nn}
    v_sub_u32 v{Rr}, v{T_}, v{X0}
    v_mov_b32_dpp v{X1}, v{NS} row_shr:8 row_mask:0xf bank_mask:0xf bound_ctrl:0
    v_sub_u32 v{INC}, v{INC}, v{X1}
    v_cmp_ge_u32 vcc, 64, v{NS}
    s_ff1_i32_b64 s{st}, vcc
    s_mov_b64 s[{st+2}:{st+3}], 0xff
    s_lshl_b64 s[{st+2}:{st+3}], s[{st+2}:{st+3}], s{st}
    """)
    return dict(Lm1=Lm1, t=T_, n=Nn, incl=INC, q=Qq, r=Rr)


def sm_stream(X, et=None):
    S = S_[X]; P = P_[X]
    TS0, TS1 = TS_[X]
    et = ET if et is None else et
    def tmp(j):
        if j == 0:
            return TS0, TS1
        k = (j - 1) % 3
        return et + 2 * k, et + 2 * k + 1
    E = lambda j, h: (8, f"v_exp_f32 v{tmp(j)[h]}, v{S + 2 * j + h}")
    A = lambda j, h: (4, f"v_add_f32 v{(TS0, TS1)[h]}, v{(TS0, TS1)[h]}, v{tmp(j)[h]}")
    C = lambda j: (4, f"v_cvt_pk_bf16_f32 v{P + j}, v{tmp(j)[0]}, v{tmp(j)[1]}")
    st = [E(0, 0), E(0, 1), E(1, 0), C(0), E(1, 1)]
    for j in range(1, 7):
        st += [A(j, 0), E(j + 1, 0), A(j, 1), C(j), E(j + 1, 1)]
    st += [A(7, 0), A(7, 1), C(7), (4, f"v_add_f32 v{TS0}, v{TS0}, v{TS1}")]
    return st


def mfma_qk(X, s):
    c = C_[X] if s == 0 else S_[X]
    return (f"v_mfma_f32_32x32x16_bf16 v[{S_[X]}:{S_[X]+15}], a[{AK+4*s}:{AK+4*s+3}], "
            f"a[{AQ[X]+4*s}:{AQ[X]+4*s+3}], v[{c}:{c+15}]")


def mfma_pv(X, f):
    t, dt = f >> 2, f & 3
    o = O_[X] + 16 * dt
    return (f"v_mfma_f32_32x32x16_bf16 v[{o}:{o+15}], a[{AV+4*f}:{AV+4*f+3}], "
            f"v[{P_[X]+4*t}:{P_[X]+4*t+3}], v[{o}:{o+15}]")


def k_read(s, slot):
    return f"ds_read_b128 a[{AK+4*s}:{AK+4*s+3}], v{KADDR+s} offset:{slot*8192}"


def v_read(f, y, slot):
    t, dt = f >> 2, f & 3
    return (f"ds_read_b64_tr_b16 a[{AV+4*f+2*y}:{AV+4*f+2*y+1}], v{VADDR+dt} "
            f"offset:{slot*8192 + (16*t+8*y)*256}")


LDFLAGS = ""
def dma_k(a_list, slot, spg):
    return [f"s_add_u32 m0, s{s_m0k}, {slot*8192}",
            None,
            f"buffer_load_dwordx4 v{VOFFK}, s[{SRD_K}:{SRD_K+3}], s{spg} offen{LDFLAGS} lds",
            f"buffer_load_dwordx4 v{VOFFK+1}, s[{SRD_K}:{SRD_K+3}], s{spg} offen offset:1024{LDFLAGS} lds"]


def dma_v(a_list, slot, spg):
    return [f"s_add_u32 m0, s{s_m0v}, {slot*8192}",
            None,
            f"buffer_load_dwordx4 v{VOFFV}, s[{SRD_V}:{SRD_V+3}], s{spg} offen{LDFLAGS} lds",
            f"buffer_load_dwordx4 v{VOFFV+1}, s[{SRD_V}:{SRD_V+3}], s{spg} offen offset:1024{LDFLAGS} lds"]


def plan_body(k, cfg, tramps=None, peel=None):
    kn = (k + 1) % 8
    kl = k if peel is None else f"p{k}"
    D = cfg["depth"]
    pgn = s_pg[k & 1]
    pgo = s_pg[(k & 1) ^ 1]
    tramps = [] if tramps is None else tramps
    pre = {i: [] for i in range(32)}
    front = {i: [] for i in range(32)}
    valu = {i: [] for i in range(32)}
    tail = {i: [] for i in range(32)}
    for s in range(8):
        front[s + 1].append((4, k_read(s, kn)))
    vslots = cfg["vslots"]
    vr = [(f, y) for f in range(8) for y in range(2)]
    for (f, y), sl in zip(vr, vslots):
        assert sl >= 9 + f, (f, sl)
        front[sl].append((4, v_read(f, y, k)))
    def vr_before(m):
        return sum(1 for sl in vslots if sl < m)
    pre[16].append(f"s_waitcnt lgkmcnt({vr_before(16)})")
    assert vr_before(24) >= 8
    pre[24].append(f"s_waitcnt lgkmcnt({vr_before(24) - 8})")
    assert vr_before(28) == 16
    pre[28].append("s_waitcnt lgkmcnt(0)")
    ds = cfg["dma_slots"]
    dcost = cfg["dma_cost"]
    if peel is None:
        valu[cfg["rl_slot"]].append((4, f"v_readlane_b32 s{pgn}, v{PAGES}, s{s_idx}"))
        tail[cfg["rl_slot"]].append(f"s_add_u32 s{s_idx}, s{s_idx}, 1")
        dk = dma_k(None, (k + D + 1) % 8, pgn)
        dv = dma_v(None, (k + D) % 8, pgo)
        tail[ds[0] - 1].append(dv[0])
        front[ds[0]].append((dcost, dv[2]))
        front[ds[1]].append((dcost, dv[3]))
        assert ds[2] - 1 >= ds[1]
        tail[ds[2] - 1].append(dk[0])
        front[ds[2]].append((dcost, dk[2]))
        front[ds[3]].append((dcost, dk[3]))
        assert ds[2] > cfg["rl_slot"] + 1
    else:
        g, pb = peel
        seq = [dma_k(None, (g + 1) % 8, pb + g + 1), dma_v(None, g % 8, pb + g),
               dma_k(None, (g + 2) % 8, pb + g + 2), dma_v(None, (g + 1) % 8, pb + g + 1)]
        for d_, sl in zip(seq, cfg["peel_slots"]):
            tail[sl - 1].append(d_[0])
            front[sl].append((dcost, d_[2]))
            front[sl + 1].append((dcost, d_[3]))
    ps = cfg["patch_slot"]
    tail[ps - 1].append(f"s_cmp_eq_u32 s{s_i}, s{s_patch}")
    front[ps].insert(0, (8, f"s_cbranch_scc1 L_patch_{kl}"))
    front[ps].insert(1, (0, f"L_patch_ret_{kl}:"))
    tramps.append((f"L_patch_{kl}", "L_sub_patch", f"L_patch_ret_{kl}"))
    assert max(ds) < 30
    tail[30].append(f"s_add_u32 s{s_i}, s{s_i}, 1")
    tail[30].append(f"s_cmp_ge_u32 s{s_i}, s{s_n}")
    front[31].append((8, "s_cbranch_scc1 L_drain"))
    dl = cfg["delta"]
    for X, lo in ((0, 32 - dl), (1, 16 - dl)):
        hi = lo + 15
        bs = (hi + cfg["br_dist"]) % 32
        front[bs].insert(0, (8, f"s_cbranch_vccnz L_fb{X}_{kl}"))
        front[bs].insert(1, (0, f"L_fb{X}_ret_{kl}:"))
        valu[bs].insert(0, (4, f"v_add_f32 v{L_[X]}, v{L_[X]}, v{TS_[X][0]}"))
        tramps.append((f"L_fb{X}_{kl}", f"L_sub_fb{X}", f"L_fb{X}_ret_{kl}"))
    if peel is not None:
        _, _, valu_r, _ = plan_body(k, cfg)
        for g_ in range(32):
            valu[g_] = [x for x in valu_r[g_] if not x[1].startswith("v_readlane")]
        return pre, front, valu, tail
    for X, lo in ((0, 32 - dl), (1, 16 - dl)):
        gaps = [(lo + j) % 32 for j in range(16)]
        st = sm_stream(X) + [(4, f"v_cmp_lt_f32 vcc, s{s_thr[X]}, v{TS_[X][0]}")]
        tot = sum(c for c, _ in st)
        free = [max(0, 24 - sum(c for c, _ in front[g]) - sum(c for c, _ in valu[g])) for g in gaps]
        for n_, g in enumerate(gaps):
            if g in cfg["empty_gaps"]:
                free[n_] = 0
        ftot = sum(free)
        assert ftot >= tot, (ftot, tot)
        acc = 0.0; done = 0; idx = 0
        for n_, g in enumerate(gaps):
            acc += free[n_] * tot / ftot
            used = 0
            while idx < len(st) and used + st[idx][0] <= free[n_] and len(valu[g]) < 5 and \
                    (done + st[idx][0] / 2.0 <= acc or n_ == 15):
                valu[g].append(st[idx]); done += st[idx][0]; used += st[idx][0]; idx += 1
        assert idx == len(st), (X, idx, len(st))
    return pre, front, valu, tail


def skip(t, cfg):
    if cfg.get("no_dma") and t.startswith("buffer_load"): return True
    if cfg.get("no_lds") and t.startswith("ds_read"): return True
    if cfg.get("no_sm") and (t.startswith("v_exp") or t.startswith("v_add_f32") or t.startswith("v_cvt")): return True
    if cfg.get("no_mfma") and t.startswith("v_mfma"): return True
    return False


def emit_body(a, k, tramps, cfg, peel=None, vm=None):
    D = cfg["depth"]
    mf = [mfma_qk(1, s) for s in range(8)] + [mfma_pv(1, f) for f in range(8)] + \
         [mfma_qk(0, s) for s in range(8)] + [mfma_pv(0, f) for f in range(8)]
    pre, front, valu, tail = plan_body(k, cfg, tramps, peel)
    a.label(f"L_body_{k}" if peel is None else f"L_body_p{k}")
    if cfg.get("stamp"):
        a(f"""
        s_memtime s[90:91]
        s_mov_b32 m0, s{s_i}
        s_waitcnt lgkmcnt(0)
        v_writelane_b32 v{VT+12}, s90, m0
        """)
    bp = cfg["bar_period"]
    if k % bp == 0:
        a(f"s_waitcnt vmcnt({4*(D-bp) if vm is None else vm})")
        if not cfg.get("no_bar"):
            a("s_barrier")
    if cfg.get("stamp"):
        a(f"""
        s_memtime s[90:91]
        s_waitcnt lgkmcnt(0)
        v_writelane_b32 v{VT+13}, s90, m0
        """)
    for i in range(32):
        seq = pre[i] + [mf[i]] + [t for _, t in front[i]] + [t for _, t in valu[i]] + tail[i]
        for t in seq:
            if t.endswith(":"):
                a.label(t[:-1])
            elif not skip(t, cfg):
                a(t)
    if k == 7 and peel is None:
        a("s_branch L_body_0")


def emit_rowmax(a, X, mx, t1):
    S = S_[X]
    out = [f"v_max3_f32 v{mx}, v{S}, v{S+1}, v{S+2}"]
    for r in range(3, 15, 2):
        out.append(f"v_max3_f32 v{mx}, v{mx}, v{S+r}, v{S+r+1}")
    out += [f"v_max_f32 v{mx}, v{mx}, v{S+15}", f"v_mov_b32 v{t1}, v{mx}", "s_nop 1",
            f"v_permlane32_swap_b32 v{mx}, v{t1}", "s_nop 1", f"v_max_f32 v{mx}, v{mx}, v{t1}"]
    return out


def emit_fallback(a, X):
    S = S_[X]; C = C_[X]; O = O_[X]; P = P_[X]
    mx, t1, f = VT, VT + 1, VT + 3
    a.label(f"L_sub_fb{X}")
    a("s_nop 7")
    for t in emit_rowmax(a, X, mx, t1):
        a(t)
    a(f"""
    v_max_f32 v{mx}, 0, v{mx}
    v_exp_f32 v{f}, -v{mx}
    v_add_f32 v{M_[X]}, v{M_[X]}, v{mx}
    """)
    for r in range(16):
        a(f"v_sub_f32 v{C+r}, v{C+r}, v{mx}")
        a(f"v_sub_f32 v{S+r}, v{S+r}, v{mx}")
    a(f"v_mul_f32 v{L_[X]}, v{L_[X]}, v{f}")
    for r in range(64):
        a(f"v_mul_f32 v{O+r}, v{O+r}, v{f}")
    for c, t in sm_stream(X, VT + 4):
        a(t)
    a(f"""
    s_nop 3
    s_setpc_b64 s[{s_ret}:{s_ret+1}]
    """)


def emit_patch(a):
    ninf = VT
    a.label("L_sub_patch")
    a(f"""
    s_nop 7
    v_mov_b32 v{ninf}, 0xff800000
    """)
    for r in range(16):
        cst = 8 * (r >> 2) + (r & 3)
        a(f"""
        s_sub_i32 s{s_mine+1}, s{s_rem}, {cst}
        v_cmp_gt_i32 vcc, s{s_mine+1}, v{VH4}
        s_nop 1
        v_cndmask_b32 v{C_[0]+r}, v{ninf}, v{C_[0]+r}, vcc
        v_cndmask_b32 v{C_[1]+r}, v{ninf}, v{C_[1]+r}, vcc
        """)
    a(f"""
    s_nop 3
    s_setpc_b64 s[{s_ret}:{s_ret+1}]
    """)


MAPS = {
    0: f"""s_lshr_b32 s{s_h}, s{s_wg}, 1
    s_and_b32 s{s_h}, s{s_h}, 3
    s_and_b32 s{s_t0}, s{s_wg}, 1
    s_lshl_b32 s{s_t0}, s{s_t0}, 5
    s_lshr_b32 s{s_slot}, s{s_wg}, 3
    s_or_b32 s{s_slot}, s{s_slot}, s{s_t0}""",
    2: f"""s_lshr_b32 s{s_h}, s{s_wg}, 1
    s_and_b32 s{s_h}, s{s_h}, 3
    s_lshr_b32 s{s_slot}, s{s_wg}, 3
    s_cmp_lt_u32 s{s_slot}, 30
    s_cselect_b32 s{s_t0}, s{s_slot}, 63
    s_add_u32 s{s_slot}, s{s_slot}, 30
    s_and_b32 s{s_t0+1}, s{s_wg}, 1
    s_cmp_eq_u32 s{s_t0+1}, 0
    s_cselect_b32 s{s_slot}, s{s_t0}, s{s_slot}""",
    1: f"""s_lshr_b32 s{s_h}, s{s_wg}, 3
    s_and_b32 s{s_h}, s{s_h}, 3
    s_and_b32 s{s_t0}, s{s_wg}, 7
    s_lshl_b32 s{s_t0}, s{s_t0}, 3
    s_lshr_b32 s{s_slot}, s{s_wg}, 5
    s_or_b32 s{s_slot}, s{s_slot}, s{s_t0}""",
}


def emit_pad(a, us, tag):
    a(f"s_add_u32 s92, s100, {int(us*100)}")
    a.label(f"L_pad_{tag}")
    a(f"""
    s_sleep 2
    s_memrealtime s[90:91]
    s_waitcnt lgkmcnt(0)
    s_sub_u32 s93, s92, s90
    s_cmp_gt_i32 s93, 0
    s_cbranch_scc1 L_pad_{tag}
    """)


def emit_main(a, cfg):
    K = NAME + "_kernel"
    D = cfg["depth"]
    assert D <= 7
    a.raw(f".globl {K}\n.p2align 8\n.type {K},@function")
    a.label(K)
    t0, t1, t2, t3 = VT + 11, VT + 12, VT + 13, VT + 14
    VCL = VT + 10
    def sstamp(n):
        if cfg.get("stamp"):
            a(f"""
            s_memtime s[90:91]
            s_waitcnt lgkmcnt(0)
            s_mov_b32 s{n}, s90
            """)
    def pstamp(n):
        if cfg.get("stamp"):
            a(f"""
            s_memtime s[90:91]
            s_waitcnt lgkmcnt(0)
            v_writelane_b32 v{VT+12}, s90, {40+n}
            """)
    a(f"""
    s_cmp_ge_u32 s{s_wg}, 256
    s_cbranch_scc1 L_end
    s_load_dwordx16 s[4:19], s[0:1], 0
    v_lshrrev_b32 v{VT}, 6, v0
    v_and_b32 v{VLANE}, 63, v0
    v_readfirstlane_b32 s{s_w}, v{VT}
    {MAPS[cfg["map"]]}
    v_and_b32 v{VT+1}, 7, v{VLANE}
    v_lshlrev_b32 v{VT+1}, 2, v{VT+1}
    v_lshlrev_b32 v{VT+2}, 7, v{VLANE}
    """)
    if cfg["fused"]:
        a(f"s_memrealtime s[{s_mine}:{s_mine+1}]")
    if cfg.get("stamp"):
        a("s_memtime s[92:93]")
    if cfg.get("stamp") or cfg.get("pad_to_us") or cfg.get("pad_le") or cfg.get("pad_ls") or cfg.get("pad_pub"):
        a("s_memrealtime s[100:101]")
    a(f"""
    s_and_b32 s{s_t0}, s{s_w}, 1
    s_lshl_b32 s{s_t0}, s{s_t0}, 3               ; 8*(w&1)
    s_lshl_b32 s{s_t0+1}, s{s_h}, 8              ; h*256
    v_lshrrev_b32 v{t0}, 4, v{VLANE}             ; l>>4
    v_and_b32 v{t1}, 15, v{VLANE}                ; pc
    v_add_u32 v{t2}, s{s_t0}, v{t0}              ; R&15 for x=0
    v_xor_b32 v{t3}, v{t1}, v{t2}
    v_lshlrev_b32 v{t3}, 4, v{t3}
    v_lshl_add_u32 v{t3}, v{t2}, 10, v{t3}
    v_add_u32 v{VOFFK}, s{s_t0+1}, v{t3}
    v_add_u32 v{t2}, 4, v{t2}                    ; R&15 for x=1
    v_xor_b32 v{t3}, v{t1}, v{t2}
    v_lshlrev_b32 v{t3}, 4, v{t3}
    v_lshl_add_u32 v{t3}, v{t2}, 10, v{t3}
    v_add_u32 v{t3}, s{s_t0+1}, v{t3}
    v_add_u32 v{VOFFK+1}, 0xfffffc00, v{t3}
    v_lshlrev_b32 v{t3}, 2, v{t0}
    v_xor_b32 v{t3}, v{t1}, v{t3}
    v_lshlrev_b32 v{t3}, 4, v{t3}
    v_add_u32 v{t2}, s{s_t0}, v{t0}
    v_lshl_add_u32 v{t3}, v{t2}, 10, v{t3}
    v_add_u32 v{VOFFV}, s{s_t0+1}, v{t3}
    v_add_u32 v{VOFFV+1}, 0xc00, v{VOFFV}        ; +4096 -1024
    s_lshl_b32 s{s_m0k}, s{s_w}, 11
    s_add_u32 s{s_m0v}, s{s_m0k}, 0x10000
    s_mov_b32 s{s_thr[0]}, 0x{f32bits(2.0**cfg["thr_log2"]):x}
    s_mov_b32 s{s_thr[1]}, 0x{f32bits(2.0**cfg["thr_log2"]):x}
    s_mov_b32 s{s_i}, 0
    s_mov_b32 s{s_idx}, {D+1+cfg["peel"]}
    v_lshrrev_b32 v{t0}, 5, v{VLANE}            ; h2
    v_lshlrev_b32 v{VH4}, 2, v{t0}
    v_lshrrev_b32 v{t2}, 4, v{VLANE}
    v_xor_b32 v{t3}, v{t1}, v{t2}
    v_lshlrev_b32 v{t3}, 4, v{t3}
    v_lshl_add_u32 v{ET}, v{t2}, 8, v{t3}        ; Q voffset (j&3 == 0)
    v_xor_b32 v{ET+1}, 64, v{ET}
    v_xor_b32 v{ET+2}, 0x80, v{ET}
    v_xor_b32 v{ET+3}, 0xc0, v{ET}
    v_lshlrev_b32 v{ET+4}, 3, v{VLANE}
    s_lshl_b32 s{s_qlds}, s{s_w}, 13
    s_add_u32 s{s_qlds}, s{s_qlds}, 0x20000      ; Q_A staging : 128K + w*8K
    s_and_b32 s{s_t0}, s{s_w}, 1
    s_lshl_b32 s{s_t0}, s{s_t0}, 13
    s_lshr_b32 s{s_t0+1}, s{s_w}, 1
    s_lshl_b32 s{s_t0+1}, s{s_t0+1}, 16
    s_add_u32 s{s_t0}, s{s_t0}, s{s_t0+1}
    s_add_u32 s{s_qlds+1}, s{s_t0}, 0xc000
    s_waitcnt lgkmcnt(0)
    """)
    emit_srd(a, SRD_X, s_cl, 32)
    a(f"buffer_load_dword v{VCL}, v{VT+1}, s[{SRD_X}:{SRD_X+3}], 0 offen")
    emit_srd(a, SRD_BT, s_bt, BT_BYTES)
    emit_srd(a, SRD_Q, s_q, Q_BYTES)
    nwarm = 0
    if cfg["warm"]:
        a(f"""
        s_lshr_b32 s{s_t0}, s{s_wg}, 3
        s_lshr_b32 s{s_t0+1}, s{s_t0}, 2
        s_lshl_b32 s{s_t0+1}, s{s_t0+1}, 18          ; b*262144
        s_and_b32 s{s_t0+2}, s{s_t0}, 3
        s_lshl_b32 s{s_t0+2}, s{s_t0+2}, 14
        s_add_u32 s{s_t0+1}, s{s_t0+1}, s{s_t0+2}
        s_lshl_b32 s{s_t0+2}, s{s_h}, 16
        s_add_u32 s{s_t0+1}, s{s_t0+1}, s{s_t0+2}
        s_lshl_b32 s{s_t0+2}, s{s_w}, 13
        s_add_u32 s{s_t0+1}, s{s_t0+1}, s{s_t0+2}
        s_lshl_b32 s{s_t0}, s{s_t0}, 9
        s_cmp_lt_u32 s{s_w}, 2
        s_cselect_b32 s{s_t0+1}, s{s_t0+1}, 0x80000000
        s_cmp_eq_u32 s{s_w}, 2
        s_cselect_b32 s{s_t0}, s{s_t0}, 0x80000000
        v_min_u32 v{VT+3}, 0x180, v{VT+2}
        buffer_load_dword v{P_[0]}, v{VT+2}, s[{SRD_Q}:{SRD_Q+3}], s{s_t0+1} offen
        buffer_load_dword v{P_[0]+1}, v{VT+3}, s[{SRD_BT}:{SRD_BT+3}], s{s_t0} offen
        """)
        nwarm = 2
    if cfg["cwarm"]:
        a(f"""
        s_getpc_b64 s[{SRD_K}:{SRD_K+1}]
        """)
        a.label("L_pc0")
        a(f"""
        s_and_b32 s{SRD_K+1}, s{SRD_K+1}, 0xffff
        s_mov_b32 s{SRD_K+2}, L_code_end-L_pc0
        s_mov_b32 s{SRD_K+3}, 0x20000
        s_lshl_b32 s{s_t0}, s{s_w}, 13
        buffer_load_dword v{P_[0]+2}, v{VT+2}, s[{SRD_K}:{SRD_K+3}], s{s_t0} offen
        """)
        nwarm += 1
    emit_srd(a, SRD_K, s_k, KV_BYTES)
    emit_srd(a, SRD_V, s_v, KV_BYTES)
    emit_srd(a, SRD_WS, s_ws, WS_BYTES)
    sstamp(88)
    a(f"""
    v_and_b32 v{t1}, 31, v{VLANE}               ; key / q
    v_and_b32 v{t2}, 15, v{VLANE}
    v_xor_b32 v{t2}, v{t2}, v{t0}               ; (key&15)^h2
    v_lshlrev_b32 v{t2}, 4, v{t2}
    v_lshl_add_u32 v{KADDR}, v{t1}, 8, v{t2}
    """)
    for s in range(1, 8):
        a(f"v_xor_b32 v{KADDR+s}, {s << 5}, v{KADDR}")
    a(f"""
    v_bfe_u32 v{t1}, v{VLANE}, 2, 2              ; r
    v_add_u32 v{t2}, v{VH4}, v{t1}               ; 4h2 + r
    v_lshlrev_b32 v{t2}, 8, v{t2}
    v_bfe_u32 v{t3}, v{VLANE}, 4, 1              ; sub
    v_lshl_add_u32 v{t2}, v{t3}, 5, v{t2}
    v_and_b32 v{t3}, 3, v{VLANE}                 ; c
    v_lshl_add_u32 v{t2}, v{t3}, 3, v{t2}
    v_add_u32 v{t2}, 0x10000, v{t2}
    v_lshl_add_u32 v{VADDR}, v{t1}, 6, v{t2}     ; dt=0 : (0^r)<<6
    """)
    for dt in range(1, 4):
        a(f"v_xor_b32 v{VADDR+dt}, {dt << 6}, v{VADDR}")
    a(f"s_waitcnt vmcnt({nwarm})")
    sstamp(89)
    st = s_t0
    R = emit_partition(a, VLANE, VCL, VT, st)
    sn, sincl, sLm1, scl, sq, sr, sj = st + 4, st + 5, st + 6, st + 7, st + 8, st + 9, st + 10
    SKEW1 = SKEW2 = ""
    if cfg.get("skew"):
        sh = cfg["skew"]
        g0, g1 = st + 11, st + 12
        SKEW1 = f"""s_sub_u32 s{g0}, s{sn}, s{sj}
    s_mul_i32 s{g1}, s{g0}, s{sj}                ; j*(nb-j)
    s_add_u32 s{st}, s{g1}, s{g0}
    s_sub_u32 s{st}, s{st}, s{sj}
    s_sub_u32 s{st}, s{st}, 1                    ; (j+1)*(nb-j-1)
    s_lshr_b32 s{g0}, s{g1}, {sh}
    s_lshr_b32 s{g1}, s{st}, {sh}
    s_cmp_gt_u32 s{sq}, s{sn}
    s_cselect_b32 s{g0}, s{g0}, 0
    s_cselect_b32 s{g1}, s{g1}, 0
    s_sub_u32 s{s_start}, s{s_start}, s{g0}"""
        SKEW2 = f"""s_add_u32 s{s_n}, s{s_n}, s{g0}
    s_sub_u32 s{s_n}, s{s_n}, s{g1}"""
    a(f"""
    v_cmp_lt_u32 vcc, s{s_slot}, v{R['incl']}
    s_and_b64 vcc, vcc, s[{st+2}:{st+3}]
    s_cbranch_scc0 L_end
    s_ff1_i32_b64 s{st}, vcc
    s_and_b32 s{s_b}, s{st}, 7
    v_readlane_b32 s{sn}, v{R['n']}, s{st}
    v_readlane_b32 s{sincl}, v{R['incl']}, s{st}
    v_readlane_b32 s{sq}, v{R['q']}, s{st}
    v_readlane_b32 s{sr}, v{R['r']}, s{st}
    v_readlane_b32 s{sLm1}, v{R['Lm1']}, s{st}
    v_readlane_b32 s{scl}, v{VCL}, s{st}
    s_lshl_b32 s{st+2}, s{s_b}, 5
    s_lshl_b32 s{st+1}, s{s_h}, 3
    s_add_u32 s{st+2}, s{st+2}, s{st+1}
    s_lshl_b32 s{st+1}, s{s_w}, 1
    s_add_u32 s{st+2}, s{st+2}, s{st+1}
    s_lshl_b32 s{st+2}, s{st+2}, 13              ; Q base = ((b*32 + 8h + 2w)*32)*256
    s_add_u32 s{st+3}, s{st+2}, 0x2000
    s_sub_u32 s{sj}, s{sincl}, s{sn}
    s_sub_u32 s{sj}, s{s_slot}, s{sj}            ; j = slot - E_b
    s_mul_i32 s{s_start}, s{sj}, s{sq}
    s_min_u32 s{st}, s{sj}, s{sr}
    s_add_u32 s{s_start}, s{s_start}, s{st}
    {SKEW1}
    s_lshl_b32 s{st}, s{s_b}, 9
    s_lshl_b32 s{st+1}, s{s_start}, 1
    s_add_u32 s{st}, s{st}, s{st+1}
    s_lshr_b32 s{st+1}, s{s_w}, 1
    s_add_u32 s{st}, s{st}, s{st+1}
    s_lshl_b32 s{st}, s{st}, 2
    buffer_load_dword v{PAGES}, v{ET+4}, s[{SRD_BT}:{SRD_BT+3}], s{st} offen
    """)
    def qload(X):
        for hf in range(2):
            a(f"s_add_u32 m0, s{s_qlds+X}, {4096*hf}")
            a(f"s_add_u32 s{s_qb+2}, s{s_qb+X}, {4096*hf}")
            for j in range(4):
                a(f"buffer_load_dwordx4 v{ET+j}, s[{SRD_Q}:{SRD_Q+3}], s{s_qb+2} offen offset:{1024*j} lds")
    a(f"""
    s_mov_b32 s{s_qb}, s{st+2}
    s_mov_b32 s{s_qb+1}, s{st+3}
    """)
    qload(0)
    a(f"""
    s_cmp_lt_u32 s{sj}, s{sr}
    s_addc_u32 s{s_n}, s{sq}, 0                  ; n = q + (j<r)
    {SKEW2}
    s_min_u32 s{s_n}, s{s_n}, 54
    s_and_b32 s{s_rem}, s{sLm1}, 31
    s_add_u32 s{s_rem}, s{s_rem}, 1
    s_add_u32 s{st}, s{sj}, 1
    s_cmp_eq_u32 s{st}, s{sn}
    s_cselect_b32 s{s_rem}, s{s_rem}, 32
    s_sub_u32 s{s_patch}, s{s_n}, 2
    s_cmp_lt_u32 s{s_rem}, 32
    s_cselect_b32 s{s_patch}, s{s_patch}, 0x7fffffff
    s_mov_b32 s{s_scale}, 0x{f32bits(SCALE):x}
    s_cmp_lt_i32 s{scl}, 1
    s_cselect_b32 s{s_scale}, 0, s{s_scale}
    s_mov_b32 s{s_scale+1}, s{s_scale}
    s_lshl_b32 s{s_wgslot}, s{s_h}, 6
    s_add_u32 s{s_wgslot}, s{s_wgslot}, s{s_slot}
    s_min_u32 s{s_nb}, s{sn}, 64
    s_mov_b32 s{s_jj}, s{sj}
    s_sub_u32 s{s_E}, s{s_wgslot}, s{sj}
    """)
    sstamp(93)
    nz = cfg["zero_early"]
    for r in range(64, 64 + nz):
        a(f"v_mov_b32 v{r}, 0")
    a(f"""
    v_mov_b32 v{t2}, 0x80000000
    v_cmp_gt_u32 vcc, s{s_n}, v{VLANE}
    s_waitcnt vmcnt(8)
    v_lshlrev_b32 v{PAGES}, 14, v{PAGES}
    v_cndmask_b32 v{PAGES}, v{t2}, v{PAGES}, vcc
    s_nop 0
    """)
    PEEL = cfg["peel"]
    NPRE = D - PEEL
    for j in range(D + 1 + PEEL):
        a(f"v_readlane_b32 s{st+j}, v{PAGES}, {j}")
    a("s_nop 3")
    vm = ["QA"] * 8
    def vwait(tag):
        idx = max(i for i, t in enumerate(vm) if t == tag)
        a(f"s_waitcnt vmcnt({len(vm) - 1 - idx})")
    def issue(lst, tag):
        a(lst[0]); a("s_nop 0"); a(lst[2]); a(lst[3])
        vm.extend([tag, tag])
    pairs = [("K", 0)]
    for j in range(NPRE):
        pairs += [("K", j + 1), ("V", j)]
    def pair():
        if not pairs:
            return
        kind, j = pairs.pop(0)
        issue(dma_k(None, j, st + j) if kind == "K" else dma_v(None, j, st + j), f"{kind}{j}")
    QRAW = {0: 0, 1: 128}
    def qread(X):
        for s in range(8):
            a(f"v_add_u32 v{VT+4+s}, s{s_qlds+X}, v{KADDR+s}")
        for s in range(8):
            r = QRAW[X] + 4 * s
            a(f"ds_read_b128 v[{r}:{r+3}], v{VT+4+s}")
    def prescale(X, packed):
        out = []
        for i in range(32):
            r = QRAW[X] + i
            ta, tb = VT + (i & 1) * 2, VT + (i & 1) * 2 + 1
            g = []
            if i % 4 == 0:
                g.append(f"s_waitcnt lgkmcnt({7 - i // 4})")
            g += [f"v_lshlrev_b32 v{ta}, 16, v{r}", f"v_and_b32 v{tb}, 0xffff0000, v{r}"]
            if packed(i):
                g.append(f"v_pk_mul_f32 v[{ta}:{tb}], v[{ta}:{tb}], s[{s_scale}:{s_scale+1}]")
            else:
                g += [f"v_mul_f32 v{ta}, s{s_scale}, v{ta}", f"v_mul_f32 v{tb}, s{s_scale}, v{tb}"]
            g += [f"v_cvt_pk_bf16_f32 v{ta}, v{ta}, v{tb}", f"v_accvgpr_write_b32 a{32*X+i}, v{ta}"]
            out.append(g)
        return out
    pstamp(0)
    for _ in range(cfg["pp0"]):
        pair()
    qload(1); vm.extend(["QB"] * 8)
    for _ in range(cfg["pp1"]):
        pair()
    pstamp(1)
    for r in list(range(64 + nz, 128)) + list(range(160, 208)) + list(range(32, 64)):
        a(f"v_mov_b32 v{r}, 0")
    for r in range(32):
        a(f"v_accvgpr_write_b32 a{AV+r}, 0")
    a(f"""
    v_mov_b32 v{L_[0]}, 0
    v_mov_b32 v{L_[1]}, 0
    s_cmp_eq_u32 s{s_patch}, -1
    s_cbranch_scc0 L_nopatch0
    s_call_b64 s[{s_ret}:{s_ret+1}], L_sub_patch
    """)
    a.label("L_nopatch0")
    vwait("QA")
    pstamp(10)
    qread(0)
    for i, g in enumerate(prescale(0, lambda i: cfg["pk"])):
        for t in g:
            a(t)
        if i in cfg["ppA"]:
            pair()
    pstamp(2)
    vwait("QB")
    pstamp(11)
    qread(1)
    for i, g in enumerate(prescale(1, lambda i: cfg["pk"])):
        for t in g:
            a(t)
        if i in cfg["ppB"]:
            pair()
    pstamp(3)
    vwait("K0")
    pstamp(4)
    a("s_barrier")
    pstamp(12)
    for s in range(8):
        a(k_read(s, 0))
    for s in range(8):
        a(f"s_waitcnt lgkmcnt({7-s})")
        a(mfma_qk(0, s))
        if s in cfg["ppQ"]:
            pair()
        for r in range(128 + 4 * s, 132 + 4 * s):
            a(f"v_mov_b32 v{r}, 0")
    a(mfma_qk(1, 0))
    a("s_nop 7")
    mxa = emit_rowmax(a, 0, M_[0], VT)
    mxa += [f"v_sub_f32 v{S_[0]+r}, v{S_[0]+r}, v{M_[0]}" for r in range(16)]
    mxa += [f"v_sub_f32 v{C_[0]+r}, v{C_[0]+r}, v{M_[0]}" for r in range(16)]
    for s in range(1, 8):
        a(mfma_qk(1, s))
        for _ in range(5):
            a(mxa.pop(0))
    while pairs:
        pair()
    a(f"s_mov_b32 s{s_pg[(PEEL & 1) ^ 1]}, s{st+D+PEEL}")
    while mxa:
        a(mxa.pop(0))
    a("s_nop 7")
    for t in emit_rowmax(a, 1, M_[1], VT):
        a(t)
    for r in range(16):
        a(f"v_sub_f32 v{C_[1]+r}, v{C_[1]+r}, v{M_[1]}")
    if cfg["fused"]:
        emit_srd(a, SRD_X, s_dbg, 256)
        a(f"""
        s_or_b32 s{s_mine}, s{s_mine}, 1
        v_mov_b32 v{VT+10}, s{s_mine}
        v_mov_b32 v{VT+11}, 0
        s_cmp_eq_u32 s{s_w}, 0
        s_cselect_b32 s{s_mine+1}, 0, 0x80000000
        s_mov_b64 exec, 1
        buffer_atomic_cmpswap v[{VT+10}:{VT+11}], v{VT+11}, s[{SRD_X}:{SRD_X+3}], s{s_mine+1} offen sc0
        s_mov_b64 exec, -1
        """)
    sstamp(94)
    sstamp(95)
    if cfg.get("pad_ls"):
        emit_pad(a, cfg["pad_ls"], "ls")
    pre, front, valu, tail = plan_body(7, cfg)
    hd = [t for g in range(32 - cfg["delta"], 32) for _, t in valu[g]
          if not t.startswith(f"v_add_f32 v{L_[1]},")]
    for t in hd:
        a(t)
    a("s_nop 1")
    tramps = []
    for k in range(PEEL):
        issued = NPRE + 2 * k
        need = k + cfg["bar_period"]
        assert issued >= need
        emit_body(a, k, tramps, cfg, peel=(NPRE + 2 * k, st), vm=4 * (issued - need))
    if PEEL:
        a(f"s_branch L_body_{PEEL}")
    for k in range(8):
        emit_body(a, k, tramps, cfg)
    a.label("L_drain")
    if cfg.get("pad_le"):
        emit_pad(a, cfg["pad_le"], "le")
    if cfg.get("stamp"):
        a(f"""
        s_memtime s[90:91]
        s_waitcnt lgkmcnt(0)
        s_mov_b32 s96, s90
        """)
    stf = cfg['st_flags']
    s_own, s_wlo, s_lo, s_hi = 44, 45, 46, 47
    VLD = VT + 5
    def conv(X, dt):
        o = O_[X] + 16 * dt
        d = 8 * (4 * X + dt)
        out = [f"v_cvt_pk_bf16_f32 v{d+j}, v{o+2*j}, v{o+2*j+1}" for j in range(8)]
        out.append(f"s_add_u32 s{st+1}, s{st}, {X*8192 + dt*2048}")
        for kp in range(2):
            f = 8 * X + 2 * dt + kp
            gs = f"buffer_store_dwordx4 v[{d+4*kp}:{d+4*kp+3}], v{VT+4}, s[{SRD_WS}:{SRD_WS+3}], s{st+1} offen offset:{1024*kp}{stf}"
            if cfg["fused"]:
                out.append(f"""s_bitcmp1_b32 s{s_own}, {f}
                s_cbranch_scc1 L_own_{f}
                {gs}
                s_branch L_own_r{f}
                L_own_{f}:
                ds_write_b128 v{VLD}, v[{d+4*kp}:{d+4*kp+3}] offset:{1024*f}
                L_own_r{f}:""")
            else:
                out.append(gs)
        return out
    def put(t):
        for l in t.split("\n"):
            l = l.strip()
            if l.endswith(":"):
                a.label(l[:-1])
            elif l:
                a(l)
    ep = f"""
    v_mov_b32 v{VT}, v{L_[0]}
    v_mov_b32 v{VT+1}, v{L_[1]}
    s_lshl_b32 s{st}, s{s_wgslot}, 16
    s_lshl_b32 s{st+1}, s{s_w}, 14
    s_add_u32 s{st}, s{st}, s{st+1}
    v_permlane32_swap_b32 v{L_[0]}, v{VT}
    v_permlane32_swap_b32 v{L_[1]}, v{VT+1}
    v_lshlrev_b32 v{VT+4}, 4, v{VLANE}
    v_mov_b32 v{VT+6}, v{M_[0]}
    v_add_f32 v{VT+7}, v{L_[0]}, v{VT}
    v_mov_b32 v{VT+8}, v{M_[1]}
    v_add_f32 v{VT+9}, v{L_[1]}, v{VT+1}
    """.strip().split("\n")
    if cfg["fused"]:
        ep += f"""
    s_lshl_b32 s{s_lo}, s{s_jj}, 2
    v_add_u32 v{VT}, s{s_lo}, v{VLANE}
    v_lshlrev_b32 v{VT}, 4, v{VT}
    v_cvt_f32_u32 v{VT}, v{VT}
    v_cvt_f32_u32 v{VT+1}, s{s_nb}
    v_rcp_f32 v{VT+1}, v{VT+1}
    v_add_f32 v{VT}, 0.5, v{VT}
    s_add_u32 s{s_hi}, s{s_w}, 1
    v_mul_f32 v{VT}, v{VT}, v{VT+1}
    v_cvt_u32_f32 v{VT}, v{VT}
    s_lshl_b32 s{st+2}, s{s_w}, 4
    v_readlane_b32 s{s_wlo}, v{VT}, 0
    v_readlane_b32 s{s_own}, v{VT}, 4
    v_readlane_b32 s{s_hi}, v{VT}, s{s_hi}
    v_readlane_b32 s{s_lo}, v{VT}, s{s_w}
    s_sub_u32 s{s_own}, s{s_own}, s{s_wlo}
    s_bfm_b64 s[{st+4}:{st+5}], s{s_own}, s{s_wlo}
    s_lshr_b64 s[{st+4}:{st+5}], s[{st+4}:{st+5}], s{st+2}
    s_cmp_ge_u32 s{s_nb}, 3
    s_cselect_b32 s{s_own}, s{st+4}, 0
    s_sub_u32 s{st+2}, s{st+2}, s{s_wlo}
    s_lshl_b32 s{st+2}, s{st+2}, 10
    s_add_u32 s{st+2}, s{st+2}, 0x20000
    v_add_u32 v{VLD}, s{st+2}, v{VT+4}
    """.strip().split("\n")
    ep += conv(0, 0) + conv(0, 1) + conv(0, 2) + conv(0, 3)
    for f in range(8):
        a(mfma_pv(1, f))
        for _ in range(8):
            put(ep.pop(0))
    while ep:
        put(ep.pop(0))
    a("s_nop 7")
    for dt in range(4):
        for t in conv(1, dt):
            put(t)
    if cfg["fused"]:
        a(f"""
        s_lshl_b32 s{st}, s{s_wgslot}, 11
        s_lshl_b32 s{st+1}, s{s_w}, 4
        s_add_u32 s{st}, s{st}, s{st+1}
        s_add_u32 s{st}, s{st}, 0x{WS_ML:x}
        v_lshlrev_b32 v{VT+4}, 6, v{VLANE}
        v_add_u32 v{VLD}, s{st+1}, v{VT+4}
        v_mov_b32 v{VT}, v{VT+6}
        v_mov_b32 v{VT+1}, v{VT+7}
        v_mov_b32 v{VT+2}, v{VT+8}
        v_mov_b32 v{VT+3}, v{VT+9}
        v_add_u32 v{VLD}, 0x{LDS_ML:x}, v{VLD}
        s_mov_b32 exec_hi, 0
        buffer_store_dwordx4 v[{VT}:{VT+3}], v{VT+4}, s[{SRD_WS}:{SRD_WS+3}], s{st} offen{stf}
        ds_write_b128 v{VLD}, v[{VT}:{VT+3}]
        """)
    else:
        a(f"""
        s_lshl_b32 s{st}, s{s_wgslot}, 11
        s_lshl_b32 s{st+1}, s{s_w}, 9
        s_add_u32 s{st}, s{st}, s{st+1}
        s_add_u32 s{st}, s{st}, 0x{WS_ML:x}
        v_lshlrev_b32 v{VT+4}, 3, v{VLANE}
        s_mov_b32 exec_hi, 0
        buffer_store_dwordx2 v[{VT+6}:{VT+7}], v{VT+4}, s[{SRD_WS}:{SRD_WS+3}], s{st} offen{stf}
        buffer_store_dwordx2 v[{VT+8}:{VT+9}], v{VT+4}, s[{SRD_WS}:{SRD_WS+3}], s{st} offen offset:256{stf}
        """)
    if cfg["fused"]:
        emit_fused_combine(a, cfg, sstamp)
    if cfg.get("stamp"):
        a(f"""
        s_mov_b64 exec, -1
        s_waitcnt vmcnt(0)
        s_memtime s[90:91]
        s_memrealtime s[86:87]
        s_getreg_b32 s98, hwreg(HW_REG_XCC_ID)
        s_waitcnt lgkmcnt(0)
        v_mov_b32 v{VT+14}, 0
        v_writelane_b32 v{VT+14}, s92, 0
        v_writelane_b32 v{VT+14}, s93, 1
        v_writelane_b32 v{VT+14}, s94, 2
        v_writelane_b32 v{VT+14}, s95, 3
        v_writelane_b32 v{VT+14}, s96, 4
        v_writelane_b32 v{VT+14}, s90, 5
        v_writelane_b32 v{VT+14}, s{s_n}, 6
        v_writelane_b32 v{VT+14}, s98, 7
        v_writelane_b32 v{VT+14}, s100, 8
        v_writelane_b32 v{VT+14}, s86, 9
        v_writelane_b32 v{VT+14}, s88, 10
        v_writelane_b32 v{VT+14}, s89, 11
        v_writelane_b32 v{VT+14}, s97, 12
        v_writelane_b32 v{VT+14}, s99, 13
        v_writelane_b32 v{VT+14}, s{s_h}, 14
        s_lshl_b32 s{st}, s{s_wg}, 12
        s_lshl_b32 s{st+1}, s{s_w}, 10
        s_add_u32 s{st}, s{st}, s{st+1}
        s_add_u32 s{st}, s{st}, 0x{WS_DBG:x}
        v_lshlrev_b32 v{VT}, 2, v{VLANE}
        buffer_store_dword v{VT+12}, v{VT}, s[{SRD_WS}:{SRD_WS+3}], s{st} offen
        buffer_store_dword v{VT+13}, v{VT}, s[{SRD_WS}:{SRD_WS+3}], s{st} offen offset:256
        buffer_store_dword v{VT+14}, v{VT}, s[{SRD_WS}:{SRD_WS+3}], s{st} offen offset:512
        """)
    if cfg.get("pad_to_us"):
        a(f"""
        s_waitcnt vmcnt(0)
        s_add_u32 s92, s100, {int(cfg["pad_to_us"]*100)}
        """)
    if cfg.get("delay_us"):
        a(f"""
        s_memrealtime s[90:91]
        s_waitcnt lgkmcnt(0)
        s_add_u32 s92, s90, {int(cfg["delay_us"]*100)}
        """)
    if cfg.get("delay_us") or cfg.get("pad_to_us"):
        a.label("L_delay")
        a(f"""
        s_sleep 4
        s_memrealtime s[90:91]
        s_waitcnt lgkmcnt(0)
        s_sub_u32 s93, s92, s90
        s_cmp_gt_i32 s93, 0
        s_cbranch_scc1 L_delay
        """)
    a.label("L_end")
    a("s_endpgm")
    for lab, sub, ret in tramps:
        a.label(lab)
        a(f"s_call_b64 s[{s_ret}:{s_ret+1}], {sub}")
        a(f"s_branch {ret}")
    a.label("L_code_end")
    emit_fallback(a, 0)
    emit_fallback(a, 1)
    emit_patch(a)


def emit_fused_combine(a, cfg, sstamp):
    st = s_t0
    ldf = cfg["cld_flags"]
    s_own, s_wlo, s_lo, s_hi = 44, 45, 46, 47
    s_nonce, s_to, s_mask, s_done, s_rdy, s_r0 = 54, 55, 56, 62, 64, 78
    s_cnt, s_ni, s_o, s_ml = 68, 69, 70, 72
    s_sel = (None, 66, 76)
    SJ = lambda k: (48, 49, 50, 51, 71, 73, 84, 85)[k]
    OB = lambda k: 12 * k
    MLB = lambda k: 96 + 4 * k
    ACC = 160
    MX, DEN, MN, SC, W = (192, 193), (194, 195), (196, 197), (198, 199), (204, 205)
    U0, U1, WT = 200, 201, 211
    VO, VML, VOUT, VF, VFO, VA = 206, 207, 208, 209, 210, 212
    WSR = f"s[{SRD_WS}:{SRD_WS+3}]"
    LA = cfg["clook"]
    def cst(n):
        if cfg.get("stamp"):
            a(f"""
            s_memtime s[90:91]
            s_waitcnt lgkmcnt(0)
            v_writelane_b32 v{VT+12}, s90, {53+n}
            """)
    a(f"""
    s_mov_b64 exec, -1
    v_lshlrev_b32 v{VO}, 4, v{VLANE}
    v_and_b32 v{VML}, 31, v{VLANE}
    v_lshlrev_b32 v{VOUT}, 8, v{VML}
    v_lshl_add_u32 v{VOUT}, v{VH4}, 2, v{VOUT}   ; q*256 + h2*16
    v_lshlrev_b32 v{VML}, 6, v{VML}
    v_lshlrev_b32 v{VFO}, 2, v{VLANE}
    v_cmp_gt_u32 vcc, s{s_nb}, v{VLANE}
    s_mov_b64 s[{s_mask}:{s_mask+1}], vcc
    v_mov_b32 v{U0}, 0x{LDS_NONCE:x}
    s_lshl_b32 s{s_mine+1}, s{s_b}, 2
    s_add_u32 s{s_mine+1}, s{s_mine+1}, s{s_h}
    s_lshl_b32 s{s_mine+1}, s{s_mine+1}, 8
    s_add_u32 s{s_mine+1}, s{s_mine+1}, 0x{WS_FLAG:x}
    s_mov_b32 s{s_to}, {cfg["poll_max"]}
    """)
    emit_srd(a, SRD_X, s_out, Q_BYTES)
    if cfg.get("pad_pub"):
        a("s_waitcnt vmcnt(0) lgkmcnt(0)")
        emit_pad(a, cfg["pad_pub"], "pub")
    a(f"""
    s_waitcnt vmcnt(0)
    s_cmp_lg_u32 s{s_w}, 0
    s_cbranch_scc1 L_fc_nz
    v_readfirstlane_b32 s{s_nonce}, v{VT+10}
    s_lshl_b32 s{st}, s{s_jj}, 2
    s_add_u32 s{st}, s{st}, s{s_mine+1}
    s_cmp_eq_u32 s{s_nonce}, 0
    s_cselect_b32 s{s_nonce}, s{s_mine}, s{s_nonce}
    v_mov_b32 v{VF}, s{s_nonce}
    ds_write_b32 v{U0}, v{VF}
    """)
    a.label("L_fc_nz")
    a(f"""
    s_waitcnt lgkmcnt(0)
    s_barrier
    s_cmp_lg_u32 s{s_w}, 0
    s_cbranch_scc1 L_fc_nz2
    s_mov_b64 exec, 1
    buffer_store_dword v{VF}, v{VT+11}, {WSR}, s{st} offen sc1
    s_mov_b64 exec, -1
    """)
    a.label("L_fc_nz2")
    if cfg.get("wbl2"):
        a(f"""
        s_cmp_lg_u32 s{s_w}, 3
        s_cbranch_scc1 L_fc_nowb
        s_and_b32 s{st+2}, s{s_jj}, {cfg["wbl2"]-1}
        s_cmp_lg_u32 s{st+2}, 0
        s_cbranch_scc1 L_fc_nowb
        buffer_wbl2 sc1
        """)
        a.label("L_fc_nowb")
    sstamp(97)
    a(f"""
    ds_read_b32 v{VF}, v{U0}
    s_cmp_ge_u32 s{s_lo}, s{s_hi}
    s_cbranch_scc1 L_fc_end
    s_waitcnt lgkmcnt(0)
    v_readfirstlane_b32 s{s_nonce}, v{VF}
    """)
    a.label("L_fc_outer")
    a(f"""
    s_sub_u32 s{s_ni}, s{s_hi}, s{s_lo}
    s_min_u32 s{s_ni}, s{s_ni}, 3
    s_lshl_b32 s{s_o}, s{s_lo}, 10
    s_lshr_b32 s{st}, s{s_lo}, 3                 ; u0
    s_lshl_b32 s{s_ml}, s{st}, 3
    s_mov_b64 s[{s_done}:{s_done+1}], 0
    """)
    for t in (1, 2):
        a(f"""
        s_add_u32 s{st+1}, s{s_lo}, {t}
        s_lshr_b32 s{st+1}, s{st+1}, 3
        s_cmp_lg_u32 s{st+1}, s{st}
        s_cselect_b64 s[{s_sel[t]}:{s_sel[t]+1}], -1, 0
        """)
    a(f"""
    s_cmp_lt_u32 s{s_nb}, 3
    s_cbranch_scc1 L_fc_zero
    s_sub_u32 s{st}, s{s_lo}, s{s_wlo}
    s_lshl_b32 s{st}, s{st}, 10
    s_add_u32 s{st}, s{st}, 0x20000
    v_add_u32 v{VA}, s{st}, v{VO}
    s_add_u32 s{st}, s{s_ml}, 0x{LDS_ML:x}
    v_add_u32 v{VA+1}, s{st}, v{VML}
    ds_read_b128 v[0:3], v{VA}
    ds_read_b128 v[4:7], v{VA} offset:1024
    ds_read_b128 v[8:11], v{VA} offset:2048
    ds_read_b64 v[{MLB(0)}:{MLB(0)+1}], v{VA+1}
    ds_read_b64 v[{MLB(0)+2}:{MLB(0)+3}], v{VA+1} offset:8
    s_bitset1_b64 s[{s_done}:{s_done+1}], s{s_jj}
    s_waitcnt lgkmcnt(0)
    v_mov_b32 v{MX[0]}, v{MLB(0)}
    v_mov_b32 v{DEN[0]}, v{MLB(0)+1}
    v_mov_b32 v{MX[1]}, v{MLB(0)+2}
    v_mov_b32 v{DEN[1]}, v{MLB(0)+3}
    """)
    for r in range(12):
        a(f"""
        v_lshlrev_b32 v{ACC+2*r}, 16, v{r}
        v_and_b32 v{ACC+2*r+1}, 0xffff0000, v{r}
        """)
    a("s_branch L_fc_init")
    a.label("L_fc_zero")
    for X in range(2):
        a(f"v_mov_b32 v{MX[X]}, 0xff800000")
        a(f"v_mov_b32 v{DEN[X]}, 0")
    for r in range(24):
        a(f"v_mov_b32 v{ACC+r}, 0")
    a.label("L_fc_init")
    a(f"s_add_u32 s{s_ml}, s{s_ml}, 0x{WS_ML:x}")
    a.label("L_fc_poll")
    a(f"""
    buffer_load_dword v{VF}, v{VFO}, {WSR}, s{s_mine+1} offen sc1
    s_waitcnt vmcnt(0)
    v_cmp_eq_u32 vcc, s{s_nonce}, v{VF}
    s_and_b64 s[{s_rdy}:{s_rdy+1}], vcc, s[{s_mask}:{s_mask+1}]
    s_andn2_b64 s[{s_rdy}:{s_rdy+1}], s[{s_rdy}:{s_rdy+1}], s[{s_done}:{s_done+1}]
    s_cbranch_scc1 L_fc_go
    s_sleep {cfg["poll_sleep"]}
    s_sub_u32 s{s_to}, s{s_to}, 1
    s_cmp_lg_u32 s{s_to}, 0
    s_cbranch_scc1 L_fc_poll
    s_branch L_fc_store
    """)
    a.label("L_fc_go")
    sstamp(99)
    a(f"""
    s_mov_b64 s[{s_r0}:{s_r0+1}], s[{s_rdy}:{s_rdy+1}]
    v_mov_b32 v{MN[0]}, v{MX[0]}
    v_mov_b32 v{MN[1]}, v{MX[1]}
    """)
    for k in range(8):
        a(f"""
        s_ff1_i32_b64 s{st}, s[{s_rdy}:{s_rdy+1}]
        s_bitset0_b64 s[{s_rdy}:{s_rdy+1}], s{st}
        s_add_u32 s{st}, s{st}, s{s_E}
        s_lshl_b32 s{SJ(k)}, s{st}, 16
        s_lshl_b32 s{st}, s{st}, 11
        s_add_u32 s{st}, s{st}, s{s_ml}
        s_add_u32 s{SJ(k)}, s{SJ(k)}, s{s_o}
        s_mov_b32 s{s_cnt}, {k+1}
        buffer_load_dwordx4 v[{MLB(k)}:{MLB(k)+3}], v{VML}, {WSR}, s{st} offen{ldf}
        """)
        if k < 7:
            a(f"""
            s_cmp_eq_u64 s[{s_rdy}:{s_rdy+1}], 0
            s_cbranch_scc1 L_fc_taken
            """)
    a.label("L_fc_taken")
    a(f"""
    s_andn2_b64 s[{s_r0}:{s_r0+1}], s[{s_r0}:{s_r0+1}], s[{s_rdy}:{s_rdy+1}]
    s_or_b64 s[{s_done}:{s_done+1}], s[{s_done}:{s_done+1}], s[{s_r0}:{s_r0+1}]
    s_cmp_eq_u32 s{s_ni}, 2
    s_cbranch_scc1 L_fc_r2
    s_cmp_eq_u32 s{s_ni}, 3
    s_cbranch_scc1 L_fc_r3
    """)
    def sel(dst, pair, t):
        if t == 0:
            return None
        return f"v_cndmask_b32 v{dst}, v{pair[0]}, v{pair[1]}, s[{s_sel[t]}:{s_sel[t]+1}]"
    for NI in (1, 2, 3):
        tag = f"r{NI}"
        a.label(f"L_fc_{tag}")
        def oload(k):
            for c in range(NI):
                a(f"buffer_load_dwordx4 v[{OB(k)+4*c}:{OB(k)+4*c+3}], v{VO}, {WSR}, s{SJ(k)} offen offset:{1024*c}{ldf}")
        for k in range(7, -1, -1):
            a(f"""
            s_cmp_le_u32 s{s_cnt}, {k}
            s_cbranch_scc1 L_fc_{tag}_p{k}
            """)
            if k + LA < 8:
                a(f"""
                s_cmp_gt_u32 s{s_cnt}, {k + LA}
                s_cbranch_scc1 L_fc_{tag}_pd
                """)
            oload(k)
            a.label(f"L_fc_{tag}_p{k}")
        a.label(f"L_fc_{tag}_pd")
        cst(0)
        for c in range(1, LA):
            a(f"""
            s_cmp_eq_u32 s{s_cnt}, {c}
            s_cbranch_scc0 L_fc_{tag}_w{c}
            s_waitcnt vmcnt({NI*c})
            """)
            a.label(f"L_fc_{tag}_w{c}")
        a(f"s_waitcnt vmcnt({NI*LA})")
        cst(1)
        NSET = 1 if NI == 1 else 2
        for k in range(8):
            if k:
                a(f"""
                s_cmp_le_u32 s{s_cnt}, {k}
                s_cbranch_scc1 L_fc_{tag}_max
                """)
            for X in range(NSET):
                a(f"v_max_f32 v{MN[X]}, v{MN[X]}, v{MLB(k)+2*X}")
        a.label(f"L_fc_{tag}_max")
        for X in range(NSET):
            a(f"""
            v_sub_f32 v{SC[X]}, v{MX[X]}, v{MN[X]}
            v_exp_f32 v{SC[X]}, v{SC[X]}
            v_mov_b32 v{MX[X]}, v{MN[X]}
            """)
        for X in range(NSET):
            a(f"v_mul_f32 v{DEN[X]}, v{DEN[X]}, v{SC[X]}")
        for t in range(NI):
            if t:
                a(sel(WT, SC, t))
            for r in range(8):
                a(f"v_mul_f32 v{ACC+8*t+r}, v{ACC+8*t+r}, v{WT if t else SC[0]}")
        for k in range(7, -1, -1):
            if k:
                a(f"""
                s_cmp_le_u32 s{s_cnt}, {k}
                s_cbranch_scc1 L_fc_{tag}_u{k}
                """)
            if k - LA >= 0:
                oload(k - LA)
            for X in range(NSET):
                a(f"v_sub_f32 v{W[X]}, v{MLB(k)+2*X}, v{MN[X]}")
            for X in range(NSET):
                a(f"v_exp_f32 v{W[X]}, v{W[X]}")
            a("s_nop 0")
            for X in range(NSET):
                a(f"v_fmac_f32 v{DEN[X]}, v{W[X]}, v{MLB(k)+2*X+1}")
            for t in range(NI):
                if t:
                    a(sel(WT, W, t))
                a(f"s_waitcnt vmcnt({NI*min(k, LA) + NI - 1 - t})")
                for r in range(4):
                    u0, u1 = U0 + 2 * (r & 1), U1 + 2 * (r & 1)
                    a(f"""
                    v_lshlrev_b32 v{u0}, 16, v{OB(k)+4*t+r}
                    v_and_b32 v{u1}, 0xffff0000, v{OB(k)+4*t+r}
                    v_fmac_f32 v{ACC+8*t+2*r}, v{WT if t else W[0]}, v{u0}
                    v_fmac_f32 v{ACC+8*t+2*r+1}, v{WT if t else W[0]}, v{u1}
                    """)
            a.label(f"L_fc_{tag}_u{k}")
        cst(2)
        a(f"""
        s_cmp_lg_u64 s[{s_done}:{s_done+1}], s[{s_mask}:{s_mask+1}]
        s_cbranch_scc1 L_fc_poll
        """)
        if NI < 3:
            a("s_branch L_fc_store")
    a.label("L_fc_store")
    cst(3)
    a(f"""
    v_rcp_f32 v{SC[0]}, v{DEN[0]}
    v_rcp_f32 v{SC[1]}, v{DEN[1]}
    s_lshl_b32 s{st}, s{s_b}, 2
    s_add_u32 s{st}, s{st}, s{s_h}
    s_lshl_b32 s{st}, s{st}, 16                  ; (b*32 + 8h)*8192
    """)
    for t in range(3):
        if t:
            a(f"""
            s_cmp_le_u32 s{s_ni}, {t}
            s_cbranch_scc1 L_fc_next
            {sel(WT, SC, t)}
            """)
        A0 = ACC + 8 * t
        a(f"""
        s_add_u32 s{st+1}, s{s_lo}, {t}
        s_lshr_b32 s{st+2}, s{st+1}, 3
        s_lshl_b32 s{st+2}, s{st+2}, 13
        s_and_b32 s{st+1}, s{st+1}, 7
        s_lshl_b32 s{st+1}, s{st+1}, 5
        s_add_u32 s{st+1}, s{st+1}, s{st+2}
        s_add_u32 s{st+1}, s{st+1}, s{st}
        """)
        for r in range(8):
            a(f"v_mul_f32 v{A0+r}, v{A0+r}, v{WT if t else SC[0]}")
        for r in range(4):
            a(f"v_cvt_pk_bf16_f32 v{A0+r}, v{A0+2*r}, v{A0+2*r+1}")
        a(f"""
        s_nop 1
        v_permlane32_swap_b32 v{A0}, v{A0+2}
        v_permlane32_swap_b32 v{A0+1}, v{A0+3}
        buffer_store_dwordx4 v[{A0}:{A0+3}], v{VOUT}, s[{SRD_X}:{SRD_X+3}], s{st+1} offen{cfg['out_flags']}
        """)
    a.label("L_fc_next")
    a(f"""
    s_add_u32 s{s_lo}, s{s_lo}, 3
    s_cmp_lt_u32 s{s_lo}, s{s_hi}
    s_nop 1
    s_cbranch_scc1 L_fc_outer
    """)
    a.label("L_fc_end")


def emit_combine(a, cfg):
    K = "pa_combine_kernel"
    NB = 12
    a.raw(f".globl {K}\n.p2align 8\n.type {K},@function")
    a.label(K)
    VL, VCL, VT_ = 200, 201, 202
    ACC = 160
    DEN, MX, MN, SC, W = 170, 171, 172, 173, 174
    U0, U1 = 176, 177
    OB = 0
    MLB = 64
    SRD_C, SRD_W, SRD_O = 20, 24, 28
    sw, sb, sh, swx, sn, sE, sbase, sj = 40, 41, 42, 43, 44, 45, 46, 47
    st = 60
    a(f"""
    s_cmp_ge_u32 s2, 256
    s_cbranch_scc1 L_cend
    s_load_dwordx16 s[4:19], s[0:1], 0
    {"s_memrealtime s[100:101]" if cfg.get("cpad_to_us") else ""}
    v_lshrrev_b32 v{VT_}, 6, v0
    v_and_b32 v{VL}, 63, v0
    s_lshr_b32 s{sb}, s2, 5
    v_readfirstlane_b32 s{sw}, v{VT_}
    s_lshr_b32 s{sh}, s2, 3
    s_and_b32 s{sh}, s{sh}, 3
    s_and_b32 s{swx}, s2, 7
    v_and_b32 v{VT_+1}, 7, v{VL}
    v_lshlrev_b32 v{VT_+1}, 2, v{VT_+1}
    s_waitcnt lgkmcnt(0)
    """)
    emit_srd(a, SRD_C, s_cl, 32)
    a(f"buffer_load_dword v{VCL}, v{VT_+1}, s[{SRD_C}:{SRD_C+3}], 0 offen")
    emit_srd(a, SRD_W, s_ws, WS_BYTES)
    emit_srd(a, SRD_O, s_out, Q_BYTES)
    VOFF, VML, VOUT = 180, 181, 182
    a(f"""
    s_lshl_b32 s{st}, s{swx}, 13
    s_lshl_b32 s{st+1}, s{sw}, 10
    s_add_u32 s{st}, s{st}, s{st+1}
    v_lshlrev_b32 v{VOFF}, 4, v{VL}
    v_add_u32 v{VOFF}, s{st}, v{VOFF}
    s_lshl_b32 s{st}, s{swx}, 8
    s_add_u32 s{st}, s{st}, 0x{WS_ML:x}
    v_and_b32 v{VML}, 31, v{VL}
    v_lshlrev_b32 v{VOUT}, 8, v{VML}             ; q*256
    v_lshlrev_b32 v{VML}, 3, v{VML}
    v_add_u32 v{VML}, s{st}, v{VML}
    v_lshrrev_b32 v{VT_+2}, 5, v{VL}
    v_lshl_add_u32 v{VOUT}, v{VT_+2}, 3, v{VOUT} ; + h2*8
    s_lshl_b32 s{st}, s2, 13
    s_lshl_b32 s{st+1}, s{sw}, 5
    s_add_u32 s{st}, s{st}, s{st+1}
    v_add_u32 v{VOUT}, s{st}, v{VOUT}
    v_mov_b32 v{DEN}, 0
    v_mov_b32 v{MX}, 0xff800000
    """)
    for r in range(8):
        a(f"v_mov_b32 v{ACC+r}, 0")
    a("s_waitcnt vmcnt(0)")
    R = emit_partition(a, VL, VCL, VT_, st)
    a(f"""
    s_add_u32 s{st}, s{st}, s{sb}
    v_readlane_b32 s{sn}, v{R['n']}, s{st}
    v_readlane_b32 s{sE}, v{R['incl']}, s{st}
    s_nop 3
    s_sub_u32 s{sE}, s{sE}, s{sn}
    s_min_u32 s{sn}, s{sn}, 64
    s_lshl_b32 s{st}, s{sh}, 6
    s_add_u32 s{sE}, s{sE}, s{st}
    s_mov_b32 s{sbase}, 0
    """)
    a.label("L_cloop")
    for j in range(NB):
        a(f"""
        s_add_u32 s{sj}, s{sbase}, {j}
        s_add_u32 s{st}, s{sE}, s{sj}
        s_lshl_b32 s{st+1}, s{st}, 16
        s_lshl_b32 s{st}, s{st}, 11
        s_cmp_lt_u32 s{sj}, s{sn}
        s_cselect_b32 s{st+1}, s{st+1}, 0x80000000
        s_cselect_b32 s{st}, s{st}, 0x80000000
        buffer_load_dwordx2 v[{MLB+2*j}:{MLB+2*j+1}], v{VML}, s[{SRD_W}:{SRD_W+3}], s{st} offen
        buffer_load_dwordx4 v[{OB+4*j}:{OB+4*j+3}], v{VOFF}, s[{SRD_W}:{SRD_W+3}], s{st+1} offen
        """)
    a(f"v_mov_b32 v{MN}, v{MX}")
    for j in range(NB):
        a(f"""
        s_add_u32 s{sj}, s{sbase}, {j}
        s_cmp_ge_u32 s{sj}, s{sn}
        s_cbranch_scc1 L_cmaxdone
        s_waitcnt vmcnt({2*(NB-1-j)+1})
        v_max_f32 v{MN}, v{MN}, v{MLB+2*j}
        """)
    a.label("L_cmaxdone")
    a(f"""
    v_sub_f32 v{SC}, v{MX}, v{MN}
    v_exp_f32 v{SC}, v{SC}
    v_mov_b32 v{MX}, v{MN}
    v_mul_f32 v{DEN}, v{DEN}, v{SC}
    """)
    for r in range(8):
        a(f"v_mul_f32 v{ACC+r}, v{ACC+r}, v{SC}")
    for j in range(NB):
        a(f"""
        s_add_u32 s{sj}, s{sbase}, {j}
        s_cmp_ge_u32 s{sj}, s{sn}
        s_cbranch_scc1 L_cfin
        v_sub_f32 v{W}, v{MLB+2*j}, v{MX}
        v_exp_f32 v{W}, v{W}
        s_waitcnt vmcnt({2*(NB-1-j)})
        v_fmac_f32 v{DEN}, v{W}, v{MLB+2*j+1}
        """)
        for r in range(4):
            a(f"""
            v_lshlrev_b32 v{U0}, 16, v{OB+4*j+r}
            v_and_b32 v{U1}, 0xffff0000, v{OB+4*j+r}
            v_fmac_f32 v{ACC+2*r}, v{W}, v{U0}
            v_fmac_f32 v{ACC+2*r+1}, v{W}, v{U1}
            """)
    a(f"""
    s_add_u32 s{sbase}, s{sbase}, {NB}
    s_branch L_cloop
    """)
    a.label("L_cfin")
    a(f"""
    v_rcp_f32 v{SC}, v{DEN}
    s_nop 0
    """)
    for r in range(8):
        a(f"v_mul_f32 v{ACC+r}, v{ACC+r}, v{SC}")
    for r in range(4):
        a(f"v_cvt_pk_bf16_f32 v{ACC+r}, v{ACC+2*r}, v{ACC+2*r+1}")
    a(f"""
    buffer_store_dwordx2 v[{ACC}:{ACC+1}], v{VOUT}, s[{SRD_O}:{SRD_O+3}], 0 offen
    buffer_store_dwordx2 v[{ACC+2}:{ACC+3}], v{VOUT}, s[{SRD_O}:{SRD_O+3}], 0 offen offset:16
    """)
    if cfg.get("cpad_to_us"):
        a(f"""
        s_waitcnt vmcnt(0)
        s_add_u32 s92, s100, {int(cfg["cpad_to_us"]*100)}
        """)
        a.label("L_cdelay")
        a(f"""
        s_sleep 4
        s_memrealtime s[90:91]
        s_waitcnt lgkmcnt(0)
        s_sub_u32 s93, s92, s90
        s_cmp_gt_i32 s93, 0
        s_cbranch_scc1 L_cdelay
        """)
    a.label("L_cend")
    a("s_endpgm")


def descriptor(name, vgpr, accum, sgpr=102):
    return f"""
.p2align 6
.amdhsa_kernel {name}
  .amdhsa_next_free_vgpr {vgpr}
  .amdhsa_next_free_sgpr {sgpr}
  .amdhsa_accum_offset {accum}
  .amdhsa_group_segment_fixed_size 0
  .amdhsa_kernarg_size 64
  .amdhsa_user_sgpr_count 2
  .amdhsa_user_sgpr_kernarg_segment_ptr 1
  .amdhsa_system_sgpr_workgroup_id_x 1
.end_amdhsa_kernel
"""


DEFAULT_CFG = dict(
    vslots=[9, 10, 11, 12, 13, 14, 15, 16, 17, 18, 19, 20, 21, 22, 23, 24],
    rl_slot=22,
    dma_slots=[25, 26, 27, 29],
    dma_cost=12,
    patch_slot=9,
    delta=3,
    br_dist=2,
    empty_gaps=[31],
    bar_period=2,
    pp0=1, pp1=0, ppA=[7, 15], ppB=[15, 31], ppQ=[1, 3, 5, 7],
    pk=1,
    warm=1,
    zero_early=64,
    thr_log2=12,
    st_flags=" sc1",
    fused=1, cld_flags=" sc1", poll_sleep=1, poll_max=200000, cpk=0, clook=3, out_flags=" sc1",
    depth=6, map=0, cwarm=0, peel=0, peel_slots=[19, 22, 25, 27],
    ld_flags=" nt",
)


def generate(cfg=None, out=OUT):
    c = dict(DEFAULT_CFG)
    if cfg:
        c.update(cfg)
    global LDFLAGS
    LDFLAGS = c["ld_flags"]
    a = Asm()
    a.raw(f"""; Paged attention (GQA, split-KV) for gfx950 -- generated by gen.py (hand-scheduled)
{("; @launch grid=(256,1,1) block=(256,1,1) lds=163840" if c["fused"] else "; @launch kernel=" + NAME + "_kernel grid=(256,1,1) block=(256,1,1) lds=163840" + chr(10) + "; @launch kernel=pa_combine_kernel grid=(256,1,1) block=(512,1,1) lds=0")}
{"; @launch kernel=pa_nop_kernel grid=(1,1,1) block=(64,1,1) lds=0" + chr(10) if c.get("nop3") else ""}.amdgcn_target "amdgcn-amd-amdhsa--gfx950"
.text""")
    emit_main(a, c)
    if not c["fused"]:
        emit_combine(a, c)
    if c.get("nop3"):
        a.raw(".globl pa_nop_kernel\n.p2align 8\n.type pa_nop_kernel,@function\npa_nop_kernel:\n    s_endpgm")
    a.raw('.section .rodata,"a"')
    if c.get("nop3"):
        a.raw(descriptor("pa_nop_kernel", 8, 8))
    a.raw(descriptor(NAME + "_kernel", 384, 256))
    if not c["fused"]:
        a.raw(descriptor("pa_combine_kernel", 216, 216))
    open(out, "w").write(a.text())


if __name__ == "__main__":
    import json
    cfg = json.loads(sys.argv[1]) if len(sys.argv) > 1 else None
    generate(cfg, sys.argv[2] if len(sys.argv) > 2 else OUT)
```

```python
import sys, math

NAME = "standalone__paged_block_table_kv_pagedattention__sampling"
OUT = "cdna_kernels/%s.s" % NAME

KV_BYTES = 4100 * 16384
Q_BYTES = 8 * 32 * 32 * 128 * 2
BT_BYTES = 8 * 512 * 4
WS_ML = 0x1000000
LDS_ML = 0x27000
LDS_NONCE = 0x27ff0
WS_DBG = WS_ML + 256 * 2048
WS_FLAG = WS_DBG + 0x100000
WS_BYTES = WS_FLAG + 32 * 2048
SCALE = math.log2(math.e) / math.sqrt(128.0)
THR_LOG2 = 12

import struct
def f32bits(x):
    return struct.unpack("<I", struct.pack("<f", x))[0]

class Asm:
    def __init__(self):
        self.lines = []
    def __call__(self, s):
        for l in s.strip("\n").split("\n"):
            self.lines.append("    " + l.strip())
    def label(self, l):
        self.lines.append(l + ":")
    def raw(self, s):
        self.lines.append(s)
    def text(self):
        return "\n".join(self.lines) + "\n"

S_ = {0: 0, 1: 16}
C_ = {0: 32, 1: 48}
O_ = {0: 64, 1: 128}
P_ = {0: 192, 1: 200}
KADDR = 208
VADDR = 216
VOFFK = 220
VOFFV = 222
PAGES = 224
L_ = {0: 225, 1: 226}
M_ = {0: 227, 1: 228}
TS_ = {0: (229, 230), 1: (231, 232)}
ET = 233
VLANE = 239
VT = 240
VH4 = 255
AQ = {0: 0, 1: 32}
AK = 64
AV = 96

s_wg = 2
s_q, s_k, s_v, s_bt, s_cl, s_out, s_dbg, s_ws = 4, 6, 8, 10, 12, 14, 16, 18
SRD_K, SRD_V, SRD_Q, SRD_X, SRD_WS, SRD_BT = 20, 24, 28, 32, 36, 76
s_w = 40
s_h = 41
s_slot = 42
s_n = 43
s_i = 44
s_patch = 45
s_rem = 46
s_idx = 47
s_pg = {0: 48, 1: 49}
s_m0k = 50
s_m0v = 51
s_thr = {0: 52, 1: 52}
s_E = 53
s_nb = 82
s_jj = 3
s_mine = 74
s_own, s_wlo, s_lo, s_hi = 84, 85, 86, 87
s_floor = {0: 54, 1: 55}
s_first = {0: 56, 1: 57}
s_ret = 58
s_t0 = 60
s_qb = 84
s_qlds = 54
s_b = 80
s_start = 81
s_scale = 56
s_wgslot = 83


def emit_srd(a, d, ptr, nbytes):
    a(f"""
    s_mov_b32 s{d}, s{ptr}
    s_and_b32 s{d+1}, s{ptr+1}, 0xffff
    s_mov_b32 s{d+2}, 0x{nbytes:x}
    s_mov_b32 s{d+3}, 0x20000
    """)


def sum8(a, dst, src, tmp):
    a(f"""
    s_nop 1
    v_add_u32_dpp v{tmp}, v{src}, v{src} quad_perm:[1,0,3,2] row_mask:0xf bank_mask:0xf
    s_nop 1
    v_add_u32_dpp v{dst}, v{tmp}, v{tmp} quad_perm:[2,3,0,1] row_mask:0xf bank_mask:0xf
    s_nop 1
    v_add_u32_dpp v{dst}, v{dst}, v{dst} row_half_mirror row_mask:0xf bank_mask:0xf
    """)


def emit_partition(a, vlane, vcl, vt, st):
    Lm1, T_, Cc, Nn, NS, INC, Qq, Rr, X0, X1 = range(vt, vt + 10)
    a(f"""
    v_add_u32 v{Lm1}, -1, v{vcl}
    v_min_u32 v{Lm1}, 0x1fff, v{Lm1}
    v_lshrrev_b32 v{T_}, 5, v{Lm1}
    v_add_u32 v{T_}, 1, v{T_}
    """)
    sum8(a, Cc, T_, X0)
    a(f"""
    v_add_u32 v{Cc}, 63, v{Cc}
    v_lshrrev_b32 v{Cc}, 6, v{Cc}
    v_lshrrev_b32 v{X0}, 3, v{vlane}
    v_add_u32 v{Cc}, v{Cc}, v{X0}
    v_cvt_f32_u32 v{X0}, v{Cc}
    v_rcp_f32 v{X0}, v{X0}
    v_add3_u32 v{X1}, v{T_}, v{Cc}, -1
    v_cvt_f32_u32 v{X1}, v{X1}
    v_add_f32 v{X1}, 0.5, v{X1}
    v_mul_f32 v{X1}, v{X1}, v{X0}
    v_cvt_u32_f32 v{Nn}, v{X1}
    """)
    sum8(a, NS, Nn, X0)
    a(f"""
    s_nop 1
    v_add_u32_dpp v{INC}, v{Nn}, v{Nn} row_shr:1 row_mask:0xf bank_mask:0xf bound_ctrl:0
    v_cvt_f32_u32 v{X0}, v{Nn}
    v_rcp_f32 v{X0}, v{X0}
    v_add_u32_dpp v{INC}, v{INC}, v{INC} row_shr:2 row_mask:0xf bank_mask:0xf bound_ctrl:0
    v_cvt_f32_u32 v{X1}, v{T_}
    v_add_f32 v{X1}, 0.5, v{X1}
    v_add_u32_dpp v{INC}, v{INC}, v{INC} row_shr:4 row_mask:0xf bank_mask:0xf bound_ctrl:0
    v_mul_f32 v{X1}, v{X1}, v{X0}
    v_cvt_u32_f32 v{Qq}, v{X1}
    v_add_u32_dpp v{INC}, v{INC}, v{INC} row_shr:8 row_mask:0xf bank_mask:0xf bound_ctrl:0
    v_mul_u32_u24 v{X0}, v{Qq}, v{Nn}
    v_sub_u32 v{Rr}, v{T_}, v{X0}
    v_mov_b32_dpp v{X1}, v{NS} row_shr:8 row_mask:0xf bank_mask:0xf bound_ctrl:0
    v_sub_u32 v{INC}, v{INC}, v{X1}
    v_cmp_ge_u32 vcc, 64, v{NS}
    s_ff1_i32_b64 s{st}, vcc
    s_mov_b64 s[{st+2}:{st+3}], 0xff
    s_lshl_b64 s[{st+2}:{st+3}], s[{st+2}:{st+3}], s{st}
    """)
    return dict(Lm1=Lm1, t=T_, n=Nn, incl=INC, q=Qq, r=Rr)


def sm_stream(X, et=None):
    S = S_[X]; P = P_[X]
    TS0, TS1 = TS_[X]
    et = ET if et is None else et
    def tmp(j):
        if j == 0:
            return TS0, TS1
        k = (j - 1) % 3
        return et + 2 * k, et + 2 * k + 1
    E = lambda j, h: (8, f"v_exp_f32 v{tmp(j)[h]}, v{S + 2 * j + h}")
    A = lambda j, h: (4, f"v_add_f32 v{(TS0, TS1)[h]}, v{(TS0, TS1)[h]}, v{tmp(j)[h]}")
    C = lambda j: (4, f"v_cvt_pk_bf16_f32 v{P + j}, v{tmp(j)[0]}, v{tmp(j)[1]}")
    st = [E(0, 0), E(0, 1), E(1, 0), C(0), E(1, 1)]
    for j in range(1, 7):
        st += [A(j, 0), E(j + 1, 0), A(j, 1), C(j), E(j + 1, 1)]
    st += [A(7, 0), A(7, 1), C(7), (4, f"v_add_f32 v{TS0}, v{TS0}, v{TS1}")]
    return st


def mfma_qk(X, s):
    c = C_[X] if s == 0 else S_[X]
    return (f"v_mfma_f32_32x32x16_bf16 v[{S_[X]}:{S_[X]+15}], a[{AK+4*s}:{AK+4*s+3}], "
            f"a[{AQ[X]+4*s}:{AQ[X]+4*s+3}], v[{c}:{c+15}]")


def mfma_pv(X, f):
    t, dt = f >> 2, f & 3
    o = O_[X] + 16 * dt
    return (f"v_mfma_f32_32x32x16_bf16 v[{o}:{o+15}], a[{AV+4*f}:{AV+4*f+3}], "
            f"v[{P_[X]+4*t}:{P_[X]+4*t+3}], v[{o}:{o+15}]")


def k_read(s, slot):
    return f"ds_read_b128 a[{AK+4*s}:{AK+4*s+3}], v{KADDR+s} offset:{slot*8192}"


def v_read(f, y, slot):
    t, dt = f >> 2, f & 3
    return (f"ds_read_b64_tr_b16 a[{AV+4*f+2*y}:{AV+4*f+2*y+1}], v{VADDR+dt} "
            f"offset:{slot*8192 + (16*t+8*y)*256}")


LDFLAGS = ""
def dma_k(a_list, slot, spg):
    return [f"s_add_u32 m0, s{s_m0k}, {slot*8192}",
            None,
            f"buffer_load_dwordx4 v{VOFFK}, s[{SRD_K}:{SRD_K+3}], s{spg} offen{LDFLAGS} lds",
            f"buffer_load_dwordx4 v{VOFFK+1}, s[{SRD_K}:{SRD_K+3}], s{spg} offen offset:1024{LDFLAGS} lds"]


def dma_v(a_list, slot, spg):
    return [f"s_add_u32 m0, s{s_m0v}, {slot*8192}",
            None,
            f"buffer_load_dwordx4 v{VOFFV}, s[{SRD_V}:{SRD_V+3}], s{spg} offen{LDFLAGS} lds",
            f"buffer_load_dwordx4 v{VOFFV+1}, s[{SRD_V}:{SRD_V+3}], s{spg} offen offset:1024{LDFLAGS} lds"]


def plan_body(k, cfg, tramps=None, peel=None):
    kn = (k + 1) % 8
    kl = k if peel is None else f"p{k}"
    D = cfg["depth"]
    pgn = s_pg[k & 1]
    pgo = s_pg[(k & 1) ^ 1]
    tramps = [] if tramps is None else tramps
    pre = {i: [] for i in range(32)}
    front = {i: [] for i in range(32)}
    valu = {i: [] for i in range(32)}
    tail = {i: [] for i in range(32)}
    for s in range(8):
        front[s + 1].append((4, k_read(s, kn)))
    vslots = cfg["vslots"]
    vr = [(f, y) for f in range(8) for y in range(2)]
    for (f, y), sl in zip(vr, vslots):
        assert sl >= 9 + f, (f, sl)
        front[sl].append((4, v_read(f, y, k)))
    def vr_before(m):
        return sum(1 for sl in vslots if sl < m)
    pre[16].append(f"s_waitcnt lgkmcnt({vr_before(16)})")
    assert vr_before(24) >= 8
    pre[24].append(f"s_waitcnt lgkmcnt({vr_before(24) - 8})")
    assert vr_before(28) == 16
    pre[28].append("s_waitcnt lgkmcnt(0)")
    ds = cfg["dma_slots"]
    dcost = cfg["dma_cost"]
    if peel is None:
        valu[cfg["rl_slot"]].append((4, f"v_readlane_b32 s{pgn}, v{PAGES}, s{s_idx}"))
        tail[cfg["rl_slot"]].append(f"s_add_u32 s{s_idx}, s{s_idx}, 1")
        dk = dma_k(None, (k + D + 1) % 8, pgn)
        dv = dma_v(None, (k + D) % 8, pgo)
        tail[ds[0] - 1].append(dv[0])
        front[ds[0]].append((dcost, dv[2]))
        front[ds[1]].append((dcost, dv[3]))
        assert ds[2] - 1 >= ds[1]
        tail[ds[2] - 1].append(dk[0])
        front[ds[2]].append((dcost, dk[2]))
        front[ds[3]].append((dcost, dk[3]))
        assert ds[2] > cfg["rl_slot"] + 1
    else:
        g, pb = peel
        seq = [dma_k(None, (g + 1) % 8, pb + g + 1), dma_v(None, g % 8, pb + g),
               dma_k(None, (g + 2) % 8, pb + g + 2), dma_v(None, (g + 1) % 8, pb + g + 1)]
        for d_, sl in zip(seq, cfg["peel_slots"]):
            tail[sl - 1].append(d_[0])
            front[sl].append((dcost, d_[2]))
            front[sl + 1].append((dcost, d_[3]))
    ps = cfg["patch_slot"]
    tail[ps - 1].append(f"s_cmp_eq_u32 s{s_i}, s{s_patch}")
    front[ps].insert(0, (8, f"s_cbranch_scc1 L_patch_{kl}"))
    front[ps].insert(1, (0, f"L_patch_ret_{kl}:"))
    tramps.append((f"L_patch_{kl}", "L_sub_patch", f"L_patch_ret_{kl}"))
    assert max(ds) < 30
    tail[30].append(f"s_add_u32 s{s_i}, s{s_i}, 1")
    tail[30].append(f"s_cmp_ge_u32 s{s_i}, s{s_n}")
    front[31].append((8, "s_cbranch_scc1 L_drain"))
    dl = cfg["delta"]
    for X, lo in ((0, 32 - dl), (1, 16 - dl)):
        hi = lo + 15
        bs = (hi + cfg["br_dist"]) % 32
        front[bs].insert(0, (8, f"s_cbranch_vccnz L_fb{X}_{kl}"))
        front[bs].insert(1, (0, f"L_fb{X}_ret_{kl}:"))
        valu[bs].insert(0, (4, f"v_add_f32 v{L_[X]}, v{L_[X]}, v{TS_[X][0]}"))
        tramps.append((f"L_fb{X}_{kl}", f"L_sub_fb{X}", f"L_fb{X}_ret_{kl}"))
    if peel is not None:
        _, _, valu_r, _ = plan_body(k, cfg)
        for g_ in range(32):
            valu[g_] = [x for x in valu_r[g_] if not x[1].startswith("v_readlane")]
        return pre, front, valu, tail
    for X, lo in ((0, 32 - dl), (1, 16 - dl)):
        gaps = [(lo + j) % 32 for j in range(16)]
        st = sm_stream(X) + [(4, f"v_cmp_lt_f32 vcc, s{s_thr[X]}, v{TS_[X][0]}")]
        tot = sum(c for c, _ in st)
        free = [max(0, 24 - sum(c for c, _ in front[g]) - sum(c for c, _ in valu[g])) for g in gaps]
        for n_, g in enumerate(gaps):
            if g in cfg["empty_gaps"]:
                free[n_] = 0
        ftot = sum(free)
        assert ftot >= tot, (ftot, tot)
        acc = 0.0; done = 0; idx = 0
        for n_, g in enumerate(gaps):
            acc += free[n_] * tot / ftot
            used = 0
            while idx < len(st) and used + st[idx][0] <= free[n_] and len(valu[g]) < 5 and \
                    (done + st[idx][0] / 2.0 <= acc or n_ == 15):
                valu[g].append(st[idx]); done += st[idx][0]; used += st[idx][0]; idx += 1
        assert idx == len(st), (X, idx, len(st))
    return pre, front, valu, tail


def skip(t, cfg):
    if cfg.get("no_dma") and t.startswith("buffer_load"): return True
    if cfg.get("no_lds") and t.startswith("ds_read"): return True
    if cfg.get("no_sm") and (t.startswith("v_exp") or t.startswith("v_add_f32") or t.startswith("v_cvt")): return True
    if cfg.get("no_mfma") and t.startswith("v_mfma"): return True
    return False


def emit_body(a, k, tramps, cfg, peel=None, vm=None):
    D = cfg["depth"]
    mf = [mfma_qk(1, s) for s in range(8)] + [mfma_pv(1, f) for f in range(8)] + \
         [mfma_qk(0, s) for s in range(8)] + [mfma_pv(0, f) for f in range(8)]
    pre, front, valu, tail = plan_body(k, cfg, tramps, peel)
    a.label(f"L_body_{k}" if peel is None else f"L_body_p{k}")
    if cfg.get("stamp"):
        a(f"""
        s_memtime s[90:91]
        s_mov_b32 m0, s{s_i}
        s_waitcnt lgkmcnt(0)
        v_writelane_b32 v{VT+12}, s90, m0
        """)
    bp = cfg["bar_period"]
    if k % bp == 0:
        a(f"s_waitcnt vmcnt({4*(D-bp) if vm is None else vm})")
        if not cfg.get("no_bar"):
            a("s_barrier")
    if cfg.get("stamp"):
        a(f"""
        s_memtime s[90:91]
        s_waitcnt lgkmcnt(0)
        v_writelane_b32 v{VT+13}, s90, m0
        """)
    for i in range(32):
        seq = pre[i] + [mf[i]] + [t for _, t in front[i]] + [t for _, t in valu[i]] + tail[i]
        for t in seq:
            if t.endswith(":"):
                a.label(t[:-1])
            elif not skip(t, cfg):
                a(t)
    if k == 7 and peel is None:
        a("s_branch L_body_0")


def emit_rowmax(a, X, mx, t1):
    S = S_[X]
    out = [f"v_max3_f32 v{mx}, v{S}, v{S+1}, v{S+2}"]
    for r in range(3, 15, 2):
        out.append(f"v_max3_f32 v{mx}, v{mx}, v{S+r}, v{S+r+1}")
    out += [f"v_max_f32 v{mx}, v{mx}, v{S+15}", f"v_mov_b32 v{t1}, v{mx}", "s_nop 1",
            f"v_permlane32_swap_b32 v{mx}, v{t1}", "s_nop 1", f"v_max_f32 v{mx}, v{mx}, v{t1}"]
    return out


def emit_fallback(a, X):
    S = S_[X]; C = C_[X]; O = O_[X]; P = P_[X]
    mx, t1, f = VT, VT + 1, VT + 3
    a.label(f"L_sub_fb{X}")
    a("s_nop 7")
    for t in emit_rowmax(a, X, mx, t1):
        a(t)
    a(f"""
    v_max_f32 v{mx}, 0, v{mx}
    v_exp_f32 v{f}, -v{mx}
    v_add_f32 v{M_[X]}, v{M_[X]}, v{mx}
    """)
    for r in range(16):
        a(f"v_sub_f32 v{C+r}, v{C+r}, v{mx}")
        a(f"v_sub_f32 v{S+r}, v{S+r}, v{mx}")
    a(f"v_mul_f32 v{L_[X]}, v{L_[X]}, v{f}")
    for r in range(64):
        a(f"v_mul_f32 v{O+r}, v{O+r}, v{f}")
    for c, t in sm_stream(X, VT + 4):
        a(t)
    a(f"""
    s_nop 3
    s_setpc_b64 s[{s_ret}:{s_ret+1}]
    """)


def emit_patch(a):
    ninf = VT
    a.label("L_sub_patch")
    a(f"""
    s_nop 7
    v_mov_b32 v{ninf}, 0xff800000
    """)
    for r in range(16):
        cst = 8 * (r >> 2) + (r & 3)
        a(f"""
        s_sub_i32 s{s_mine+1}, s{s_rem}, {cst}
        v_cmp_gt_i32 vcc, s{s_mine+1}, v{VH4}
        s_nop 1
        v_cndmask_b32 v{C_[0]+r}, v{ninf}, v{C_[0]+r}, vcc
        v_cndmask_b32 v{C_[1]+r}, v{ninf}, v{C_[1]+r}, vcc
        """)
    a(f"""
    s_nop 3
    s_setpc_b64 s[{s_ret}:{s_ret+1}]
    """)


MAPS = {
    0: f"""s_lshr_b32 s{s_h}, s{s_wg}, 1
    s_and_b32 s{s_h}, s{s_h}, 3
    s_and_b32 s{s_t0}, s{s_wg}, 1
    s_lshl_b32 s{s_t0}, s{s_t0}, 5
    s_lshr_b32 s{s_slot}, s{s_wg}, 3
    s_or_b32 s{s_slot}, s{s_slot}, s{s_t0}""",
    2: f"""s_lshr_b32 s{s_h}, s{s_wg}, 1
    s_and_b32 s{s_h}, s{s_h}, 3
    s_lshr_b32 s{s_slot}, s{s_wg}, 3
    s_cmp_lt_u32 s{s_slot}, 30
    s_cselect_b32 s{s_t0}, s{s_slot}, 63
    s_add_u32 s{s_slot}, s{s_slot}, 30
    s_and_b32 s{s_t0+1}, s{s_wg}, 1
    s_cmp_eq_u32 s{s_t0+1}, 0
    s_cselect_b32 s{s_slot}, s{s_t0}, s{s_slot}""",
    1: f"""s_lshr_b32 s{s_h}, s{s_wg}, 3
    s_and_b32 s{s_h}, s{s_h}, 3
    s_and_b32 s{s_t0}, s{s_wg}, 7
    s_lshl_b32 s{s_t0}, s{s_t0}, 3
    s_lshr_b32 s{s_slot}, s{s_wg}, 5
    s_or_b32 s{s_slot}, s{s_slot}, s{s_t0}""",
}


def emit_pad(a, us, tag):
    a(f"s_add_u32 s92, s100, {int(us*100)}")
    a.label(f"L_pad_{tag}")
    a(f"""
    s_sleep 2
    s_memrealtime s[90:91]
    s_waitcnt lgkmcnt(0)
    s_sub_u32 s93, s92, s90
    s_cmp_gt_i32 s93, 0
    s_cbranch_scc1 L_pad_{tag}
    """)


def emit_main(a, cfg):
    K = NAME + "_kernel"
    D = cfg["depth"]
    assert D <= 7
    a.raw(f".globl {K}\n.p2align 8\n.type {K},@function")
    a.label(K)
    t0, t1, t2, t3 = VT + 11, VT + 12, VT + 13, VT + 14
    VCL = VT + 10
    def sstamp(n):
        if cfg.get("stamp"):
            a(f"""
            s_memtime s[90:91]
            s_waitcnt lgkmcnt(0)
            s_mov_b32 s{n}, s90
            """)
    def pstamp(n):
        if cfg.get("stamp"):
            a(f"""
            s_memtime s[90:91]
            s_waitcnt lgkmcnt(0)
            v_writelane_b32 v{VT+12}, s90, {40+n}
            """)
    a(f"""
    s_cmp_ge_u32 s{s_wg}, 256
    s_cbranch_scc1 L_end
    s_load_dwordx16 s[4:19], s[0:1], 0
    v_lshrrev_b32 v{VT}, 6, v0
    v_and_b32 v{VLANE}, 63, v0
    v_readfirstlane_b32 s{s_w}, v{VT}
    {MAPS[cfg["map"]]}
    v_and_b32 v{VT+1}, 7, v{VLANE}
    v_lshlrev_b32 v{VT+1}, 2, v{VT+1}
    v_lshlrev_b32 v{VT+2}, 7, v{VLANE}
    """)
    if cfg["fused"]:
        a(f"s_memrealtime s[{s_mine}:{s_mine+1}]")
    if cfg.get("stamp"):
        a("s_memtime s[92:93]")
    if cfg.get("stamp") or cfg.get("pad_to_us") or cfg.get("pad_le") or cfg.get("pad_ls") or cfg.get("pad_pub"):
        a("s_memrealtime s[100:101]")
    a(f"""
    s_and_b32 s{s_t0}, s{s_w}, 1
    s_lshl_b32 s{s_t0}, s{s_t0}, 3               ; 8*(w&1)
    s_lshl_b32 s{s_t0+1}, s{s_h}, 8              ; h*256
    v_lshrrev_b32 v{t0}, 4, v{VLANE}             ; l>>4
    v_and_b32 v{t1}, 15, v{VLANE}                ; pc
    v_add_u32 v{t2}, s{s_t0}, v{t0}              ; R&15 for x=0
    v_xor_b32 v{t3}, v{t1}, v{t2}
    v_lshlrev_b32 v{t3}, 4, v{t3}
    v_lshl_add_u32 v{t3}, v{t2}, 10, v{t3}
    v_add_u32 v{VOFFK}, s{s_t0+1}, v{t3}
    v_add_u32 v{t2}, 4, v{t2}                    ; R&15 for x=1
    v_xor_b32 v{t3}, v{t1}, v{t2}
    v_lshlrev_b32 v{t3}, 4, v{t3}
    v_lshl_add_u32 v{t3}, v{t2}, 10, v{t3}
    v_add_u32 v{t3}, s{s_t0+1}, v{t3}
    v_add_u32 v{VOFFK+1}, 0xfffffc00, v{t3}
    v_lshlrev_b32 v{t3}, 2, v{t0}
    v_xor_b32 v{t3}, v{t1}, v{t3}
    v_lshlrev_b32 v{t3}, 4, v{t3}
    v_add_u32 v{t2}, s{s_t0}, v{t0}
    v_lshl_add_u32 v{t3}, v{t2}, 10, v{t3}
    v_add_u32 v{VOFFV}, s{s_t0+1}, v{t3}
    v_add_u32 v{VOFFV+1}, 0xc00, v{VOFFV}        ; +4096 -1024
    s_lshl_b32 s{s_m0k}, s{s_w}, 11
    s_add_u32 s{s_m0v}, s{s_m0k}, 0x10000
    s_mov_b32 s{s_thr[0]}, 0x{f32bits(2.0**cfg["thr_log2"]):x}
    s_mov_b32 s{s_thr[1]}, 0x{f32bits(2.0**cfg["thr_log2"]):x}
    s_mov_b32 s{s_i}, 0
    s_mov_b32 s{s_idx}, {D+1+cfg["peel"]}
    v_lshrrev_b32 v{t0}, 5, v{VLANE}            ; h2
    v_lshlrev_b32 v{VH4}, 2, v{t0}
    v_lshrrev_b32 v{t2}, 4, v{VLANE}
    v_xor_b32 v{t3}, v{t1}, v{t2}
    v_lshlrev_b32 v{t3}, 4, v{t3}
    v_lshl_add_u32 v{ET}, v{t2}, 8, v{t3}        ; Q voffset (j&3 == 0)
    v_xor_b32 v{ET+1}, 64, v{ET}
    v_xor_b32 v{ET+2}, 0x80, v{ET}
    v_xor_b32 v{ET+3}, 0xc0, v{ET}
    v_lshlrev_b32 v{ET+4}, 3, v{VLANE}
    s_lshl_b32 s{s_qlds}, s{s_w}, 13
    s_add_u32 s{s_qlds}, s{s_qlds}, 0x20000      ; Q_A staging : 128K + w*8K
    s_and_b32 s{s_t0}, s{s_w}, 1
    s_lshl_b32 s{s_t0}, s{s_t0}, 13
    s_lshr_b32 s{s_t0+1}, s{s_w}, 1
    s_lshl_b32 s{s_t0+1}, s{s_t0+1}, 16
    s_add_u32 s{s_t0}, s{s_t0}, s{s_t0+1}
    s_add_u32 s{s_qlds+1}, s{s_t0}, 0xc000
    s_waitcnt lgkmcnt(0)
    """)
    emit_srd(a, SRD_X, s_cl, 32)
    a(f"buffer_load_dword v{VCL}, v{VT+1}, s[{SRD_X}:{SRD_X+3}], 0 offen")
    emit_srd(a, SRD_BT, s_bt, BT_BYTES)
    emit_srd(a, SRD_Q, s_q, Q_BYTES)
    nwarm = 0
    if cfg["warm"]:
        a(f"""
        s_lshr_b32 s{s_t0}, s{s_wg}, 3
        s_lshr_b32 s{s_t0+1}, s{s_t0}, 2
        s_lshl_b32 s{s_t0+1}, s{s_t0+1}, 18          ; b*262144
        s_and_b32 s{s_t0+2}, s{s_t0}, 3
        s_lshl_b32 s{s_t0+2}, s{s_t0+2}, 14
        s_add_u32 s{s_t0+1}, s{s_t0+1}, s{s_t0+2}
        s_lshl_b32 s{s_t0+2}, s{s_h}, 16
        s_add_u32 s{s_t0+1}, s{s_t0+1}, s{s_t0+2}
        s_lshl_b32 s{s_t0+2}, s{s_w}, 13
        s_add_u32 s{s_t0+1}, s{s_t0+1}, s{s_t0+2}
        s_lshl_b32 s{s_t0}, s{s_t0}, 9
        s_cmp_lt_u32 s{s_w}, 2
        s_cselect_b32 s{s_t0+1}, s{s_t0+1}, 0x80000000
        s_cmp_eq_u32 s{s_w}, 2
        s_cselect_b32 s{s_t0}, s{s_t0}, 0x80000000
        v_min_u32 v{VT+3}, 0x180, v{VT+2}
        buffer_load_dword v{P_[0]}, v{VT+2}, s[{SRD_Q}:{SRD_Q+3}], s{s_t0+1} offen
        buffer_load_dword v{P_[0]+1}, v{VT+3}, s[{SRD_BT}:{SRD_BT+3}], s{s_t0} offen
        """)
        nwarm = 2
    if cfg["cwarm"]:
        a(f"""
        s_getpc_b64 s[{SRD_K}:{SRD_K+1}]
        """)
        a.label("L_pc0")
        a(f"""
        s_and_b32 s{SRD_K+1}, s{SRD_K+1}, 0xffff
        s_mov_b32 s{SRD_K+2}, L_code_end-L_pc0
        s_mov_b32 s{SRD_K+3}, 0x20000
        s_lshl_b32 s{s_t0}, s{s_w}, 13
        buffer_load_dword v{P_[0]+2}, v{VT+2}, s[{SRD_K}:{SRD_K+3}], s{s_t0} offen
        """)
        nwarm += 1
    emit_srd(a, SRD_K, s_k, KV_BYTES)
    emit_srd(a, SRD_V, s_v, KV_BYTES)
    emit_srd(a, SRD_WS, s_ws, WS_BYTES)
    sstamp(88)
    a(f"""
    v_and_b32 v{t1}, 31, v{VLANE}               ; key / q
    v_and_b32 v{t2}, 15, v{VLANE}
    v_xor_b32 v{t2}, v{t2}, v{t0}               ; (key&15)^h2
    v_lshlrev_b32 v{t2}, 4, v{t2}
    v_lshl_add_u32 v{KADDR}, v{t1}, 8, v{t2}
    """)
    for s in range(1, 8):
        a(f"v_xor_b32 v{KADDR+s}, {s << 5}, v{KADDR}")
    a(f"""
    v_bfe_u32 v{t1}, v{VLANE}, 2, 2              ; r
    v_add_u32 v{t2}, v{VH4}, v{t1}               ; 4h2 + r
    v_lshlrev_b32 v{t2}, 8, v{t2}
    v_bfe_u32 v{t3}, v{VLANE}, 4, 1              ; sub
    v_lshl_add_u32 v{t2}, v{t3}, 5, v{t2}
    v_and_b32 v{t3}, 3, v{VLANE}                 ; c
    v_lshl_add_u32 v{t2}, v{t3}, 3, v{t2}
    v_add_u32 v{t2}, 0x10000, v{t2}
    v_lshl_add_u32 v{VADDR}, v{t1}, 6, v{t2}     ; dt=0 : (0^r)<<6
    """)
    for dt in range(1, 4):
        a(f"v_xor_b32 v{VADDR+dt}, {dt << 6}, v{VADDR}")
    a(f"s_waitcnt vmcnt({nwarm})")
    sstamp(89)
    st = s_t0
    R = emit_partition(a, VLANE, VCL, VT, st)
    sn, sincl, sLm1, scl, sq, sr, sj = st + 4, st + 5, st + 6, st + 7, st + 8, st + 9, st + 10
    SKEW1 = SKEW2 = ""
    if cfg.get("skew"):
        sh = cfg["skew"]
        g0, g1 = st + 11, st + 12
        SKEW1 = f"""s_sub_u32 s{g0}, s{sn}, s{sj}
    s_mul_i32 s{g1}, s{g0}, s{sj}                ; j*(nb-j)
    s_add_u32 s{st}, s{g1}, s{g0}
    s_sub_u32 s{st}, s{st}, s{sj}
    s_sub_u32 s{st}, s{st}, 1                    ; (j+1)*(nb-j-1)
    s_lshr_b32 s{g0}, s{g1}, {sh}
    s_lshr_b32 s{g1}, s{st}, {sh}
    s_cmp_gt_u32 s{sq}, s{sn}
    s_cselect_b32 s{g0}, s{g0}, 0
    s_cselect_b32 s{g1}, s{g1}, 0
    s_sub_u32 s{s_start}, s{s_start}, s{g0}"""
        SKEW2 = f"""s_add_u32 s{s_n}, s{s_n}, s{g0}
    s_sub_u32 s{s_n}, s{s_n}, s{g1}"""
    a(f"""
    v_cmp_lt_u32 vcc, s{s_slot}, v{R['incl']}
    s_and_b64 vcc, vcc, s[{st+2}:{st+3}]
    s_cbranch_scc0 L_end
    s_ff1_i32_b64 s{st}, vcc
    s_and_b32 s{s_b}, s{st}, 7
    v_readlane_b32 s{sn}, v{R['n']}, s{st}
    v_readlane_b32 s{sincl}, v{R['incl']}, s{st}
    v_readlane_b32 s{sq}, v{R['q']}, s{st}
    v_readlane_b32 s{sr}, v{R['r']}, s{st}
    v_readlane_b32 s{sLm1}, v{R['Lm1']}, s{st}
    v_readlane_b32 s{scl}, v{VCL}, s{st}
    s_lshl_b32 s{st+2}, s{s_b}, 5
    s_lshl_b32 s{st+1}, s{s_h}, 3
    s_add_u32 s{st+2}, s{st+2}, s{st+1}
    s_lshl_b32 s{st+1}, s{s_w}, 1
    s_add_u32 s{st+2}, s{st+2}, s{st+1}
    s_lshl_b32 s{st+2}, s{st+2}, 13              ; Q base = ((b*32 + 8h + 2w)*32)*256
    s_add_u32 s{st+3}, s{st+2}, 0x2000
    s_sub_u32 s{sj}, s{sincl}, s{sn}
    s_sub_u32 s{sj}, s{s_slot}, s{sj}            ; j = slot - E_b
    s_mul_i32 s{s_start}, s{sj}, s{sq}
    s_min_u32 s{st}, s{sj}, s{sr}
    s_add_u32 s{s_start}, s{s_start}, s{st}
    {SKEW1}
    s_lshl_b32 s{st}, s{s_b}, 9
    s_lshl_b32 s{st+1}, s{s_start}, 1
    s_add_u32 s{st}, s{st}, s{st+1}
    s_lshr_b32 s{st+1}, s{s_w}, 1
    s_add_u32 s{st}, s{st}, s{st+1}
    s_lshl_b32 s{st}, s{st}, 2
    buffer_load_dword v{PAGES}, v{ET+4}, s[{SRD_BT}:{SRD_BT+3}], s{st} offen
    """)
    def qload(X):
        for hf in range(2):
            a(f"s_add_u32 m0, s{s_qlds+X}, {4096*hf}")
            a(f"s_add_u32 s{s_qb+2}, s{s_qb+X}, {4096*hf}")
            for j in range(4):
                a(f"buffer_load_dwordx4 v{ET+j}, s[{SRD_Q}:{SRD_Q+3}], s{s_qb+2} offen offset:{1024*j} lds")
    a(f"""
    s_mov_b32 s{s_qb}, s{st+2}
    s_mov_b32 s{s_qb+1}, s{st+3}
    """)
    qload(0)
    emit_srd(a, SRD_X, s_dbg, 256)
    a(f"""
    s_or_b32 s{s_mine}, s{s_mine}, 1
    v_mov_b32 v{VT+8}, s{s_mine}
    v_mov_b32 v{VT+9}, 0
    s_or_b32 s{st}, s{s_wg}, s{s_w}
    s_cmp_eq_u32 s{st}, 0
    s_cselect_b32 s{st}, 0, 0x80000000
    s_mov_b64 exec, 1
    buffer_store_dword v{VT+8}, v{VT+9}, s[{SRD_X}:{SRD_X+3}], s{st} offen sc1
    s_mov_b64 exec, -1
    """)
    a(f"""
    s_cmp_lt_u32 s{sj}, s{sr}
    s_addc_u32 s{s_n}, s{sq}, 0                  ; n = q + (j<r)
    {SKEW2}
    s_min_u32 s{s_n}, s{s_n}, 54
    s_and_b32 s{s_rem}, s{sLm1}, 31
    s_add_u32 s{s_rem}, s{s_rem}, 1
    s_add_u32 s{st}, s{sj}, 1
    s_cmp_eq_u32 s{st}, s{sn}
    s_cselect_b32 s{s_rem}, s{s_rem}, 32
    s_sub_u32 s{s_patch}, s{s_n}, 2
    s_cmp_lt_u32 s{s_rem}, 32
    s_cselect_b32 s{s_patch}, s{s_patch}, 0x7fffffff
    s_mov_b32 s{s_scale}, 0x{f32bits(SCALE):x}
    s_cmp_lt_i32 s{scl}, 1
    s_cselect_b32 s{s_scale}, 0, s{s_scale}
    s_mov_b32 s{s_scale+1}, s{s_scale}
    s_lshl_b32 s{s_wgslot}, s{s_h}, 6
    s_add_u32 s{s_wgslot}, s{s_wgslot}, s{s_slot}
    s_min_u32 s{s_nb}, s{sn}, 64
    s_mov_b32 s{s_jj}, s{sj}
    s_sub_u32 s{s_E}, s{s_wgslot}, s{sj}
    """)
    sstamp(93)
    nz = cfg["zero_early"]
    for r in range(64, 64 + nz):
        a(f"v_mov_b32 v{r}, 0")
    a(f"""
    v_mov_b32 v{t2}, 0x80000000
    v_cmp_gt_u32 vcc, s{s_n}, v{VLANE}
    s_waitcnt vmcnt(9)
    v_lshlrev_b32 v{PAGES}, 14, v{PAGES}
    v_cndmask_b32 v{PAGES}, v{t2}, v{PAGES}, vcc
    s_nop 0
    """)
    PEEL = cfg["peel"]
    NPRE = D - PEEL
    for j in range(D + 1 + PEEL):
        a(f"v_readlane_b32 s{st+j}, v{PAGES}, {j}")
    a("s_nop 3")
    vm = ["QA"] * 8 + ["NONCE"]
    def vwait(tag):
        idx = max(i for i, t in enumerate(vm) if t == tag)
        a(f"s_waitcnt vmcnt({len(vm) - 1 - idx})")
    def issue(lst, tag):
        a(lst[0]); a("s_nop 0"); a(lst[2]); a(lst[3])
        vm.extend([tag, tag])
    pairs = [("K", 0)]
    for j in range(NPRE):
        pairs += [("K", j + 1), ("V", j)]
    def pair():
        if not pairs:
            return
        kind, j = pairs.pop(0)
        issue(dma_k(None, j, st + j) if kind == "K" else dma_v(None, j, st + j), f"{kind}{j}")
    QRAW = {0: 0, 1: 128}
    def qread(X):
        for s in range(8):
            a(f"v_add_u32 v{VT+4+s}, s{s_qlds+X}, v{KADDR+s}")
        for s in range(8):
            r = QRAW[X] + 4 * s
            a(f"ds_read_b128 v[{r}:{r+3}], v{VT+4+s}")
    def prescale(X, packed):
        out = []
        for i in range(32):
            r = QRAW[X] + i
            ta, tb = VT + (i & 1) * 2, VT + (i & 1) * 2 + 1
            g = []
            if i % 4 == 0:
                g.append(f"s_waitcnt lgkmcnt({7 - i // 4})")
            g += [f"v_lshlrev_b32 v{ta}, 16, v{r}", f"v_and_b32 v{tb}, 0xffff0000, v{r}"]
            if packed(i):
                g.append(f"v_pk_mul_f32 v[{ta}:{tb}], v[{ta}:{tb}], s[{s_scale}:{s_scale+1}]")
            else:
                g += [f"v_mul_f32 v{ta}, s{s_scale}, v{ta}", f"v_mul_f32 v{tb}, s{s_scale}, v{tb}"]
            g += [f"v_cvt_pk_bf16_f32 v{ta}, v{ta}, v{tb}", f"v_accvgpr_write_b32 a{32*X+i}, v{ta}"]
            out.append(g)
        return out
    pstamp(0)
    for _ in range(cfg["pp0"]):
        pair()
    qload(1); vm.extend(["QB"] * 8)
    for _ in range(cfg["pp1"]):
        pair()
    pstamp(1)
    a(f"""
    s_lshl_b32 s{s_lo}, s{s_jj}, 2
    v_add_u32 v{VT+6}, s{s_lo}, v{VLANE}
    v_lshlrev_b32 v{VT+6}, 4, v{VT+6}
    v_cvt_f32_u32 v{VT+6}, v{VT+6}
    v_cvt_f32_u32 v{VT+7}, s{s_nb}
    v_rcp_f32 v{VT+7}, v{VT+7}
    v_add_f32 v{VT+6}, 0.5, v{VT+6}
    s_add_u32 s{s_hi}, s{s_w}, 1
    v_mul_f32 v{VT+6}, v{VT+6}, v{VT+7}
    v_cvt_u32_f32 v{VT+6}, v{VT+6}
    s_lshl_b32 s{st+11}, s{s_w}, 4
    v_readlane_b32 s{s_wlo}, v{VT+6}, 0
    v_readlane_b32 s{s_own}, v{VT+6}, 4
    v_readlane_b32 s{s_hi}, v{VT+6}, s{s_hi}
    v_readlane_b32 s{s_lo}, v{VT+6}, s{s_w}
    s_sub_u32 s{s_own}, s{s_own}, s{s_wlo}
    s_bfm_b64 s[{st+12}:{st+13}], s{s_own}, s{s_wlo}
    s_lshr_b64 s[{st+12}:{st+13}], s[{st+12}:{st+13}], s{st+11}
    s_cmp_ge_u32 s{s_nb}, 3
    s_cselect_b32 s{s_own}, s{st+12}, 0
    """)
    for r in list(range(64 + nz, 128)) + list(range(160, 208)) + list(range(32, 64)):
        a(f"v_mov_b32 v{r}, 0")
    for r in range(32):
        a(f"v_accvgpr_write_b32 a{AV+r}, 0")
    a(f"""
    v_mov_b32 v{L_[0]}, 0
    v_mov_b32 v{L_[1]}, 0
    s_cmp_eq_u32 s{s_patch}, -1
    s_cbranch_scc0 L_nopatch0
    s_call_b64 s[{s_ret}:{s_ret+1}], L_sub_patch
    """)
    a.label("L_nopatch0")
    vwait("QA")
    pstamp(10)
    qread(0)
    for i, g in enumerate(prescale(0, lambda i: cfg["pk"])):
        for t in g:
            a(t)
        if i in cfg["ppA"]:
            pair()
    pstamp(2)
    vwait("QB")
    pstamp(11)
    qread(1)
    for i, g in enumerate(prescale(1, lambda i: cfg["pk"])):
        for t in g:
            a(t)
        if i in cfg["ppB"]:
            pair()
    pstamp(3)
    vwait("K0")
    pstamp(4)
    a("s_barrier")
    pstamp(12)
    for s in range(8):
        a(k_read(s, 0))
    for s in range(8):
        a(f"s_waitcnt lgkmcnt({7-s})")
        a(mfma_qk(0, s))
        if s in cfg["ppQ"]:
            pair()
        for r in range(128 + 4 * s, 132 + 4 * s):
            a(f"v_mov_b32 v{r}, 0")
    a(mfma_qk(1, 0))
    a("s_nop 7")
    mxa = emit_rowmax(a, 0, M_[0], VT)
    mxa += [f"v_sub_f32 v{S_[0]+r}, v{S_[0]+r}, v{M_[0]}" for r in range(16)]
    mxa += [f"v_sub_f32 v{C_[0]+r}, v{C_[0]+r}, v{M_[0]}" for r in range(16)]
    for s in range(1, 8):
        a(mfma_qk(1, s))
        for _ in range(5):
            a(mxa.pop(0))
    while pairs:
        pair()
    a(f"s_mov_b32 s{s_pg[(PEEL & 1) ^ 1]}, s{st+D+PEEL}")
    while mxa:
        a(mxa.pop(0))
    a("s_nop 7")
    for t in emit_rowmax(a, 1, M_[1], VT):
        a(t)
    for r in range(16):
        a(f"v_sub_f32 v{C_[1]+r}, v{C_[1]+r}, v{M_[1]}")
    if cfg["fused"]:
        a(f"""
        v_mov_b32 v{VT+11}, 0
        buffer_load_dword v{VT+10}, v{VT+11}, s[{SRD_X}:{SRD_X+3}], 0 offen sc1
        """)
    sstamp(94)
    sstamp(95)
    if cfg.get("pad_ls"):
        emit_pad(a, cfg["pad_ls"], "ls")
    pre, front, valu, tail = plan_body(7, cfg)
    hd = [t for g in range(32 - cfg["delta"], 32) for _, t in valu[g]
          if not t.startswith(f"v_add_f32 v{L_[1]},")]
    for t in hd:
        a(t)
    a("s_nop 1")
    tramps = []
    for k in range(PEEL):
        issued = NPRE + 2 * k
        need = k + cfg["bar_period"]
        assert issued >= need
        emit_body(a, k, tramps, cfg, peel=(NPRE + 2 * k, st), vm=4 * (issued - need))
    if PEEL:
        a(f"s_branch L_body_{PEEL}")
    for k in range(8):
        emit_body(a, k, tramps, cfg)
    a.label("L_drain")
    if cfg.get("pad_le"):
        emit_pad(a, cfg["pad_le"], "le")
    if cfg.get("stamp"):
        a(f"""
        s_memtime s[90:91]
        s_waitcnt lgkmcnt(0)
        s_mov_b32 s96, s90
        """)
    stf = cfg['st_flags']
    VLD = VT + 5
    assert cfg["fused"]
    def conv(X, dt):
        o = O_[X] + 16 * dt
        d = 8 * (4 * X + dt)
        out = [f"v_cvt_pk_bf16_f32 v{d+j}, v{o+2*j}, v{o+2*j+1}" for j in range(8)]
        out.append(f"s_add_u32 s{st+1}, s{st}, {X*8192 + dt*2048}")
        for kp in range(2):
            f = 8 * X + 2 * dt + kp
            gs = lambda so: f"buffer_store_dwordx4 v[{d+4*kp}:{d+4*kp+3}], v{VT+4}, s[{SRD_WS}:{SRD_WS+3}], {so} offen offset:{1024*kp}{stf}"
            dw = f"ds_write_b128 v{VLD}, v[{d+4*kp}:{d+4*kp+3}] offset:{1024*f}"
            if X == 0 or cfg["flagmode"] != "part":
                out.append(f"""s_bitcmp1_b32 s{s_own}, {f}
                s_cbranch_scc1 L_own_{f}
                {gs(f"s{st+1}")}
                s_branch L_own_r{f}
                L_own_{f}:
                {dw}
                L_own_r{f}:""")
            else:
                out.append(f"""s_bitcmp1_b32 s{s_own}, {f}
                s_cselect_b32 s{st+3}, 0x80000000, s{st+1}
                {gs(f"s{st+3}")}
                s_cbranch_scc0 L_own_r{f}
                {dw}
                L_own_r{f}:""")
        return out
    def put(t):
        for l in t.split("\n"):
            l = l.strip()
            if l.endswith(":"):
                a.label(l[:-1])
            elif l:
                a(l)
    ep = f"""
    s_waitcnt vmcnt(4)
    v_mov_b32 v{VT+6}, v{L_[0]}
    v_mov_b32 v{VT+7}, v{L_[1]}
    s_lshl_b32 s{st}, s{s_wgslot}, 11
    s_lshl_b32 s{st+1}, s{s_w}, 4
    s_add_u32 s{st}, s{st}, s{st+1}
    v_permlane32_swap_b32 v{L_[0]}, v{VT+6}
    v_permlane32_swap_b32 v{L_[1]}, v{VT+7}
    v_lshlrev_b32 v{VT+8}, 6, v{VLANE}
    v_mov_b32 v{VT}, v{M_[0]}
    v_add_f32 v{VT+1}, v{L_[0]}, v{VT+6}
    v_mov_b32 v{VT+2}, v{M_[1]}
    v_add_f32 v{VT+3}, v{L_[1]}, v{VT+7}
    s_add_u32 s{st}, s{st}, 0x{WS_ML:x}
    s_add_u32 s{st+1}, s{st+1}, 0x{LDS_ML:x}
    v_add_u32 v{VT+9}, s{st+1}, v{VT+8}
    s_mov_b32 exec_hi, 0\nbuffer_store_dwordx4 v[{VT}:{VT+3}], v{VT+8}, s[{SRD_WS}:{SRD_WS+3}], s{st} offen{stf}\nds_write_b128 v{VT+9}, v[{VT}:{VT+3}]\ns_mov_b64 exec, -1
    s_lshl_b32 s{st}, s{s_wgslot}, 16
    s_lshl_b32 s{st+1}, s{s_w}, 14
    s_add_u32 s{st}, s{st}, s{st+1}
    v_lshlrev_b32 v{VT+4}, 4, v{VLANE}
    s_lshl_b32 s{st+2}, s{s_w}, 4
    s_sub_u32 s{st+2}, s{st+2}, s{s_wlo}
    s_lshl_b32 s{st+2}, s{st+2}, 10
    s_add_u32 s{st+2}, s{st+2}, 0x20000
    v_add_u32 v{VLD}, s{st+2}, v{VT+4}
    """.strip().split("\n    ")
    ep += conv(0, 0) + conv(0, 1) + conv(0, 2) + conv(0, 3)
    for f in range(8):
        a(mfma_pv(1, f))
        for _ in range(8):
            put(ep.pop(0))
    while ep:
        put(ep.pop(0))
    a("s_nop 7")
    for dt in range(4):
        for t in conv(1, dt):
            put(t)
    if cfg["fused"]:
        emit_fused_combine(a, cfg, sstamp)
    if cfg.get("stamp"):
        a(f"""
        s_mov_b64 exec, -1
        s_waitcnt vmcnt(0)
        s_memtime s[90:91]
        s_memrealtime s[66:67]
        s_getreg_b32 s98, hwreg(HW_REG_XCC_ID)
        s_waitcnt lgkmcnt(0)
        v_mov_b32 v{VT+14}, 0
        v_writelane_b32 v{VT+14}, s92, 0
        v_writelane_b32 v{VT+14}, s93, 1
        v_writelane_b32 v{VT+14}, s94, 2
        v_writelane_b32 v{VT+14}, s95, 3
        v_writelane_b32 v{VT+14}, s96, 4
        v_writelane_b32 v{VT+14}, s90, 5
        v_writelane_b32 v{VT+14}, s{s_n}, 6
        v_writelane_b32 v{VT+14}, s98, 7
        v_writelane_b32 v{VT+14}, s100, 8
        v_writelane_b32 v{VT+14}, s66, 9
        v_writelane_b32 v{VT+14}, s88, 10
        v_writelane_b32 v{VT+14}, s89, 11
        v_writelane_b32 v{VT+14}, s97, 12
        v_writelane_b32 v{VT+14}, s99, 13
        v_writelane_b32 v{VT+14}, s{s_h}, 14
        s_lshl_b32 s{st}, s{s_wg}, 12
        s_lshl_b32 s{st+1}, s{s_w}, 10
        s_add_u32 s{st}, s{st}, s{st+1}
        s_add_u32 s{st}, s{st}, 0x{WS_DBG:x}
        v_lshlrev_b32 v{VT}, 2, v{VLANE}
        buffer_store_dword v{VT+12}, v{VT}, s[{SRD_WS}:{SRD_WS+3}], s{st} offen
        buffer_store_dword v{VT+13}, v{VT}, s[{SRD_WS}:{SRD_WS+3}], s{st} offen offset:256
        buffer_store_dword v{VT+14}, v{VT}, s[{SRD_WS}:{SRD_WS+3}], s{st} offen offset:512
        """)
    if cfg.get("pad_to_us"):
        a(f"""
        s_waitcnt vmcnt(0)
        s_add_u32 s92, s100, {int(cfg["pad_to_us"]*100)}
        """)
    if cfg.get("delay_us"):
        a(f"""
        s_memrealtime s[90:91]
        s_waitcnt lgkmcnt(0)
        s_add_u32 s92, s90, {int(cfg["delay_us"]*100)}
        """)
    if cfg.get("delay_us") or cfg.get("pad_to_us"):
        a.label("L_delay")
        a(f"""
        s_sleep 4
        s_memrealtime s[90:91]
        s_waitcnt lgkmcnt(0)
        s_sub_u32 s93, s92, s90
        s_cmp_gt_i32 s93, 0
        s_cbranch_scc1 L_delay
        """)
    a.label("L_end")
    a("s_endpgm")
    for lab, sub, ret in tramps:
        a.label(lab)
        a(f"s_call_b64 s[{s_ret}:{s_ret+1}], {sub}")
        a(f"s_branch {ret}")
    a.label("L_code_end")
    emit_fallback(a, 0)
    emit_fallback(a, 1)
    emit_patch(a)


def emit_fused_combine(a, cfg, sstamp):
    st = s_t0
    ldf = cfg["cld_flags"]
    s_nonce, s_to, s_mask, s_done, s_rdy, s_r0 = 54, 55, 56, 62, 64, 78
    s_cnt, s_ni, s_o, s_ml = 68, 69, 70, 72
    s_f0, s_f1 = 42, 52
    s_sel = (None, 66, 76)
    SJ = lambda k: (48, 49, 50, 51, 71, 73, 44, 45)[k]
    OB = lambda k: 12 * k
    MLB = lambda k: 96 + 4 * k
    ACC = 160
    MX, DEN, MN, SC, W = (192, 193), (194, 195), (196, 197), (198, 199), (204, 205)
    U0, U1, WT = 200, 201, 211
    VO, VML, VOUT, VF, VFO, VA = 206, 207, 208, 209, 210, 212
    WSR = f"s[{SRD_WS}:{SRD_WS+3}]"
    LA = cfg["clook"]
    def cst(n):
        if cfg.get("stamp"):
            a(f"""
            s_memtime s[90:91]
            s_waitcnt lgkmcnt(0)
            v_writelane_b32 v{VT+12}, s90, {53+n}
            """)
    a(f"""
    v_readfirstlane_b32 s{s_nonce}, v{VT+10}
    s_mov_b32 s{s_to}, {cfg["poll_max"]}
    s_cmp_lg_u32 s{s_nonce}, 0
    s_cbranch_scc1 L_fc_havenonce
    """)
    a.label("L_fc_npoll")
    a(f"""
    buffer_load_dword v{VT+10}, v{VT+11}, s[{SRD_X}:{SRD_X+3}], 0 offen sc1
    s_waitcnt vmcnt(0)
    v_readfirstlane_b32 s{s_nonce}, v{VT+10}
    s_sub_u32 s{s_to}, s{s_to}, 1
    s_cmp_eq_u32 s{s_to}, 0
    s_cbranch_scc1 L_fc_havenonce
    s_cmp_eq_u32 s{s_nonce}, 0
    s_cbranch_scc1 L_fc_npoll
    """)
    a.label("L_fc_havenonce")
    a(f"""
    v_lshlrev_b32 v{VO}, 4, v{VLANE}
    v_and_b32 v{VML}, 31, v{VLANE}
    v_lshlrev_b32 v{VOUT}, 8, v{VML}
    v_lshl_add_u32 v{VOUT}, v{VH4}, 2, v{VOUT}   ; q*256 + h2*16
    v_lshlrev_b32 v{VML}, 6, v{VML}
    v_lshlrev_b32 v{VFO}, 2, v{VLANE}
    v_cmp_gt_u32 vcc, s{s_nb}, v{VLANE}
    s_mov_b64 s[{s_mask}:{s_mask+1}], vcc
    v_mov_b32 v{VF}, s{s_nonce}
    s_lshl_b32 s{s_mine+1}, s{s_b}, 2
    s_add_u32 s{s_mine+1}, s{s_mine+1}, s{s_h}
    s_lshl_b32 s{s_mine+1}, s{s_mine+1}, 11
    s_add_u32 s{s_mine+1}, s{s_mine+1}, 0x{WS_FLAG:x}
    s_max_u32 s{s_to}, s{s_to}, 1
    s_lshl_b32 s{st}, s{s_jj}, 2
    s_lshl_b32 s{st+1}, s{s_w}, 9
    s_add_u32 s{st}, s{st}, s{st+1}
    s_add_u32 s{st}, s{st}, s{s_mine+1}
    """)
    emit_srd(a, SRD_X, s_out, Q_BYTES)
    if cfg.get("pad_pub"):
        a("s_waitcnt vmcnt(0) lgkmcnt(0)")
        emit_pad(a, cfg["pad_pub"], "pub")
    if cfg["flagmode"] == "part":
        a(f"""
        s_waitcnt lgkmcnt(0)
        s_barrier
        s_waitcnt vmcnt(8)
        s_mov_b64 exec, 1
        buffer_store_dword v{VF}, v{VT+11}, {WSR}, s{st} offen sc1
        s_waitcnt vmcnt(1)
        buffer_store_dword v{VF}, v{VT+11}, {WSR}, s{st} offen offset:256 sc1
        s_mov_b64 exec, -1
        """)
    else:
        a(f"""
        s_waitcnt vmcnt(0) lgkmcnt(0)
        s_barrier
        s_cmp_eq_u32 s{s_w}, 0
        s_cselect_b64 exec, 1, 0
        s_cbranch_scc0 L_fc_noflag
        buffer_store_dword v{VF}, v{VT+11}, {WSR}, s{st} offen sc1
        """)
        a.label("L_fc_noflag")
        a("s_mov_b64 exec, -1")
    sstamp(97)
    a(f"""
    s_cmp_ge_u32 s{s_lo}, s{s_hi}
    s_cbranch_scc1 L_fc_end
    """)
    a.label("L_fc_outer")
    a(f"""
    s_sub_u32 s{s_ni}, s{s_hi}, s{s_lo}
    s_min_u32 s{s_ni}, s{s_ni}, 3
    s_lshl_b32 s{s_o}, s{s_lo}, 10
    s_lshr_b32 s{st}, s{s_lo}, 3                 ; u0
    s_lshl_b32 s{s_ml}, s{st}, 3
    s_mov_b64 s[{s_done}:{s_done+1}], 0
    s_lshl_b32 s{s_f0}, s{st}, 8
    s_add_u32 s{s_f0}, s{s_f0}, s{s_mine+1}
    s_add_u32 s{s_f1}, s{s_lo}, s{s_ni}
    s_sub_u32 s{s_f1}, s{s_f1}, 1
    s_lshr_b32 s{s_f1}, s{s_f1}, 3
    s_lshl_b32 s{s_f1}, s{s_f1}, 8
    s_add_u32 s{s_f1}, s{s_f1}, s{s_mine+1}
    """)
    for t in (1, 2):
        a(f"""
        s_add_u32 s{st+1}, s{s_lo}, {t}
        s_lshr_b32 s{st+1}, s{st+1}, 3
        s_cmp_lg_u32 s{st+1}, s{st}
        s_cselect_b64 s[{s_sel[t]}:{s_sel[t]+1}], -1, 0
        """)
    a(f"""
    s_cmp_lt_u32 s{s_nb}, 3
    s_cbranch_scc1 L_fc_zero
    s_sub_u32 s{st}, s{s_lo}, s{s_wlo}
    s_lshl_b32 s{st}, s{st}, 10
    s_add_u32 s{st}, s{st}, 0x20000
    v_add_u32 v{VA}, s{st}, v{VO}
    s_add_u32 s{st}, s{s_ml}, 0x{LDS_ML:x}
    v_add_u32 v{VA+1}, s{st}, v{VML}
    ds_read_b128 v[0:3], v{VA}
    ds_read_b128 v[4:7], v{VA} offset:1024
    ds_read_b128 v[8:11], v{VA} offset:2048
    ds_read_b64 v[{MLB(0)}:{MLB(0)+1}], v{VA+1}
    ds_read_b64 v[{MLB(0)+2}:{MLB(0)+3}], v{VA+1} offset:8
    s_bitset1_b64 s[{s_done}:{s_done+1}], s{s_jj}
    s_waitcnt lgkmcnt(0)
    v_mov_b32 v{MX[0]}, v{MLB(0)}
    v_mov_b32 v{DEN[0]}, v{MLB(0)+1}
    v_mov_b32 v{MX[1]}, v{MLB(0)+2}
    v_mov_b32 v{DEN[1]}, v{MLB(0)+3}
    """)
    for r in range(12):
        a(f"""
        v_lshlrev_b32 v{ACC+2*r}, 16, v{r}
        v_and_b32 v{ACC+2*r+1}, 0xffff0000, v{r}
        """)
    a("s_branch L_fc_init")
    a.label("L_fc_zero")
    for X in range(2):
        a(f"v_mov_b32 v{MX[X]}, 0xff800000")
        a(f"v_mov_b32 v{DEN[X]}, 0")
    for r in range(24):
        a(f"v_mov_b32 v{ACC+r}, 0")
    a.label("L_fc_init")
    a(f"s_add_u32 s{s_ml}, s{s_ml}, 0x{WS_ML:x}")
    if cfg["flagmode"] == "part":
        POLL = f"""buffer_load_dword v{VF}, v{VFO}, {WSR}, s{s_f0} offen sc1
    buffer_load_dword v{WT}, v{VFO}, {WSR}, s{s_f1} offen sc1
    s_waitcnt vmcnt(0)
    v_cmp_eq_u32 vcc, s{s_nonce}, v{VF}
    s_and_b64 s[{s_rdy}:{s_rdy+1}], vcc, s[{s_mask}:{s_mask+1}]
    v_cmp_eq_u32 vcc, s{s_nonce}, v{WT}
    s_and_b64 s[{s_rdy}:{s_rdy+1}], vcc, s[{s_rdy}:{s_rdy+1}]"""
    else:
        POLL = f"""buffer_load_dword v{VF}, v{VFO}, {WSR}, s{s_mine+1} offen sc1
    s_waitcnt vmcnt(0)
    v_cmp_eq_u32 vcc, s{s_nonce}, v{VF}
    s_and_b64 s[{s_rdy}:{s_rdy+1}], vcc, s[{s_mask}:{s_mask+1}]"""
    a.label("L_fc_poll")
    a(f"""
    {POLL}
    s_andn2_b64 s[{s_rdy}:{s_rdy+1}], s[{s_rdy}:{s_rdy+1}], s[{s_done}:{s_done+1}]
    s_cbranch_scc1 L_fc_go
    s_sleep {cfg["poll_sleep"]}
    s_sub_u32 s{s_to}, s{s_to}, 1
    s_cmp_lg_u32 s{s_to}, 0
    s_cbranch_scc1 L_fc_poll
    s_branch L_fc_store
    """)
    a.label("L_fc_go")
    sstamp(99)
    a(f"""
    s_mov_b64 s[{s_r0}:{s_r0+1}], s[{s_rdy}:{s_rdy+1}]
    v_mov_b32 v{MN[0]}, v{MX[0]}
    v_mov_b32 v{MN[1]}, v{MX[1]}
    """)
    for k in range(8):
        a(f"""
        s_ff1_i32_b64 s{st}, s[{s_rdy}:{s_rdy+1}]
        s_bitset0_b64 s[{s_rdy}:{s_rdy+1}], s{st}
        s_add_u32 s{st}, s{st}, s{s_E}
        s_lshl_b32 s{SJ(k)}, s{st}, 16
        s_lshl_b32 s{st}, s{st}, 11
        s_add_u32 s{st}, s{st}, s{s_ml}
        s_add_u32 s{SJ(k)}, s{SJ(k)}, s{s_o}
        s_mov_b32 s{s_cnt}, {k+1}
        buffer_load_dwordx4 v[{MLB(k)}:{MLB(k)+3}], v{VML}, {WSR}, s{st} offen{ldf}
        """)
        if k < 7:
            a(f"""
            s_cmp_eq_u64 s[{s_rdy}:{s_rdy+1}], 0
            s_cbranch_scc1 L_fc_taken
            """)
    a.label("L_fc_taken")
    a(f"""
    s_andn2_b64 s[{s_r0}:{s_r0+1}], s[{s_r0}:{s_r0+1}], s[{s_rdy}:{s_rdy+1}]
    s_or_b64 s[{s_done}:{s_done+1}], s[{s_done}:{s_done+1}], s[{s_r0}:{s_r0+1}]
    s_cmp_eq_u32 s{s_ni}, 2
    s_cbranch_scc1 L_fc_r2
    s_cmp_eq_u32 s{s_ni}, 3
    s_cbranch_scc1 L_fc_r3
    """)
    def sel(dst, pair, t):
        if t == 0:
            return None
        return f"v_cndmask_b32 v{dst}, v{pair[0]}, v{pair[1]}, s[{s_sel[t]}:{s_sel[t]+1}]"
    for NI in (1, 2, 3):
        tag = f"r{NI}"
        a.label(f"L_fc_{tag}")
        def oload(k):
            for c in range(NI):
                a(f"buffer_load_dwordx4 v[{OB(k)+4*c}:{OB(k)+4*c+3}], v{VO}, {WSR}, s{SJ(k)} offen offset:{1024*c}{ldf}")
        for k in range(7, -1, -1):
            a(f"""
            s_cmp_le_u32 s{s_cnt}, {k}
            s_cbranch_scc1 L_fc_{tag}_p{k}
            """)
            if k + LA < 8:
                a(f"""
                s_cmp_gt_u32 s{s_cnt}, {k + LA}
                s_cbranch_scc1 L_fc_{tag}_pd
                """)
            oload(k)
            a.label(f"L_fc_{tag}_p{k}")
        a.label(f"L_fc_{tag}_pd")
        cst(0)
        for c in range(1, LA):
            a(f"""
            s_cmp_eq_u32 s{s_cnt}, {c}
            s_cbranch_scc0 L_fc_{tag}_w{c}
            s_waitcnt vmcnt({NI*c})
            """)
            a.label(f"L_fc_{tag}_w{c}")
        a(f"s_waitcnt vmcnt({NI*LA})")
        cst(1)
        NSET = 1 if NI == 1 else 2
        for k in range(8):
            if k:
                a(f"""
                s_cmp_le_u32 s{s_cnt}, {k}
                s_cbranch_scc1 L_fc_{tag}_max
                """)
            for X in range(NSET):
                a(f"v_max_f32 v{MN[X]}, v{MN[X]}, v{MLB(k)+2*X}")
        a.label(f"L_fc_{tag}_max")
        for X in range(NSET):
            a(f"""
            v_sub_f32 v{SC[X]}, v{MX[X]}, v{MN[X]}
            v_exp_f32 v{SC[X]}, v{SC[X]}
            v_mov_b32 v{MX[X]}, v{MN[X]}
            """)
        for X in range(NSET):
            a(f"v_mul_f32 v{DEN[X]}, v{DEN[X]}, v{SC[X]}")
        for t in range(NI):
            if t:
                a(sel(WT, SC, t))
            for r in range(8):
                a(f"v_mul_f32 v{ACC+8*t+r}, v{ACC+8*t+r}, v{WT if t else SC[0]}")
        for k in range(7, -1, -1):
            if k:
                a(f"""
                s_cmp_le_u32 s{s_cnt}, {k}
                s_cbranch_scc1 L_fc_{tag}_u{k}
                """)
            if k - LA >= 0:
                oload(k - LA)
            for X in range(NSET):
                a(f"v_sub_f32 v{W[X]}, v{MLB(k)+2*X}, v{MN[X]}")
            for X in range(NSET):
                a(f"v_exp_f32 v{W[X]}, v{W[X]}")
            a("s_nop 0")
            for X in range(NSET):
                a(f"v_fmac_f32 v{DEN[X]}, v{W[X]}, v{MLB(k)+2*X+1}")
            for t in range(NI):
                if t:
                    a(sel(WT, W, t))
                a(f"s_waitcnt vmcnt({NI*min(k, LA) + NI - 1 - t})")
                for r in range(4):
                    u0, u1 = U0 + 2 * (r & 1), U1 + 2 * (r & 1)
                    a(f"""
                    v_lshlrev_b32 v{u0}, 16, v{OB(k)+4*t+r}
                    v_and_b32 v{u1}, 0xffff0000, v{OB(k)+4*t+r}
                    v_fmac_f32 v{ACC+8*t+2*r}, v{WT if t else W[0]}, v{u0}
                    v_fmac_f32 v{ACC+8*t+2*r+1}, v{WT if t else W[0]}, v{u1}
                    """)
            a.label(f"L_fc_{tag}_u{k}")
        cst(2)
        a(f"""
        s_cmp_lg_u64 s[{s_done}:{s_done+1}], s[{s_mask}:{s_mask+1}]
        s_cbranch_scc1 L_fc_poll
        """)
        if NI < 3:
            a("s_branch L_fc_store")
    a.label("L_fc_store")
    cst(3)
    a(f"""
    v_rcp_f32 v{SC[0]}, v{DEN[0]}
    v_rcp_f32 v{SC[1]}, v{DEN[1]}
    s_lshl_b32 s{st}, s{s_b}, 2
    s_add_u32 s{st}, s{st}, s{s_h}
    s_lshl_b32 s{st}, s{st}, 16                  ; (b*32 + 8h)*8192
    """)
    for t in range(3):
        if t:
            a(f"""
            s_cmp_le_u32 s{s_ni}, {t}
            s_cbranch_scc1 L_fc_next
            {sel(WT, SC, t)}
            """)
        A0 = ACC + 8 * t
        a(f"""
        s_add_u32 s{st+1}, s{s_lo}, {t}
        s_lshr_b32 s{st+2}, s{st+1}, 3
        s_lshl_b32 s{st+2}, s{st+2}, 13
        s_and_b32 s{st+1}, s{st+1}, 7
        s_lshl_b32 s{st+1}, s{st+1}, 5
        s_add_u32 s{st+1}, s{st+1}, s{st+2}
        s_add_u32 s{st+1}, s{st+1}, s{st}
        """)
        for r in range(8):
            a(f"v_mul_f32 v{A0+r}, v{A0+r}, v{WT if t else SC[0]}")
        for r in range(4):
            a(f"v_cvt_pk_bf16_f32 v{A0+r}, v{A0+2*r}, v{A0+2*r+1}")
        a(f"""
        s_nop 1
        v_permlane32_swap_b32 v{A0}, v{A0+2}
        v_permlane32_swap_b32 v{A0+1}, v{A0+3}
        buffer_store_dwordx4 v[{A0}:{A0+3}], v{VOUT}, s[{SRD_X}:{SRD_X+3}], s{st+1} offen{cfg['out_flags']}
        """)
    a.label("L_fc_next")
    a(f"""
    s_add_u32 s{s_lo}, s{s_lo}, 3
    s_cmp_lt_u32 s{s_lo}, s{s_hi}
    s_nop 1
    s_cbranch_scc1 L_fc_outer
    """)
    a.label("L_fc_end")


def emit_combine(a, cfg):
    K = "pa_combine_kernel"
    NB = 12
    a.raw(f".globl {K}\n.p2align 8\n.type {K},@function")
    a.label(K)
    VL, VCL, VT_ = 200, 201, 202
    ACC = 160
    DEN, MX, MN, SC, W = 170, 171, 172, 173, 174
    U0, U1 = 176, 177
    OB = 0
    MLB = 64
    SRD_C, SRD_W, SRD_O = 20, 24, 28
    sw, sb, sh, swx, sn, sE, sbase, sj = 40, 41, 42, 43, 44, 45, 46, 47
    st = 60
    a(f"""
    s_cmp_ge_u32 s2, 256
    s_cbranch_scc1 L_cend
    s_load_dwordx16 s[4:19], s[0:1], 0
    {"s_memrealtime s[100:101]" if cfg.get("cpad_to_us") else ""}
    v_lshrrev_b32 v{VT_}, 6, v0
    v_and_b32 v{VL}, 63, v0
    s_lshr_b32 s{sb}, s2, 5
    v_readfirstlane_b32 s{sw}, v{VT_}
    s_lshr_b32 s{sh}, s2, 3
    s_and_b32 s{sh}, s{sh}, 3
    s_and_b32 s{swx}, s2, 7
    v_and_b32 v{VT_+1}, 7, v{VL}
    v_lshlrev_b32 v{VT_+1}, 2, v{VT_+1}
    s_waitcnt lgkmcnt(0)
    """)
    emit_srd(a, SRD_C, s_cl, 32)
    a(f"buffer_load_dword v{VCL}, v{VT_+1}, s[{SRD_C}:{SRD_C+3}], 0 offen")
    emit_srd(a, SRD_W, s_ws, WS_BYTES)
    emit_srd(a, SRD_O, s_out, Q_BYTES)
    VOFF, VML, VOUT = 180, 181, 182
    a(f"""
    s_lshl_b32 s{st}, s{swx}, 13
    s_lshl_b32 s{st+1}, s{sw}, 10
    s_add_u32 s{st}, s{st}, s{st+1}
    v_lshlrev_b32 v{VOFF}, 4, v{VL}
    v_add_u32 v{VOFF}, s{st}, v{VOFF}
    s_lshl_b32 s{st}, s{swx}, 8
    s_add_u32 s{st}, s{st}, 0x{WS_ML:x}
    v_and_b32 v{VML}, 31, v{VL}
    v_lshlrev_b32 v{VOUT}, 8, v{VML}             ; q*256
    v_lshlrev_b32 v{VML}, 3, v{VML}
    v_add_u32 v{VML}, s{st}, v{VML}
    v_lshrrev_b32 v{VT_+2}, 5, v{VL}
    v_lshl_add_u32 v{VOUT}, v{VT_+2}, 3, v{VOUT} ; + h2*8
    s_lshl_b32 s{st}, s2, 13
    s_lshl_b32 s{st+1}, s{sw}, 5
    s_add_u32 s{st}, s{st}, s{st+1}
    v_add_u32 v{VOUT}, s{st}, v{VOUT}
    v_mov_b32 v{DEN}, 0
    v_mov_b32 v{MX}, 0xff800000
    """)
    for r in range(8):
        a(f"v_mov_b32 v{ACC+r}, 0")
    a("s_waitcnt vmcnt(0)")
    R = emit_partition(a, VL, VCL, VT_, st)
    a(f"""
    s_add_u32 s{st}, s{st}, s{sb}
    v_readlane_b32 s{sn}, v{R['n']}, s{st}
    v_readlane_b32 s{sE}, v{R['incl']}, s{st}
    s_nop 3
    s_sub_u32 s{sE}, s{sE}, s{sn}
    s_min_u32 s{sn}, s{sn}, 64
    s_lshl_b32 s{st}, s{sh}, 6
    s_add_u32 s{sE}, s{sE}, s{st}
    s_mov_b32 s{sbase}, 0
    """)
    a.label("L_cloop")
    for j in range(NB):
        a(f"""
        s_add_u32 s{sj}, s{sbase}, {j}
        s_add_u32 s{st}, s{sE}, s{sj}
        s_lshl_b32 s{st+1}, s{st}, 16
        s_lshl_b32 s{st}, s{st}, 11
        s_cmp_lt_u32 s{sj}, s{sn}
        s_cselect_b32 s{st+1}, s{st+1}, 0x80000000
        s_cselect_b32 s{st}, s{st}, 0x80000000
        buffer_load_dwordx2 v[{MLB+2*j}:{MLB+2*j+1}], v{VML}, s[{SRD_W}:{SRD_W+3}], s{st} offen
        buffer_load_dwordx4 v[{OB+4*j}:{OB+4*j+3}], v{VOFF}, s[{SRD_W}:{SRD_W+3}], s{st+1} offen
        """)
    a(f"v_mov_b32 v{MN}, v{MX}")
    for j in range(NB):
        a(f"""
        s_add_u32 s{sj}, s{sbase}, {j}
        s_cmp_ge_u32 s{sj}, s{sn}
        s_cbranch_scc1 L_cmaxdone
        s_waitcnt vmcnt({2*(NB-1-j)+1})
        v_max_f32 v{MN}, v{MN}, v{MLB+2*j}
        """)
    a.label("L_cmaxdone")
    a(f"""
    v_sub_f32 v{SC}, v{MX}, v{MN}
    v_exp_f32 v{SC}, v{SC}
    v_mov_b32 v{MX}, v{MN}
    v_mul_f32 v{DEN}, v{DEN}, v{SC}
    """)
    for r in range(8):
        a(f"v_mul_f32 v{ACC+r}, v{ACC+r}, v{SC}")
    for j in range(NB):
        a(f"""
        s_add_u32 s{sj}, s{sbase}, {j}
        s_cmp_ge_u32 s{sj}, s{sn}
        s_cbranch_scc1 L_cfin
        v_sub_f32 v{W}, v{MLB+2*j}, v{MX}
        v_exp_f32 v{W}, v{W}
        s_waitcnt vmcnt({2*(NB-1-j)})
        v_fmac_f32 v{DEN}, v{W}, v{MLB+2*j+1}
        """)
        for r in range(4):
            a(f"""
            v_lshlrev_b32 v{U0}, 16, v{OB+4*j+r}
            v_and_b32 v{U1}, 0xffff0000, v{OB+4*j+r}
            v_fmac_f32 v{ACC+2*r}, v{W}, v{U0}
            v_fmac_f32 v{ACC+2*r+1}, v{W}, v{U1}
            """)
    a(f"""
    s_add_u32 s{sbase}, s{sbase}, {NB}
    s_branch L_cloop
    """)
    a.label("L_cfin")
    a(f"""
    v_rcp_f32 v{SC}, v{DEN}
    s_nop 0
    """)
    for r in range(8):
        a(f"v_mul_f32 v{ACC+r}, v{ACC+r}, v{SC}")
    for r in range(4):
        a(f"v_cvt_pk_bf16_f32 v{ACC+r}, v{ACC+2*r}, v{ACC+2*r+1}")
    a(f"""
    buffer_store_dwordx2 v[{ACC}:{ACC+1}], v{VOUT}, s[{SRD_O}:{SRD_O+3}], 0 offen
    buffer_store_dwordx2 v[{ACC+2}:{ACC+3}], v{VOUT}, s[{SRD_O}:{SRD_O+3}], 0 offen offset:16
    """)
    if cfg.get("cpad_to_us"):
        a(f"""
        s_waitcnt vmcnt(0)
        s_add_u32 s92, s100, {int(cfg["cpad_to_us"]*100)}
        """)
        a.label("L_cdelay")
        a(f"""
        s_sleep 4
        s_memrealtime s[90:91]
        s_waitcnt lgkmcnt(0)
        s_sub_u32 s93, s92, s90
        s_cmp_gt_i32 s93, 0
        s_cbranch_scc1 L_cdelay
        """)
    a.label("L_cend")
    a("s_endpgm")


def descriptor(name, vgpr, accum, sgpr=102):
    return f"""
.p2align 6
.amdhsa_kernel {name}
  .amdhsa_next_free_vgpr {vgpr}
  .amdhsa_next_free_sgpr {sgpr}
  .amdhsa_accum_offset {accum}
  .amdhsa_group_segment_fixed_size 0
  .amdhsa_kernarg_size 64
  .amdhsa_user_sgpr_count 2
  .amdhsa_user_sgpr_kernarg_segment_ptr 1
  .amdhsa_system_sgpr_workgroup_id_x 1
.end_amdhsa_kernel
"""


DEFAULT_CFG = dict(
    vslots=[9, 10, 11, 12, 13, 14, 15, 16, 17, 18, 19, 20, 21, 22, 23, 24],
    rl_slot=22,
    dma_slots=[25, 26, 27, 29],
    dma_cost=12,
    patch_slot=9,
    delta=3,
    br_dist=2,
    empty_gaps=[31],
    bar_period=2,
    pp0=1, pp1=0, ppA=[7, 15], ppB=[15, 31], ppQ=[1, 3, 5, 7],
    pk=1,
    warm=1,
    zero_early=64,
    thr_log2=12,
    st_flags=" sc1",
    fused=1, cld_flags=" sc1", poll_sleep=1, poll_max=200000, cpk=0, clook=3, out_flags=" sc1",
    depth=6, map=0, flagmode="wg", cwarm=0, peel=0, peel_slots=[19, 22, 25, 27],
    ld_flags=" nt",
)


def generate(cfg=None, out=OUT):
    c = dict(DEFAULT_CFG)
    if cfg:
        c.update(cfg)
    global LDFLAGS
    LDFLAGS = c["ld_flags"]
    a = Asm()
    a.raw(f"""; Paged attention (GQA, split-KV) for gfx950 -- generated by gen.py (hand-scheduled)
; kernel 1: 256 workgroups, each 256 q rows x a key range of one (batch, kv head); partials -> d_ws
; kernel 2: combines the partials
{("; @launch grid=(256,1,1) block=(256,1,1) lds=163840" if c["fused"] else "; @launch kernel=" + NAME + "_kernel grid=(256,1,1) block=(256,1,1) lds=163840" + chr(10) + "; @launch kernel=pa_combine_kernel grid=(256,1,1) block=(512,1,1) lds=0")}
{"; @launch kernel=pa_nop_kernel grid=(1,1,1) block=(64,1,1) lds=0" + chr(10) if c.get("nop3") else ""}.amdgcn_target "amdgcn-amd-amdhsa--gfx950"
.text""")
    emit_main(a, c)
    if not c["fused"]:
        emit_combine(a, c)
    if c.get("nop3"):
        a.raw(".globl pa_nop_kernel\n.p2align 8\n.type pa_nop_kernel,@function\npa_nop_kernel:\n    s_endpgm")
    a.raw('.section .rodata,"a"')
    if c.get("nop3"):
        a.raw(descriptor("pa_nop_kernel", 8, 8))
    a.raw(descriptor(NAME + "_kernel", 384, 256))
    if not c["fused"]:
        a.raw(descriptor("pa_combine_kernel", 216, 216))
    open(out, "w").write(a.text())


if __name__ == "__main__":
    import json
    cfg = json.loads(sys.argv[1]) if len(sys.argv) > 1 else None
    generate(cfg, sys.argv[2] if len(sys.argv) > 2 else OUT)
```

```python
import sys, math

NAME = "standalone__paged_block_table_kv_pagedattention__sampling"
OUT = "cdna_kernels/%s.s" % NAME

KV_BYTES = 4100 * 16384
Q_BYTES = 8 * 32 * 32 * 128 * 2
BT_BYTES = 8 * 512 * 4
WS_ML = 0x1000000
LDS_ML = 0x27000
LDS_NONCE = 0x27ff0
WS_DBG = WS_ML + 256 * 2048
WS_FLAG = WS_DBG + 0x100000
WS_BYTES = WS_FLAG + 32 * 2048
SCALE = math.log2(math.e) / math.sqrt(128.0)
THR_LOG2 = 12

import struct
def f32bits(x):
    return struct.unpack("<I", struct.pack("<f", x))[0]

class Asm:
    def __init__(self):
        self.lines = []
    def __call__(self, s):
        for l in s.strip("\n").split("\n"):
            self.lines.append("    " + l.strip())
    def label(self, l):
        self.lines.append(l + ":")
    def raw(self, s):
        self.lines.append(s)
    def text(self):
        return "\n".join(self.lines) + "\n"

S_ = {0: 0, 1: 16}
C_ = {0: 32, 1: 48}
O_ = {0: 64, 1: 128}
P_ = {0: 192, 1: 200}
KADDR = 208
VADDR = 216
VOFFK = 220
VOFFV = 222
PAGES = 224
L_ = {0: 225, 1: 226}
M_ = {0: 227, 1: 228}
TS_ = {0: (229, 230), 1: (231, 232)}
ET = 233
VLANE = 239
VT = 240
VH4 = 255
AQ = {0: 0, 1: 32}
AK = 64
AV = 96

s_wg = 2
s_q, s_k, s_v, s_bt, s_cl, s_out, s_dbg, s_ws = 4, 6, 8, 10, 12, 14, 16, 18
SRD_K, SRD_V, SRD_Q, SRD_X, SRD_WS, SRD_BT = 20, 24, 28, 32, 36, 76
s_w = 40
s_h = 41
s_slot = 42
s_n = 43
s_i = 44
s_patch = 45
s_rem = 46
s_idx = 47
s_pg = {0: 48, 1: 49}
s_m0k = 50
s_m0v = 51
s_thr = {0: 52, 1: 52}
s_E = 53
s_nb = 82
s_jj = 3
s_mine = 74
s_own, s_wlo, s_lo, s_hi = 84, 85, 86, 87
s_floor = {0: 54, 1: 55}
s_first = {0: 56, 1: 57}
s_ret = 58
s_t0 = 60
s_qb = 84
s_qlds = 54
s_b = 80
s_start = 81
s_scale = 56
s_wgslot = 83


def emit_srd(a, d, ptr, nbytes):
    a(f"""
    s_mov_b32 s{d}, s{ptr}
    s_and_b32 s{d+1}, s{ptr+1}, 0xffff
    s_mov_b32 s{d+2}, 0x{nbytes:x}
    s_mov_b32 s{d+3}, 0x20000
    """)


def sum8(a, dst, src, tmp):
    a(f"""
    s_nop 1
    v_add_u32_dpp v{tmp}, v{src}, v{src} quad_perm:[1,0,3,2] row_mask:0xf bank_mask:0xf
    s_nop 1
    v_add_u32_dpp v{dst}, v{tmp}, v{tmp} quad_perm:[2,3,0,1] row_mask:0xf bank_mask:0xf
    s_nop 1
    v_add_u32_dpp v{dst}, v{dst}, v{dst} row_half_mirror row_mask:0xf bank_mask:0xf
    """)


def emit_partition(a, vlane, vcl, vt, st):
    Lm1, T_, Cc, Nn, NS, INC, Qq, Rr, X0, X1 = range(vt, vt + 10)
    a(f"""
    v_add_u32 v{Lm1}, -1, v{vcl}
    v_min_u32 v{Lm1}, 0x1fff, v{Lm1}
    v_lshrrev_b32 v{T_}, 5, v{Lm1}
    v_add_u32 v{T_}, 1, v{T_}
    """)
    sum8(a, Cc, T_, X0)
    a(f"""
    v_add_u32 v{Cc}, 63, v{Cc}
    v_lshrrev_b32 v{Cc}, 6, v{Cc}
    v_lshrrev_b32 v{X0}, 3, v{vlane}
    v_add_u32 v{Cc}, v{Cc}, v{X0}
    v_cvt_f32_u32 v{X0}, v{Cc}
    v_rcp_f32 v{X0}, v{X0}
    v_add3_u32 v{X1}, v{T_}, v{Cc}, -1
    v_cvt_f32_u32 v{X1}, v{X1}
    v_add_f32 v{X1}, 0.5, v{X1}
    v_mul_f32 v{X1}, v{X1}, v{X0}
    v_cvt_u32_f32 v{Nn}, v{X1}
    """)
    sum8(a, NS, Nn, X0)
    a(f"""
    s_nop 1
    v_add_u32_dpp v{INC}, v{Nn}, v{Nn} row_shr:1 row_mask:0xf bank_mask:0xf bound_ctrl:0
    v_cvt_f32_u32 v{X0}, v{Nn}
    v_rcp_f32 v{X0}, v{X0}
    v_add_u32_dpp v{INC}, v{INC}, v{INC} row_shr:2 row_mask:0xf bank_mask:0xf bound_ctrl:0
    v_cvt_f32_u32 v{X1}, v{T_}
    v_add_f32 v{X1}, 0.5, v{X1}
    v_add_u32_dpp v{INC}, v{INC}, v{INC} row_shr:4 row_mask:0xf bank_mask:0xf bound_ctrl:0
    v_mul_f32 v{X1}, v{X1}, v{X0}
    v_cvt_u32_f32 v{Qq}, v{X1}
    v_add_u32_dpp v{INC}, v{INC}, v{INC} row_shr:8 row_mask:0xf bank_mask:0xf bound_ctrl:0
    v_mul_u32_u24 v{X0}, v{Qq}, v{Nn}
    v_sub_u32 v{Rr}, v{T_}, v{X0}
    v_mov_b32_dpp v{X1}, v{NS} row_shr:8 row_mask:0xf bank_mask:0xf bound_ctrl:0
    v_sub_u32 v{INC}, v{INC}, v{X1}
    v_cmp_ge_u32 vcc, 64, v{NS}
    s_ff1_i32_b64 s{st}, vcc
    s_mov_b64 s[{st+2}:{st+3}], 0xff
    s_lshl_b64 s[{st+2}:{st+3}], s[{st+2}:{st+3}], s{st}
    """)
    return dict(Lm1=Lm1, t=T_, n=Nn, incl=INC, q=Qq, r=Rr)


def sm_stream(X, et=None):
    S = S_[X]; P = P_[X]
    TS0, TS1 = TS_[X]
    et = ET if et is None else et
    def tmp(j):
        if j == 0:
            return TS0, TS1
        k = (j - 1) % 3
        return et + 2 * k, et + 2 * k + 1
    E = lambda j, h: (8, f"v_exp_f32 v{tmp(j)[h]}, v{S + 2 * j + h}")
    A = lambda j, h: (4, f"v_add_f32 v{(TS0, TS1)[h]}, v{(TS0, TS1)[h]}, v{tmp(j)[h]}")
    C = lambda j: (4, f"v_cvt_pk_bf16_f32 v{P + j}, v{tmp(j)[0]}, v{tmp(j)[1]}")
    st = [E(0, 0), E(0, 1), E(1, 0), C(0), E(1, 1)]
    for j in range(1, 7):
        st += [A(j, 0), E(j + 1, 0), A(j, 1), C(j), E(j + 1, 1)]
    st += [A(7, 0), A(7, 1), C(7), (4, f"v_add_f32 v{TS0}, v{TS0}, v{TS1}")]
    return st


def mfma_qk(X, s):
    c = C_[X] if s == 0 else S_[X]
    return (f"v_mfma_f32_32x32x16_bf16 v[{S_[X]}:{S_[X]+15}], a[{AK+4*s}:{AK+4*s+3}], "
            f"a[{AQ[X]+4*s}:{AQ[X]+4*s+3}], v[{c}:{c+15}]")


def mfma_pv(X, f):
    t, dt = f >> 2, f & 3
    o = O_[X] + 16 * dt
    return (f"v_mfma_f32_32x32x16_bf16 v[{o}:{o+15}], a[{AV+4*f}:{AV+4*f+3}], "
            f"v[{P_[X]+4*t}:{P_[X]+4*t+3}], v[{o}:{o+15}]")


def k_read(s, slot):
    return f"ds_read_b128 a[{AK+4*s}:{AK+4*s+3}], v{KADDR+s} offset:{slot*8192}"


def v_read(f, y, slot):
    t, dt = f >> 2, f & 3
    return (f"ds_read_b64_tr_b16 a[{AV+4*f+2*y}:{AV+4*f+2*y+1}], v{VADDR+dt} "
            f"offset:{slot*8192 + (16*t+8*y)*256}")


LDFLAGS = ""
def dma_k(a_list, slot, spg):
    return [f"s_add_u32 m0, s{s_m0k}, {slot*8192}",
            None,
            f"buffer_load_dwordx4 v{VOFFK}, s[{SRD_K}:{SRD_K+3}], s{spg} offen{LDFLAGS} lds",
            f"buffer_load_dwordx4 v{VOFFK+1}, s[{SRD_K}:{SRD_K+3}], s{spg} offen offset:1024{LDFLAGS} lds"]


def dma_v(a_list, slot, spg):
    return [f"s_add_u32 m0, s{s_m0v}, {slot*8192}",
            None,
            f"buffer_load_dwordx4 v{VOFFV}, s[{SRD_V}:{SRD_V+3}], s{spg} offen{LDFLAGS} lds",
            f"buffer_load_dwordx4 v{VOFFV+1}, s[{SRD_V}:{SRD_V+3}], s{spg} offen offset:1024{LDFLAGS} lds"]


def plan_body(k, cfg, tramps=None, peel=None):
    kn = (k + 1) % 8
    kl = k if peel is None else f"p{k}"
    D = cfg["depth"]
    pgn = s_pg[k & 1]
    pgo = s_pg[(k & 1) ^ 1]
    tramps = [] if tramps is None else tramps
    pre = {i: [] for i in range(32)}
    front = {i: [] for i in range(32)}
    valu = {i: [] for i in range(32)}
    tail = {i: [] for i in range(32)}
    for s in range(8):
        front[s + 1].append((4, k_read(s, kn)))
    vslots = cfg["vslots"]
    vr = [(f, y) for f in range(8) for y in range(2)]
    for (f, y), sl in zip(vr, vslots):
        assert sl >= 9 + f, (f, sl)
        front[sl].append((4, v_read(f, y, k)))
    def vr_before(m):
        return sum(1 for sl in vslots if sl < m)
    pre[16].append(f"s_waitcnt lgkmcnt({vr_before(16)})")
    assert vr_before(24) >= 8
    pre[24].append(f"s_waitcnt lgkmcnt({vr_before(24) - 8})")
    assert vr_before(28) == 16
    pre[28].append("s_waitcnt lgkmcnt(0)")
    ds = cfg["dma_slots"]
    dcost = cfg["dma_cost"]
    if peel is None:
        valu[cfg["rl_slot"]].append((4, f"v_readlane_b32 s{pgn}, v{PAGES}, s{s_idx}"))
        tail[cfg["rl_slot"]].append(f"s_add_u32 s{s_idx}, s{s_idx}, 1")
        dk = dma_k(None, (k + D + 1) % 8, pgn)
        dv = dma_v(None, (k + D) % 8, pgo)
        tail[ds[0] - 1].append(dv[0])
        front[ds[0]].append((dcost, dv[2]))
        front[ds[1]].append((dcost, dv[3]))
        assert ds[2] - 1 >= ds[1]
        tail[ds[2] - 1].append(dk[0])
        front[ds[2]].append((dcost, dk[2]))
        front[ds[3]].append((dcost, dk[3]))
        assert ds[2] > cfg["rl_slot"] + 1
    else:
        g, pb = peel
        seq = [dma_k(None, (g + 1) % 8, pb + g + 1), dma_v(None, g % 8, pb + g),
               dma_k(None, (g + 2) % 8, pb + g + 2), dma_v(None, (g + 1) % 8, pb + g + 1)]
        for d_, sl in zip(seq, cfg["peel_slots"]):
            tail[sl - 1].append(d_[0])
            front[sl].append((dcost, d_[2]))
            front[sl + 1].append((dcost, d_[3]))
    ps = cfg["patch_slot"]
    tail[ps - 1].append(f"s_cmp_eq_u32 s{s_i}, s{s_patch}")
    front[ps].insert(0, (8, f"s_cbranch_scc1 L_patch_{kl}"))
    front[ps].insert(1, (0, f"L_patch_ret_{kl}:"))
    tramps.append((f"L_patch_{kl}", "L_sub_patch", f"L_patch_ret_{kl}"))
    assert max(ds) < 30
    tail[30].append(f"s_add_u32 s{s_i}, s{s_i}, 1")
    tail[30].append(f"s_cmp_ge_u32 s{s_i}, s{s_n}")
    front[31].append((8, "s_cbranch_scc1 L_drain"))
    dl = cfg["delta"]
    for X, lo in ((0, 32 - dl), (1, 16 - dl)):
        hi = lo + 15
        bs = (hi + cfg["br_dist"]) % 32
        front[bs].insert(0, (8, f"s_cbranch_vccnz L_fb{X}_{kl}"))
        front[bs].insert(1, (0, f"L_fb{X}_ret_{kl}:"))
        valu[bs].insert(0, (4, f"v_add_f32 v{L_[X]}, v{L_[X]}, v{TS_[X][0]}"))
        tramps.append((f"L_fb{X}_{kl}", f"L_sub_fb{X}", f"L_fb{X}_ret_{kl}"))
    if peel is not None:
        _, _, valu_r, _ = plan_body(k, cfg)
        for g_ in range(32):
            valu[g_] = [x for x in valu_r[g_] if not x[1].startswith("v_readlane")]
        return pre, front, valu, tail
    for X, lo in ((0, 32 - dl), (1, 16 - dl)):
        gaps = [(lo + j) % 32 for j in range(16)]
        st = sm_stream(X) + [(4, f"v_cmp_lt_f32 vcc, s{s_thr[X]}, v{TS_[X][0]}")]
        tot = sum(c for c, _ in st)
        free = [max(0, 24 - sum(c for c, _ in front[g]) - sum(c for c, _ in valu[g])) for g in gaps]
        for n_, g in enumerate(gaps):
            if g in cfg["empty_gaps"]:
                free[n_] = 0
        ftot = sum(free)
        assert ftot >= tot, (ftot, tot)
        acc = 0.0; done = 0; idx = 0
        for n_, g in enumerate(gaps):
            acc += free[n_] * tot / ftot
            used = 0
            while idx < len(st) and used + st[idx][0] <= free[n_] and len(valu[g]) < 5 and \
                    (done + st[idx][0] / 2.0 <= acc or n_ == 15):
                valu[g].append(st[idx]); done += st[idx][0]; used += st[idx][0]; idx += 1
        assert idx == len(st), (X, idx, len(st))
    return pre, front, valu, tail


def skip(t, cfg):
    if cfg.get("no_dma") and t.startswith("buffer_load"): return True
    if cfg.get("no_lds") and t.startswith("ds_read"): return True
    if cfg.get("no_sm") and (t.startswith("v_exp") or t.startswith("v_add_f32") or t.startswith("v_cvt")): return True
    if cfg.get("no_mfma") and t.startswith("v_mfma"): return True
    return False


def emit_body(a, k, tramps, cfg, peel=None, vm=None):
    D = cfg["depth"]
    mf = [mfma_qk(1, s) for s in range(8)] + [mfma_pv(1, f) for f in range(8)] + \
         [mfma_qk(0, s) for s in range(8)] + [mfma_pv(0, f) for f in range(8)]
    pre, front, valu, tail = plan_body(k, cfg, tramps, peel)
    a.label(f"L_body_{k}" if peel is None else f"L_body_p{k}")
    if cfg.get("stamp"):
        a(f"""
        s_memtime s[90:91]
        s_mov_b32 m0, s{s_i}
        s_waitcnt lgkmcnt(0)
        v_writelane_b32 v{VT+12}, s90, m0
        """)
    bp = cfg["bar_period"]
    if k % bp == 0:
        a(f"s_waitcnt vmcnt({4*(D-bp) if vm is None else vm})")
        if not cfg.get("no_bar"):
            a("s_barrier")
    if cfg.get("stamp"):
        a(f"""
        s_memtime s[90:91]
        s_waitcnt lgkmcnt(0)
        v_writelane_b32 v{VT+13}, s90, m0
        """)
    for i in range(32):
        seq = pre[i] + [mf[i]] + [t for _, t in front[i]] + [t for _, t in valu[i]] + tail[i]
        for t in seq:
            if t.endswith(":"):
                a.label(t[:-1])
            elif not skip(t, cfg):
                a(t)
    if k == 7 and peel is None:
        a("s_branch L_body_0")


def emit_rowmax(a, X, mx, t1):
    S = S_[X]
    out = [f"v_max3_f32 v{mx}, v{S}, v{S+1}, v{S+2}"]
    for r in range(3, 15, 2):
        out.append(f"v_max3_f32 v{mx}, v{mx}, v{S+r}, v{S+r+1}")
    out += [f"v_max_f32 v{mx}, v{mx}, v{S+15}", f"v_mov_b32 v{t1}, v{mx}", "s_nop 1",
            f"v_permlane32_swap_b32 v{mx}, v{t1}", "s_nop 1", f"v_max_f32 v{mx}, v{mx}, v{t1}"]
    return out


def emit_fallback(a, X):
    S = S_[X]; C = C_[X]; O = O_[X]; P = P_[X]
    mx, t1, f = VT, VT + 1, VT + 3
    a.label(f"L_sub_fb{X}")
    a("s_nop 7")
    for t in emit_rowmax(a, X, mx, t1):
        a(t)
    a(f"""
    v_max_f32 v{mx}, 0, v{mx}
    v_exp_f32 v{f}, -v{mx}
    v_add_f32 v{M_[X]}, v{M_[X]}, v{mx}
    """)
    for r in range(16):
        a(f"v_sub_f32 v{C+r}, v{C+r}, v{mx}")
        a(f"v_sub_f32 v{S+r}, v{S+r}, v{mx}")
    a(f"v_mul_f32 v{L_[X]}, v{L_[X]}, v{f}")
    for r in range(64):
        a(f"v_mul_f32 v{O+r}, v{O+r}, v{f}")
    for c, t in sm_stream(X, VT + 4):
        a(t)
    a(f"""
    s_nop 3
    s_setpc_b64 s[{s_ret}:{s_ret+1}]
    """)


def emit_patch(a):
    ninf = VT
    a.label("L_sub_patch")
    a(f"""
    s_nop 7
    v_mov_b32 v{ninf}, 0xff800000
    """)
    for r in range(16):
        cst = 8 * (r >> 2) + (r & 3)
        a(f"""
        s_sub_i32 s{s_mine+1}, s{s_rem}, {cst}
        v_cmp_gt_i32 vcc, s{s_mine+1}, v{VH4}
        s_nop 1
        v_cndmask_b32 v{C_[0]+r}, v{ninf}, v{C_[0]+r}, vcc
        v_cndmask_b32 v{C_[1]+r}, v{ninf}, v{C_[1]+r}, vcc
        """)
    a(f"""
    s_nop 3
    s_setpc_b64 s[{s_ret}:{s_ret+1}]
    """)


MAPS = {
    0: f"""s_lshr_b32 s{s_h}, s{s_wg}, 1
    s_and_b32 s{s_h}, s{s_h}, 3
    s_and_b32 s{s_t0}, s{s_wg}, 1
    s_lshl_b32 s{s_t0}, s{s_t0}, 5
    s_lshr_b32 s{s_slot}, s{s_wg}, 3
    s_or_b32 s{s_slot}, s{s_slot}, s{s_t0}""",
    2: f"""s_lshr_b32 s{s_h}, s{s_wg}, 1
    s_and_b32 s{s_h}, s{s_h}, 3
    s_lshr_b32 s{s_slot}, s{s_wg}, 3
    s_cmp_lt_u32 s{s_slot}, 30
    s_cselect_b32 s{s_t0}, s{s_slot}, 63
    s_add_u32 s{s_slot}, s{s_slot}, 30
    s_and_b32 s{s_t0+1}, s{s_wg}, 1
    s_cmp_eq_u32 s{s_t0+1}, 0
    s_cselect_b32 s{s_slot}, s{s_t0}, s{s_slot}""",
    1: f"""s_lshr_b32 s{s_h}, s{s_wg}, 3
    s_and_b32 s{s_h}, s{s_h}, 3
    s_and_b32 s{s_t0}, s{s_wg}, 7
    s_lshl_b32 s{s_t0}, s{s_t0}, 3
    s_lshr_b32 s{s_slot}, s{s_wg}, 5
    s_or_b32 s{s_slot}, s{s_slot}, s{s_t0}""",
}


def emit_pad(a, us, tag):
    a(f"s_add_u32 s92, s100, {int(us*100)}")
    a.label(f"L_pad_{tag}")
    a(f"""
    s_sleep 2
    s_memrealtime s[90:91]
    s_waitcnt lgkmcnt(0)
    s_sub_u32 s93, s92, s90
    s_cmp_gt_i32 s93, 0
    s_cbranch_scc1 L_pad_{tag}
    """)


def emit_main(a, cfg):
    K = NAME + "_kernel"
    D = cfg["depth"]
    assert D <= 7
    a.raw(f".globl {K}\n.p2align 8\n.type {K},@function")
    a.label(K)
    t0, t1, t2, t3 = VT + 11, VT + 12, VT + 13, VT + 14
    VCL = VT + 10
    def sstamp(n):
        if cfg.get("stamp"):
            a(f"""
            s_memtime s[90:91]
            s_waitcnt lgkmcnt(0)
            s_mov_b32 s{n}, s90
            """)
    def pstamp(n):
        if cfg.get("stamp"):
            a(f"""
            s_memtime s[90:91]
            s_waitcnt lgkmcnt(0)
            v_writelane_b32 v{VT+12}, s90, {40+n}
            """)
    a(f"""
    s_cmp_ge_u32 s{s_wg}, 256
    s_cbranch_scc1 L_end
    s_load_dwordx16 s[4:19], s[0:1], 0
    v_lshrrev_b32 v{VT}, 6, v0
    v_and_b32 v{VLANE}, 63, v0
    v_readfirstlane_b32 s{s_w}, v{VT}
    {MAPS[cfg["map"]]}
    v_and_b32 v{VT+1}, 7, v{VLANE}
    v_lshlrev_b32 v{VT+1}, 2, v{VT+1}
    v_lshlrev_b32 v{VT+2}, 7, v{VLANE}
    """)
    if cfg["fused"]:
        a(f"s_memrealtime s[{s_mine}:{s_mine+1}]")
    if cfg.get("stamp"):
        a("s_memtime s[92:93]")
    if cfg.get("stamp") or cfg.get("pad_to_us") or cfg.get("pad_le") or cfg.get("pad_ls") or cfg.get("pad_pub"):
        a("s_memrealtime s[100:101]")
    a(f"""
    s_and_b32 s{s_t0}, s{s_w}, 1
    s_lshl_b32 s{s_t0}, s{s_t0}, 3               ; 8*(w&1)
    s_lshl_b32 s{s_t0+1}, s{s_h}, 8              ; h*256
    v_lshrrev_b32 v{t0}, 4, v{VLANE}             ; l>>4
    v_and_b32 v{t1}, 15, v{VLANE}                ; pc
    v_add_u32 v{t2}, s{s_t0}, v{t0}              ; R&15 for x=0
    v_xor_b32 v{t3}, v{t1}, v{t2}
    v_lshlrev_b32 v{t3}, 4, v{t3}
    v_lshl_add_u32 v{t3}, v{t2}, 10, v{t3}
    v_add_u32 v{VOFFK}, s{s_t0+1}, v{t3}
    v_add_u32 v{t2}, 4, v{t2}                    ; R&15 for x=1
    v_xor_b32 v{t3}, v{t1}, v{t2}
    v_lshlrev_b32 v{t3}, 4, v{t3}
    v_lshl_add_u32 v{t3}, v{t2}, 10, v{t3}
    v_add_u32 v{t3}, s{s_t0+1}, v{t3}
    v_add_u32 v{VOFFK+1}, 0xfffffc00, v{t3}
    v_lshlrev_b32 v{t3}, 2, v{t0}
    v_xor_b32 v{t3}, v{t1}, v{t3}
    v_lshlrev_b32 v{t3}, 4, v{t3}
    v_add_u32 v{t2}, s{s_t0}, v{t0}
    v_lshl_add_u32 v{t3}, v{t2}, 10, v{t3}
    v_add_u32 v{VOFFV}, s{s_t0+1}, v{t3}
    v_add_u32 v{VOFFV+1}, 0xc00, v{VOFFV}        ; +4096 -1024
    s_lshl_b32 s{s_m0k}, s{s_w}, 11
    s_add_u32 s{s_m0v}, s{s_m0k}, 0x10000
    s_mov_b32 s{s_thr[0]}, 0x{f32bits(2.0**cfg["thr_log2"]):x}
    s_mov_b32 s{s_thr[1]}, 0x{f32bits(2.0**cfg["thr_log2"]):x}
    s_mov_b32 s{s_i}, 0
    s_mov_b32 s{s_idx}, {D+1+cfg["peel"]}
    v_lshrrev_b32 v{t0}, 5, v{VLANE}            ; h2
    v_lshlrev_b32 v{VH4}, 2, v{t0}
    v_lshrrev_b32 v{t2}, 4, v{VLANE}
    v_xor_b32 v{t3}, v{t1}, v{t2}
    v_lshlrev_b32 v{t3}, 4, v{t3}
    v_lshl_add_u32 v{ET}, v{t2}, 8, v{t3}        ; Q voffset (j&3 == 0)
    v_xor_b32 v{ET+1}, 64, v{ET}
    v_xor_b32 v{ET+2}, 0x80, v{ET}
    v_xor_b32 v{ET+3}, 0xc0, v{ET}
    v_lshlrev_b32 v{ET+4}, 3, v{VLANE}
    s_lshl_b32 s{s_qlds}, s{s_w}, 13
    s_add_u32 s{s_qlds}, s{s_qlds}, 0x20000      ; Q_A staging : 128K + w*8K
    s_and_b32 s{s_t0}, s{s_w}, 1
    s_lshl_b32 s{s_t0}, s{s_t0}, 13
    s_lshr_b32 s{s_t0+1}, s{s_w}, 1
    s_lshl_b32 s{s_t0+1}, s{s_t0+1}, 16
    s_add_u32 s{s_t0}, s{s_t0}, s{s_t0+1}
    s_add_u32 s{s_qlds+1}, s{s_t0}, 0xc000
    s_waitcnt lgkmcnt(0)
    """)
    emit_srd(a, SRD_X, s_cl, 32)
    a(f"buffer_load_dword v{VCL}, v{VT+1}, s[{SRD_X}:{SRD_X+3}], 0 offen")
    emit_srd(a, SRD_BT, s_bt, BT_BYTES)
    emit_srd(a, SRD_Q, s_q, Q_BYTES)
    nwarm = 0
    if cfg["warm"]:
        a(f"""
        s_lshr_b32 s{s_t0}, s{s_wg}, 3
        s_lshr_b32 s{s_t0+1}, s{s_t0}, 2
        s_lshl_b32 s{s_t0+1}, s{s_t0+1}, 18          ; b*262144
        s_and_b32 s{s_t0+2}, s{s_t0}, 3
        s_lshl_b32 s{s_t0+2}, s{s_t0+2}, 14
        s_add_u32 s{s_t0+1}, s{s_t0+1}, s{s_t0+2}
        s_lshl_b32 s{s_t0+2}, s{s_h}, 16
        s_add_u32 s{s_t0+1}, s{s_t0+1}, s{s_t0+2}
        s_lshl_b32 s{s_t0+2}, s{s_w}, 13
        s_add_u32 s{s_t0+1}, s{s_t0+1}, s{s_t0+2}
        s_lshl_b32 s{s_t0}, s{s_t0}, 9
        s_cmp_lt_u32 s{s_w}, 2
        s_cselect_b32 s{s_t0+1}, s{s_t0+1}, 0x80000000
        s_cmp_eq_u32 s{s_w}, 2
        s_cselect_b32 s{s_t0}, s{s_t0}, 0x80000000
        v_min_u32 v{VT+3}, 0x180, v{VT+2}
        buffer_load_dword v{P_[0]}, v{VT+2}, s[{SRD_Q}:{SRD_Q+3}], s{s_t0+1} offen
        buffer_load_dword v{P_[0]+1}, v{VT+3}, s[{SRD_BT}:{SRD_BT+3}], s{s_t0} offen
        """)
        nwarm = 2
    if cfg["cwarm"]:
        a(f"""
        s_getpc_b64 s[{SRD_K}:{SRD_K+1}]
        """)
        a.label("L_pc0")
        a(f"""
        s_and_b32 s{SRD_K+1}, s{SRD_K+1}, 0xffff
        s_mov_b32 s{SRD_K+2}, L_code_end-L_pc0
        s_mov_b32 s{SRD_K+3}, 0x20000
        s_lshl_b32 s{s_t0}, s{s_w}, 13
        buffer_load_dword v{P_[0]+2}, v{VT+2}, s[{SRD_K}:{SRD_K+3}], s{s_t0} offen
        """)
        nwarm += 1
    emit_srd(a, SRD_K, s_k, KV_BYTES)
    emit_srd(a, SRD_V, s_v, KV_BYTES)
    emit_srd(a, SRD_WS, s_ws, WS_BYTES)
    sstamp(88)
    a(f"""
    v_and_b32 v{t1}, 31, v{VLANE}               ; key / q
    v_and_b32 v{t2}, 15, v{VLANE}
    v_xor_b32 v{t2}, v{t2}, v{t0}               ; (key&15)^h2
    v_lshlrev_b32 v{t2}, 4, v{t2}
    v_lshl_add_u32 v{KADDR}, v{t1}, 8, v{t2}
    """)
    for s in range(1, 8):
        a(f"v_xor_b32 v{KADDR+s}, {s << 5}, v{KADDR}")
    a(f"""
    v_bfe_u32 v{t1}, v{VLANE}, 2, 2              ; r
    v_add_u32 v{t2}, v{VH4}, v{t1}               ; 4h2 + r
    v_lshlrev_b32 v{t2}, 8, v{t2}
    v_bfe_u32 v{t3}, v{VLANE}, 4, 1              ; sub
    v_lshl_add_u32 v{t2}, v{t3}, 5, v{t2}
    v_and_b32 v{t3}, 3, v{VLANE}                 ; c
    v_lshl_add_u32 v{t2}, v{t3}, 3, v{t2}
    v_add_u32 v{t2}, 0x10000, v{t2}
    v_lshl_add_u32 v{VADDR}, v{t1}, 6, v{t2}     ; dt=0 : (0^r)<<6
    """)
    for dt in range(1, 4):
        a(f"v_xor_b32 v{VADDR+dt}, {dt << 6}, v{VADDR}")
    a(f"s_waitcnt vmcnt({nwarm})")
    sstamp(89)
    st = s_t0
    R = emit_partition(a, VLANE, VCL, VT, st)
    sn, sincl, sLm1, scl, sq, sr, sj = st + 4, st + 5, st + 6, st + 7, st + 8, st + 9, st + 10
    SKEW1 = SKEW2 = ""
    if cfg.get("skew"):
        sh = cfg["skew"]
        g0, g1 = st + 11, st + 12
        SKEW1 = f"""s_sub_u32 s{g0}, s{sn}, s{sj}
    s_mul_i32 s{g1}, s{g0}, s{sj}                ; j*(nb-j)
    s_add_u32 s{st}, s{g1}, s{g0}
    s_sub_u32 s{st}, s{st}, s{sj}
    s_sub_u32 s{st}, s{st}, 1                    ; (j+1)*(nb-j-1)
    s_lshr_b32 s{g0}, s{g1}, {sh}
    s_lshr_b32 s{g1}, s{st}, {sh}
    s_cmp_gt_u32 s{sq}, s{sn}
    s_cselect_b32 s{g0}, s{g0}, 0
    s_cselect_b32 s{g1}, s{g1}, 0
    s_sub_u32 s{s_start}, s{s_start}, s{g0}"""
        SKEW2 = f"""s_add_u32 s{s_n}, s{s_n}, s{g0}
    s_sub_u32 s{s_n}, s{s_n}, s{g1}"""
    a(f"""
    v_cmp_lt_u32 vcc, s{s_slot}, v{R['incl']}
    s_and_b64 vcc, vcc, s[{st+2}:{st+3}]
    s_cbranch_scc0 L_end
    s_ff1_i32_b64 s{st}, vcc
    s_and_b32 s{s_b}, s{st}, 7
    v_readlane_b32 s{sn}, v{R['n']}, s{st}
    v_readlane_b32 s{sincl}, v{R['incl']}, s{st}
    v_readlane_b32 s{sq}, v{R['q']}, s{st}
    v_readlane_b32 s{sr}, v{R['r']}, s{st}
    v_readlane_b32 s{sLm1}, v{R['Lm1']}, s{st}
    v_readlane_b32 s{scl}, v{VCL}, s{st}
    s_lshl_b32 s{st+2}, s{s_b}, 5
    s_lshl_b32 s{st+1}, s{s_h}, 3
    s_add_u32 s{st+2}, s{st+2}, s{st+1}
    s_lshl_b32 s{st+1}, s{s_w}, 1
    s_add_u32 s{st+2}, s{st+2}, s{st+1}
    s_lshl_b32 s{st+2}, s{st+2}, 13              ; Q base = ((b*32 + 8h + 2w)*32)*256
    s_add_u32 s{st+3}, s{st+2}, 0x2000
    s_sub_u32 s{sj}, s{sincl}, s{sn}
    s_sub_u32 s{sj}, s{s_slot}, s{sj}            ; j = slot - E_b
    s_mul_i32 s{s_start}, s{sj}, s{sq}
    s_min_u32 s{st}, s{sj}, s{sr}
    s_add_u32 s{s_start}, s{s_start}, s{st}
    {SKEW1}
    s_lshl_b32 s{st}, s{s_b}, 9
    s_lshl_b32 s{st+1}, s{s_start}, 1
    s_add_u32 s{st}, s{st}, s{st+1}
    s_lshr_b32 s{st+1}, s{s_w}, 1
    s_add_u32 s{st}, s{st}, s{st+1}
    s_lshl_b32 s{st}, s{st}, 2
    buffer_load_dword v{PAGES}, v{ET+4}, s[{SRD_BT}:{SRD_BT+3}], s{st} offen
    """)
    def qload(X):
        for hf in range(2):
            a(f"s_add_u32 m0, s{s_qlds+X}, {4096*hf}")
            a(f"s_add_u32 s{s_qb+2}, s{s_qb+X}, {4096*hf}")
            for j in range(4):
                a(f"buffer_load_dwordx4 v{ET+j}, s[{SRD_Q}:{SRD_Q+3}], s{s_qb+2} offen offset:{1024*j} lds")
    a(f"""
    s_mov_b32 s{s_qb}, s{st+2}
    s_mov_b32 s{s_qb+1}, s{st+3}
    """)
    qload(0)
    emit_srd(a, SRD_X, s_dbg, 256)
    a(f"""
    s_or_b32 s{s_mine}, s{s_mine}, 1
    v_mov_b32 v{VT+8}, s{s_mine}
    v_mov_b32 v{VT+9}, 0
    s_or_b32 s{st}, s{s_wg}, s{s_w}
    s_cmp_eq_u32 s{st}, 0
    s_cselect_b32 s{st}, 0, 0x80000000
    s_mov_b64 exec, 1
    buffer_store_dword v{VT+8}, v{VT+9}, s[{SRD_X}:{SRD_X+3}], s{st} offen sc1
    s_mov_b64 exec, -1
    """)
    a(f"""
    s_cmp_lt_u32 s{sj}, s{sr}
    s_addc_u32 s{s_n}, s{sq}, 0                  ; n = q + (j<r)
    {SKEW2}
    s_min_u32 s{s_n}, s{s_n}, 54
    s_and_b32 s{s_rem}, s{sLm1}, 31
    s_add_u32 s{s_rem}, s{s_rem}, 1
    s_add_u32 s{st}, s{sj}, 1
    s_cmp_eq_u32 s{st}, s{sn}
    s_cselect_b32 s{s_rem}, s{s_rem}, 32
    s_sub_u32 s{s_patch}, s{s_n}, 2
    s_cmp_lt_u32 s{s_rem}, 32
    s_cselect_b32 s{s_patch}, s{s_patch}, 0x7fffffff
    s_mov_b32 s{s_scale}, 0x{f32bits(SCALE):x}
    s_cmp_lt_i32 s{scl}, 1
    s_cselect_b32 s{s_scale}, 0, s{s_scale}
    s_mov_b32 s{s_scale+1}, s{s_scale}
    s_lshl_b32 s{s_wgslot}, s{s_h}, 6
    s_add_u32 s{s_wgslot}, s{s_wgslot}, s{s_slot}
    s_min_u32 s{s_nb}, s{sn}, 64
    s_mov_b32 s{s_jj}, s{sj}
    s_sub_u32 s{s_E}, s{s_wgslot}, s{sj}
    """)
    sstamp(93)
    nz = cfg["zero_early"]
    for r in range(64, 64 + nz):
        a(f"v_mov_b32 v{r}, 0")
    a(f"""
    v_mov_b32 v{t2}, 0x80000000
    v_cmp_gt_u32 vcc, s{s_n}, v{VLANE}
    s_waitcnt vmcnt(9)
    v_lshlrev_b32 v{PAGES}, 14, v{PAGES}
    v_cndmask_b32 v{PAGES}, v{t2}, v{PAGES}, vcc
    s_nop 0
    """)
    PEEL = cfg["peel"]
    NPRE = D - PEEL
    for j in range(D + 1 + PEEL):
        a(f"v_readlane_b32 s{st+j}, v{PAGES}, {j}")
    a("s_nop 3")
    vm = ["QA"] * 8 + ["NONCE"]
    def vwait(tag):
        idx = max(i for i, t in enumerate(vm) if t == tag)
        a(f"s_waitcnt vmcnt({len(vm) - 1 - idx})")
    def issue(lst, tag):
        a(lst[0]); a("s_nop 0"); a(lst[2]); a(lst[3])
        vm.extend([tag, tag])
    pairs = [("K", 0)]
    for j in range(NPRE):
        pairs += [("K", j + 1), ("V", j)]
    def pair():
        if not pairs:
            return
        kind, j = pairs.pop(0)
        issue(dma_k(None, j, st + j) if kind == "K" else dma_v(None, j, st + j), f"{kind}{j}")
    QRAW = {0: 0, 1: 128}
    def qread(X):
        for s in range(8):
            a(f"v_add_u32 v{VT+4+s}, s{s_qlds+X}, v{KADDR+s}")
        for s in range(8):
            r = QRAW[X] + 4 * s
            a(f"ds_read_b128 v[{r}:{r+3}], v{VT+4+s}")
    def prescale(X, packed):
        out = []
        for i in range(32):
            r = QRAW[X] + i
            ta, tb = VT + (i & 1) * 2, VT + (i & 1) * 2 + 1
            g = []
            if i % 4 == 0:
                g.append(f"s_waitcnt lgkmcnt({7 - i // 4})")
            g += [f"v_lshlrev_b32 v{ta}, 16, v{r}", f"v_and_b32 v{tb}, 0xffff0000, v{r}"]
            if packed(i):
                g.append(f"v_pk_mul_f32 v[{ta}:{tb}], v[{ta}:{tb}], s[{s_scale}:{s_scale+1}]")
            else:
                g += [f"v_mul_f32 v{ta}, s{s_scale}, v{ta}", f"v_mul_f32 v{tb}, s{s_scale}, v{tb}"]
            g += [f"v_cvt_pk_bf16_f32 v{ta}, v{ta}, v{tb}", f"v_accvgpr_write_b32 a{32*X+i}, v{ta}"]
            out.append(g)
        return out
    pstamp(0)
    for _ in range(cfg["pp0"]):
        pair()
    qload(1); vm.extend(["QB"] * 8)
    for _ in range(cfg["pp1"]):
        pair()
    pstamp(1)
    a(f"""
    s_lshl_b32 s{s_lo}, s{s_jj}, 2
    v_add_u32 v{VT+6}, s{s_lo}, v{VLANE}
    v_lshlrev_b32 v{VT+6}, 4, v{VT+6}
    v_cvt_f32_u32 v{VT+6}, v{VT+6}
    v_cvt_f32_u32 v{VT+7}, s{s_nb}
    v_rcp_f32 v{VT+7}, v{VT+7}
    v_add_f32 v{VT+6}, 0.5, v{VT+6}
    s_add_u32 s{s_hi}, s{s_w}, 1
    v_mul_f32 v{VT+6}, v{VT+6}, v{VT+7}
    v_cvt_u32_f32 v{VT+6}, v{VT+6}
    s_lshl_b32 s{st+11}, s{s_w}, 4
    v_readlane_b32 s{s_wlo}, v{VT+6}, 0
    v_readlane_b32 s{s_own}, v{VT+6}, 4
    v_readlane_b32 s{s_hi}, v{VT+6}, s{s_hi}
    v_readlane_b32 s{s_lo}, v{VT+6}, s{s_w}
    s_sub_u32 s{s_own}, s{s_own}, s{s_wlo}
    s_bfm_b64 s[{st+12}:{st+13}], s{s_own}, s{s_wlo}
    s_lshr_b64 s[{st+12}:{st+13}], s[{st+12}:{st+13}], s{st+11}
    s_cmp_ge_u32 s{s_nb}, 3
    s_cselect_b32 s{s_own}, s{st+12}, 0
    """)
    for r in list(range(64 + nz, 128)) + list(range(160, 208)) + list(range(32, 64)):
        a(f"v_mov_b32 v{r}, 0")
    for r in range(32):
        a(f"v_accvgpr_write_b32 a{AV+r}, 0")
    a(f"""
    v_mov_b32 v{L_[0]}, 0
    v_mov_b32 v{L_[1]}, 0
    s_cmp_eq_u32 s{s_patch}, -1
    s_cbranch_scc0 L_nopatch0
    s_call_b64 s[{s_ret}:{s_ret+1}], L_sub_patch
    """)
    a.label("L_nopatch0")
    vwait("QA")
    pstamp(10)
    qread(0)
    for i, g in enumerate(prescale(0, lambda i: cfg["pk"])):
        for t in g:
            a(t)
        if i in cfg["ppA"]:
            pair()
    pstamp(2)
    vwait("QB")
    pstamp(11)
    qread(1)
    for i, g in enumerate(prescale(1, lambda i: cfg["pk"])):
        for t in g:
            a(t)
        if i in cfg["ppB"]:
            pair()
    pstamp(3)
    vwait("K0")
    pstamp(4)
    a("s_barrier")
    pstamp(12)
    for s in range(8):
        a(k_read(s, 0))
    for s in range(8):
        a(f"s_waitcnt lgkmcnt({7-s})")
        a(mfma_qk(0, s))
        if s in cfg["ppQ"]:
            pair()
        for r in range(128 + 4 * s, 132 + 4 * s):
            a(f"v_mov_b32 v{r}, 0")
    a(mfma_qk(1, 0))
    a("s_nop 7")
    mxa = emit_rowmax(a, 0, M_[0], VT)
    mxa += [f"v_sub_f32 v{S_[0]+r}, v{S_[0]+r}, v{M_[0]}" for r in range(16)]
    mxa += [f"v_sub_f32 v{C_[0]+r}, v{C_[0]+r}, v{M_[0]}" for r in range(16)]
    for s in range(1, 8):
        a(mfma_qk(1, s))
        for _ in range(5):
            a(mxa.pop(0))
    while pairs:
        pair()
    a(f"s_mov_b32 s{s_pg[(PEEL & 1) ^ 1]}, s{st+D+PEEL}")
    while mxa:
        a(mxa.pop(0))
    a("s_nop 7")
    for t in emit_rowmax(a, 1, M_[1], VT):
        a(t)
    for r in range(16):
        a(f"v_sub_f32 v{C_[1]+r}, v{C_[1]+r}, v{M_[1]}")
    if cfg["fused"]:
        a(f"""
        v_mov_b32 v{VT+11}, 0
        """)
    sstamp(94)
    sstamp(95)
    if cfg.get("pad_ls"):
        emit_pad(a, cfg["pad_ls"], "ls")
    pre, front, valu, tail = plan_body(7, cfg)
    hd = [t for g in range(32 - cfg["delta"], 32) for _, t in valu[g]
          if not t.startswith(f"v_add_f32 v{L_[1]},")]
    for t in hd:
        a(t)
    a("s_nop 1")
    tramps = []
    for k in range(PEEL):
        issued = NPRE + 2 * k
        need = k + cfg["bar_period"]
        assert issued >= need
        emit_body(a, k, tramps, cfg, peel=(NPRE + 2 * k, st), vm=4 * (issued - need))
    if PEEL:
        a(f"s_branch L_body_{PEEL}")
    for k in range(8):
        emit_body(a, k, tramps, cfg)
    a.label("L_drain")
    if cfg.get("pad_le"):
        emit_pad(a, cfg["pad_le"], "le")
    if cfg.get("stamp"):
        a(f"""
        s_memtime s[90:91]
        s_waitcnt lgkmcnt(0)
        s_mov_b32 s96, s90
        """)
    stf = cfg['st_flags']
    VLD = VT + 5
    assert cfg["fused"]
    def conv(X, dt):
        o = O_[X] + 16 * dt
        d = 8 * (4 * X + dt)
        out = [f"v_cvt_pk_bf16_f32 v{d+j}, v{o+2*j}, v{o+2*j+1}" for j in range(8)]
        out.append(f"s_add_u32 s{st+1}, s{st}, {X*8192 + dt*2048}")
        for kp in range(2):
            f = 8 * X + 2 * dt + kp
            gs = lambda so: f"buffer_store_dwordx4 v[{d+4*kp}:{d+4*kp+3}], v{VT+4}, s[{SRD_WS}:{SRD_WS+3}], {so} offen offset:{1024*kp}{stf}"
            dw = f"ds_write_b128 v{VLD}, v[{d+4*kp}:{d+4*kp+3}] offset:{1024*f}"
            if X == 0 or cfg["flagmode"] != "part":
                out.append(f"""s_bitcmp1_b32 s{s_own}, {f}
                s_cbranch_scc1 L_own_{f}
                {gs(f"s{st+1}")}
                s_branch L_own_r{f}
                L_own_{f}:
                {dw}
                L_own_r{f}:""")
            else:
                out.append(f"""s_bitcmp1_b32 s{s_own}, {f}
                s_cselect_b32 s{st+3}, 0x80000000, s{st+1}
                {gs(f"s{st+3}")}
                s_cbranch_scc0 L_own_r{f}
                {dw}
                L_own_r{f}:""")
        return out
    def put(t):
        for l in t.split("\n"):
            l = l.strip()
            if l.endswith(":"):
                a.label(l[:-1])
            elif l:
                a(l)
    ep = f"""
    buffer_load_dword v{VT+10}, v{VT+11}, s[{SRD_X}:{SRD_X+3}], 0 offen
    v_mov_b32 v{VT+6}, v{L_[0]}
    v_mov_b32 v{VT+7}, v{L_[1]}
    s_lshl_b32 s{st}, s{s_wgslot}, 11
    s_lshl_b32 s{st+1}, s{s_w}, 4
    s_add_u32 s{st}, s{st}, s{st+1}
    v_permlane32_swap_b32 v{L_[0]}, v{VT+6}
    v_permlane32_swap_b32 v{L_[1]}, v{VT+7}
    v_lshlrev_b32 v{VT+8}, 6, v{VLANE}
    v_mov_b32 v{VT}, v{M_[0]}
    v_add_f32 v{VT+1}, v{L_[0]}, v{VT+6}
    v_mov_b32 v{VT+2}, v{M_[1]}
    v_add_f32 v{VT+3}, v{L_[1]}, v{VT+7}
    s_add_u32 s{st}, s{st}, 0x{WS_ML:x}
    s_add_u32 s{st+1}, s{st+1}, 0x{LDS_ML:x}
    v_add_u32 v{VT+9}, s{st+1}, v{VT+8}
    s_mov_b32 exec_hi, 0\nbuffer_store_dwordx4 v[{VT}:{VT+3}], v{VT+8}, s[{SRD_WS}:{SRD_WS+3}], s{st} offen{stf}\nds_write_b128 v{VT+9}, v[{VT}:{VT+3}]\ns_mov_b64 exec, -1
    s_lshl_b32 s{st}, s{s_wgslot}, 16
    s_lshl_b32 s{st+1}, s{s_w}, 14
    s_add_u32 s{st}, s{st}, s{st+1}
    v_lshlrev_b32 v{VT+4}, 4, v{VLANE}
    s_lshl_b32 s{st+2}, s{s_w}, 4
    s_sub_u32 s{st+2}, s{st+2}, s{s_wlo}
    s_lshl_b32 s{st+2}, s{st+2}, 10
    s_add_u32 s{st+2}, s{st+2}, 0x20000
    v_add_u32 v{VLD}, s{st+2}, v{VT+4}
    """.strip().split("\n    ")
    ep += conv(0, 0) + conv(0, 1) + conv(0, 2) + conv(0, 3)
    for f in range(8):
        a(mfma_pv(1, f))
        for _ in range(8):
            put(ep.pop(0))
    while ep:
        put(ep.pop(0))
    a("s_nop 7")
    for dt in range(4):
        for t in conv(1, dt):
            put(t)
    if cfg["fused"]:
        emit_fused_combine(a, cfg, sstamp)
    if cfg.get("stamp"):
        a(f"""
        s_mov_b64 exec, -1
        s_waitcnt vmcnt(0)
        s_memtime s[90:91]
        s_memrealtime s[66:67]
        s_getreg_b32 s98, hwreg(HW_REG_XCC_ID)
        s_waitcnt lgkmcnt(0)
        v_mov_b32 v{VT+14}, 0
        v_writelane_b32 v{VT+14}, s92, 0
        v_writelane_b32 v{VT+14}, s93, 1
        v_writelane_b32 v{VT+14}, s94, 2
        v_writelane_b32 v{VT+14}, s95, 3
        v_writelane_b32 v{VT+14}, s96, 4
        v_writelane_b32 v{VT+14}, s90, 5
        v_writelane_b32 v{VT+14}, s{s_n}, 6
        v_writelane_b32 v{VT+14}, s98, 7
        v_writelane_b32 v{VT+14}, s100, 8
        v_writelane_b32 v{VT+14}, s66, 9
        v_writelane_b32 v{VT+14}, s88, 10
        v_writelane_b32 v{VT+14}, s89, 11
        v_writelane_b32 v{VT+14}, s97, 12
        v_writelane_b32 v{VT+14}, s99, 13
        v_writelane_b32 v{VT+14}, s{s_h}, 14
        s_lshl_b32 s{st}, s{s_wg}, 12
        s_lshl_b32 s{st+1}, s{s_w}, 10
        s_add_u32 s{st}, s{st}, s{st+1}
        s_add_u32 s{st}, s{st}, 0x{WS_DBG:x}
        v_lshlrev_b32 v{VT}, 2, v{VLANE}
        buffer_store_dword v{VT+12}, v{VT}, s[{SRD_WS}:{SRD_WS+3}], s{st} offen
        buffer_store_dword v{VT+13}, v{VT}, s[{SRD_WS}:{SRD_WS+3}], s{st} offen offset:256
        buffer_store_dword v{VT+14}, v{VT}, s[{SRD_WS}:{SRD_WS+3}], s{st} offen offset:512
        """)
    if cfg.get("pad_to_us"):
        a(f"""
        s_waitcnt vmcnt(0)
        s_add_u32 s92, s100, {int(cfg["pad_to_us"]*100)}
        """)
    if cfg.get("delay_us"):
        a(f"""
        s_memrealtime s[90:91]
        s_waitcnt lgkmcnt(0)
        s_add_u32 s92, s90, {int(cfg["delay_us"]*100)}
        """)
    if cfg.get("delay_us") or cfg.get("pad_to_us"):
        a.label("L_delay")
        a(f"""
        s_sleep 4
        s_memrealtime s[90:91]
        s_waitcnt lgkmcnt(0)
        s_sub_u32 s93, s92, s90
        s_cmp_gt_i32 s93, 0
        s_cbranch_scc1 L_delay
        """)
    a.label("L_end")
    a("s_endpgm")
    for lab, sub, ret in tramps:
        a.label(lab)
        a(f"s_call_b64 s[{s_ret}:{s_ret+1}], {sub}")
        a(f"s_branch {ret}")
    a.label("L_code_end")
    emit_fallback(a, 0)
    emit_fallback(a, 1)
    emit_patch(a)


def emit_fused_combine(a, cfg, sstamp):
    st = s_t0
    ldf = cfg["cld_flags"]
    s_nonce, s_to, s_mask, s_done, s_rdy, s_r0 = 54, 55, 56, 62, 64, 78
    s_cnt, s_ni, s_o, s_ml = 68, 69, 70, 72
    s_f0, s_f1 = 42, 52
    s_sel = (None, 66, 76)
    SJ = lambda k: (48, 49, 50, 51, 71, 73, 44, 45)[k]
    OB = lambda k: 12 * k
    MLB = lambda k: 96 + 4 * k
    ACC = 160
    MX, DEN, MN, SC, W = (192, 193), (194, 195), (196, 197), (198, 199), (204, 205)
    U0, U1, WT = 200, 201, 211
    VO, VML, VOUT, VF, VFO, VA = 206, 207, 208, 209, 210, 212
    WSR = f"s[{SRD_WS}:{SRD_WS+3}]"
    LA = cfg["clook"]
    def cst(n):
        if cfg.get("stamp"):
            a(f"""
            s_memtime s[90:91]
            s_waitcnt lgkmcnt(0)
            v_writelane_b32 v{VT+12}, s90, {53+n}
            """)
    a(f"""
    v_lshlrev_b32 v{VO}, 4, v{VLANE}
    v_and_b32 v{VML}, 31, v{VLANE}
    v_lshlrev_b32 v{VOUT}, 8, v{VML}
    v_lshl_add_u32 v{VOUT}, v{VH4}, 2, v{VOUT}   ; q*256 + h2*16
    v_lshlrev_b32 v{VML}, 6, v{VML}
    v_lshlrev_b32 v{VFO}, 2, v{VLANE}
    v_cmp_gt_u32 vcc, s{s_nb}, v{VLANE}
    s_mov_b64 s[{s_mask}:{s_mask+1}], vcc
    s_lshl_b32 s{s_mine+1}, s{s_b}, 2
    s_add_u32 s{s_mine+1}, s{s_mine+1}, s{s_h}
    s_lshl_b32 s{s_mine+1}, s{s_mine+1}, 11
    s_add_u32 s{s_mine+1}, s{s_mine+1}, 0x{WS_FLAG:x}
    s_lshl_b32 s{st}, s{s_jj}, 2
    s_lshl_b32 s{st+1}, s{s_w}, 9
    s_add_u32 s{st}, s{st}, s{st+1}
    s_add_u32 s{st}, s{st}, s{s_mine+1}
    s_mov_b32 s{s_to}, {cfg["poll_max"]}
    s_waitcnt vmcnt({"8" if cfg["flagmode"] == "part" else "0"})
    v_readfirstlane_b32 s{s_nonce}, v{VT+10}
    s_cmp_lg_u32 s{s_nonce}, 0
    s_cbranch_scc1 L_fc_havenonce
    """)
    a.label("L_fc_npoll")
    a(f"""
    buffer_load_dword v{VT+10}, v{VT+11}, s[{SRD_X}:{SRD_X+3}], 0 offen sc1
    s_waitcnt vmcnt(0)
    v_readfirstlane_b32 s{s_nonce}, v{VT+10}
    s_sub_u32 s{s_to}, s{s_to}, 1
    s_cmp_eq_u32 s{s_to}, 1
    s_cbranch_scc1 L_fc_havenonce
    s_cmp_eq_u32 s{s_nonce}, 0
    s_cbranch_scc1 L_fc_npoll
    """)
    a.label("L_fc_havenonce")
    a(f"v_mov_b32 v{VF}, s{s_nonce}")
    emit_srd(a, SRD_X, s_out, Q_BYTES)
    if cfg.get("pad_pub"):
        a("s_waitcnt vmcnt(0) lgkmcnt(0)")
        emit_pad(a, cfg["pad_pub"], "pub")
    if cfg["flagmode"] == "part":
        a(f"""
        s_waitcnt lgkmcnt(0)
        s_barrier
        s_waitcnt vmcnt(8)
        s_mov_b64 exec, 1
        buffer_store_dword v{VF}, v{VT+11}, {WSR}, s{st} offen sc1
        s_waitcnt vmcnt(1)
        buffer_store_dword v{VF}, v{VT+11}, {WSR}, s{st} offen offset:256 sc1
        s_mov_b64 exec, -1
        """)
    else:
        a(f"""
        s_waitcnt vmcnt(0) lgkmcnt(0)
        s_barrier
        s_cmp_eq_u32 s{s_w}, 0
        s_cselect_b64 exec, 1, 0
        s_cbranch_scc0 L_fc_noflag
        buffer_store_dword v{VF}, v{VT+11}, {WSR}, s{st} offen sc1
        """)
        a.label("L_fc_noflag")
        a("s_mov_b64 exec, -1")
    sstamp(97)
    a(f"""
    s_cmp_ge_u32 s{s_lo}, s{s_hi}
    s_cbranch_scc1 L_fc_end
    """)
    a.label("L_fc_outer")
    a(f"""
    s_sub_u32 s{s_ni}, s{s_hi}, s{s_lo}
    s_min_u32 s{s_ni}, s{s_ni}, 3
    s_lshl_b32 s{s_o}, s{s_lo}, 10
    s_lshr_b32 s{st}, s{s_lo}, 3                 ; u0
    s_lshl_b32 s{s_ml}, s{st}, 3
    s_mov_b64 s[{s_done}:{s_done+1}], 0
    s_lshl_b32 s{s_f0}, s{st}, 8
    s_add_u32 s{s_f0}, s{s_f0}, s{s_mine+1}
    s_add_u32 s{s_f1}, s{s_lo}, s{s_ni}
    s_sub_u32 s{s_f1}, s{s_f1}, 1
    s_lshr_b32 s{s_f1}, s{s_f1}, 3
    s_lshl_b32 s{s_f1}, s{s_f1}, 8
    s_add_u32 s{s_f1}, s{s_f1}, s{s_mine+1}
    """)
    for t in (1, 2):
        a(f"""
        s_add_u32 s{st+1}, s{s_lo}, {t}
        s_lshr_b32 s{st+1}, s{st+1}, 3
        s_cmp_lg_u32 s{st+1}, s{st}
        s_cselect_b64 s[{s_sel[t]}:{s_sel[t]+1}], -1, 0
        """)
    a(f"""
    s_cmp_lt_u32 s{s_nb}, 3
    s_cbranch_scc1 L_fc_zero
    s_sub_u32 s{st}, s{s_lo}, s{s_wlo}
    s_lshl_b32 s{st}, s{st}, 10
    s_add_u32 s{st}, s{st}, 0x20000
    v_add_u32 v{VA}, s{st}, v{VO}
    s_add_u32 s{st}, s{s_ml}, 0x{LDS_ML:x}
    v_add_u32 v{VA+1}, s{st}, v{VML}
    ds_read_b128 v[0:3], v{VA}
    ds_read_b128 v[4:7], v{VA} offset:1024
    ds_read_b128 v[8:11], v{VA} offset:2048
    ds_read_b64 v[{MLB(0)}:{MLB(0)+1}], v{VA+1}
    ds_read_b64 v[{MLB(0)+2}:{MLB(0)+3}], v{VA+1} offset:8
    s_bitset1_b64 s[{s_done}:{s_done+1}], s{s_jj}
    s_waitcnt lgkmcnt(0)
    v_mov_b32 v{MX[0]}, v{MLB(0)}
    v_mov_b32 v{DEN[0]}, v{MLB(0)+1}
    v_mov_b32 v{MX[1]}, v{MLB(0)+2}
    v_mov_b32 v{DEN[1]}, v{MLB(0)+3}
    """)
    for r in range(12):
        a(f"""
        v_lshlrev_b32 v{ACC+2*r}, 16, v{r}
        v_and_b32 v{ACC+2*r+1}, 0xffff0000, v{r}
        """)
    a("s_branch L_fc_init")
    a.label("L_fc_zero")
    for X in range(2):
        a(f"v_mov_b32 v{MX[X]}, 0xff800000")
        a(f"v_mov_b32 v{DEN[X]}, 0")
    for r in range(24):
        a(f"v_mov_b32 v{ACC+r}, 0")
    a.label("L_fc_init")
    a(f"s_add_u32 s{s_ml}, s{s_ml}, 0x{WS_ML:x}")
    if cfg["flagmode"] == "part":
        POLL = f"""buffer_load_dword v{VF}, v{VFO}, {WSR}, s{s_f0} offen sc1
    buffer_load_dword v{WT}, v{VFO}, {WSR}, s{s_f1} offen sc1
    s_waitcnt vmcnt(0)
    v_cmp_eq_u32 vcc, s{s_nonce}, v{VF}
    s_and_b64 s[{s_rdy}:{s_rdy+1}], vcc, s[{s_mask}:{s_mask+1}]
    v_cmp_eq_u32 vcc, s{s_nonce}, v{WT}
    s_and_b64 s[{s_rdy}:{s_rdy+1}], vcc, s[{s_rdy}:{s_rdy+1}]"""
    else:
        POLL = f"""buffer_load_dword v{VF}, v{VFO}, {WSR}, s{s_mine+1} offen sc1
    s_waitcnt vmcnt(0)
    v_cmp_eq_u32 vcc, s{s_nonce}, v{VF}
    s_and_b64 s[{s_rdy}:{s_rdy+1}], vcc, s[{s_mask}:{s_mask+1}]"""
    a.label("L_fc_poll")
    a(f"""
    {POLL}
    s_andn2_b64 s[{s_rdy}:{s_rdy+1}], s[{s_rdy}:{s_rdy+1}], s[{s_done}:{s_done+1}]
    s_cbranch_scc1 L_fc_go
    s_sleep {cfg["poll_sleep"]}
    s_sub_u32 s{s_to}, s{s_to}, 1
    s_cmp_lg_u32 s{s_to}, 0
    s_cbranch_scc1 L_fc_poll
    s_branch L_fc_store
    """)
    a.label("L_fc_go")
    sstamp(99)
    a(f"""
    s_mov_b64 s[{s_r0}:{s_r0+1}], s[{s_rdy}:{s_rdy+1}]
    v_mov_b32 v{MN[0]}, v{MX[0]}
    v_mov_b32 v{MN[1]}, v{MX[1]}
    """)
    for k in range(8):
        a(f"""
        s_ff1_i32_b64 s{st}, s[{s_rdy}:{s_rdy+1}]
        s_bitset0_b64 s[{s_rdy}:{s_rdy+1}], s{st}
        s_add_u32 s{st}, s{st}, s{s_E}
        s_lshl_b32 s{SJ(k)}, s{st}, 16
        s_lshl_b32 s{st}, s{st}, 11
        s_add_u32 s{st}, s{st}, s{s_ml}
        s_add_u32 s{SJ(k)}, s{SJ(k)}, s{s_o}
        s_mov_b32 s{s_cnt}, {k+1}
        buffer_load_dwordx4 v[{MLB(k)}:{MLB(k)+3}], v{VML}, {WSR}, s{st} offen{ldf}
        """)
        if k < 7:
            a(f"""
            s_cmp_eq_u64 s[{s_rdy}:{s_rdy+1}], 0
            s_cbranch_scc1 L_fc_taken
            """)
    a.label("L_fc_taken")
    a(f"""
    s_andn2_b64 s[{s_r0}:{s_r0+1}], s[{s_r0}:{s_r0+1}], s[{s_rdy}:{s_rdy+1}]
    s_or_b64 s[{s_done}:{s_done+1}], s[{s_done}:{s_done+1}], s[{s_r0}:{s_r0+1}]
    s_cmp_eq_u32 s{s_ni}, 2
    s_cbranch_scc1 L_fc_r2
    s_cmp_eq_u32 s{s_ni}, 3
    s_cbranch_scc1 L_fc_r3
    """)
    def sel(dst, pair, t):
        if t == 0:
            return None
        return f"v_cndmask_b32 v{dst}, v{pair[0]}, v{pair[1]}, s[{s_sel[t]}:{s_sel[t]+1}]"
    for NI in (1, 2, 3):
        tag = f"r{NI}"
        a.label(f"L_fc_{tag}")
        def oload(k):
            for c in range(NI):
                a(f"buffer_load_dwordx4 v[{OB(k)+4*c}:{OB(k)+4*c+3}], v{VO}, {WSR}, s{SJ(k)} offen offset:{1024*c}{ldf}")
        for k in range(7, -1, -1):
            a(f"""
            s_cmp_le_u32 s{s_cnt}, {k}
            s_cbranch_scc1 L_fc_{tag}_p{k}
            """)
            if k + LA < 8:
                a(f"""
                s_cmp_gt_u32 s{s_cnt}, {k + LA}
                s_cbranch_scc1 L_fc_{tag}_pd
                """)
            oload(k)
            a.label(f"L_fc_{tag}_p{k}")
        a.label(f"L_fc_{tag}_pd")
        cst(0)
        for c in range(1, LA):
            a(f"""
            s_cmp_eq_u32 s{s_cnt}, {c}
            s_cbranch_scc0 L_fc_{tag}_w{c}
            s_waitcnt vmcnt({NI*c})
            """)
            a.label(f"L_fc_{tag}_w{c}")
        a(f"s_waitcnt vmcnt({NI*LA})")
        cst(1)
        NSET = 1 if NI == 1 else 2
        for k in range(8):
            if k:
                a(f"""
                s_cmp_le_u32 s{s_cnt}, {k}
                s_cbranch_scc1 L_fc_{tag}_max
                """)
            for X in range(NSET):
                a(f"v_max_f32 v{MN[X]}, v{MN[X]}, v{MLB(k)+2*X}")
        a.label(f"L_fc_{tag}_max")
        for X in range(NSET):
            a(f"""
            v_sub_f32 v{SC[X]}, v{MX[X]}, v{MN[X]}
            v_exp_f32 v{SC[X]}, v{SC[X]}
            v_mov_b32 v{MX[X]}, v{MN[X]}
            """)
        for X in range(NSET):
            a(f"v_mul_f32 v{DEN[X]}, v{DEN[X]}, v{SC[X]}")
        for t in range(NI):
            if t:
                a(sel(WT, SC, t))
            for r in range(8):
                a(f"v_mul_f32 v{ACC+8*t+r}, v{ACC+8*t+r}, v{WT if t else SC[0]}")
        for k in range(7, -1, -1):
            if k:
                a(f"""
                s_cmp_le_u32 s{s_cnt}, {k}
                s_cbranch_scc1 L_fc_{tag}_u{k}
                """)
            if k - LA >= 0:
                oload(k - LA)
            for X in range(NSET):
                a(f"v_sub_f32 v{W[X]}, v{MLB(k)+2*X}, v{MN[X]}")
            for X in range(NSET):
                a(f"v_exp_f32 v{W[X]}, v{W[X]}")
            a("s_nop 0")
            for X in range(NSET):
                a(f"v_fmac_f32 v{DEN[X]}, v{W[X]}, v{MLB(k)+2*X+1}")
            for t in range(NI):
                if t:
                    a(sel(WT, W, t))
                a(f"s_waitcnt vmcnt({NI*min(k, LA) + NI - 1 - t})")
                for r in range(4):
                    u0, u1 = U0 + 2 * (r & 1), U1 + 2 * (r & 1)
                    a(f"""
                    v_lshlrev_b32 v{u0}, 16, v{OB(k)+4*t+r}
                    v_and_b32 v{u1}, 0xffff0000, v{OB(k)+4*t+r}
                    v_fmac_f32 v{ACC+8*t+2*r}, v{WT if t else W[0]}, v{u0}
                    v_fmac_f32 v{ACC+8*t+2*r+1}, v{WT if t else W[0]}, v{u1}
                    """)
            a.label(f"L_fc_{tag}_u{k}")
        cst(2)
        a(f"""
        s_cmp_lg_u64 s[{s_done}:{s_done+1}], s[{s_mask}:{s_mask+1}]
        s_cbranch_scc1 L_fc_poll
        """)
        if NI < 3:
            a("s_branch L_fc_store")
    a.label("L_fc_store")
    cst(3)
    a(f"""
    v_rcp_f32 v{SC[0]}, v{DEN[0]}
    v_rcp_f32 v{SC[1]}, v{DEN[1]}
    s_lshl_b32 s{st}, s{s_b}, 2
    s_add_u32 s{st}, s{st}, s{s_h}
    s_lshl_b32 s{st}, s{st}, 16                  ; (b*32 + 8h)*8192
    """)
    for t in range(3):
        if t:
            a(f"""
            s_cmp_le_u32 s{s_ni}, {t}
            s_cbranch_scc1 L_fc_next
            {sel(WT, SC, t)}
            """)
        A0 = ACC + 8 * t
        a(f"""
        s_add_u32 s{st+1}, s{s_lo}, {t}
        s_lshr_b32 s{st+2}, s{st+1}, 3
        s_lshl_b32 s{st+2}, s{st+2}, 13
        s_and_b32 s{st+1}, s{st+1}, 7
        s_lshl_b32 s{st+1}, s{st+1}, 5
        s_add_u32 s{st+1}, s{st+1}, s{st+2}
        s_add_u32 s{st+1}, s{st+1}, s{st}
        """)
        for r in range(8):
            a(f"v_mul_f32 v{A0+r}, v{A0+r}, v{WT if t else SC[0]}")
        for r in range(4):
            a(f"v_cvt_pk_bf16_f32 v{A0+r}, v{A0+2*r}, v{A0+2*r+1}")
        a(f"""
        s_nop 1
        v_permlane32_swap_b32 v{A0}, v{A0+2}
        v_permlane32_swap_b32 v{A0+1}, v{A0+3}
        buffer_store_dwordx4 v[{A0}:{A0+3}], v{VOUT}, s[{SRD_X}:{SRD_X+3}], s{st+1} offen{cfg['out_flags']}
        """)
    a.label("L_fc_next")
    a(f"""
    s_add_u32 s{s_lo}, s{s_lo}, 3
    s_cmp_lt_u32 s{s_lo}, s{s_hi}
    s_nop 1
    s_cbranch_scc1 L_fc_outer
    """)
    a.label("L_fc_end")


def emit_combine(a, cfg):
    K = "pa_combine_kernel"
    NB = 12
    a.raw(f".globl {K}\n.p2align 8\n.type {K},@function")
    a.label(K)
    VL, VCL, VT_ = 200, 201, 202
    ACC = 160
    DEN, MX, MN, SC, W = 170, 171, 172, 173, 174
    U0, U1 = 176, 177
    OB = 0
    MLB = 64
    SRD_C, SRD_W, SRD_O = 20, 24, 28
    sw, sb, sh, swx, sn, sE, sbase, sj = 40, 41, 42, 43, 44, 45, 46, 47
    st = 60
    a(f"""
    s_cmp_ge_u32 s2, 256
    s_cbranch_scc1 L_cend
    s_load_dwordx16 s[4:19], s[0:1], 0
    {"s_memrealtime s[100:101]" if cfg.get("cpad_to_us") else ""}
    v_lshrrev_b32 v{VT_}, 6, v0
    v_and_b32 v{VL}, 63, v0
    s_lshr_b32 s{sb}, s2, 5
    v_readfirstlane_b32 s{sw}, v{VT_}
    s_lshr_b32 s{sh}, s2, 3
    s_and_b32 s{sh}, s{sh}, 3
    s_and_b32 s{swx}, s2, 7
    v_and_b32 v{VT_+1}, 7, v{VL}
    v_lshlrev_b32 v{VT_+1}, 2, v{VT_+1}
    s_waitcnt lgkmcnt(0)
    """)
    emit_srd(a, SRD_C, s_cl, 32)
    a(f"buffer_load_dword v{VCL}, v{VT_+1}, s[{SRD_C}:{SRD_C+3}], 0 offen")
    emit_srd(a, SRD_W, s_ws, WS_BYTES)
    emit_srd(a, SRD_O, s_out, Q_BYTES)
    VOFF, VML, VOUT = 180, 181, 182
    a(f"""
    s_lshl_b32 s{st}, s{swx}, 13
    s_lshl_b32 s{st+1}, s{sw}, 10
    s_add_u32 s{st}, s{st}, s{st+1}
    v_lshlrev_b32 v{VOFF}, 4, v{VL}
    v_add_u32 v{VOFF}, s{st}, v{VOFF}
    s_lshl_b32 s{st}, s{swx}, 8
    s_add_u32 s{st}, s{st}, 0x{WS_ML:x}
    v_and_b32 v{VML}, 31, v{VL}
    v_lshlrev_b32 v{VOUT}, 8, v{VML}             ; q*256
    v_lshlrev_b32 v{VML}, 3, v{VML}
    v_add_u32 v{VML}, s{st}, v{VML}
    v_lshrrev_b32 v{VT_+2}, 5, v{VL}
    v_lshl_add_u32 v{VOUT}, v{VT_+2}, 3, v{VOUT} ; + h2*8
    s_lshl_b32 s{st}, s2, 13
    s_lshl_b32 s{st+1}, s{sw}, 5
    s_add_u32 s{st}, s{st}, s{st+1}
    v_add_u32 v{VOUT}, s{st}, v{VOUT}
    v_mov_b32 v{DEN}, 0
    v_mov_b32 v{MX}, 0xff800000
    """)
    for r in range(8):
        a(f"v_mov_b32 v{ACC+r}, 0")
    a("s_waitcnt vmcnt(0)")
    R = emit_partition(a, VL, VCL, VT_, st)
    a(f"""
    s_add_u32 s{st}, s{st}, s{sb}
    v_readlane_b32 s{sn}, v{R['n']}, s{st}
    v_readlane_b32 s{sE}, v{R['incl']}, s{st}
    s_nop 3
    s_sub_u32 s{sE}, s{sE}, s{sn}
    s_min_u32 s{sn}, s{sn}, 64
    s_lshl_b32 s{st}, s{sh}, 6
    s_add_u32 s{sE}, s{sE}, s{st}
    s_mov_b32 s{sbase}, 0
    """)
    a.label("L_cloop")
    for j in range(NB):
        a(f"""
        s_add_u32 s{sj}, s{sbase}, {j}
        s_add_u32 s{st}, s{sE}, s{sj}
        s_lshl_b32 s{st+1}, s{st}, 16
        s_lshl_b32 s{st}, s{st}, 11
        s_cmp_lt_u32 s{sj}, s{sn}
        s_cselect_b32 s{st+1}, s{st+1}, 0x80000000
        s_cselect_b32 s{st}, s{st}, 0x80000000
        buffer_load_dwordx2 v[{MLB+2*j}:{MLB+2*j+1}], v{VML}, s[{SRD_W}:{SRD_W+3}], s{st} offen
        buffer_load_dwordx4 v[{OB+4*j}:{OB+4*j+3}], v{VOFF}, s[{SRD_W}:{SRD_W+3}], s{st+1} offen
        """)
    a(f"v_mov_b32 v{MN}, v{MX}")
    for j in range(NB):
        a(f"""
        s_add_u32 s{sj}, s{sbase}, {j}
        s_cmp_ge_u32 s{sj}, s{sn}
        s_cbranch_scc1 L_cmaxdone
        s_waitcnt vmcnt({2*(NB-1-j)+1})
        v_max_f32 v{MN}, v{MN}, v{MLB+2*j}
        """)
    a.label("L_cmaxdone")
    a(f"""
    v_sub_f32 v{SC}, v{MX}, v{MN}
    v_exp_f32 v{SC}, v{SC}
    v_mov_b32 v{MX}, v{MN}
    v_mul_f32 v{DEN}, v{DEN}, v{SC}
    """)
    for r in range(8):
        a(f"v_mul_f32 v{ACC+r}, v{ACC+r}, v{SC}")
    for j in range(NB):
        a(f"""
        s_add_u32 s{sj}, s{sbase}, {j}
        s_cmp_ge_u32 s{sj}, s{sn}
        s_cbranch_scc1 L_cfin
        v_sub_f32 v{W}, v{MLB+2*j}, v{MX}
        v_exp_f32 v{W}, v{W}
        s_waitcnt vmcnt({2*(NB-1-j)})
        v_fmac_f32 v{DEN}, v{W}, v{MLB+2*j+1}
        """)
        for r in range(4):
            a(f"""
            v_lshlrev_b32 v{U0}, 16, v{OB+4*j+r}
            v_and_b32 v{U1}, 0xffff0000, v{OB+4*j+r}
            v_fmac_f32 v{ACC+2*r}, v{W}, v{U0}
            v_fmac_f32 v{ACC+2*r+1}, v{W}, v{U1}
            """)
    a(f"""
    s_add_u32 s{sbase}, s{sbase}, {NB}
    s_branch L_cloop
    """)
    a.label("L_cfin")
    a(f"""
    v_rcp_f32 v{SC}, v{DEN}
    s_nop 0
    """)
    for r in range(8):
        a(f"v_mul_f32 v{ACC+r}, v{ACC+r}, v{SC}")
    for r in range(4):
        a(f"v_cvt_pk_bf16_f32 v{ACC+r}, v{ACC+2*r}, v{ACC+2*r+1}")
    a(f"""
    buffer_store_dwordx2 v[{ACC}:{ACC+1}], v{VOUT}, s[{SRD_O}:{SRD_O+3}], 0 offen
    buffer_store_dwordx2 v[{ACC+2}:{ACC+3}], v{VOUT}, s[{SRD_O}:{SRD_O+3}], 0 offen offset:16
    """)
    if cfg.get("cpad_to_us"):
        a(f"""
        s_waitcnt vmcnt(0)
        s_add_u32 s92, s100, {int(cfg["cpad_to_us"]*100)}
        """)
        a.label("L_cdelay")
        a(f"""
        s_sleep 4
        s_memrealtime s[90:91]
        s_waitcnt lgkmcnt(0)
        s_sub_u32 s93, s92, s90
        s_cmp_gt_i32 s93, 0
        s_cbranch_scc1 L_cdelay
        """)
    a.label("L_cend")
    a("s_endpgm")


def descriptor(name, vgpr, accum, sgpr=102):
    return f"""
.p2align 6
.amdhsa_kernel {name}
  .amdhsa_next_free_vgpr {vgpr}
  .amdhsa_next_free_sgpr {sgpr}
  .amdhsa_accum_offset {accum}
  .amdhsa_group_segment_fixed_size 0
  .amdhsa_kernarg_size 64
  .amdhsa_user_sgpr_count 2
  .amdhsa_user_sgpr_kernarg_segment_ptr 1
  .amdhsa_system_sgpr_workgroup_id_x 1
.end_amdhsa_kernel
"""


DEFAULT_CFG = dict(
    vslots=[9, 10, 11, 12, 13, 14, 15, 16, 17, 18, 19, 20, 21, 22, 23, 24],
    rl_slot=22,
    dma_slots=[25, 26, 27, 29],
    dma_cost=12,
    patch_slot=9,
    delta=3,
    br_dist=2,
    empty_gaps=[31],
    bar_period=2,
    pp0=1, pp1=0, ppA=[7, 15], ppB=[15, 31], ppQ=[1, 3, 5, 7],
    pk=1,
    warm=1,
    zero_early=64,
    thr_log2=12,
    st_flags=" sc1",
    fused=1, cld_flags=" sc1", poll_sleep=1, poll_max=200000, cpk=0, clook=3, out_flags=" sc1",
    depth=6, map=0, flagmode="wg", cwarm=0, peel=0, peel_slots=[19, 22, 25, 27],
    ld_flags=" nt",
)


def generate(cfg=None, out=OUT):
    c = dict(DEFAULT_CFG)
    if cfg:
        c.update(cfg)
    global LDFLAGS
    LDFLAGS = c["ld_flags"]
    a = Asm()
    a.raw(f"""; Paged attention (GQA, split-KV) for gfx950 -- generated by gen.py (hand-scheduled)
; kernel 1: 256 workgroups, each 256 q rows x a key range of one (batch, kv head); partials -> d_ws
; kernel 2: combines the partials
{("; @launch grid=(256,1,1) block=(256,1,1) lds=163840" if c["fused"] else "; @launch kernel=" + NAME + "_kernel grid=(256,1,1) block=(256,1,1) lds=163840" + chr(10) + "; @launch kernel=pa_combine_kernel grid=(256,1,1) block=(512,1,1) lds=0")}
{"; @launch kernel=pa_nop_kernel grid=(1,1,1) block=(64,1,1) lds=0" + chr(10) if c.get("nop3") else ""}.amdgcn_target "amdgcn-amd-amdhsa--gfx950"
.text""")
    emit_main(a, c)
    if not c["fused"]:
        emit_combine(a, c)
    if c.get("nop3"):
        a.raw(".globl pa_nop_kernel\n.p2align 8\n.type pa_nop_kernel,@function\npa_nop_kernel:\n    s_endpgm")
    a.raw('.section .rodata,"a"')
    if c.get("nop3"):
        a.raw(descriptor("pa_nop_kernel", 8, 8))
    a.raw(descriptor(NAME + "_kernel", 384, 256))
    if not c["fused"]:
        a.raw(descriptor("pa_combine_kernel", 216, 216))
    open(out, "w").write(a.text())


if __name__ == "__main__":
    import json
    cfg = json.loads(sys.argv[1]) if len(sys.argv) > 1 else None
    generate(cfg, sys.argv[2] if len(sys.argv) > 2 else OUT)
```

```python
import sys, math

NAME = "standalone__paged_block_table_kv_pagedattention__sampling"
OUT = "cdna_kernels/%s.s" % NAME

KV_BYTES = 4100 * 16384
Q_BYTES = 8 * 32 * 32 * 128 * 2
BT_BYTES = 8 * 512 * 4
WS_ML = 0x1000000
LDS_ML = 0x27000
LDS_NONCE = 0x27ff0
WS_DBG = WS_ML + 256 * 2048
WS_FLAG = WS_DBG + 0x100000
WS_BYTES = WS_FLAG + 32 * 2048
SCALE = math.log2(math.e) / math.sqrt(128.0)
THR_LOG2 = 12

import struct
def f32bits(x):
    return struct.unpack("<I", struct.pack("<f", x))[0]

class Asm:
    def __init__(self):
        self.lines = []
    def __call__(self, s):
        for l in s.strip("\n").split("\n"):
            self.lines.append("    " + l.strip())
    def label(self, l):
        self.lines.append(l + ":")
    def raw(self, s):
        self.lines.append(s)
    def text(self):
        return "\n".join(self.lines) + "\n"

S_ = {0: 0, 1: 16}
C_ = {0: 32, 1: 48}
O_ = {0: 64, 1: 128}
P_ = {0: 192, 1: 200}
KADDR = 208
VADDR = 216
VOFFK = 220
VOFFV = 222
PAGES = 224
L_ = {0: 225, 1: 226}
M_ = {0: 227, 1: 228}
TS_ = {0: (229, 230), 1: (231, 232)}
ET = 233
VLANE = 239
VT = 240
VH4 = 255
AQ = {0: 0, 1: 32}
AK = 64
AV = 96

s_wg = 2
s_q, s_k, s_v, s_bt, s_cl, s_out, s_dbg, s_ws = 4, 6, 8, 10, 12, 14, 16, 18
SRD_K, SRD_V, SRD_Q, SRD_X, SRD_WS, SRD_BT = 20, 24, 28, 32, 36, 76
s_w = 40
s_h = 41
s_slot = 42
s_n = 43
s_i = 44
s_patch = 45
s_rem = 46
s_idx = 47
s_pg = {0: 48, 1: 49}
s_m0k = 50
s_m0v = 51
s_thr = {0: 52, 1: 52}
s_E = 53
s_nb = 82
s_jj = 3
s_mine = 74
s_own, s_wlo, s_lo, s_hi = 84, 85, 86, 87
s_floor = {0: 54, 1: 55}
s_first = {0: 56, 1: 57}
s_ret = 58
s_t0 = 60
s_qb = 84
s_qlds = 54
s_b = 80
s_start = 81
s_scale = 56
s_wgslot = 83


def emit_srd(a, d, ptr, nbytes):
    a(f"""
    s_mov_b32 s{d}, s{ptr}
    s_and_b32 s{d+1}, s{ptr+1}, 0xffff
    s_mov_b32 s{d+2}, 0x{nbytes:x}
    s_mov_b32 s{d+3}, 0x20000
    """)


def sum8(a, dst, src, tmp):
    a(f"""
    s_nop 1
    v_add_u32_dpp v{tmp}, v{src}, v{src} quad_perm:[1,0,3,2] row_mask:0xf bank_mask:0xf
    s_nop 1
    v_add_u32_dpp v{dst}, v{tmp}, v{tmp} quad_perm:[2,3,0,1] row_mask:0xf bank_mask:0xf
    s_nop 1
    v_add_u32_dpp v{dst}, v{dst}, v{dst} row_half_mirror row_mask:0xf bank_mask:0xf
    """)


def emit_partition(a, vlane, vcl, vt, st):
    Lm1, T_, Cc, Nn, NS, INC, Qq, Rr, X0, X1 = range(vt, vt + 10)
    a(f"""
    v_add_u32 v{Lm1}, -1, v{vcl}
    v_min_u32 v{Lm1}, 0x1fff, v{Lm1}
    v_lshrrev_b32 v{T_}, 5, v{Lm1}
    v_add_u32 v{T_}, 1, v{T_}
    """)
    sum8(a, Cc, T_, X0)
    a(f"""
    v_add_u32 v{Cc}, 63, v{Cc}
    v_lshrrev_b32 v{Cc}, 6, v{Cc}
    v_lshrrev_b32 v{X0}, 3, v{vlane}
    v_add_u32 v{Cc}, v{Cc}, v{X0}
    v_cvt_f32_u32 v{X0}, v{Cc}
    v_rcp_f32 v{X0}, v{X0}
    v_add3_u32 v{X1}, v{T_}, v{Cc}, -1
    v_cvt_f32_u32 v{X1}, v{X1}
    v_add_f32 v{X1}, 0.5, v{X1}
    v_mul_f32 v{X1}, v{X1}, v{X0}
    v_cvt_u32_f32 v{Nn}, v{X1}
    """)
    sum8(a, NS, Nn, X0)
    a(f"""
    s_nop 1
    v_add_u32_dpp v{INC}, v{Nn}, v{Nn} row_shr:1 row_mask:0xf bank_mask:0xf bound_ctrl:0
    v_cvt_f32_u32 v{X0}, v{Nn}
    v_rcp_f32 v{X0}, v{X0}
    v_add_u32_dpp v{INC}, v{INC}, v{INC} row_shr:2 row_mask:0xf bank_mask:0xf bound_ctrl:0
    v_cvt_f32_u32 v{X1}, v{T_}
    v_add_f32 v{X1}, 0.5, v{X1}
    v_add_u32_dpp v{INC}, v{INC}, v{INC} row_shr:4 row_mask:0xf bank_mask:0xf bound_ctrl:0
    v_mul_f32 v{X1}, v{X1}, v{X0}
    v_cvt_u32_f32 v{Qq}, v{X1}
    v_add_u32_dpp v{INC}, v{INC}, v{INC} row_shr:8 row_mask:0xf bank_mask:0xf bound_ctrl:0
    v_mul_u32_u24 v{X0}, v{Qq}, v{Nn}
    v_sub_u32 v{Rr}, v{T_}, v{X0}
    v_mov_b32_dpp v{X1}, v{NS} row_shr:8 row_mask:0xf bank_mask:0xf bound_ctrl:0
    v_sub_u32 v{INC}, v{INC}, v{X1}
    v_cmp_ge_u32 vcc, 64, v{NS}
    s_ff1_i32_b64 s{st}, vcc
    s_mov_b64 s[{st+2}:{st+3}], 0xff
    s_lshl_b64 s[{st+2}:{st+3}], s[{st+2}:{st+3}], s{st}
    """)
    return dict(Lm1=Lm1, t=T_, n=Nn, incl=INC, q=Qq, r=Rr)


def sm_stream(X, et=None):
    S = S_[X]; P = P_[X]
    TS0, TS1 = TS_[X]
    et = ET if et is None else et
    def tmp(j):
        if j == 0:
            return TS0, TS1
        k = (j - 1) % 3
        return et + 2 * k, et + 2 * k + 1
    E = lambda j, h: (8, f"v_exp_f32 v{tmp(j)[h]}, v{S + 2 * j + h}")
    A = lambda j, h: (4, f"v_add_f32 v{(TS0, TS1)[h]}, v{(TS0, TS1)[h]}, v{tmp(j)[h]}")
    C = lambda j: (4, f"v_cvt_pk_bf16_f32 v{P + j}, v{tmp(j)[0]}, v{tmp(j)[1]}")
    st = [E(0, 0), E(0, 1), E(1, 0), C(0), E(1, 1)]
    for j in range(1, 7):
        st += [A(j, 0), E(j + 1, 0), A(j, 1), C(j), E(j + 1, 1)]
    st += [A(7, 0), A(7, 1), C(7), (4, f"v_add_f32 v{TS0}, v{TS0}, v{TS1}")]
    return st


def mfma_qk(X, s):
    c = C_[X] if s == 0 else S_[X]
    return (f"v_mfma_f32_32x32x16_bf16 v[{S_[X]}:{S_[X]+15}], a[{AK+4*s}:{AK+4*s+3}], "
            f"a[{AQ[X]+4*s}:{AQ[X]+4*s+3}], v[{c}:{c+15}]")


def mfma_pv(X, f):
    t, dt = f >> 2, f & 3
    o = O_[X] + 16 * dt
    return (f"v_mfma_f32_32x32x16_bf16 v[{o}:{o+15}], a[{AV+4*f}:{AV+4*f+3}], "
            f"v[{P_[X]+4*t}:{P_[X]+4*t+3}], v[{o}:{o+15}]")


def k_read(s, slot):
    return f"ds_read_b128 a[{AK+4*s}:{AK+4*s+3}], v{KADDR+s} offset:{slot*8192}"


def v_read(f, y, slot):
    t, dt = f >> 2, f & 3
    return (f"ds_read_b64_tr_b16 a[{AV+4*f+2*y}:{AV+4*f+2*y+1}], v{VADDR+dt} "
            f"offset:{slot*8192 + (16*t+8*y)*256}")


LDFLAGS = ""
def dma_k(a_list, slot, spg):
    return [f"s_add_u32 m0, s{s_m0k}, {slot*8192}",
            None,
            f"buffer_load_dwordx4 v{VOFFK}, s[{SRD_K}:{SRD_K+3}], s{spg} offen{LDFLAGS} lds",
            f"buffer_load_dwordx4 v{VOFFK+1}, s[{SRD_K}:{SRD_K+3}], s{spg} offen offset:1024{LDFLAGS} lds"]


def dma_v(a_list, slot, spg):
    return [f"s_add_u32 m0, s{s_m0v}, {slot*8192}",
            None,
            f"buffer_load_dwordx4 v{VOFFV}, s[{SRD_V}:{SRD_V+3}], s{spg} offen{LDFLAGS} lds",
            f"buffer_load_dwordx4 v{VOFFV+1}, s[{SRD_V}:{SRD_V+3}], s{spg} offen offset:1024{LDFLAGS} lds"]


def plan_body(k, cfg, tramps=None, peel=None):
    kn = (k + 1) % 8
    kl = k if peel is None else f"p{k}"
    D = cfg["depth"]
    pgn = s_pg[k & 1]
    pgo = s_pg[(k & 1) ^ 1]
    tramps = [] if tramps is None else tramps
    pre = {i: [] for i in range(32)}
    front = {i: [] for i in range(32)}
    valu = {i: [] for i in range(32)}
    tail = {i: [] for i in range(32)}
    for s in range(8):
        front[s + 1].append((4, k_read(s, kn)))
    vslots = cfg["vslots"]
    vr = [(f, y) for f in range(8) for y in range(2)]
    for (f, y), sl in zip(vr, vslots):
        assert sl >= 9 + f, (f, sl)
        front[sl].append((4, v_read(f, y, k)))
    def vr_before(m):
        return sum(1 for sl in vslots if sl < m)
    pre[16].append(f"s_waitcnt lgkmcnt({vr_before(16)})")
    assert vr_before(24) >= 8
    pre[24].append(f"s_waitcnt lgkmcnt({vr_before(24) - 8})")
    assert vr_before(28) == 16
    pre[28].append("s_waitcnt lgkmcnt(0)")
    ds = cfg["dma_slots"]
    dcost = cfg["dma_cost"]
    if peel is None:
        valu[cfg["rl_slot"]].append((4, f"v_readlane_b32 s{pgn}, v{PAGES}, s{s_idx}"))
        tail[cfg["rl_slot"]].append(f"s_add_u32 s{s_idx}, s{s_idx}, 1")
        dk = dma_k(None, (k + D + 1) % 8, pgn)
        dv = dma_v(None, (k + D) % 8, pgo)
        tail[ds[0] - 1].append(dv[0])
        front[ds[0]].append((dcost, dv[2]))
        front[ds[1]].append((dcost, dv[3]))
        assert ds[2] - 1 >= ds[1]
        tail[ds[2] - 1].append(dk[0])
        front[ds[2]].append((dcost, dk[2]))
        front[ds[3]].append((dcost, dk[3]))
        assert ds[2] > cfg["rl_slot"] + 1
    else:
        g, pb = peel
        seq = [dma_k(None, (g + 1) % 8, pb + g + 1), dma_v(None, g % 8, pb + g),
               dma_k(None, (g + 2) % 8, pb + g + 2), dma_v(None, (g + 1) % 8, pb + g + 1)]
        for d_, sl in zip(seq, cfg["peel_slots"]):
            tail[sl - 1].append(d_[0])
            front[sl].append((dcost, d_[2]))
            front[sl + 1].append((dcost, d_[3]))
    ps = cfg["patch_slot"]
    tail[ps - 1].append(f"s_cmp_eq_u32 s{s_i}, s{s_patch}")
    front[ps].insert(0, (8, f"s_cbranch_scc1 L_patch_{kl}"))
    front[ps].insert(1, (0, f"L_patch_ret_{kl}:"))
    tramps.append((f"L_patch_{kl}", "L_sub_patch", f"L_patch_ret_{kl}"))
    assert max(ds) < 30
    tail[30].append(f"s_add_u32 s{s_i}, s{s_i}, 1")
    tail[30].append(f"s_cmp_ge_u32 s{s_i}, s{s_n}")
    front[31].append((8, "s_cbranch_scc1 L_drain"))
    dl = cfg["delta"]
    for X, lo in ((0, 32 - dl), (1, 16 - dl)):
        hi = lo + 15
        bs = (hi + cfg["br_dist"]) % 32
        front[bs].insert(0, (8, f"s_cbranch_vccnz L_fb{X}_{kl}"))
        front[bs].insert(1, (0, f"L_fb{X}_ret_{kl}:"))
        valu[bs].insert(0, (4, f"v_add_f32 v{L_[X]}, v{L_[X]}, v{TS_[X][0]}"))
        tramps.append((f"L_fb{X}_{kl}", f"L_sub_fb{X}", f"L_fb{X}_ret_{kl}"))
    if peel is not None:
        _, _, valu_r, _ = plan_body(k, cfg)
        for g_ in range(32):
            valu[g_] = [x for x in valu_r[g_] if not x[1].startswith("v_readlane")]
        return pre, front, valu, tail
    for X, lo in ((0, 32 - dl), (1, 16 - dl)):
        gaps = [(lo + j) % 32 for j in range(16)]
        st = sm_stream(X) + [(4, f"v_cmp_lt_f32 vcc, s{s_thr[X]}, v{TS_[X][0]}")]
        tot = sum(c for c, _ in st)
        free = [max(0, 24 - sum(c for c, _ in front[g]) - sum(c for c, _ in valu[g])) for g in gaps]
        for n_, g in enumerate(gaps):
            if g in cfg["empty_gaps"]:
                free[n_] = 0
        ftot = sum(free)
        assert ftot >= tot, (ftot, tot)
        acc = 0.0; done = 0; idx = 0
        for n_, g in enumerate(gaps):
            acc += free[n_] * tot / ftot
            used = 0
            while idx < len(st) and used + st[idx][0] <= free[n_] and len(valu[g]) < 5 and \
                    (done + st[idx][0] / 2.0 <= acc or n_ == 15):
                valu[g].append(st[idx]); done += st[idx][0]; used += st[idx][0]; idx += 1
        assert idx == len(st), (X, idx, len(st))
    return pre, front, valu, tail


def skip(t, cfg):
    if cfg.get("no_dma") and t.startswith("buffer_load"): return True
    if cfg.get("no_lds") and t.startswith("ds_read"): return True
    if cfg.get("no_sm") and (t.startswith("v_exp") or t.startswith("v_add_f32") or t.startswith("v_cvt")): return True
    if cfg.get("no_mfma") and t.startswith("v_mfma"): return True
    return False


def emit_body(a, k, tramps, cfg, peel=None, vm=None):
    D = cfg["depth"]
    mf = [mfma_qk(1, s) for s in range(8)] + [mfma_pv(1, f) for f in range(8)] + \
         [mfma_qk(0, s) for s in range(8)] + [mfma_pv(0, f) for f in range(8)]
    pre, front, valu, tail = plan_body(k, cfg, tramps, peel)
    a.label(f"L_body_{k}" if peel is None else f"L_body_p{k}")
    if cfg.get("stamp"):
        a(f"""
        s_memtime s[90:91]
        s_mov_b32 m0, s{s_i}
        s_waitcnt lgkmcnt(0)
        v_writelane_b32 v{VT+12}, s90, m0
        """)
    bp = cfg["bar_period"]
    if k % bp == 0:
        a(f"s_waitcnt vmcnt({4*(D-bp) if vm is None else vm})")
        if not cfg.get("no_bar"):
            a("s_barrier")
    if cfg.get("stamp"):
        a(f"""
        s_memtime s[90:91]
        s_waitcnt lgkmcnt(0)
        v_writelane_b32 v{VT+13}, s90, m0
        """)
    for i in range(32):
        seq = pre[i] + [mf[i]] + [t for _, t in front[i]] + [t for _, t in valu[i]] + tail[i]
        for t in seq:
            if t.endswith(":"):
                a.label(t[:-1])
            elif not skip(t, cfg):
                a(t)
    if k == 7 and peel is None:
        a("s_branch L_body_0")


def emit_rowmax(a, X, mx, t1):
    S = S_[X]
    out = [f"v_max3_f32 v{mx}, v{S}, v{S+1}, v{S+2}"]
    for r in range(3, 15, 2):
        out.append(f"v_max3_f32 v{mx}, v{mx}, v{S+r}, v{S+r+1}")
    out += [f"v_max_f32 v{mx}, v{mx}, v{S+15}", f"v_mov_b32 v{t1}, v{mx}", "s_nop 1",
            f"v_permlane32_swap_b32 v{mx}, v{t1}", "s_nop 1", f"v_max_f32 v{mx}, v{mx}, v{t1}"]
    return out


def emit_fallback(a, X):
    S = S_[X]; C = C_[X]; O = O_[X]; P = P_[X]
    mx, t1, f = VT, VT + 1, VT + 3
    a.label(f"L_sub_fb{X}")
    a("s_nop 7")
    for t in emit_rowmax(a, X, mx, t1):
        a(t)
    a(f"""
    v_max_f32 v{mx}, 0, v{mx}
    v_exp_f32 v{f}, -v{mx}
    v_add_f32 v{M_[X]}, v{M_[X]}, v{mx}
    """)
    for r in range(16):
        a(f"v_sub_f32 v{C+r}, v{C+r}, v{mx}")
        a(f"v_sub_f32 v{S+r}, v{S+r}, v{mx}")
    a(f"v_mul_f32 v{L_[X]}, v{L_[X]}, v{f}")
    for r in range(64):
        a(f"v_mul_f32 v{O+r}, v{O+r}, v{f}")
    for c, t in sm_stream(X, VT + 4):
        a(t)
    a(f"""
    s_nop 3
    s_setpc_b64 s[{s_ret}:{s_ret+1}]
    """)


def emit_patch(a):
    ninf = VT
    a.label("L_sub_patch")
    a(f"""
    s_nop 7
    v_mov_b32 v{ninf}, 0xff800000
    """)
    for r in range(16):
        cst = 8 * (r >> 2) + (r & 3)
        a(f"""
        s_sub_i32 s{s_mine+1}, s{s_rem}, {cst}
        v_cmp_gt_i32 vcc, s{s_mine+1}, v{VH4}
        s_nop 1
        v_cndmask_b32 v{C_[0]+r}, v{ninf}, v{C_[0]+r}, vcc
        v_cndmask_b32 v{C_[1]+r}, v{ninf}, v{C_[1]+r}, vcc
        """)
    a(f"""
    s_nop 3
    s_setpc_b64 s[{s_ret}:{s_ret+1}]
    """)


MAPS = {
    0: f"""s_lshr_b32 s{s_h}, s{s_wg}, 1
    s_and_b32 s{s_h}, s{s_h}, 3
    s_and_b32 s{s_t0}, s{s_wg}, 1
    s_lshl_b32 s{s_t0}, s{s_t0}, 5
    s_lshr_b32 s{s_slot}, s{s_wg}, 3
    s_or_b32 s{s_slot}, s{s_slot}, s{s_t0}""",
    2: f"""s_lshr_b32 s{s_h}, s{s_wg}, 1
    s_and_b32 s{s_h}, s{s_h}, 3
    s_lshr_b32 s{s_slot}, s{s_wg}, 3
    s_cmp_lt_u32 s{s_slot}, 30
    s_cselect_b32 s{s_t0}, s{s_slot}, 63
    s_add_u32 s{s_slot}, s{s_slot}, 30
    s_and_b32 s{s_t0+1}, s{s_wg}, 1
    s_cmp_eq_u32 s{s_t0+1}, 0
    s_cselect_b32 s{s_slot}, s{s_t0}, s{s_slot}""",
    1: f"""s_lshr_b32 s{s_h}, s{s_wg}, 3
    s_and_b32 s{s_h}, s{s_h}, 3
    s_and_b32 s{s_t0}, s{s_wg}, 7
    s_lshl_b32 s{s_t0}, s{s_t0}, 3
    s_lshr_b32 s{s_slot}, s{s_wg}, 5
    s_or_b32 s{s_slot}, s{s_slot}, s{s_t0}""",
}


def emit_pad(a, us, tag):
    a(f"s_add_u32 s92, s100, {int(us*100)}")
    a.label(f"L_pad_{tag}")
    a(f"""
    s_sleep 2
    s_memrealtime s[90:91]
    s_waitcnt lgkmcnt(0)
    s_sub_u32 s93, s92, s90
    s_cmp_gt_i32 s93, 0
    s_cbranch_scc1 L_pad_{tag}
    """)


def emit_main(a, cfg):
    K = NAME + "_kernel"
    D = cfg["depth"]
    assert D <= 7
    a.raw(f".globl {K}\n.p2align 8\n.type {K},@function")
    a.label(K)
    t0, t1, t2, t3 = VT + 11, VT + 12, VT + 13, VT + 14
    VCL = VT + 10
    def sstamp(n):
        if cfg.get("stamp"):
            a(f"""
            s_memtime s[90:91]
            s_waitcnt lgkmcnt(0)
            s_mov_b32 s{n}, s90
            """)
    def pstamp(n):
        if cfg.get("stamp"):
            a(f"""
            s_memtime s[90:91]
            s_waitcnt lgkmcnt(0)
            v_writelane_b32 v{VT+12}, s90, {40+n}
            """)
    a(f"""
    s_cmp_ge_u32 s{s_wg}, 256
    s_cbranch_scc1 L_end
    s_load_dwordx16 s[4:19], s[0:1], 0
    v_lshrrev_b32 v{VT}, 6, v0
    v_and_b32 v{VLANE}, 63, v0
    v_readfirstlane_b32 s{s_w}, v{VT}
    {MAPS[cfg["map"]]}
    v_and_b32 v{VT+1}, 7, v{VLANE}
    v_lshlrev_b32 v{VT+1}, 2, v{VT+1}
    v_lshlrev_b32 v{VT+2}, 7, v{VLANE}
    """)
    if cfg["fused"]:
        a(f"s_memrealtime s[{s_mine}:{s_mine+1}]")
    if cfg.get("stamp"):
        a("s_memtime s[92:93]")
    if cfg.get("stamp") or cfg.get("pad_to_us") or cfg.get("pad_le") or cfg.get("pad_ls") or cfg.get("pad_pub"):
        a("s_memrealtime s[100:101]")
    a(f"""
    s_and_b32 s{s_t0}, s{s_w}, 1
    s_lshl_b32 s{s_t0}, s{s_t0}, 3               ; 8*(w&1)
    s_lshl_b32 s{s_t0+1}, s{s_h}, 8              ; h*256
    v_lshrrev_b32 v{t0}, 4, v{VLANE}             ; l>>4
    v_and_b32 v{t1}, 15, v{VLANE}                ; pc
    v_add_u32 v{t2}, s{s_t0}, v{t0}              ; R&15 for x=0
    v_xor_b32 v{t3}, v{t1}, v{t2}
    v_lshlrev_b32 v{t3}, 4, v{t3}
    v_lshl_add_u32 v{t3}, v{t2}, 10, v{t3}
    v_add_u32 v{VOFFK}, s{s_t0+1}, v{t3}
    v_add_u32 v{t2}, 4, v{t2}                    ; R&15 for x=1
    v_xor_b32 v{t3}, v{t1}, v{t2}
    v_lshlrev_b32 v{t3}, 4, v{t3}
    v_lshl_add_u32 v{t3}, v{t2}, 10, v{t3}
    v_add_u32 v{t3}, s{s_t0+1}, v{t3}
    v_add_u32 v{VOFFK+1}, 0xfffffc00, v{t3}
    v_lshlrev_b32 v{t3}, 2, v{t0}
    v_xor_b32 v{t3}, v{t1}, v{t3}
    v_lshlrev_b32 v{t3}, 4, v{t3}
    v_add_u32 v{t2}, s{s_t0}, v{t0}
    v_lshl_add_u32 v{t3}, v{t2}, 10, v{t3}
    v_add_u32 v{VOFFV}, s{s_t0+1}, v{t3}
    v_add_u32 v{VOFFV+1}, 0xc00, v{VOFFV}        ; +4096 -1024
    s_lshl_b32 s{s_m0k}, s{s_w}, 11
    s_add_u32 s{s_m0v}, s{s_m0k}, 0x10000
    s_mov_b32 s{s_thr[0]}, 0x{f32bits(2.0**cfg["thr_log2"]):x}
    s_mov_b32 s{s_thr[1]}, 0x{f32bits(2.0**cfg["thr_log2"]):x}
    s_mov_b32 s{s_i}, 0
    s_mov_b32 s{s_idx}, {D+1+cfg["peel"]}
    v_lshrrev_b32 v{t0}, 5, v{VLANE}            ; h2
    v_lshlrev_b32 v{VH4}, 2, v{t0}
    v_lshrrev_b32 v{t2}, 4, v{VLANE}
    v_xor_b32 v{t3}, v{t1}, v{t2}
    v_lshlrev_b32 v{t3}, 4, v{t3}
    v_lshl_add_u32 v{ET}, v{t2}, 8, v{t3}        ; Q voffset (j&3 == 0)
    v_xor_b32 v{ET+1}, 64, v{ET}
    v_xor_b32 v{ET+2}, 0x80, v{ET}
    v_xor_b32 v{ET+3}, 0xc0, v{ET}
    v_lshlrev_b32 v{ET+4}, 3, v{VLANE}
    s_lshl_b32 s{s_qlds}, s{s_w}, 13
    s_add_u32 s{s_qlds}, s{s_qlds}, 0x20000      ; Q_A staging : 128K + w*8K
    s_and_b32 s{s_t0}, s{s_w}, 1
    s_lshl_b32 s{s_t0}, s{s_t0}, 13
    s_lshr_b32 s{s_t0+1}, s{s_w}, 1
    s_lshl_b32 s{s_t0+1}, s{s_t0+1}, 16
    s_add_u32 s{s_t0}, s{s_t0}, s{s_t0+1}
    s_add_u32 s{s_qlds+1}, s{s_t0}, 0xc000
    s_waitcnt lgkmcnt(0)
    """)
    emit_srd(a, SRD_X, s_cl, 32)
    a(f"buffer_load_dword v{VCL}, v{VT+1}, s[{SRD_X}:{SRD_X+3}], 0 offen")
    emit_srd(a, SRD_BT, s_bt, BT_BYTES)
    emit_srd(a, SRD_Q, s_q, Q_BYTES)
    nwarm = 0
    if cfg["warm"]:
        a(f"""
        s_lshr_b32 s{s_t0}, s{s_wg}, 3
        s_lshr_b32 s{s_t0+1}, s{s_t0}, 2
        s_lshl_b32 s{s_t0+1}, s{s_t0+1}, 18          ; b*262144
        s_and_b32 s{s_t0+2}, s{s_t0}, 3
        s_lshl_b32 s{s_t0+2}, s{s_t0+2}, 14
        s_add_u32 s{s_t0+1}, s{s_t0+1}, s{s_t0+2}
        s_lshl_b32 s{s_t0+2}, s{s_h}, 16
        s_add_u32 s{s_t0+1}, s{s_t0+1}, s{s_t0+2}
        s_lshl_b32 s{s_t0+2}, s{s_w}, 13
        s_add_u32 s{s_t0+1}, s{s_t0+1}, s{s_t0+2}
        s_lshl_b32 s{s_t0}, s{s_t0}, 9
        s_cmp_lt_u32 s{s_w}, 2
        s_cselect_b32 s{s_t0+1}, s{s_t0+1}, 0x80000000
        s_cmp_eq_u32 s{s_w}, 2
        s_cselect_b32 s{s_t0}, s{s_t0}, 0x80000000
        v_min_u32 v{VT+3}, 0x180, v{VT+2}
        buffer_load_dword v{P_[0]}, v{VT+2}, s[{SRD_Q}:{SRD_Q+3}], s{s_t0+1} offen
        buffer_load_dword v{P_[0]+1}, v{VT+3}, s[{SRD_BT}:{SRD_BT+3}], s{s_t0} offen
        """)
        nwarm = 2
    if cfg["cwarm"]:
        a(f"""
        s_getpc_b64 s[{SRD_K}:{SRD_K+1}]
        """)
        a.label("L_pc0")
        a(f"""
        s_and_b32 s{SRD_K+1}, s{SRD_K+1}, 0xffff
        s_mov_b32 s{SRD_K+2}, L_code_end-L_pc0
        s_mov_b32 s{SRD_K+3}, 0x20000
        s_lshl_b32 s{s_t0}, s{s_w}, 13
        buffer_load_dword v{P_[0]+2}, v{VT+2}, s[{SRD_K}:{SRD_K+3}], s{s_t0} offen
        """)
        nwarm += 1
    emit_srd(a, SRD_K, s_k, KV_BYTES)
    emit_srd(a, SRD_V, s_v, KV_BYTES)
    emit_srd(a, SRD_WS, s_ws, WS_BYTES)
    if cfg["tlbwarm"]:
        a(f"""
        s_lshr_b32 s{s_t0}, s{s_wg}, 3
        s_lshl_b32 s{s_t0}, s{s_t0}, 2
        s_add_u32 s{s_t0}, s{s_t0}, s{s_w}
        s_cmp_lt_u32 s{s_t0}, {cfg["tlbwarm"]}
        s_cselect_b32 s{s_t0}, 0, 0x80000000
        v_lshlrev_b32 v{VT+3}, 21, v{VLANE}
        buffer_load_dword v{P_[0]+3}, v{VT+3}, s[{SRD_K}:{SRD_K+3}], s{s_t0} offen nt
        buffer_load_dword v{P_[0]+4}, v{VT+3}, s[{SRD_V}:{SRD_V+3}], s{s_t0} offen nt
        buffer_load_dword v{P_[0]+5}, v{VT+3}, s[{SRD_WS}:{SRD_WS+3}], s{s_t0} offen nt
        """)
        nwarm += 3
    sstamp(88)
    a(f"""
    v_and_b32 v{t1}, 31, v{VLANE}               ; key / q
    v_and_b32 v{t2}, 15, v{VLANE}
    v_xor_b32 v{t2}, v{t2}, v{t0}               ; (key&15)^h2
    v_lshlrev_b32 v{t2}, 4, v{t2}
    v_lshl_add_u32 v{KADDR}, v{t1}, 8, v{t2}
    """)
    for s in range(1, 8):
        a(f"v_xor_b32 v{KADDR+s}, {s << 5}, v{KADDR}")
    a(f"""
    v_bfe_u32 v{t1}, v{VLANE}, 2, 2              ; r
    v_add_u32 v{t2}, v{VH4}, v{t1}               ; 4h2 + r
    v_lshlrev_b32 v{t2}, 8, v{t2}
    v_bfe_u32 v{t3}, v{VLANE}, 4, 1              ; sub
    v_lshl_add_u32 v{t2}, v{t3}, 5, v{t2}
    v_and_b32 v{t3}, 3, v{VLANE}                 ; c
    v_lshl_add_u32 v{t2}, v{t3}, 3, v{t2}
    v_add_u32 v{t2}, 0x10000, v{t2}
    v_lshl_add_u32 v{VADDR}, v{t1}, 6, v{t2}     ; dt=0 : (0^r)<<6
    """)
    for dt in range(1, 4):
        a(f"v_xor_b32 v{VADDR+dt}, {dt << 6}, v{VADDR}")
    a(f"s_waitcnt vmcnt({nwarm})")
    sstamp(89)
    st = s_t0
    R = emit_partition(a, VLANE, VCL, VT, st)
    sn, sincl, sLm1, scl, sq, sr, sj = st + 4, st + 5, st + 6, st + 7, st + 8, st + 9, st + 10
    SKEW1 = SKEW2 = ""
    if cfg.get("skew"):
        sh = cfg["skew"]
        g0, g1 = st + 11, st + 12
        SKEW1 = f"""s_sub_u32 s{g0}, s{sn}, s{sj}
    s_mul_i32 s{g1}, s{g0}, s{sj}                ; j*(nb-j)
    s_add_u32 s{st}, s{g1}, s{g0}
    s_sub_u32 s{st}, s{st}, s{sj}
    s_sub_u32 s{st}, s{st}, 1                    ; (j+1)*(nb-j-1)
    s_mul_i32 s{g1}, s{g1}, {cfg.get("skew_mul", 1)}
    s_mul_i32 s{st}, s{st}, {cfg.get("skew_mul", 1)}
    s_lshr_b32 s{g0}, s{g1}, {sh}
    s_lshr_b32 s{g1}, s{st}, {sh}
    s_cmp_gt_u32 s{sq}, s{sn}
    s_cselect_b32 s{g0}, s{g0}, 0
    s_cselect_b32 s{g1}, s{g1}, 0
    s_sub_u32 s{s_start}, s{s_start}, s{g0}"""
        SKEW2 = f"""s_add_u32 s{s_n}, s{s_n}, s{g0}
    s_sub_u32 s{s_n}, s{s_n}, s{g1}"""
    a(f"""
    v_cmp_lt_u32 vcc, s{s_slot}, v{R['incl']}
    s_and_b64 vcc, vcc, s[{st+2}:{st+3}]
    s_cbranch_scc0 L_end
    s_ff1_i32_b64 s{st}, vcc
    s_and_b32 s{s_b}, s{st}, 7
    v_readlane_b32 s{sn}, v{R['n']}, s{st}
    v_readlane_b32 s{sincl}, v{R['incl']}, s{st}
    v_readlane_b32 s{sq}, v{R['q']}, s{st}
    v_readlane_b32 s{sr}, v{R['r']}, s{st}
    v_readlane_b32 s{sLm1}, v{R['Lm1']}, s{st}
    v_readlane_b32 s{scl}, v{VCL}, s{st}
    s_lshl_b32 s{st+2}, s{s_b}, 5
    s_lshl_b32 s{st+1}, s{s_h}, 3
    s_add_u32 s{st+2}, s{st+2}, s{st+1}
    s_lshl_b32 s{st+1}, s{s_w}, 1
    s_add_u32 s{st+2}, s{st+2}, s{st+1}
    s_lshl_b32 s{st+2}, s{st+2}, 13              ; Q base = ((b*32 + 8h + 2w)*32)*256
    s_add_u32 s{st+3}, s{st+2}, 0x2000
    s_sub_u32 s{sj}, s{sincl}, s{sn}
    s_sub_u32 s{sj}, s{s_slot}, s{sj}            ; j = slot - E_b
    s_mul_i32 s{s_start}, s{sj}, s{sq}
    s_min_u32 s{st}, s{sj}, s{sr}
    s_add_u32 s{s_start}, s{s_start}, s{st}
    {SKEW1}
    s_lshl_b32 s{st}, s{s_b}, 9
    s_lshl_b32 s{st+1}, s{s_start}, 1
    s_add_u32 s{st}, s{st}, s{st+1}
    s_lshr_b32 s{st+1}, s{s_w}, 1
    s_add_u32 s{st}, s{st}, s{st+1}
    s_lshl_b32 s{st}, s{st}, 2
    buffer_load_dword v{PAGES}, v{ET+4}, s[{SRD_BT}:{SRD_BT+3}], s{st} offen
    """)
    def qload(X):
        for hf in range(2):
            a(f"s_add_u32 m0, s{s_qlds+X}, {4096*hf}")
            a(f"s_add_u32 s{s_qb+2}, s{s_qb+X}, {4096*hf}")
            for j in range(4):
                a(f"buffer_load_dwordx4 v{ET+j}, s[{SRD_Q}:{SRD_Q+3}], s{s_qb+2} offen offset:{1024*j} lds")
    a(f"""
    s_mov_b32 s{s_qb}, s{st+2}
    s_mov_b32 s{s_qb+1}, s{st+3}
    """)
    qload(0)
    emit_srd(a, SRD_X, s_dbg, 256)
    a(f"""
    s_or_b32 s{s_mine}, s{s_mine}, 1
    v_mov_b32 v{VT+8}, s{s_mine}
    v_mov_b32 v{VT+9}, 0
    s_or_b32 s{st}, s{s_wg}, s{s_w}
    s_cmp_eq_u32 s{st}, 0
    s_cselect_b32 s{st}, 0, 0x80000000
    s_mov_b64 exec, 1
    buffer_store_dword v{VT+8}, v{VT+9}, s[{SRD_X}:{SRD_X+3}], s{st} offen sc1
    s_mov_b64 exec, -1
    """)
    a(f"""
    s_cmp_lt_u32 s{sj}, s{sr}
    s_addc_u32 s{s_n}, s{sq}, 0                  ; n = q + (j<r)
    {SKEW2}
    s_min_u32 s{s_n}, s{s_n}, 54
    s_and_b32 s{s_rem}, s{sLm1}, 31
    s_add_u32 s{s_rem}, s{s_rem}, 1
    s_add_u32 s{st}, s{sj}, 1
    s_cmp_eq_u32 s{st}, s{sn}
    s_cselect_b32 s{s_rem}, s{s_rem}, 32
    s_sub_u32 s{s_patch}, s{s_n}, 2
    s_cmp_lt_u32 s{s_rem}, 32
    s_cselect_b32 s{s_patch}, s{s_patch}, 0x7fffffff
    s_mov_b32 s{s_scale}, 0x{f32bits(SCALE):x}
    s_cmp_lt_i32 s{scl}, 1
    s_cselect_b32 s{s_scale}, 0, s{s_scale}
    s_mov_b32 s{s_scale+1}, s{s_scale}
    s_lshl_b32 s{s_wgslot}, s{s_h}, 6
    s_add_u32 s{s_wgslot}, s{s_wgslot}, s{s_slot}
    s_min_u32 s{s_nb}, s{sn}, 64
    s_mov_b32 s{s_jj}, s{sj}
    s_sub_u32 s{s_E}, s{s_wgslot}, s{sj}
    """)
    sstamp(93)
    nz = cfg["zero_early"]
    for r in range(64, 64 + nz):
        a(f"v_mov_b32 v{r}, 0")
    a(f"""
    v_mov_b32 v{t2}, 0x80000000
    v_cmp_gt_u32 vcc, s{s_n}, v{VLANE}
    s_waitcnt vmcnt(9)
    v_lshlrev_b32 v{PAGES}, 14, v{PAGES}
    v_cndmask_b32 v{PAGES}, v{t2}, v{PAGES}, vcc
    s_nop 0
    """)
    PEEL = cfg["peel"]
    NPRE = D - PEEL
    for j in range(D + 1 + PEEL):
        a(f"v_readlane_b32 s{st+j}, v{PAGES}, {j}")
    a("s_nop 3")
    vm = ["QA"] * 8 + ["NONCE"]
    def vwait(tag):
        idx = max(i for i, t in enumerate(vm) if t == tag)
        a(f"s_waitcnt vmcnt({len(vm) - 1 - idx})")
    def issue(lst, tag):
        a(lst[0]); a("s_nop 0"); a(lst[2]); a(lst[3])
        vm.extend([tag, tag])
    pairs = [("K", 0)]
    for j in range(NPRE):
        pairs += [("K", j + 1), ("V", j)]
    def pair():
        if not pairs:
            return
        kind, j = pairs.pop(0)
        issue(dma_k(None, j, st + j) if kind == "K" else dma_v(None, j, st + j), f"{kind}{j}")
    QRAW = {0: 0, 1: 128}
    def qread(X):
        for s in range(8):
            a(f"v_add_u32 v{VT+4+s}, s{s_qlds+X}, v{KADDR+s}")
        for s in range(8):
            r = QRAW[X] + 4 * s
            a(f"ds_read_b128 v[{r}:{r+3}], v{VT+4+s}")
    def prescale(X, packed):
        out = []
        for i in range(32):
            r = QRAW[X] + i
            ta, tb = VT + (i & 1) * 2, VT + (i & 1) * 2 + 1
            g = []
            if i % 4 == 0:
                g.append(f"s_waitcnt lgkmcnt({7 - i // 4})")
            g += [f"v_lshlrev_b32 v{ta}, 16, v{r}", f"v_and_b32 v{tb}, 0xffff0000, v{r}"]
            if packed(i):
                g.append(f"v_pk_mul_f32 v[{ta}:{tb}], v[{ta}:{tb}], s[{s_scale}:{s_scale+1}]")
            else:
                g += [f"v_mul_f32 v{ta}, s{s_scale}, v{ta}", f"v_mul_f32 v{tb}, s{s_scale}, v{tb}"]
            g += [f"v_cvt_pk_bf16_f32 v{ta}, v{ta}, v{tb}", f"v_accvgpr_write_b32 a{32*X+i}, v{ta}"]
            out.append(g)
        return out
    pstamp(0)
    for _ in range(cfg["pp0"]):
        pair()
    qload(1); vm.extend(["QB"] * 8)
    for _ in range(cfg["pp1"]):
        pair()
    pstamp(1)
    a(f"""
    s_lshl_b32 s{s_lo}, s{s_jj}, 2
    v_add_u32 v{VT+6}, s{s_lo}, v{VLANE}
    v_lshlrev_b32 v{VT+6}, 4, v{VT+6}
    v_cvt_f32_u32 v{VT+6}, v{VT+6}
    v_cvt_f32_u32 v{VT+7}, s{s_nb}
    v_rcp_f32 v{VT+7}, v{VT+7}
    v_add_f32 v{VT+6}, 0.5, v{VT+6}
    s_add_u32 s{s_hi}, s{s_w}, 1
    v_mul_f32 v{VT+6}, v{VT+6}, v{VT+7}
    v_cvt_u32_f32 v{VT+6}, v{VT+6}
    s_lshl_b32 s{st+11}, s{s_w}, 4
    v_readlane_b32 s{s_wlo}, v{VT+6}, 0
    v_readlane_b32 s{s_own}, v{VT+6}, 4
    v_readlane_b32 s{s_hi}, v{VT+6}, s{s_hi}
    v_readlane_b32 s{s_lo}, v{VT+6}, s{s_w}
    s_sub_u32 s{s_own}, s{s_own}, s{s_wlo}
    s_bfm_b64 s[{st+12}:{st+13}], s{s_own}, s{s_wlo}
    s_lshr_b64 s[{st+12}:{st+13}], s[{st+12}:{st+13}], s{st+11}
    s_cmp_ge_u32 s{s_nb}, 3
    s_cselect_b32 s{s_own}, s{st+12}, 0
    """)
    for r in list(range(64 + nz, 128)) + list(range(160, 208)) + list(range(32, 64)):
        a(f"v_mov_b32 v{r}, 0")
    for r in range(32):
        a(f"v_accvgpr_write_b32 a{AV+r}, 0")
    a(f"""
    v_mov_b32 v{L_[0]}, 0
    v_mov_b32 v{L_[1]}, 0
    s_cmp_eq_u32 s{s_patch}, -1
    s_cbranch_scc0 L_nopatch0
    s_call_b64 s[{s_ret}:{s_ret+1}], L_sub_patch
    """)
    a.label("L_nopatch0")
    vwait("QA")
    pstamp(10)
    qread(0)
    for i, g in enumerate(prescale(0, lambda i: cfg["pk"])):
        for t in g:
            a(t)
        if i in cfg["ppA"]:
            pair()
    pstamp(2)
    vwait("QB")
    pstamp(11)
    qread(1)
    for i, g in enumerate(prescale(1, lambda i: cfg["pk"])):
        for t in g:
            a(t)
        if i in cfg["ppB"]:
            pair()
    pstamp(3)
    vwait("K0")
    pstamp(4)
    a("s_barrier")
    pstamp(12)
    for s in range(8):
        a(k_read(s, 0))
    for s in range(8):
        a(f"s_waitcnt lgkmcnt({7-s})")
        a(mfma_qk(0, s))
        if s in cfg["ppQ"]:
            pair()
        for r in range(128 + 4 * s, 132 + 4 * s):
            a(f"v_mov_b32 v{r}, 0")
    a(mfma_qk(1, 0))
    a("s_nop 7")
    mxa = emit_rowmax(a, 0, M_[0], VT)
    mxa += [f"v_sub_f32 v{S_[0]+r}, v{S_[0]+r}, v{M_[0]}" for r in range(16)]
    mxa += [f"v_sub_f32 v{C_[0]+r}, v{C_[0]+r}, v{M_[0]}" for r in range(16)]
    for s in range(1, 8):
        a(mfma_qk(1, s))
        for _ in range(5):
            a(mxa.pop(0))
    while pairs:
        pair()
    a(f"s_mov_b32 s{s_pg[(PEEL & 1) ^ 1]}, s{st+D+PEEL}")
    while mxa:
        a(mxa.pop(0))
    a("s_nop 7")
    for t in emit_rowmax(a, 1, M_[1], VT):
        a(t)
    for r in range(16):
        a(f"v_sub_f32 v{C_[1]+r}, v{C_[1]+r}, v{M_[1]}")
    if cfg["fused"]:
        a(f"""
        v_mov_b32 v{VT+11}, 0
        """)
    sstamp(94)
    sstamp(95)
    if cfg.get("pad_ls"):
        emit_pad(a, cfg["pad_ls"], "ls")
    pre, front, valu, tail = plan_body(7, cfg)
    hd = [t for g in range(32 - cfg["delta"], 32) for _, t in valu[g]
          if not t.startswith(f"v_add_f32 v{L_[1]},")]
    for t in hd:
        a(t)
    a("s_nop 1")
    tramps = []
    for k in range(PEEL):
        issued = NPRE + 2 * k
        need = k + cfg["bar_period"]
        assert issued >= need
        emit_body(a, k, tramps, cfg, peel=(NPRE + 2 * k, st), vm=4 * (issued - need))
    if PEEL:
        a(f"s_branch L_body_{PEEL}")
    for k in range(8):
        emit_body(a, k, tramps, cfg)
    a.label("L_drain")
    if cfg.get("pad_le"):
        emit_pad(a, cfg["pad_le"], "le")
    if cfg.get("stamp"):
        a(f"""
        s_memtime s[90:91]
        s_waitcnt lgkmcnt(0)
        s_mov_b32 s96, s90
        """)
    stf = cfg['st_flags']
    VLD = VT + 5
    assert cfg["fused"]
    def conv(X, dt):
        o = O_[X] + 16 * dt
        d = 8 * (4 * X + dt)
        out = [f"v_cvt_pk_bf16_f32 v{d+j}, v{o+2*j}, v{o+2*j+1}" for j in range(8)]
        out.append(f"s_add_u32 s{st+1}, s{st}, {X*8192 + dt*2048}")
        for kp in range(2):
            f = 8 * X + 2 * dt + kp
            gs = lambda so: f"buffer_store_dwordx4 v[{d+4*kp}:{d+4*kp+3}], v{VT+4}, s[{SRD_WS}:{SRD_WS+3}], {so} offen offset:{1024*kp}{stf}"
            dw = f"ds_write_b128 v{VLD}, v[{d+4*kp}:{d+4*kp+3}] offset:{1024*f}"
            if X == 0 or cfg["flagmode"] != "part":
                out.append(f"""s_bitcmp1_b32 s{s_own}, {f}
                s_cbranch_scc1 L_own_{f}
                {gs(f"s{st+1}")}
                s_branch L_own_r{f}
                L_own_{f}:
                {dw}
                L_own_r{f}:""")
            else:
                out.append(f"""s_bitcmp1_b32 s{s_own}, {f}
                s_cselect_b32 s{st+3}, 0x80000000, s{st+1}
                {gs(f"s{st+3}")}
                s_cbranch_scc0 L_own_r{f}
                {dw}
                L_own_r{f}:""")
        return out
    def put(t):
        for l in t.split("\n"):
            l = l.strip()
            if l.endswith(":"):
                a.label(l[:-1])
            elif l:
                a(l)
    ep = f"""
    buffer_load_dword v{VT+10}, v{VT+11}, s[{SRD_X}:{SRD_X+3}], 0 offen
    v_mov_b32 v{VT+6}, v{L_[0]}
    v_mov_b32 v{VT+7}, v{L_[1]}
    s_lshl_b32 s{st}, s{s_wgslot}, 11
    s_lshl_b32 s{st+1}, s{s_w}, 4
    s_add_u32 s{st}, s{st}, s{st+1}
    v_permlane32_swap_b32 v{L_[0]}, v{VT+6}
    v_permlane32_swap_b32 v{L_[1]}, v{VT+7}
    v_lshlrev_b32 v{VT+8}, 6, v{VLANE}
    v_mov_b32 v{VT}, v{M_[0]}
    v_add_f32 v{VT+1}, v{L_[0]}, v{VT+6}
    v_mov_b32 v{VT+2}, v{M_[1]}
    v_add_f32 v{VT+3}, v{L_[1]}, v{VT+7}
    s_add_u32 s{st}, s{st}, 0x{WS_ML:x}
    s_add_u32 s{st+1}, s{st+1}, 0x{LDS_ML:x}
    v_add_u32 v{VT+9}, s{st+1}, v{VT+8}
    s_mov_b32 exec_hi, 0\nbuffer_store_dwordx4 v[{VT}:{VT+3}], v{VT+8}, s[{SRD_WS}:{SRD_WS+3}], s{st} offen{stf}\nds_write_b128 v{VT+9}, v[{VT}:{VT+3}]\ns_mov_b64 exec, -1
    s_lshl_b32 s{st}, s{s_wgslot}, 16
    s_lshl_b32 s{st+1}, s{s_w}, 14
    s_add_u32 s{st}, s{st}, s{st+1}
    v_lshlrev_b32 v{VT+4}, 4, v{VLANE}
    s_lshl_b32 s{st+2}, s{s_w}, 4
    s_sub_u32 s{st+2}, s{st+2}, s{s_wlo}
    s_lshl_b32 s{st+2}, s{st+2}, 10
    s_add_u32 s{st+2}, s{st+2}, 0x20000
    v_add_u32 v{VLD}, s{st+2}, v{VT+4}
    """.strip().split("\n    ")
    ep += conv(0, 0) + conv(0, 1) + conv(0, 2) + conv(0, 3)
    for f in range(8):
        a(mfma_pv(1, f))
        for _ in range(8):
            put(ep.pop(0))
    while ep:
        put(ep.pop(0))
    a("s_nop 7")
    for dt in range(4):
        for t in conv(1, dt):
            put(t)
    if cfg["fused"]:
        emit_fused_combine(a, cfg, sstamp)
    if cfg.get("stamp"):
        a(f"""
        s_mov_b64 exec, -1
        s_waitcnt vmcnt(0)
        s_memtime s[90:91]
        s_memrealtime s[66:67]
        s_getreg_b32 s98, hwreg(HW_REG_XCC_ID)
        s_waitcnt lgkmcnt(0)
        v_mov_b32 v{VT+14}, 0
        v_writelane_b32 v{VT+14}, s92, 0
        v_writelane_b32 v{VT+14}, s93, 1
        v_writelane_b32 v{VT+14}, s94, 2
        v_writelane_b32 v{VT+14}, s95, 3
        v_writelane_b32 v{VT+14}, s96, 4
        v_writelane_b32 v{VT+14}, s90, 5
        v_writelane_b32 v{VT+14}, s{s_n}, 6
        v_writelane_b32 v{VT+14}, s98, 7
        v_writelane_b32 v{VT+14}, s100, 8
        v_writelane_b32 v{VT+14}, s66, 9
        v_writelane_b32 v{VT+14}, s88, 10
        v_writelane_b32 v{VT+14}, s89, 11
        v_writelane_b32 v{VT+14}, s97, 12
        v_writelane_b32 v{VT+14}, s99, 13
        v_writelane_b32 v{VT+14}, s{s_h}, 14
        s_lshl_b32 s{st}, s{s_wg}, 12
        s_lshl_b32 s{st+1}, s{s_w}, 10
        s_add_u32 s{st}, s{st}, s{st+1}
        s_add_u32 s{st}, s{st}, 0x{WS_DBG:x}
        v_lshlrev_b32 v{VT}, 2, v{VLANE}
        buffer_store_dword v{VT+12}, v{VT}, s[{SRD_WS}:{SRD_WS+3}], s{st} offen
        buffer_store_dword v{VT+13}, v{VT}, s[{SRD_WS}:{SRD_WS+3}], s{st} offen offset:256
        buffer_store_dword v{VT+14}, v{VT}, s[{SRD_WS}:{SRD_WS+3}], s{st} offen offset:512
        """)
    if cfg.get("pad_to_us"):
        a(f"""
        s_waitcnt vmcnt(0)
        s_add_u32 s92, s100, {int(cfg["pad_to_us"]*100)}
        """)
    if cfg.get("delay_us"):
        a(f"""
        s_memrealtime s[90:91]
        s_waitcnt lgkmcnt(0)
        s_add_u32 s92, s90, {int(cfg["delay_us"]*100)}
        """)
    if cfg.get("delay_us") or cfg.get("pad_to_us"):
        a.label("L_delay")
        a(f"""
        s_sleep 4
        s_memrealtime s[90:91]
        s_waitcnt lgkmcnt(0)
        s_sub_u32 s93, s92, s90
        s_cmp_gt_i32 s93, 0
        s_cbranch_scc1 L_delay
        """)
    a.label("L_end")
    a("s_endpgm")
    for lab, sub, ret in tramps:
        a.label(lab)
        a(f"s_call_b64 s[{s_ret}:{s_ret+1}], {sub}")
        a(f"s_branch {ret}")
    a.label("L_code_end")
    emit_fallback(a, 0)
    emit_fallback(a, 1)
    emit_patch(a)


def emit_fused_combine(a, cfg, sstamp):
    st = s_t0
    ldf = cfg["cld_flags"]
    s_nonce, s_to, s_mask, s_done, s_rdy, s_r0 = 54, 55, 56, 62, 64, 78
    s_cnt, s_ni, s_o, s_ml = 68, 69, 70, 72
    s_f0, s_f1 = 42, 52
    s_sel = (None, 66, 76)
    SJ = lambda k: (48, 49, 50, 51, 71, 73, 44, 45)[k]
    OB = lambda k: 12 * k
    MLB = lambda k: 96 + 4 * k
    ACC = 160
    MX, DEN, MN, SC, W = (192, 193), (194, 195), (196, 197), (198, 199), (204, 205)
    U0, U1, WT = 200, 201, 211
    VO, VML, VOUT, VF, VFO, VA = 206, 207, 208, 209, 210, 212
    WSR = f"s[{SRD_WS}:{SRD_WS+3}]"
    LA = cfg["clook"]
    def cst(n):
        if cfg.get("stamp"):
            a(f"""
            s_memtime s[90:91]
            s_waitcnt lgkmcnt(0)
            v_writelane_b32 v{VT+12}, s90, {53+n}
            """)
    a(f"""
    v_lshlrev_b32 v{VO}, 4, v{VLANE}
    v_and_b32 v{VML}, 31, v{VLANE}
    v_lshlrev_b32 v{VOUT}, 8, v{VML}
    v_lshl_add_u32 v{VOUT}, v{VH4}, 2, v{VOUT}   ; q*256 + h2*16
    v_lshlrev_b32 v{VML}, 6, v{VML}
    v_lshlrev_b32 v{VFO}, 2, v{VLANE}
    v_cmp_gt_u32 vcc, s{s_nb}, v{VLANE}
    s_mov_b64 s[{s_mask}:{s_mask+1}], vcc
    s_lshl_b32 s{s_mine+1}, s{s_b}, 2
    s_add_u32 s{s_mine+1}, s{s_mine+1}, s{s_h}
    s_lshl_b32 s{s_mine+1}, s{s_mine+1}, 11
    s_add_u32 s{s_mine+1}, s{s_mine+1}, 0x{WS_FLAG:x}
    s_lshl_b32 s{st}, s{s_jj}, 2
    s_lshl_b32 s{st+1}, s{s_w}, 9
    s_add_u32 s{st}, s{st}, s{st+1}
    s_add_u32 s{st}, s{st}, s{s_mine+1}
    s_mov_b32 s{s_to}, {cfg["poll_max"]}
    s_waitcnt vmcnt({"8" if cfg["flagmode"] == "part" else "0"})
    v_readfirstlane_b32 s{s_nonce}, v{VT+10}
    s_cmp_lg_u32 s{s_nonce}, 0
    s_cbranch_scc1 L_fc_havenonce
    """)
    a.label("L_fc_npoll")
    a(f"""
    buffer_load_dword v{VT+10}, v{VT+11}, s[{SRD_X}:{SRD_X+3}], 0 offen sc1
    s_waitcnt vmcnt(0)
    v_readfirstlane_b32 s{s_nonce}, v{VT+10}
    s_sub_u32 s{s_to}, s{s_to}, 1
    s_cmp_eq_u32 s{s_to}, 1
    s_cbranch_scc1 L_fc_havenonce
    s_cmp_eq_u32 s{s_nonce}, 0
    s_cbranch_scc1 L_fc_npoll
    """)
    a.label("L_fc_havenonce")
    a(f"v_mov_b32 v{VF}, s{s_nonce}")
    emit_srd(a, SRD_X, s_out, Q_BYTES)
    if cfg.get("pad_pub"):
        a("s_waitcnt vmcnt(0) lgkmcnt(0)")
        emit_pad(a, cfg["pad_pub"], "pub")
    if cfg["flagmode"] == "part":
        a(f"""
        s_waitcnt lgkmcnt(0)
        s_barrier
        s_waitcnt vmcnt(8)
        s_mov_b64 exec, 1
        buffer_store_dword v{VF}, v{VT+11}, {WSR}, s{st} offen sc1
        s_waitcnt vmcnt(1)
        buffer_store_dword v{VF}, v{VT+11}, {WSR}, s{st} offen offset:256 sc1
        s_mov_b64 exec, -1
        """)
    else:
        a(f"""
        s_waitcnt vmcnt(0) lgkmcnt(0)
        s_barrier
        s_cmp_eq_u32 s{s_w}, 0
        s_cselect_b64 exec, 1, 0
        s_cbranch_scc0 L_fc_noflag
        buffer_store_dword v{VF}, v{VT+11}, {WSR}, s{st} offen sc1
        """)
        a.label("L_fc_noflag")
        a("s_mov_b64 exec, -1")
    sstamp(97)
    a(f"""
    s_cmp_ge_u32 s{s_lo}, s{s_hi}
    s_cbranch_scc1 L_fc_end
    """)
    a.label("L_fc_outer")
    a(f"""
    s_sub_u32 s{s_ni}, s{s_hi}, s{s_lo}
    s_min_u32 s{s_ni}, s{s_ni}, 3
    s_lshl_b32 s{s_o}, s{s_lo}, 10
    s_lshr_b32 s{st}, s{s_lo}, 3                 ; u0
    s_lshl_b32 s{s_ml}, s{st}, 3
    s_mov_b64 s[{s_done}:{s_done+1}], 0
    s_lshl_b32 s{s_f0}, s{st}, 8
    s_add_u32 s{s_f0}, s{s_f0}, s{s_mine+1}
    s_add_u32 s{s_f1}, s{s_lo}, s{s_ni}
    s_sub_u32 s{s_f1}, s{s_f1}, 1
    s_lshr_b32 s{s_f1}, s{s_f1}, 3
    s_lshl_b32 s{s_f1}, s{s_f1}, 8
    s_add_u32 s{s_f1}, s{s_f1}, s{s_mine+1}
    """)
    for t in (1, 2):
        a(f"""
        s_add_u32 s{st+1}, s{s_lo}, {t}
        s_lshr_b32 s{st+1}, s{st+1}, 3
        s_cmp_lg_u32 s{st+1}, s{st}
        s_cselect_b64 s[{s_sel[t]}:{s_sel[t]+1}], -1, 0
        """)
    a(f"""
    s_cmp_lt_u32 s{s_nb}, 3
    s_cbranch_scc1 L_fc_zero
    s_sub_u32 s{st}, s{s_lo}, s{s_wlo}
    s_lshl_b32 s{st}, s{st}, 10
    s_add_u32 s{st}, s{st}, 0x20000
    v_add_u32 v{VA}, s{st}, v{VO}
    s_add_u32 s{st}, s{s_ml}, 0x{LDS_ML:x}
    v_add_u32 v{VA+1}, s{st}, v{VML}
    ds_read_b128 v[0:3], v{VA}
    ds_read_b128 v[4:7], v{VA} offset:1024
    ds_read_b128 v[8:11], v{VA} offset:2048
    ds_read_b64 v[{MLB(0)}:{MLB(0)+1}], v{VA+1}
    ds_read_b64 v[{MLB(0)+2}:{MLB(0)+3}], v{VA+1} offset:8
    s_bitset1_b64 s[{s_done}:{s_done+1}], s{s_jj}
    s_waitcnt lgkmcnt(0)
    v_mov_b32 v{MX[0]}, v{MLB(0)}
    v_mov_b32 v{DEN[0]}, v{MLB(0)+1}
    v_mov_b32 v{MX[1]}, v{MLB(0)+2}
    v_mov_b32 v{DEN[1]}, v{MLB(0)+3}
    """)
    for r in range(12):
        a(f"""
        v_lshlrev_b32 v{ACC+2*r}, 16, v{r}
        v_and_b32 v{ACC+2*r+1}, 0xffff0000, v{r}
        """)
    a("s_branch L_fc_init")
    a.label("L_fc_zero")
    for X in range(2):
        a(f"v_mov_b32 v{MX[X]}, 0xff800000")
        a(f"v_mov_b32 v{DEN[X]}, 0")
    for r in range(24):
        a(f"v_mov_b32 v{ACC+r}, 0")
    a.label("L_fc_init")
    a(f"s_add_u32 s{s_ml}, s{s_ml}, 0x{WS_ML:x}")
    if cfg["flagmode"] == "part":
        POLL = f"""buffer_load_dword v{VF}, v{VFO}, {WSR}, s{s_f0} offen sc1
    buffer_load_dword v{WT}, v{VFO}, {WSR}, s{s_f1} offen sc1
    s_waitcnt vmcnt(0)
    v_cmp_eq_u32 vcc, s{s_nonce}, v{VF}
    s_and_b64 s[{s_rdy}:{s_rdy+1}], vcc, s[{s_mask}:{s_mask+1}]
    v_cmp_eq_u32 vcc, s{s_nonce}, v{WT}
    s_and_b64 s[{s_rdy}:{s_rdy+1}], vcc, s[{s_rdy}:{s_rdy+1}]"""
    else:
        POLL = f"""buffer_load_dword v{VF}, v{VFO}, {WSR}, s{s_mine+1} offen sc1
    s_waitcnt vmcnt(0)
    v_cmp_eq_u32 vcc, s{s_nonce}, v{VF}
    s_and_b64 s[{s_rdy}:{s_rdy+1}], vcc, s[{s_mask}:{s_mask+1}]"""
    a.label("L_fc_poll")
    a(f"""
    {POLL}
    s_andn2_b64 s[{s_rdy}:{s_rdy+1}], s[{s_rdy}:{s_rdy+1}], s[{s_done}:{s_done+1}]
    s_cbranch_scc1 L_fc_go
    s_sleep {cfg["poll_sleep"]}
    s_sub_u32 s{s_to}, s{s_to}, 1
    s_cmp_lg_u32 s{s_to}, 0
    s_cbranch_scc1 L_fc_poll
    s_branch L_fc_store
    """)
    a.label("L_fc_go")
    sstamp(99)
    a(f"""
    s_mov_b64 s[{s_r0}:{s_r0+1}], s[{s_rdy}:{s_rdy+1}]
    v_mov_b32 v{MN[0]}, v{MX[0]}
    v_mov_b32 v{MN[1]}, v{MX[1]}
    """)
    for k in range(8):
        a(f"""
        s_ff1_i32_b64 s{st}, s[{s_rdy}:{s_rdy+1}]
        s_bitset0_b64 s[{s_rdy}:{s_rdy+1}], s{st}
        s_add_u32 s{st}, s{st}, s{s_E}
        s_lshl_b32 s{SJ(k)}, s{st}, 16
        s_lshl_b32 s{st}, s{st}, 11
        s_add_u32 s{st}, s{st}, s{s_ml}
        s_add_u32 s{SJ(k)}, s{SJ(k)}, s{s_o}
        s_mov_b32 s{s_cnt}, {k+1}
        buffer_load_dwordx4 v[{MLB(k)}:{MLB(k)+3}], v{VML}, {WSR}, s{st} offen{ldf}
        """)
        if k < 7:
            a(f"""
            s_cmp_eq_u64 s[{s_rdy}:{s_rdy+1}], 0
            s_cbranch_scc1 L_fc_taken
            """)
    a.label("L_fc_taken")
    a(f"""
    s_andn2_b64 s[{s_r0}:{s_r0+1}], s[{s_r0}:{s_r0+1}], s[{s_rdy}:{s_rdy+1}]
    s_or_b64 s[{s_done}:{s_done+1}], s[{s_done}:{s_done+1}], s[{s_r0}:{s_r0+1}]
    s_cmp_eq_u32 s{s_ni}, 2
    s_cbranch_scc1 L_fc_r2
    s_cmp_eq_u32 s{s_ni}, 3
    s_cbranch_scc1 L_fc_r3
    """)
    def sel(dst, pair, t):
        if t == 0:
            return None
        return f"v_cndmask_b32 v{dst}, v{pair[0]}, v{pair[1]}, s[{s_sel[t]}:{s_sel[t]+1}]"
    for NI in (1, 2, 3):
        tag = f"r{NI}"
        a.label(f"L_fc_{tag}")
        def oload(k):
            for c in range(NI):
                a(f"buffer_load_dwordx4 v[{OB(k)+4*c}:{OB(k)+4*c+3}], v{VO}, {WSR}, s{SJ(k)} offen offset:{1024*c}{ldf}")
        for k in range(7, -1, -1):
            a(f"""
            s_cmp_le_u32 s{s_cnt}, {k}
            s_cbranch_scc1 L_fc_{tag}_p{k}
            """)
            if k + LA < 8:
                a(f"""
                s_cmp_gt_u32 s{s_cnt}, {k + LA}
                s_cbranch_scc1 L_fc_{tag}_pd
                """)
            oload(k)
            a.label(f"L_fc_{tag}_p{k}")
        a.label(f"L_fc_{tag}_pd")
        cst(0)
        for c in range(1, LA):
            a(f"""
            s_cmp_eq_u32 s{s_cnt}, {c}
            s_cbranch_scc0 L_fc_{tag}_w{c}
            s_waitcnt vmcnt({NI*c})
            """)
            a.label(f"L_fc_{tag}_w{c}")
        a(f"s_waitcnt vmcnt({NI*LA})")
        cst(1)
        NSET = 1 if NI == 1 else 2
        for k in range(8):
            if k:
                a(f"""
                s_cmp_le_u32 s{s_cnt}, {k}
                s_cbranch_scc1 L_fc_{tag}_max
                """)
            for X in range(NSET):
                a(f"v_max_f32 v{MN[X]}, v{MN[X]}, v{MLB(k)+2*X}")
        a.label(f"L_fc_{tag}_max")
        for X in range(NSET):
            a(f"""
            v_sub_f32 v{SC[X]}, v{MX[X]}, v{MN[X]}
            v_exp_f32 v{SC[X]}, v{SC[X]}
            v_mov_b32 v{MX[X]}, v{MN[X]}
            """)
        for X in range(NSET):
            a(f"v_mul_f32 v{DEN[X]}, v{DEN[X]}, v{SC[X]}")
        for t in range(NI):
            if t:
                a(sel(WT, SC, t))
            for r in range(8):
                a(f"v_mul_f32 v{ACC+8*t+r}, v{ACC+8*t+r}, v{WT if t else SC[0]}")
        for k in range(7, -1, -1):
            if k:
                a(f"""
                s_cmp_le_u32 s{s_cnt}, {k}
                s_cbranch_scc1 L_fc_{tag}_u{k}
                """)
            if k - LA >= 0:
                oload(k - LA)
            for X in range(NSET):
                a(f"v_sub_f32 v{W[X]}, v{MLB(k)+2*X}, v{MN[X]}")
            for X in range(NSET):
                a(f"v_exp_f32 v{W[X]}, v{W[X]}")
            a("s_nop 0")
            for X in range(NSET):
                a(f"v_fmac_f32 v{DEN[X]}, v{W[X]}, v{MLB(k)+2*X+1}")
            for t in range(NI):
                if t:
                    a(sel(WT, W, t))
                a(f"s_waitcnt vmcnt({NI*min(k, LA) + NI - 1 - t})")
                for r in range(4):
                    u0, u1 = U0 + 2 * (r & 1), U1 + 2 * (r & 1)
                    a(f"""
                    v_lshlrev_b32 v{u0}, 16, v{OB(k)+4*t+r}
                    v_and_b32 v{u1}, 0xffff0000, v{OB(k)+4*t+r}
                    v_fmac_f32 v{ACC+8*t+2*r}, v{WT if t else W[0]}, v{u0}
                    v_fmac_f32 v{ACC+8*t+2*r+1}, v{WT if t else W[0]}, v{u1}
                    """)
            a.label(f"L_fc_{tag}_u{k}")
        cst(2)
        a(f"""
        s_cmp_lg_u64 s[{s_done}:{s_done+1}], s[{s_mask}:{s_mask+1}]
        s_cbranch_scc1 L_fc_poll
        """)
        if NI < 3:
            a("s_branch L_fc_store")
    a.label("L_fc_store")
    cst(3)
    a(f"""
    v_rcp_f32 v{SC[0]}, v{DEN[0]}
    v_rcp_f32 v{SC[1]}, v{DEN[1]}
    s_lshl_b32 s{st}, s{s_b}, 2
    s_add_u32 s{st}, s{st}, s{s_h}
    s_lshl_b32 s{st}, s{st}, 16                  ; (b*32 + 8h)*8192
    """)
    for t in range(3):
        if t:
            a(f"""
            s_cmp_le_u32 s{s_ni}, {t}
            s_cbranch_scc1 L_fc_next
            {sel(WT, SC, t)}
            """)
        A0 = ACC + 8 * t
        a(f"""
        s_add_u32 s{st+1}, s{s_lo}, {t}
        s_lshr_b32 s{st+2}, s{st+1}, 3
        s_lshl_b32 s{st+2}, s{st+2}, 13
        s_and_b32 s{st+1}, s{st+1}, 7
        s_lshl_b32 s{st+1}, s{st+1}, 5
        s_add_u32 s{st+1}, s{st+1}, s{st+2}
        s_add_u32 s{st+1}, s{st+1}, s{st}
        """)
        for r in range(8):
            a(f"v_mul_f32 v{A0+r}, v{A0+r}, v{WT if t else SC[0]}")
        for r in range(4):
            a(f"v_cvt_pk_bf16_f32 v{A0+r}, v{A0+2*r}, v{A0+2*r+1}")
        a(f"""
        s_nop 1
        v_permlane32_swap_b32 v{A0}, v{A0+2}
        v_permlane32_swap_b32 v{A0+1}, v{A0+3}
        buffer_store_dwordx4 v[{A0}:{A0+3}], v{VOUT}, s[{SRD_X}:{SRD_X+3}], s{st+1} offen{cfg['out_flags']}
        """)
    a.label("L_fc_next")
    a(f"""
    s_add_u32 s{s_lo}, s{s_lo}, 3
    s_cmp_lt_u32 s{s_lo}, s{s_hi}
    s_nop 1
    s_cbranch_scc1 L_fc_outer
    """)
    a.label("L_fc_end")


def emit_combine(a, cfg):
    K = "pa_combine_kernel"
    NB = 12
    a.raw(f".globl {K}\n.p2align 8\n.type {K},@function")
    a.label(K)
    VL, VCL, VT_ = 200, 201, 202
    ACC = 160
    DEN, MX, MN, SC, W = 170, 171, 172, 173, 174
    U0, U1 = 176, 177
    OB = 0
    MLB = 64
    SRD_C, SRD_W, SRD_O = 20, 24, 28
    sw, sb, sh, swx, sn, sE, sbase, sj = 40, 41, 42, 43, 44, 45, 46, 47
    st = 60
    a(f"""
    s_cmp_ge_u32 s2, 256
    s_cbranch_scc1 L_cend
    s_load_dwordx16 s[4:19], s[0:1], 0
    {"s_memrealtime s[100:101]" if cfg.get("cpad_to_us") else ""}
    v_lshrrev_b32 v{VT_}, 6, v0
    v_and_b32 v{VL}, 63, v0
    s_lshr_b32 s{sb}, s2, 5
    v_readfirstlane_b32 s{sw}, v{VT_}
    s_lshr_b32 s{sh}, s2, 3
    s_and_b32 s{sh}, s{sh}, 3
    s_and_b32 s{swx}, s2, 7
    v_and_b32 v{VT_+1}, 7, v{VL}
    v_lshlrev_b32 v{VT_+1}, 2, v{VT_+1}
    s_waitcnt lgkmcnt(0)
    """)
    emit_srd(a, SRD_C, s_cl, 32)
    a(f"buffer_load_dword v{VCL}, v{VT_+1}, s[{SRD_C}:{SRD_C+3}], 0 offen")
    emit_srd(a, SRD_W, s_ws, WS_BYTES)
    emit_srd(a, SRD_O, s_out, Q_BYTES)
    VOFF, VML, VOUT = 180, 181, 182
    a(f"""
    s_lshl_b32 s{st}, s{swx}, 13
    s_lshl_b32 s{st+1}, s{sw}, 10
    s_add_u32 s{st}, s{st}, s{st+1}
    v_lshlrev_b32 v{VOFF}, 4, v{VL}
    v_add_u32 v{VOFF}, s{st}, v{VOFF}
    s_lshl_b32 s{st}, s{swx}, 8
    s_add_u32 s{st}, s{st}, 0x{WS_ML:x}
    v_and_b32 v{VML}, 31, v{VL}
    v_lshlrev_b32 v{VOUT}, 8, v{VML}             ; q*256
    v_lshlrev_b32 v{VML}, 3, v{VML}
    v_add_u32 v{VML}, s{st}, v{VML}
    v_lshrrev_b32 v{VT_+2}, 5, v{VL}
    v_lshl_add_u32 v{VOUT}, v{VT_+2}, 3, v{VOUT} ; + h2*8
    s_lshl_b32 s{st}, s2, 13
    s_lshl_b32 s{st+1}, s{sw}, 5
    s_add_u32 s{st}, s{st}, s{st+1}
    v_add_u32 v{VOUT}, s{st}, v{VOUT}
    v_mov_b32 v{DEN}, 0
    v_mov_b32 v{MX}, 0xff800000
    """)
    for r in range(8):
        a(f"v_mov_b32 v{ACC+r}, 0")
    a("s_waitcnt vmcnt(0)")
    R = emit_partition(a, VL, VCL, VT_, st)
    a(f"""
    s_add_u32 s{st}, s{st}, s{sb}
    v_readlane_b32 s{sn}, v{R['n']}, s{st}
    v_readlane_b32 s{sE}, v{R['incl']}, s{st}
    s_nop 3
    s_sub_u32 s{sE}, s{sE}, s{sn}
    s_min_u32 s{sn}, s{sn}, 64
    s_lshl_b32 s{st}, s{sh}, 6
    s_add_u32 s{sE}, s{sE}, s{st}
    s_mov_b32 s{sbase}, 0
    """)
    a.label("L_cloop")
    for j in range(NB):
        a(f"""
        s_add_u32 s{sj}, s{sbase}, {j}
        s_add_u32 s{st}, s{sE}, s{sj}
        s_lshl_b32 s{st+1}, s{st}, 16
        s_lshl_b32 s{st}, s{st}, 11
        s_cmp_lt_u32 s{sj}, s{sn}
        s_cselect_b32 s{st+1}, s{st+1}, 0x80000000
        s_cselect_b32 s{st}, s{st}, 0x80000000
        buffer_load_dwordx2 v[{MLB+2*j}:{MLB+2*j+1}], v{VML}, s[{SRD_W}:{SRD_W+3}], s{st} offen
        buffer_load_dwordx4 v[{OB+4*j}:{OB+4*j+3}], v{VOFF}, s[{SRD_W}:{SRD_W+3}], s{st+1} offen
        """)
    a(f"v_mov_b32 v{MN}, v{MX}")
    for j in range(NB):
        a(f"""
        s_add_u32 s{sj}, s{sbase}, {j}
        s_cmp_ge_u32 s{sj}, s{sn}
        s_cbranch_scc1 L_cmaxdone
        s_waitcnt vmcnt({2*(NB-1-j)+1})
        v_max_f32 v{MN}, v{MN}, v{MLB+2*j}
        """)
    a.label("L_cmaxdone")
    a(f"""
    v_sub_f32 v{SC}, v{MX}, v{MN}
    v_exp_f32 v{SC}, v{SC}
    v_mov_b32 v{MX}, v{MN}
    v_mul_f32 v{DEN}, v{DEN}, v{SC}
    """)
    for r in range(8):
        a(f"v_mul_f32 v{ACC+r}, v{ACC+r}, v{SC}")
    for j in range(NB):
        a(f"""
        s_add_u32 s{sj}, s{sbase}, {j}
        s_cmp_ge_u32 s{sj}, s{sn}
        s_cbranch_scc1 L_cfin
        v_sub_f32 v{W}, v{MLB+2*j}, v{MX}
        v_exp_f32 v{W}, v{W}
        s_waitcnt vmcnt({2*(NB-1-j)})
        v_fmac_f32 v{DEN}, v{W}, v{MLB+2*j+1}
        """)
        for r in range(4):
            a(f"""
            v_lshlrev_b32 v{U0}, 16, v{OB+4*j+r}
            v_and_b32 v{U1}, 0xffff0000, v{OB+4*j+r}
            v_fmac_f32 v{ACC+2*r}, v{W}, v{U0}
            v_fmac_f32 v{ACC+2*r+1}, v{W}, v{U1}
            """)
    a(f"""
    s_add_u32 s{sbase}, s{sbase}, {NB}
    s_branch L_cloop
    """)
    a.label("L_cfin")
    a(f"""
    v_rcp_f32 v{SC}, v{DEN}
    s_nop 0
    """)
    for r in range(8):
        a(f"v_mul_f32 v{ACC+r}, v{ACC+r}, v{SC}")
    for r in range(4):
        a(f"v_cvt_pk_bf16_f32 v{ACC+r}, v{ACC+2*r}, v{ACC+2*r+1}")
    a(f"""
    buffer_store_dwordx2 v[{ACC}:{ACC+1}], v{VOUT}, s[{SRD_O}:{SRD_O+3}], 0 offen
    buffer_store_dwordx2 v[{ACC+2}:{ACC+3}], v{VOUT}, s[{SRD_O}:{SRD_O+3}], 0 offen offset:16
    """)
    if cfg.get("cpad_to_us"):
        a(f"""
        s_waitcnt vmcnt(0)
        s_add_u32 s92, s100, {int(cfg["cpad_to_us"]*100)}
        """)
        a.label("L_cdelay")
        a(f"""
        s_sleep 4
        s_memrealtime s[90:91]
        s_waitcnt lgkmcnt(0)
        s_sub_u32 s93, s92, s90
        s_cmp_gt_i32 s93, 0
        s_cbranch_scc1 L_cdelay
        """)
    a.label("L_cend")
    a("s_endpgm")


def descriptor(name, vgpr, accum, sgpr=102):
    return f"""
.p2align 6
.amdhsa_kernel {name}
  .amdhsa_next_free_vgpr {vgpr}
  .amdhsa_next_free_sgpr {sgpr}
  .amdhsa_accum_offset {accum}
  .amdhsa_group_segment_fixed_size 0
  .amdhsa_kernarg_size 64
  .amdhsa_user_sgpr_count 2
  .amdhsa_user_sgpr_kernarg_segment_ptr 1
  .amdhsa_system_sgpr_workgroup_id_x 1
.end_amdhsa_kernel
"""


DEFAULT_CFG = dict(
    vslots=[9, 10, 11, 12, 13, 14, 15, 16, 17, 18, 19, 20, 21, 22, 23, 24],
    rl_slot=22,
    dma_slots=[25, 26, 27, 29],
    dma_cost=12,
    patch_slot=9,
    delta=3,
    br_dist=2,
    empty_gaps=[31],
    bar_period=2,
    pp0=1, pp1=0, ppA=[7, 15], ppB=[15, 31], ppQ=[1, 3, 5, 7],
    pk=1,
    warm=1,
    zero_early=64,
    thr_log2=12,
    st_flags=" sc1",
    fused=1, cld_flags=" sc1", poll_sleep=1, poll_max=200000, cpk=0, clook=3, out_flags=" sc1",
    depth=6, map=0, flagmode="wg", tlbwarm=0, cwarm=0, peel=0, peel_slots=[19, 22, 25, 27],
    ld_flags=" nt",
)


def generate(cfg=None, out=OUT):
    c = dict(DEFAULT_CFG)
    if cfg:
        c.update(cfg)
    global LDFLAGS
    LDFLAGS = c["ld_flags"]
    a = Asm()
    a.raw(f"""; Paged attention (GQA, split-KV) for gfx950 -- generated by gen.py (hand-scheduled)
; kernel 1: 256 workgroups, each 256 q rows x a key range of one (batch, kv head); partials -> d_ws
; kernel 2: combines the partials
{("; @launch grid=(256,1,1) block=(256,1,1) lds=163840" if c["fused"] else "; @launch kernel=" + NAME + "_kernel grid=(256,1,1) block=(256,1,1) lds=163840" + chr(10) + "; @launch kernel=pa_combine_kernel grid=(256,1,1) block=(512,1,1) lds=0")}
{"; @launch kernel=pa_nop_kernel grid=(1,1,1) block=(64,1,1) lds=0" + chr(10) if c.get("nop3") else ""}.amdgcn_target "amdgcn-amd-amdhsa--gfx950"
.text""")
    emit_main(a, c)
    if not c["fused"]:
        emit_combine(a, c)
    if c.get("nop3"):
        a.raw(".globl pa_nop_kernel\n.p2align 8\n.type pa_nop_kernel,@function\npa_nop_kernel:\n    s_endpgm")
    a.raw('.section .rodata,"a"')
    if c.get("nop3"):
        a.raw(descriptor("pa_nop_kernel", 8, 8))
    a.raw(descriptor(NAME + "_kernel", 384, 256))
    if not c["fused"]:
        a.raw(descriptor("pa_combine_kernel", 216, 216))
    open(out, "w").write(a.text())


if __name__ == "__main__":
    import json
    cfg = json.loads(sys.argv[1]) if len(sys.argv) > 1 else None
    generate(cfg, sys.argv[2] if len(sys.argv) > 2 else OUT)
```

```python
import sys, math

NAME = "standalone__paged_block_table_kv_pagedattention__sampling"
OUT = "cdna_kernels/%s.s" % NAME

KV_BYTES = 4100 * 16384
Q_BYTES = 8 * 32 * 32 * 128 * 2
BT_BYTES = 8 * 512 * 4
WS_ML = 0x1000000
LDS_ML = 0x27000
LDS_NONCE = 0x27ff0
WS_DBG = WS_ML + 256 * 2048
WS_FLAG = WS_DBG + 0x100000
WS_BYTES = WS_FLAG + 32 * 2048
SCALE = math.log2(math.e) / math.sqrt(128.0)
THR_LOG2 = 12

import struct
def f32bits(x):
    return struct.unpack("<I", struct.pack("<f", x))[0]

class Asm:
    def __init__(self):
        self.lines = []
    def __call__(self, s):
        for l in s.strip("\n").split("\n"):
            self.lines.append("    " + l.strip())
    def label(self, l):
        self.lines.append(l + ":")
    def raw(self, s):
        self.lines.append(s)
    def text(self):
        return "\n".join(self.lines) + "\n"

S_ = {0: 0, 1: 16}
C_ = {0: 32, 1: 48}
O_ = {0: 64, 1: 128}
P_ = {0: 192, 1: 200}
KADDR = 208
VADDR = 216
VOFFK = 220
VOFFV = 222
PAGES = 224
L_ = {0: 225, 1: 226}
M_ = {0: 227, 1: 228}
TS_ = {0: (229, 230), 1: (231, 232)}
ET = 233
VLANE = 239
VT = 240
VH4 = 255
AQ = {0: 0, 1: 32}
AK = 64
AV = 96

s_wg = 2
s_q, s_k, s_v, s_bt, s_cl, s_out, s_dbg, s_ws = 4, 6, 8, 10, 12, 14, 16, 18
SRD_K, SRD_V, SRD_Q, SRD_X, SRD_WS, SRD_BT = 20, 24, 28, 32, 36, 76
s_w = 40
s_h = 41
s_slot = 42
s_n = 43
s_i = 44
s_patch = 45
s_rem = 46
s_idx = 47
s_pg = {0: 48, 1: 49}
s_m0k = 50
s_m0v = 51
s_thr = {0: 52, 1: 52}
s_E = 53
s_nb = 82
s_jj = 3
s_mine = 74
s_own, s_wlo, s_lo, s_hi = 84, 85, 86, 87
s_floor = {0: 54, 1: 55}
s_first = {0: 56, 1: 57}
s_ret = 58
s_t0 = 60
s_qb = 84
s_qlds = 54
s_b = 80
s_start = 81
s_scale = 56
s_wgslot = 83


def emit_srd(a, d, ptr, nbytes):
    a(f"""
    s_mov_b32 s{d}, s{ptr}
    s_and_b32 s{d+1}, s{ptr+1}, 0xffff
    s_mov_b32 s{d+2}, 0x{nbytes:x}
    s_mov_b32 s{d+3}, 0x20000
    """)


def sum8(a, dst, src, tmp):
    a(f"""
    s_nop 1
    v_add_u32_dpp v{tmp}, v{src}, v{src} quad_perm:[1,0,3,2] row_mask:0xf bank_mask:0xf
    s_nop 1
    v_add_u32_dpp v{dst}, v{tmp}, v{tmp} quad_perm:[2,3,0,1] row_mask:0xf bank_mask:0xf
    s_nop 1
    v_add_u32_dpp v{dst}, v{dst}, v{dst} row_half_mirror row_mask:0xf bank_mask:0xf
    """)


def emit_partition(a, vlane, vcl, vt, st):
    Lm1, T_, Cc, Nn, NS, INC, Qq, Rr, X0, X1 = range(vt, vt + 10)
    a(f"""
    v_add_u32 v{Lm1}, -1, v{vcl}
    v_min_u32 v{Lm1}, 0x1fff, v{Lm1}
    v_lshrrev_b32 v{T_}, 5, v{Lm1}
    v_add_u32 v{T_}, 1, v{T_}
    """)
    sum8(a, Cc, T_, X0)
    a(f"""
    v_add_u32 v{Cc}, 63, v{Cc}
    v_lshrrev_b32 v{Cc}, 6, v{Cc}
    v_lshrrev_b32 v{X0}, 3, v{vlane}
    v_add_u32 v{Cc}, v{Cc}, v{X0}
    v_cvt_f32_u32 v{X0}, v{Cc}
    v_rcp_f32 v{X0}, v{X0}
    v_add3_u32 v{X1}, v{T_}, v{Cc}, -1
    v_cvt_f32_u32 v{X1}, v{X1}
    v_add_f32 v{X1}, 0.5, v{X1}
    v_mul_f32 v{X1}, v{X1}, v{X0}
    v_cvt_u32_f32 v{Nn}, v{X1}
    """)
    sum8(a, NS, Nn, X0)
    a(f"""
    s_nop 1
    v_add_u32_dpp v{INC}, v{Nn}, v{Nn} row_shr:1 row_mask:0xf bank_mask:0xf bound_ctrl:0
    v_cvt_f32_u32 v{X0}, v{Nn}
    v_rcp_f32 v{X0}, v{X0}
    v_add_u32_dpp v{INC}, v{INC}, v{INC} row_shr:2 row_mask:0xf bank_mask:0xf bound_ctrl:0
    v_cvt_f32_u32 v{X1}, v{T_}
    v_add_f32 v{X1}, 0.5, v{X1}
    v_add_u32_dpp v{INC}, v{INC}, v{INC} row_shr:4 row_mask:0xf bank_mask:0xf bound_ctrl:0
    v_mul_f32 v{X1}, v{X1}, v{X0}
    v_cvt_u32_f32 v{Qq}, v{X1}
    v_add_u32_dpp v{INC}, v{INC}, v{INC} row_shr:8 row_mask:0xf bank_mask:0xf bound_ctrl:0
    v_mul_u32_u24 v{X0}, v{Qq}, v{Nn}
    v_sub_u32 v{Rr}, v{T_}, v{X0}
    v_mov_b32_dpp v{X1}, v{NS} row_shr:8 row_mask:0xf bank_mask:0xf bound_ctrl:0
    v_sub_u32 v{INC}, v{INC}, v{X1}
    v_cmp_ge_u32 vcc, 64, v{NS}
    s_ff1_i32_b64 s{st}, vcc
    s_mov_b64 s[{st+2}:{st+3}], 0xff
    s_lshl_b64 s[{st+2}:{st+3}], s[{st+2}:{st+3}], s{st}
    """)
    return dict(Lm1=Lm1, t=T_, n=Nn, incl=INC, q=Qq, r=Rr)


def sm_stream(X, et=None):
    S = S_[X]; P = P_[X]
    TS0, TS1 = TS_[X]
    et = ET if et is None else et
    def tmp(j):
        if j == 0:
            return TS0, TS1
        k = (j - 1) % 3
        return et + 2 * k, et + 2 * k + 1
    E = lambda j, h: (8, f"v_exp_f32 v{tmp(j)[h]}, v{S + 2 * j + h}")
    A = lambda j, h: (4, f"v_add_f32 v{(TS0, TS1)[h]}, v{(TS0, TS1)[h]}, v{tmp(j)[h]}")
    C = lambda j: (4, f"v_cvt_pk_bf16_f32 v{P + j}, v{tmp(j)[0]}, v{tmp(j)[1]}")
    st = [E(0, 0), E(0, 1), E(1, 0), C(0), E(1, 1)]
    for j in range(1, 7):
        st += [A(j, 0), E(j + 1, 0), A(j, 1), C(j), E(j + 1, 1)]
    st += [A(7, 0), A(7, 1), C(7), (4, f"v_add_f32 v{TS0}, v{TS0}, v{TS1}")]
    return st


def mfma_qk(X, s):
    c = C_[X] if s == 0 else S_[X]
    return (f"v_mfma_f32_32x32x16_bf16 v[{S_[X]}:{S_[X]+15}], a[{AK+4*s}:{AK+4*s+3}], "
            f"a[{AQ[X]+4*s}:{AQ[X]+4*s+3}], v[{c}:{c+15}]")


def mfma_pv(X, f):
    t, dt = f >> 2, f & 3
    o = O_[X] + 16 * dt
    return (f"v_mfma_f32_32x32x16_bf16 v[{o}:{o+15}], a[{AV+4*f}:{AV+4*f+3}], "
            f"v[{P_[X]+4*t}:{P_[X]+4*t+3}], v[{o}:{o+15}]")


def k_read(s, slot):
    return f"ds_read_b128 a[{AK+4*s}:{AK+4*s+3}], v{KADDR+s} offset:{slot*8192}"


def v_read(f, y, slot):
    t, dt = f >> 2, f & 3
    return (f"ds_read_b64_tr_b16 a[{AV+4*f+2*y}:{AV+4*f+2*y+1}], v{VADDR+dt} "
            f"offset:{slot*8192 + (16*t+8*y)*256}")


LDFLAGS = ""
def dma_k(a_list, slot, spg):
    return [f"s_add_u32 m0, s{s_m0k}, {slot*8192}",
            None,
            f"buffer_load_dwordx4 v{VOFFK}, s[{SRD_K}:{SRD_K+3}], s{spg} offen{LDFLAGS} lds",
            f"buffer_load_dwordx4 v{VOFFK+1}, s[{SRD_K}:{SRD_K+3}], s{spg} offen offset:1024{LDFLAGS} lds"]


def dma_v(a_list, slot, spg):
    return [f"s_add_u32 m0, s{s_m0v}, {slot*8192}",
            None,
            f"buffer_load_dwordx4 v{VOFFV}, s[{SRD_V}:{SRD_V+3}], s{spg} offen{LDFLAGS} lds",
            f"buffer_load_dwordx4 v{VOFFV+1}, s[{SRD_V}:{SRD_V+3}], s{spg} offen offset:1024{LDFLAGS} lds"]


def plan_body(k, cfg, tramps=None, peel=None):
    kn = (k + 1) % 8
    kl = k if peel is None else f"p{k}"
    D = cfg["depth"]
    pgn = s_pg[k & 1]
    pgo = s_pg[(k & 1) ^ 1]
    tramps = [] if tramps is None else tramps
    pre = {i: [] for i in range(32)}
    front = {i: [] for i in range(32)}
    valu = {i: [] for i in range(32)}
    tail = {i: [] for i in range(32)}
    for s in range(8):
        front[s + 1].append((4, k_read(s, kn)))
    vslots = cfg["vslots"]
    vr = [(f, y) for f in range(8) for y in range(2)]
    for (f, y), sl in zip(vr, vslots):
        assert sl >= 9 + f, (f, sl)
        front[sl].append((4, v_read(f, y, k)))
    def vr_before(m):
        return sum(1 for sl in vslots if sl < m)
    pre[16].append(f"s_waitcnt lgkmcnt({vr_before(16)})")
    assert vr_before(24) >= 8
    pre[24].append(f"s_waitcnt lgkmcnt({vr_before(24) - 8})")
    assert vr_before(28) == 16
    pre[28].append("s_waitcnt lgkmcnt(0)")
    ds = cfg["dma_slots"]
    dcost = cfg["dma_cost"]
    if peel is None:
        valu[cfg["rl_slot"]].append((4, f"v_readlane_b32 s{pgn}, v{PAGES}, s{s_idx}"))
        tail[cfg["rl_slot"]].append(f"s_add_u32 s{s_idx}, s{s_idx}, 1")
        dk = dma_k(None, (k + D + 1) % 8, pgn)
        dv = dma_v(None, (k + D) % 8, pgo)
        tail[ds[0] - 1].append(dv[0])
        front[ds[0]].append((dcost, dv[2]))
        front[ds[1]].append((dcost, dv[3]))
        assert ds[2] - 1 >= ds[1]
        tail[ds[2] - 1].append(dk[0])
        front[ds[2]].append((dcost, dk[2]))
        front[ds[3]].append((dcost, dk[3]))
        assert ds[2] > cfg["rl_slot"] + 1
    else:
        g, pb = peel
        seq = [dma_k(None, (g + 1) % 8, pb + g + 1), dma_v(None, g % 8, pb + g),
               dma_k(None, (g + 2) % 8, pb + g + 2), dma_v(None, (g + 1) % 8, pb + g + 1)]
        for d_, sl in zip(seq, cfg["peel_slots"]):
            tail[sl - 1].append(d_[0])
            front[sl].append((dcost, d_[2]))
            front[sl + 1].append((dcost, d_[3]))
    ps = cfg["patch_slot"]
    tail[ps - 1].append(f"s_cmp_eq_u32 s{s_i}, s{s_patch}")
    front[ps].insert(0, (8, f"s_cbranch_scc1 L_patch_{kl}"))
    front[ps].insert(1, (0, f"L_patch_ret_{kl}:"))
    tramps.append((f"L_patch_{kl}", "L_sub_patch", f"L_patch_ret_{kl}"))
    assert max(ds) < 30
    tail[30].append(f"s_add_u32 s{s_i}, s{s_i}, 1")
    tail[30].append(f"s_cmp_ge_u32 s{s_i}, s{s_n}")
    front[31].append((8, "s_cbranch_scc1 L_drain"))
    dl = cfg["delta"]
    for X, lo in ((0, 32 - dl), (1, 16 - dl)):
        hi = lo + 15
        bs = (hi + cfg["br_dist"]) % 32
        front[bs].insert(0, (8, f"s_cbranch_vccnz L_fb{X}_{kl}"))
        front[bs].insert(1, (0, f"L_fb{X}_ret_{kl}:"))
        valu[bs].insert(0, (4, f"v_add_f32 v{L_[X]}, v{L_[X]}, v{TS_[X][0]}"))
        tramps.append((f"L_fb{X}_{kl}", f"L_sub_fb{X}", f"L_fb{X}_ret_{kl}"))
    if peel is not None:
        _, _, valu_r, _ = plan_body(k, cfg)
        for g_ in range(32):
            valu[g_] = [x for x in valu_r[g_] if not x[1].startswith("v_readlane")]
        return pre, front, valu, tail
    for X, lo in ((0, 32 - dl), (1, 16 - dl)):
        gaps = [(lo + j) % 32 for j in range(16)]
        st = sm_stream(X) + [(4, f"v_cmp_lt_f32 vcc, s{s_thr[X]}, v{TS_[X][0]}")]
        tot = sum(c for c, _ in st)
        free = [max(0, 24 - sum(c for c, _ in front[g]) - sum(c for c, _ in valu[g])) for g in gaps]
        for n_, g in enumerate(gaps):
            if g in cfg["empty_gaps"]:
                free[n_] = 0
        ftot = sum(free)
        assert ftot >= tot, (ftot, tot)
        acc = 0.0; done = 0; idx = 0
        for n_, g in enumerate(gaps):
            acc += free[n_] * tot / ftot
            used = 0
            while idx < len(st) and used + st[idx][0] <= free[n_] and len(valu[g]) < 5 and \
                    (done + st[idx][0] / 2.0 <= acc or n_ == 15):
                valu[g].append(st[idx]); done += st[idx][0]; used += st[idx][0]; idx += 1
        assert idx == len(st), (X, idx, len(st))
    return pre, front, valu, tail


def skip(t, cfg):
    if cfg.get("no_dma") and t.startswith("buffer_load"): return True
    if cfg.get("no_lds") and t.startswith("ds_read"): return True
    if cfg.get("no_sm") and (t.startswith("v_exp") or t.startswith("v_add_f32") or t.startswith("v_cvt")): return True
    if cfg.get("no_mfma") and t.startswith("v_mfma"): return True
    return False


def emit_body(a, k, tramps, cfg, peel=None, vm=None):
    D = cfg["depth"]
    mf = [mfma_qk(1, s) for s in range(8)] + [mfma_pv(1, f) for f in range(8)] + \
         [mfma_qk(0, s) for s in range(8)] + [mfma_pv(0, f) for f in range(8)]
    pre, front, valu, tail = plan_body(k, cfg, tramps, peel)
    a.label(f"L_body_{k}" if peel is None else f"L_body_p{k}")
    if cfg.get("stamp"):
        a(f"""
        s_memtime s[90:91]
        s_mov_b32 m0, s{s_i}
        s_waitcnt lgkmcnt(0)
        v_writelane_b32 v{VT+12}, s90, m0
        """)
    bp = cfg["bar_period"]
    if k % bp == 0:
        a(f"s_waitcnt vmcnt({4*(D-bp) if vm is None else vm})")
        if not cfg.get("no_bar"):
            a("s_barrier")
    if cfg.get("stamp"):
        a(f"""
        s_memtime s[90:91]
        s_waitcnt lgkmcnt(0)
        v_writelane_b32 v{VT+13}, s90, m0
        """)
    for i in range(32):
        seq = pre[i] + [mf[i]] + [t for _, t in front[i]] + [t for _, t in valu[i]] + tail[i]
        for t in seq:
            if t.endswith(":"):
                a.label(t[:-1])
            elif not skip(t, cfg):
                a(t)
    if k == 7 and peel is None:
        a("s_branch L_body_0")


def emit_rowmax(a, X, mx, t1):
    S = S_[X]
    out = [f"v_max3_f32 v{mx}, v{S}, v{S+1}, v{S+2}"]
    for r in range(3, 15, 2):
        out.append(f"v_max3_f32 v{mx}, v{mx}, v{S+r}, v{S+r+1}")
    out += [f"v_max_f32 v{mx}, v{mx}, v{S+15}", f"v_mov_b32 v{t1}, v{mx}", "s_nop 1",
            f"v_permlane32_swap_b32 v{mx}, v{t1}", "s_nop 1", f"v_max_f32 v{mx}, v{mx}, v{t1}"]
    return out


def emit_fallback(a, X):
    S = S_[X]; C = C_[X]; O = O_[X]; P = P_[X]
    mx, t1, f = VT, VT + 1, VT + 3
    a.label(f"L_sub_fb{X}")
    a("s_nop 7")
    for t in emit_rowmax(a, X, mx, t1):
        a(t)
    a(f"""
    v_max_f32 v{mx}, 0, v{mx}
    v_exp_f32 v{f}, -v{mx}
    v_add_f32 v{M_[X]}, v{M_[X]}, v{mx}
    """)
    for r in range(16):
        a(f"v_sub_f32 v{C+r}, v{C+r}, v{mx}")
        a(f"v_sub_f32 v{S+r}, v{S+r}, v{mx}")
    a(f"v_mul_f32 v{L_[X]}, v{L_[X]}, v{f}")
    for r in range(64):
        a(f"v_mul_f32 v{O+r}, v{O+r}, v{f}")
    for c, t in sm_stream(X, VT + 4):
        a(t)
    a(f"""
    s_nop 3
    s_setpc_b64 s[{s_ret}:{s_ret+1}]
    """)


def emit_patch(a):
    ninf = VT
    a.label("L_sub_patch")
    a(f"""
    s_nop 7
    v_mov_b32 v{ninf}, 0xff800000
    """)
    for r in range(16):
        cst = 8 * (r >> 2) + (r & 3)
        a(f"""
        s_sub_i32 s{s_mine+1}, s{s_rem}, {cst}
        v_cmp_gt_i32 vcc, s{s_mine+1}, v{VH4}
        s_nop 1
        v_cndmask_b32 v{C_[0]+r}, v{ninf}, v{C_[0]+r}, vcc
        v_cndmask_b32 v{C_[1]+r}, v{ninf}, v{C_[1]+r}, vcc
        """)
    a(f"""
    s_nop 3
    s_setpc_b64 s[{s_ret}:{s_ret+1}]
    """)


MAPS = {
    0: f"""s_lshr_b32 s{s_h}, s{s_wg}, 1
    s_and_b32 s{s_h}, s{s_h}, 3
    s_and_b32 s{s_t0}, s{s_wg}, 1
    s_lshl_b32 s{s_t0}, s{s_t0}, 5
    s_lshr_b32 s{s_slot}, s{s_wg}, 3
    s_or_b32 s{s_slot}, s{s_slot}, s{s_t0}""",
    2: f"""s_lshr_b32 s{s_h}, s{s_wg}, 1
    s_and_b32 s{s_h}, s{s_h}, 3
    s_lshr_b32 s{s_slot}, s{s_wg}, 3
    s_cmp_lt_u32 s{s_slot}, 30
    s_cselect_b32 s{s_t0}, s{s_slot}, 63
    s_add_u32 s{s_slot}, s{s_slot}, 30
    s_and_b32 s{s_t0+1}, s{s_wg}, 1
    s_cmp_eq_u32 s{s_t0+1}, 0
    s_cselect_b32 s{s_slot}, s{s_t0}, s{s_slot}""",
    1: f"""s_lshr_b32 s{s_h}, s{s_wg}, 3
    s_and_b32 s{s_h}, s{s_h}, 3
    s_and_b32 s{s_t0}, s{s_wg}, 7
    s_lshl_b32 s{s_t0}, s{s_t0}, 3
    s_lshr_b32 s{s_slot}, s{s_wg}, 5
    s_or_b32 s{s_slot}, s{s_slot}, s{s_t0}""",
}


def emit_pad(a, us, tag):
    a(f"s_add_u32 s92, s100, {int(us*100)}")
    a.label(f"L_pad_{tag}")
    a(f"""
    s_sleep 2
    s_memrealtime s[90:91]
    s_waitcnt lgkmcnt(0)
    s_sub_u32 s93, s92, s90
    s_cmp_gt_i32 s93, 0
    s_cbranch_scc1 L_pad_{tag}
    """)


def emit_main(a, cfg):
    K = NAME + "_kernel"
    D = cfg["depth"]
    assert D <= 7
    a.raw(f".globl {K}\n.p2align 8\n.type {K},@function")
    a.label(K)
    t0, t1, t2, t3 = VT + 11, VT + 12, VT + 13, VT + 14
    VCL = VT + 10
    def sstamp(n):
        if cfg.get("stamp"):
            a(f"""
            s_memtime s[90:91]
            s_waitcnt lgkmcnt(0)
            s_mov_b32 s{n}, s90
            """)
    def pstamp(n):
        if cfg.get("stamp"):
            a(f"""
            s_memtime s[90:91]
            s_waitcnt lgkmcnt(0)
            v_writelane_b32 v{VT+12}, s90, {40+n}
            """)
    a(f"""
    s_cmp_ge_u32 s{s_wg}, 256
    s_cbranch_scc1 L_end
    s_load_dwordx16 s[4:19], s[0:1], 0
    v_lshrrev_b32 v{VT}, 6, v0
    v_and_b32 v{VLANE}, 63, v0
    v_readfirstlane_b32 s{s_w}, v{VT}
    {MAPS[cfg["map"]]}
    v_and_b32 v{VT+1}, 7, v{VLANE}
    v_lshlrev_b32 v{VT+1}, 2, v{VT+1}
    v_lshlrev_b32 v{VT+2}, 7, v{VLANE}
    """)
    if cfg["fused"]:
        a(f"s_memrealtime s[{s_mine}:{s_mine+1}]")
    if cfg.get("stamp"):
        a("s_memtime s[92:93]")
    if cfg.get("stamp") or cfg.get("pad_to_us") or cfg.get("pad_le") or cfg.get("pad_ls") or cfg.get("pad_pub"):
        a("s_memrealtime s[100:101]")
    a(f"""
    s_and_b32 s{s_t0}, s{s_w}, 1
    s_lshl_b32 s{s_t0}, s{s_t0}, 3               ; 8*(w&1)
    s_lshl_b32 s{s_t0+1}, s{s_h}, 8              ; h*256
    v_lshrrev_b32 v{t0}, 4, v{VLANE}             ; l>>4
    v_and_b32 v{t1}, 15, v{VLANE}                ; pc
    v_add_u32 v{t2}, s{s_t0}, v{t0}              ; R&15 for x=0
    v_xor_b32 v{t3}, v{t1}, v{t2}
    v_lshlrev_b32 v{t3}, 4, v{t3}
    v_lshl_add_u32 v{t3}, v{t2}, 10, v{t3}
    v_add_u32 v{VOFFK}, s{s_t0+1}, v{t3}
    v_add_u32 v{t2}, 4, v{t2}                    ; R&15 for x=1
    v_xor_b32 v{t3}, v{t1}, v{t2}
    v_lshlrev_b32 v{t3}, 4, v{t3}
    v_lshl_add_u32 v{t3}, v{t2}, 10, v{t3}
    v_add_u32 v{t3}, s{s_t0+1}, v{t3}
    v_add_u32 v{VOFFK+1}, 0xfffffc00, v{t3}
    v_lshlrev_b32 v{t3}, 2, v{t0}
    v_xor_b32 v{t3}, v{t1}, v{t3}
    v_lshlrev_b32 v{t3}, 4, v{t3}
    v_add_u32 v{t2}, s{s_t0}, v{t0}
    v_lshl_add_u32 v{t3}, v{t2}, 10, v{t3}
    v_add_u32 v{VOFFV}, s{s_t0+1}, v{t3}
    v_add_u32 v{VOFFV+1}, 0xc00, v{VOFFV}        ; +4096 -1024
    s_lshl_b32 s{s_m0k}, s{s_w}, 11
    s_add_u32 s{s_m0v}, s{s_m0k}, 0x10000
    s_mov_b32 s{s_thr[0]}, 0x{f32bits(2.0**cfg["thr_log2"]):x}
    s_mov_b32 s{s_thr[1]}, 0x{f32bits(2.0**cfg["thr_log2"]):x}
    s_mov_b32 s{s_i}, 0
    s_mov_b32 s{s_idx}, {D+1+cfg["peel"]}
    v_lshrrev_b32 v{t0}, 5, v{VLANE}            ; h2
    v_lshlrev_b32 v{VH4}, 2, v{t0}
    v_lshrrev_b32 v{t2}, 4, v{VLANE}
    v_xor_b32 v{t3}, v{t1}, v{t2}
    v_lshlrev_b32 v{t3}, 4, v{t3}
    v_lshl_add_u32 v{ET}, v{t2}, 8, v{t3}        ; Q voffset (j&3 == 0)
    v_xor_b32 v{ET+1}, 64, v{ET}
    v_xor_b32 v{ET+2}, 0x80, v{ET}
    v_xor_b32 v{ET+3}, 0xc0, v{ET}
    v_lshlrev_b32 v{ET+4}, 3, v{VLANE}
    s_lshl_b32 s{s_qlds}, s{s_w}, 13
    s_add_u32 s{s_qlds}, s{s_qlds}, 0x20000      ; Q_A staging : 128K + w*8K
    s_and_b32 s{s_t0}, s{s_w}, 1
    s_lshl_b32 s{s_t0}, s{s_t0}, 13
    s_lshr_b32 s{s_t0+1}, s{s_w}, 1
    s_lshl_b32 s{s_t0+1}, s{s_t0+1}, 16
    s_add_u32 s{s_t0}, s{s_t0}, s{s_t0+1}
    s_add_u32 s{s_qlds+1}, s{s_t0}, 0xc000
    s_waitcnt lgkmcnt(0)
    """)
    emit_srd(a, SRD_X, s_cl, 32)
    a(f"buffer_load_dword v{VCL}, v{VT+1}, s[{SRD_X}:{SRD_X+3}], 0 offen")
    emit_srd(a, SRD_BT, s_bt, BT_BYTES)
    emit_srd(a, SRD_Q, s_q, Q_BYTES)
    nwarm = 0
    if cfg["warm"]:
        a(f"""
        s_lshr_b32 s{s_t0}, s{s_wg}, 3
        s_lshr_b32 s{s_t0+1}, s{s_t0}, 2
        s_lshl_b32 s{s_t0+1}, s{s_t0+1}, 18          ; b*262144
        s_and_b32 s{s_t0+2}, s{s_t0}, 3
        s_lshl_b32 s{s_t0+2}, s{s_t0+2}, 14
        s_add_u32 s{s_t0+1}, s{s_t0+1}, s{s_t0+2}
        s_lshl_b32 s{s_t0+2}, s{s_h}, 16
        s_add_u32 s{s_t0+1}, s{s_t0+1}, s{s_t0+2}
        s_lshl_b32 s{s_t0+2}, s{s_w}, 13
        s_add_u32 s{s_t0+1}, s{s_t0+1}, s{s_t0+2}
        s_lshl_b32 s{s_t0}, s{s_t0}, 9
        s_cmp_lt_u32 s{s_w}, 2
        s_cselect_b32 s{s_t0+1}, s{s_t0+1}, 0x80000000
        s_cmp_eq_u32 s{s_w}, 2
        s_cselect_b32 s{s_t0}, s{s_t0}, 0x80000000
        v_min_u32 v{VT+3}, 0x180, v{VT+2}
        buffer_load_dword v{P_[0]}, v{VT+2}, s[{SRD_Q}:{SRD_Q+3}], s{s_t0+1} offen
        buffer_load_dword v{P_[0]+1}, v{VT+3}, s[{SRD_BT}:{SRD_BT+3}], s{s_t0} offen
        """)
        nwarm = 2
    if cfg["cwarm"]:
        a(f"""
        s_getpc_b64 s[{SRD_K}:{SRD_K+1}]
        """)
        a.label("L_pc0")
        a(f"""
        s_and_b32 s{SRD_K+1}, s{SRD_K+1}, 0xffff
        s_mov_b32 s{SRD_K+2}, L_code_end-L_pc0
        s_mov_b32 s{SRD_K+3}, 0x20000
        s_lshl_b32 s{s_t0}, s{s_w}, 13
        buffer_load_dword v{P_[0]+2}, v{VT+2}, s[{SRD_K}:{SRD_K+3}], s{s_t0} offen
        """)
        nwarm += 1
    emit_srd(a, SRD_K, s_k, KV_BYTES)
    emit_srd(a, SRD_V, s_v, KV_BYTES)
    emit_srd(a, SRD_WS, s_ws, WS_BYTES)
    if cfg["tlbwarm"]:
        a(f"""
        s_lshr_b32 s{s_t0}, s{s_wg}, 3
        s_lshl_b32 s{s_t0}, s{s_t0}, 2
        s_add_u32 s{s_t0}, s{s_t0}, s{s_w}
        s_cmp_lt_u32 s{s_t0}, {cfg["tlbwarm"]}
        s_cselect_b32 s{s_t0}, 0, 0x80000000
        v_lshlrev_b32 v{VT+3}, 21, v{VLANE}
        buffer_load_dword v{P_[0]+3}, v{VT+3}, s[{SRD_K}:{SRD_K+3}], s{s_t0} offen nt
        buffer_load_dword v{P_[0]+4}, v{VT+3}, s[{SRD_V}:{SRD_V+3}], s{s_t0} offen nt
        buffer_load_dword v{P_[0]+5}, v{VT+3}, s[{SRD_WS}:{SRD_WS+3}], s{s_t0} offen nt
        """)
        nwarm += 3
    sstamp(88)
    a(f"""
    v_and_b32 v{t1}, 31, v{VLANE}               ; key / q
    v_and_b32 v{t2}, 15, v{VLANE}
    v_xor_b32 v{t2}, v{t2}, v{t0}               ; (key&15)^h2
    v_lshlrev_b32 v{t2}, 4, v{t2}
    v_lshl_add_u32 v{KADDR}, v{t1}, 8, v{t2}
    """)
    for s in range(1, 8):
        a(f"v_xor_b32 v{KADDR+s}, {s << 5}, v{KADDR}")
    a(f"""
    v_bfe_u32 v{t1}, v{VLANE}, 2, 2              ; r
    v_add_u32 v{t2}, v{VH4}, v{t1}               ; 4h2 + r
    v_lshlrev_b32 v{t2}, 8, v{t2}
    v_bfe_u32 v{t3}, v{VLANE}, 4, 1              ; sub
    v_lshl_add_u32 v{t2}, v{t3}, 5, v{t2}
    v_and_b32 v{t3}, 3, v{VLANE}                 ; c
    v_lshl_add_u32 v{t2}, v{t3}, 3, v{t2}
    v_add_u32 v{t2}, 0x10000, v{t2}
    v_lshl_add_u32 v{VADDR}, v{t1}, 6, v{t2}     ; dt=0 : (0^r)<<6
    """)
    for dt in range(1, 4):
        a(f"v_xor_b32 v{VADDR+dt}, {dt << 6}, v{VADDR}")
    a(f"s_waitcnt vmcnt({nwarm})")
    sstamp(89)
    st = s_t0
    R = emit_partition(a, VLANE, VCL, VT, st)
    sn, sincl, sLm1, scl, sq, sr, sj = st + 4, st + 5, st + 6, st + 7, st + 8, st + 9, st + 10
    SKEW1 = SKEW2 = ""
    if cfg.get("skew"):
        sh = cfg["skew"]
        g0, g1 = st + 11, st + 12
        SKEW1 = f"""s_sub_u32 s{g0}, s{sn}, s{sj}
    s_mul_i32 s{g1}, s{g0}, s{sj}                ; j*(nb-j)
    s_add_u32 s{st}, s{g1}, s{g0}
    s_sub_u32 s{st}, s{st}, s{sj}
    s_sub_u32 s{st}, s{st}, 1                    ; (j+1)*(nb-j-1)
    s_mul_i32 s{g1}, s{g1}, {cfg.get("skew_mul", 1)}
    s_mul_i32 s{st}, s{st}, {cfg.get("skew_mul", 1)}
    s_lshr_b32 s{g0}, s{g1}, {sh}
    s_lshr_b32 s{g1}, s{st}, {sh}
    s_cmp_gt_u32 s{sq}, s{sn}
    s_cselect_b32 s{g0}, s{g0}, 0
    s_cselect_b32 s{g1}, s{g1}, 0
    s_sub_u32 s{s_start}, s{s_start}, s{g0}"""
        SKEW2 = f"""s_add_u32 s{s_n}, s{s_n}, s{g0}
    s_sub_u32 s{s_n}, s{s_n}, s{g1}"""
    a(f"""
    v_cmp_lt_u32 vcc, s{s_slot}, v{R['incl']}
    s_and_b64 vcc, vcc, s[{st+2}:{st+3}]
    s_cbranch_scc0 L_end
    s_ff1_i32_b64 s{st}, vcc
    s_and_b32 s{s_b}, s{st}, 7
    v_readlane_b32 s{sn}, v{R['n']}, s{st}
    v_readlane_b32 s{sincl}, v{R['incl']}, s{st}
    v_readlane_b32 s{sq}, v{R['q']}, s{st}
    v_readlane_b32 s{sr}, v{R['r']}, s{st}
    v_readlane_b32 s{sLm1}, v{R['Lm1']}, s{st}
    v_readlane_b32 s{scl}, v{VCL}, s{st}
    s_lshl_b32 s{st+2}, s{s_b}, 5
    s_lshl_b32 s{st+1}, s{s_h}, 3
    s_add_u32 s{st+2}, s{st+2}, s{st+1}
    s_lshl_b32 s{st+1}, s{s_w}, 1
    s_add_u32 s{st+2}, s{st+2}, s{st+1}
    s_lshl_b32 s{st+2}, s{st+2}, 13              ; Q base = ((b*32 + 8h + 2w)*32)*256
    s_add_u32 s{st+3}, s{st+2}, 0x2000
    s_sub_u32 s{sj}, s{sincl}, s{sn}
    s_sub_u32 s{sj}, s{s_slot}, s{sj}            ; j = slot - E_b
    s_mul_i32 s{s_start}, s{sj}, s{sq}
    s_min_u32 s{st}, s{sj}, s{sr}
    s_add_u32 s{s_start}, s{s_start}, s{st}
    {SKEW1}
    s_lshl_b32 s{st}, s{s_b}, 9
    s_lshl_b32 s{st+1}, s{s_start}, 1
    s_add_u32 s{st}, s{st}, s{st+1}
    s_lshr_b32 s{st+1}, s{s_w}, 1
    s_add_u32 s{st}, s{st}, s{st+1}
    s_lshl_b32 s{st}, s{st}, 2
    buffer_load_dword v{PAGES}, v{ET+4}, s[{SRD_BT}:{SRD_BT+3}], s{st} offen
    """)
    def qload(X):
        for hf in range(2):
            a(f"s_add_u32 m0, s{s_qlds+X}, {4096*hf}")
            a(f"s_add_u32 s{s_qb+2}, s{s_qb+X}, {4096*hf}")
            for j in range(4):
                a(f"buffer_load_dwordx4 v{ET+j}, s[{SRD_Q}:{SRD_Q+3}], s{s_qb+2} offen offset:{1024*j} lds")
    a(f"""
    s_mov_b32 s{s_qb}, s{st+2}
    s_mov_b32 s{s_qb+1}, s{st+3}
    """)
    qload(0)
    emit_srd(a, SRD_X, s_dbg, 256)
    a(f"""
    s_or_b32 s{s_mine}, s{s_mine}, 1
    v_mov_b32 v{VT+8}, s{s_mine}
    v_mov_b32 v{VT+9}, s{s_mine+1}
    v_mov_b32 v{VT+7}, 0
    s_or_b32 s{st}, s{s_wg}, s{s_w}
    s_cmp_eq_u32 s{st}, 0
    s_cselect_b32 s{st}, 0, 0x80000000
    s_mov_b64 exec, 1
    buffer_store_dwordx2 v[{VT+8}:{VT+9}], v{VT+7}, s[{SRD_X}:{SRD_X+3}], s{st} offen sc1
    s_mov_b64 exec, -1
    """)
    a(f"""
    s_cmp_lt_u32 s{sj}, s{sr}
    s_addc_u32 s{s_n}, s{sq}, 0                  ; n = q + (j<r)
    {SKEW2}
    s_min_u32 s{s_n}, s{s_n}, 54
    s_and_b32 s{s_rem}, s{sLm1}, 31
    s_add_u32 s{s_rem}, s{s_rem}, 1
    s_add_u32 s{st}, s{sj}, 1
    s_cmp_eq_u32 s{st}, s{sn}
    s_cselect_b32 s{s_rem}, s{s_rem}, 32
    s_sub_u32 s{s_patch}, s{s_n}, 2
    s_cmp_lt_u32 s{s_rem}, 32
    s_cselect_b32 s{s_patch}, s{s_patch}, 0x7fffffff
    s_mov_b32 s{s_scale}, 0x{f32bits(SCALE):x}
    s_cmp_lt_i32 s{scl}, 1
    s_cselect_b32 s{s_scale}, 0, s{s_scale}
    s_mov_b32 s{s_scale+1}, s{s_scale}
    s_lshl_b32 s{s_wgslot}, s{s_h}, 6
    s_add_u32 s{s_wgslot}, s{s_wgslot}, s{s_slot}
    s_min_u32 s{s_nb}, s{sn}, 64
    s_mov_b32 s{s_jj}, s{sj}
    s_sub_u32 s{s_E}, s{s_wgslot}, s{sj}
    """)
    sstamp(93)
    nz = cfg["zero_early"]
    for r in range(64, 64 + nz):
        a(f"v_mov_b32 v{r}, 0")
    a(f"""
    v_mov_b32 v{t2}, 0x80000000
    v_cmp_gt_u32 vcc, s{s_n}, v{VLANE}
    s_waitcnt vmcnt(9)
    v_lshlrev_b32 v{PAGES}, 14, v{PAGES}
    v_cndmask_b32 v{PAGES}, v{t2}, v{PAGES}, vcc
    s_nop 0
    """)
    PEEL = cfg["peel"]
    NPRE = D - PEEL
    for j in range(D + 1 + PEEL):
        a(f"v_readlane_b32 s{st+j}, v{PAGES}, {j}")
    a("s_nop 3")
    vm = ["QA"] * 8 + ["NONCE"]
    def vwait(tag):
        idx = max(i for i, t in enumerate(vm) if t == tag)
        a(f"s_waitcnt vmcnt({len(vm) - 1 - idx})")
    def issue(lst, tag):
        a(lst[0]); a("s_nop 0"); a(lst[2]); a(lst[3])
        vm.extend([tag, tag])
    pairs = [("K", 0)]
    for j in range(NPRE):
        pairs += [("K", j + 1), ("V", j)]
    def pair():
        if not pairs:
            return
        kind, j = pairs.pop(0)
        issue(dma_k(None, j, st + j) if kind == "K" else dma_v(None, j, st + j), f"{kind}{j}")
    QRAW = {0: 0, 1: 128}
    def qread(X):
        for s in range(8):
            a(f"v_add_u32 v{VT+4+s}, s{s_qlds+X}, v{KADDR+s}")
        for s in range(8):
            r = QRAW[X] + 4 * s
            a(f"ds_read_b128 v[{r}:{r+3}], v{VT+4+s}")
    def prescale(X, packed):
        out = []
        for i in range(32):
            r = QRAW[X] + i
            ta, tb = VT + (i & 1) * 2, VT + (i & 1) * 2 + 1
            g = []
            if i % 4 == 0:
                g.append(f"s_waitcnt lgkmcnt({7 - i // 4})")
            g += [f"v_lshlrev_b32 v{ta}, 16, v{r}", f"v_and_b32 v{tb}, 0xffff0000, v{r}"]
            if packed(i):
                g.append(f"v_pk_mul_f32 v[{ta}:{tb}], v[{ta}:{tb}], s[{s_scale}:{s_scale+1}]")
            else:
                g += [f"v_mul_f32 v{ta}, s{s_scale}, v{ta}", f"v_mul_f32 v{tb}, s{s_scale}, v{tb}"]
            g += [f"v_cvt_pk_bf16_f32 v{ta}, v{ta}, v{tb}", f"v_accvgpr_write_b32 a{32*X+i}, v{ta}"]
            out.append(g)
        return out
    pstamp(0)
    for _ in range(cfg["pp0"]):
        pair()
    qload(1); vm.extend(["QB"] * 8)
    for _ in range(cfg["pp1"]):
        pair()
    pstamp(1)
    a(f"""
    s_lshl_b32 s{s_lo}, s{s_jj}, 2
    v_add_u32 v{VT+6}, s{s_lo}, v{VLANE}
    v_lshlrev_b32 v{VT+6}, 4, v{VT+6}
    v_cvt_f32_u32 v{VT+6}, v{VT+6}
    v_cvt_f32_u32 v{VT+7}, s{s_nb}
    v_rcp_f32 v{VT+7}, v{VT+7}
    v_add_f32 v{VT+6}, 0.5, v{VT+6}
    s_add_u32 s{s_hi}, s{s_w}, 1
    v_mul_f32 v{VT+6}, v{VT+6}, v{VT+7}
    v_cvt_u32_f32 v{VT+6}, v{VT+6}
    s_lshl_b32 s{st+11}, s{s_w}, 4
    v_readlane_b32 s{s_wlo}, v{VT+6}, 0
    v_readlane_b32 s{s_own}, v{VT+6}, 4
    v_readlane_b32 s{s_hi}, v{VT+6}, s{s_hi}
    v_readlane_b32 s{s_lo}, v{VT+6}, s{s_w}
    s_sub_u32 s{s_own}, s{s_own}, s{s_wlo}
    s_bfm_b64 s[{st+12}:{st+13}], s{s_own}, s{s_wlo}
    s_lshr_b64 s[{st+12}:{st+13}], s[{st+12}:{st+13}], s{st+11}
    s_cmp_ge_u32 s{s_nb}, 3
    s_cselect_b32 s{s_own}, s{st+12}, 0
    """)
    for r in list(range(64 + nz, 128)) + list(range(160, 208)) + list(range(32, 64)):
        a(f"v_mov_b32 v{r}, 0")
    for r in range(32):
        a(f"v_accvgpr_write_b32 a{AV+r}, 0")
    a(f"""
    v_mov_b32 v{L_[0]}, 0
    v_mov_b32 v{L_[1]}, 0
    s_cmp_eq_u32 s{s_patch}, -1
    s_cbranch_scc0 L_nopatch0
    s_call_b64 s[{s_ret}:{s_ret+1}], L_sub_patch
    """)
    a.label("L_nopatch0")
    vwait("QA")
    pstamp(10)
    qread(0)
    for i, g in enumerate(prescale(0, lambda i: cfg["pk"])):
        for t in g:
            a(t)
        if i in cfg["ppA"]:
            pair()
    pstamp(2)
    vwait("QB")
    pstamp(11)
    qread(1)
    for i, g in enumerate(prescale(1, lambda i: cfg["pk"])):
        for t in g:
            a(t)
        if i in cfg["ppB"]:
            pair()
    pstamp(3)
    vwait("K0")
    pstamp(4)
    a("s_barrier")
    pstamp(12)
    for s in range(8):
        a(k_read(s, 0))
    for s in range(8):
        a(f"s_waitcnt lgkmcnt({7-s})")
        a(mfma_qk(0, s))
        if s in cfg["ppQ"]:
            pair()
        for r in range(128 + 4 * s, 132 + 4 * s):
            a(f"v_mov_b32 v{r}, 0")
    a(mfma_qk(1, 0))
    a("s_nop 7")
    mxa = emit_rowmax(a, 0, M_[0], VT)
    mxa += [f"v_sub_f32 v{S_[0]+r}, v{S_[0]+r}, v{M_[0]}" for r in range(16)]
    mxa += [f"v_sub_f32 v{C_[0]+r}, v{C_[0]+r}, v{M_[0]}" for r in range(16)]
    for s in range(1, 8):
        a(mfma_qk(1, s))
        for _ in range(5):
            a(mxa.pop(0))
    while pairs:
        pair()
    a(f"s_mov_b32 s{s_pg[(PEEL & 1) ^ 1]}, s{st+D+PEEL}")
    while mxa:
        a(mxa.pop(0))
    a("s_nop 7")
    for t in emit_rowmax(a, 1, M_[1], VT):
        a(t)
    for r in range(16):
        a(f"v_sub_f32 v{C_[1]+r}, v{C_[1]+r}, v{M_[1]}")
    if cfg["fused"]:
        a(f"""
        """)
    sstamp(94)
    sstamp(95)
    if cfg.get("pad_ls"):
        emit_pad(a, cfg["pad_ls"], "ls")
    pre, front, valu, tail = plan_body(7, cfg)
    hd = [t for g in range(32 - cfg["delta"], 32) for _, t in valu[g]
          if not t.startswith(f"v_add_f32 v{L_[1]},")]
    for t in hd:
        a(t)
    a("s_nop 1")
    tramps = []
    for k in range(PEEL):
        issued = NPRE + 2 * k
        need = k + cfg["bar_period"]
        assert issued >= need
        emit_body(a, k, tramps, cfg, peel=(NPRE + 2 * k, st), vm=4 * (issued - need))
    if PEEL:
        a(f"s_branch L_body_{PEEL}")
    for k in range(8):
        emit_body(a, k, tramps, cfg)
    a.label("L_drain")
    if cfg.get("pad_le"):
        emit_pad(a, cfg["pad_le"], "le")
    if cfg.get("stamp"):
        a(f"""
        s_memtime s[90:91]
        s_waitcnt lgkmcnt(0)
        s_mov_b32 s96, s90
        """)
    stf = cfg['st_flags']
    VLD = VT + 5
    assert cfg["fused"]
    def conv(X, dt):
        o = O_[X] + 16 * dt
        d = 8 * (4 * X + dt)
        out = [f"v_cvt_pk_bf16_f32 v{d+j}, v{o+2*j}, v{o+2*j+1}" for j in range(8)]
        out.append(f"s_add_u32 s{st+1}, s{st}, {X*8192 + dt*2048}")
        for kp in range(2):
            f = 8 * X + 2 * dt + kp
            gs = lambda so: f"buffer_store_dwordx4 v[{d+4*kp}:{d+4*kp+3}], v{VT+4}, s[{SRD_WS}:{SRD_WS+3}], {so} offen offset:{1024*kp}{stf}"
            dw = f"ds_write_b128 v{VLD}, v[{d+4*kp}:{d+4*kp+3}] offset:{1024*f}"
            if X == 0 or cfg["flagmode"] != "part":
                out.append(f"""s_bitcmp1_b32 s{s_own}, {f}
                s_cbranch_scc1 L_own_{f}
                {gs(f"s{st+1}")}
                s_branch L_own_r{f}
                L_own_{f}:
                {dw}
                L_own_r{f}:""")
            else:
                out.append(f"""s_bitcmp1_b32 s{s_own}, {f}
                s_cselect_b32 s{st+3}, 0x80000000, s{st+1}
                {gs(f"s{st+3}")}
                s_cbranch_scc0 L_own_r{f}
                {dw}
                L_own_r{f}:""")
        return out
    def put(t):
        for l in t.split("\n"):
            l = l.strip()
            if l.endswith(":"):
                a.label(l[:-1])
            elif l:
                a(l)
    ep = f"""
    buffer_load_dwordx2 v[{VT+10}:{VT+11}], off, s[{SRD_X}:{SRD_X+3}], 0
    v_mov_b32 v{VT+6}, v{L_[0]}
    v_mov_b32 v{VT+7}, v{L_[1]}
    s_lshl_b32 s{st}, s{s_wgslot}, 11
    s_lshl_b32 s{st+1}, s{s_w}, 4
    s_add_u32 s{st}, s{st}, s{st+1}
    v_permlane32_swap_b32 v{L_[0]}, v{VT+6}
    v_permlane32_swap_b32 v{L_[1]}, v{VT+7}
    v_lshlrev_b32 v{VT+8}, 6, v{VLANE}
    v_mov_b32 v{VT}, v{M_[0]}
    v_add_f32 v{VT+1}, v{L_[0]}, v{VT+6}
    v_mov_b32 v{VT+2}, v{M_[1]}
    v_add_f32 v{VT+3}, v{L_[1]}, v{VT+7}
    s_add_u32 s{st}, s{st}, 0x{WS_ML:x}
    s_add_u32 s{st+1}, s{st+1}, 0x{LDS_ML:x}
    v_add_u32 v{VT+9}, s{st+1}, v{VT+8}
    s_mov_b32 exec_hi, 0\nbuffer_store_dwordx4 v[{VT}:{VT+3}], v{VT+8}, s[{SRD_WS}:{SRD_WS+3}], s{st} offen{stf}\nds_write_b128 v{VT+9}, v[{VT}:{VT+3}]\ns_mov_b64 exec, -1
    s_lshl_b32 s{st}, s{s_wgslot}, 16
    s_lshl_b32 s{st+1}, s{s_w}, 14
    s_add_u32 s{st}, s{st}, s{st+1}
    v_lshlrev_b32 v{VT+4}, 4, v{VLANE}
    s_lshl_b32 s{st+2}, s{s_w}, 4
    s_sub_u32 s{st+2}, s{st+2}, s{s_wlo}
    s_lshl_b32 s{st+2}, s{st+2}, 10
    s_add_u32 s{st+2}, s{st+2}, 0x20000
    v_add_u32 v{VLD}, s{st+2}, v{VT+4}
    """.strip().split("\n    ")
    ep += conv(0, 0) + conv(0, 1) + conv(0, 2) + conv(0, 3)
    for f in range(8):
        a(mfma_pv(1, f))
        for _ in range(8):
            put(ep.pop(0))
    while ep:
        put(ep.pop(0))
    a("s_nop 7")
    for dt in range(4):
        for t in conv(1, dt):
            put(t)
    if cfg["fused"]:
        emit_fused_combine(a, cfg, sstamp)
    if cfg.get("stamp"):
        a(f"""
        s_mov_b64 exec, -1
        s_waitcnt vmcnt(0)
        s_memtime s[90:91]
        s_memrealtime s[66:67]
        s_getreg_b32 s98, hwreg(HW_REG_XCC_ID)
        s_waitcnt lgkmcnt(0)
        v_mov_b32 v{VT+14}, 0
        v_writelane_b32 v{VT+14}, s92, 0
        v_writelane_b32 v{VT+14}, s93, 1
        v_writelane_b32 v{VT+14}, s94, 2
        v_writelane_b32 v{VT+14}, s95, 3
        v_writelane_b32 v{VT+14}, s96, 4
        v_writelane_b32 v{VT+14}, s90, 5
        v_writelane_b32 v{VT+14}, s{s_n}, 6
        v_writelane_b32 v{VT+14}, s98, 7
        v_writelane_b32 v{VT+14}, s100, 8
        v_writelane_b32 v{VT+14}, s66, 9
        v_writelane_b32 v{VT+14}, s88, 10
        v_writelane_b32 v{VT+14}, s89, 11
        v_writelane_b32 v{VT+14}, s97, 12
        v_writelane_b32 v{VT+14}, s99, 13
        v_writelane_b32 v{VT+14}, s{s_h}, 14
        s_lshl_b32 s{st}, s{s_wg}, 12
        s_lshl_b32 s{st+1}, s{s_w}, 10
        s_add_u32 s{st}, s{st}, s{st+1}
        s_add_u32 s{st}, s{st}, 0x{WS_DBG:x}
        v_lshlrev_b32 v{VT}, 2, v{VLANE}
        buffer_store_dword v{VT+12}, v{VT}, s[{SRD_WS}:{SRD_WS+3}], s{st} offen
        buffer_store_dword v{VT+13}, v{VT}, s[{SRD_WS}:{SRD_WS+3}], s{st} offen offset:256
        buffer_store_dword v{VT+14}, v{VT}, s[{SRD_WS}:{SRD_WS+3}], s{st} offen offset:512
        """)
    if cfg.get("pad_to_us"):
        a(f"""
        s_waitcnt vmcnt(0)
        s_add_u32 s92, s100, {int(cfg["pad_to_us"]*100)}
        """)
    if cfg.get("delay_us"):
        a(f"""
        s_memrealtime s[90:91]
        s_waitcnt lgkmcnt(0)
        s_add_u32 s92, s90, {int(cfg["delay_us"]*100)}
        """)
    if cfg.get("delay_us") or cfg.get("pad_to_us"):
        a.label("L_delay")
        a(f"""
        s_sleep 4
        s_memrealtime s[90:91]
        s_waitcnt lgkmcnt(0)
        s_sub_u32 s93, s92, s90
        s_cmp_gt_i32 s93, 0
        s_cbranch_scc1 L_delay
        """)
    a.label("L_end")
    a("s_endpgm")
    for lab, sub, ret in tramps:
        a.label(lab)
        a(f"s_call_b64 s[{s_ret}:{s_ret+1}], {sub}")
        a(f"s_branch {ret}")
    a.label("L_code_end")
    emit_fallback(a, 0)
    emit_fallback(a, 1)
    emit_patch(a)


def emit_fused_combine(a, cfg, sstamp):
    st = s_t0
    ldf = cfg["cld_flags"]
    s_nonce, s_to, s_mask, s_done, s_rdy, s_r0 = 54, 55, 56, 62, 64, 78
    s_cnt, s_ni, s_o, s_ml = 68, 69, 70, 72
    s_f0, s_f1 = 42, 52
    s_nonce2 = 46
    assert cfg["flagmode"] == "wg"
    s_sel = (None, 66, 76)
    SJ = lambda k: (48, 49, 50, 51, 71, 73, 44, 45)[k]
    OB = lambda k: 12 * k
    MLB = lambda k: 96 + 4 * k
    ACC = 160
    MX, DEN, MN, SC, W = (192, 193), (194, 195), (196, 197), (198, 199), (204, 205)
    U0, U1, WT = 200, 201, 211
    VO, VML, VOUT, VF, VFO, VA = 206, 207, 208, 214, 210, 212
    WSR = f"s[{SRD_WS}:{SRD_WS+3}]"
    LA = cfg["clook"]
    def cst(n):
        if cfg.get("stamp"):
            a(f"""
            s_memtime s[90:91]
            s_waitcnt lgkmcnt(0)
            v_writelane_b32 v{VT+12}, s90, {53+n}
            """)
    a(f"""
    v_lshlrev_b32 v{VO}, 4, v{VLANE}
    v_and_b32 v{VML}, 31, v{VLANE}
    v_lshlrev_b32 v{VOUT}, 8, v{VML}
    v_lshl_add_u32 v{VOUT}, v{VH4}, 2, v{VOUT}   ; q*256 + h2*16
    v_lshlrev_b32 v{VML}, 6, v{VML}
    v_lshlrev_b32 v{VFO}, 3, v{VLANE}
    v_cmp_gt_u32 vcc, s{s_nb}, v{VLANE}
    s_mov_b64 s[{s_mask}:{s_mask+1}], vcc
    s_lshl_b32 s{s_mine+1}, s{s_b}, 2
    s_add_u32 s{s_mine+1}, s{s_mine+1}, s{s_h}
    s_lshl_b32 s{s_mine+1}, s{s_mine+1}, 11
    s_add_u32 s{s_mine+1}, s{s_mine+1}, 0x{WS_FLAG:x}
    s_lshl_b32 s{st}, s{s_jj}, 3
    s_add_u32 s{st}, s{st}, s{s_mine+1}
    s_mov_b32 s{s_to}, {cfg["poll_max"]}
    s_waitcnt vmcnt({"8" if cfg["flagmode"] == "part" else "0"})
    v_readfirstlane_b32 s{s_nonce}, v{VT+10}
    v_readfirstlane_b32 s{s_nonce2}, v{VT+11}
    s_cmp_lg_u32 s{s_nonce}, 0
    s_cbranch_scc1 L_fc_havenonce
    """)
    a.label("L_fc_npoll")
    a(f"""
    buffer_load_dwordx2 v[{VT+10}:{VT+11}], off, s[{SRD_X}:{SRD_X+3}], 0 sc1
    s_waitcnt vmcnt(0)
    v_readfirstlane_b32 s{s_nonce}, v{VT+10}
    v_readfirstlane_b32 s{s_nonce2}, v{VT+11}
    s_sub_u32 s{s_to}, s{s_to}, 1
    s_cmp_eq_u32 s{s_to}, 1
    s_cbranch_scc1 L_fc_havenonce
    s_cmp_eq_u32 s{s_nonce}, 0
    s_cbranch_scc1 L_fc_npoll
    """)
    a.label("L_fc_havenonce")
    emit_srd(a, SRD_X, s_out, Q_BYTES)
    if cfg.get("pad_pub"):
        a("s_waitcnt vmcnt(0) lgkmcnt(0)")
        emit_pad(a, cfg["pad_pub"], "pub")
    if cfg["flagmode"] == "part":
        a(f"""
        s_waitcnt lgkmcnt(0)
        s_barrier
        s_waitcnt vmcnt(8)
        s_mov_b64 exec, 1
        buffer_store_dword v{VF}, v{VT+11}, {WSR}, s{st} offen sc1
        s_waitcnt vmcnt(1)
        buffer_store_dword v{VF}, v{VT+11}, {WSR}, s{st} offen offset:256 sc1
        s_mov_b64 exec, -1
        """)
    else:
        a(f"""
        s_waitcnt vmcnt(0) lgkmcnt(0)
        s_barrier
        s_cmp_eq_u32 s{s_w}, 0
        s_cselect_b64 exec, 1, 0
        s_cbranch_scc0 L_fc_noflag
        buffer_store_dwordx2 v[{VT+10}:{VT+11}], off, {WSR}, s{st} sc1
        """)
        a.label("L_fc_noflag")
        a("s_mov_b64 exec, -1")
    sstamp(97)
    a(f"""
    s_cmp_ge_u32 s{s_lo}, s{s_hi}
    s_cbranch_scc1 L_fc_end
    """)
    a.label("L_fc_outer")
    a(f"""
    s_sub_u32 s{s_ni}, s{s_hi}, s{s_lo}
    s_min_u32 s{s_ni}, s{s_ni}, 3
    s_lshl_b32 s{s_o}, s{s_lo}, 10
    s_lshr_b32 s{st}, s{s_lo}, 3                 ; u0
    s_lshl_b32 s{s_ml}, s{st}, 3
    s_mov_b64 s[{s_done}:{s_done+1}], 0
    s_lshl_b32 s{s_f0}, s{st}, 8
    s_add_u32 s{s_f0}, s{s_f0}, s{s_mine+1}
    s_add_u32 s{s_f1}, s{s_lo}, s{s_ni}
    s_sub_u32 s{s_f1}, s{s_f1}, 1
    s_lshr_b32 s{s_f1}, s{s_f1}, 3
    s_lshl_b32 s{s_f1}, s{s_f1}, 8
    s_add_u32 s{s_f1}, s{s_f1}, s{s_mine+1}
    """)
    for t in (1, 2):
        a(f"""
        s_add_u32 s{st+1}, s{s_lo}, {t}
        s_lshr_b32 s{st+1}, s{st+1}, 3
        s_cmp_lg_u32 s{st+1}, s{st}
        s_cselect_b64 s[{s_sel[t]}:{s_sel[t]+1}], -1, 0
        """)
    a(f"""
    s_cmp_lt_u32 s{s_nb}, 3
    s_cbranch_scc1 L_fc_zero
    s_sub_u32 s{st}, s{s_lo}, s{s_wlo}
    s_lshl_b32 s{st}, s{st}, 10
    s_add_u32 s{st}, s{st}, 0x20000
    v_add_u32 v{VA}, s{st}, v{VO}
    s_add_u32 s{st}, s{s_ml}, 0x{LDS_ML:x}
    v_add_u32 v{VA+1}, s{st}, v{VML}
    ds_read_b128 v[0:3], v{VA}
    ds_read_b128 v[4:7], v{VA} offset:1024
    ds_read_b128 v[8:11], v{VA} offset:2048
    ds_read_b64 v[{MLB(0)}:{MLB(0)+1}], v{VA+1}
    ds_read_b64 v[{MLB(0)+2}:{MLB(0)+3}], v{VA+1} offset:8
    s_bitset1_b64 s[{s_done}:{s_done+1}], s{s_jj}
    s_waitcnt lgkmcnt(0)
    v_mov_b32 v{MX[0]}, v{MLB(0)}
    v_mov_b32 v{DEN[0]}, v{MLB(0)+1}
    v_mov_b32 v{MX[1]}, v{MLB(0)+2}
    v_mov_b32 v{DEN[1]}, v{MLB(0)+3}
    """)
    for r in range(12):
        a(f"""
        v_lshlrev_b32 v{ACC+2*r}, 16, v{r}
        v_and_b32 v{ACC+2*r+1}, 0xffff0000, v{r}
        """)
    a("s_branch L_fc_init")
    a.label("L_fc_zero")
    for X in range(2):
        a(f"v_mov_b32 v{MX[X]}, 0xff800000")
        a(f"v_mov_b32 v{DEN[X]}, 0")
    for r in range(24):
        a(f"v_mov_b32 v{ACC+r}, 0")
    a.label("L_fc_init")
    a(f"s_add_u32 s{s_ml}, s{s_ml}, 0x{WS_ML:x}")
    if cfg["flagmode"] == "part":
        POLL = f"""buffer_load_dword v{VF}, v{VFO}, {WSR}, s{s_f0} offen sc1
    buffer_load_dword v{WT}, v{VFO}, {WSR}, s{s_f1} offen sc1
    s_waitcnt vmcnt(0)
    v_cmp_eq_u32 vcc, s{s_nonce}, v{VF}
    s_and_b64 s[{s_rdy}:{s_rdy+1}], vcc, s[{s_mask}:{s_mask+1}]
    v_cmp_eq_u32 vcc, s{s_nonce}, v{WT}
    s_and_b64 s[{s_rdy}:{s_rdy+1}], vcc, s[{s_rdy}:{s_rdy+1}]"""
    else:
        POLL = f"""buffer_load_dwordx2 v[{VF}:{VF+1}], v{VFO}, {WSR}, s{s_mine+1} offen sc1
    s_waitcnt vmcnt(0)
    v_cmp_eq_u32 vcc, s{s_nonce}, v{VF}
    s_and_b64 s[{s_rdy}:{s_rdy+1}], vcc, s[{s_mask}:{s_mask+1}]
    v_cmp_eq_u32 vcc, s{s_nonce2}, v{VF+1}
    s_and_b64 s[{s_rdy}:{s_rdy+1}], vcc, s[{s_rdy}:{s_rdy+1}]"""
    a.label("L_fc_poll")
    a(f"""
    {POLL}
    s_andn2_b64 s[{s_rdy}:{s_rdy+1}], s[{s_rdy}:{s_rdy+1}], s[{s_done}:{s_done+1}]
    s_cbranch_scc1 L_fc_go
    s_sleep {cfg["poll_sleep"]}
    s_sub_u32 s{s_to}, s{s_to}, 1
    s_cmp_lg_u32 s{s_to}, 0
    s_cbranch_scc1 L_fc_poll
    s_branch L_fc_store
    """)
    a.label("L_fc_go")
    sstamp(99)
    a(f"""
    s_mov_b64 s[{s_r0}:{s_r0+1}], s[{s_rdy}:{s_rdy+1}]
    v_mov_b32 v{MN[0]}, v{MX[0]}
    v_mov_b32 v{MN[1]}, v{MX[1]}
    """)
    for k in range(8):
        a(f"""
        s_ff1_i32_b64 s{st}, s[{s_rdy}:{s_rdy+1}]
        s_bitset0_b64 s[{s_rdy}:{s_rdy+1}], s{st}
        s_add_u32 s{st}, s{st}, s{s_E}
        s_lshl_b32 s{SJ(k)}, s{st}, 16
        s_lshl_b32 s{st}, s{st}, 11
        s_add_u32 s{st}, s{st}, s{s_ml}
        s_add_u32 s{SJ(k)}, s{SJ(k)}, s{s_o}
        s_mov_b32 s{s_cnt}, {k+1}
        buffer_load_dwordx4 v[{MLB(k)}:{MLB(k)+3}], v{VML}, {WSR}, s{st} offen{ldf}
        """)
        if k < 7:
            a(f"""
            s_cmp_eq_u64 s[{s_rdy}:{s_rdy+1}], 0
            s_cbranch_scc1 L_fc_taken
            """)
    a.label("L_fc_taken")
    a(f"""
    s_andn2_b64 s[{s_r0}:{s_r0+1}], s[{s_r0}:{s_r0+1}], s[{s_rdy}:{s_rdy+1}]
    s_or_b64 s[{s_done}:{s_done+1}], s[{s_done}:{s_done+1}], s[{s_r0}:{s_r0+1}]
    s_cmp_eq_u32 s{s_ni}, 2
    s_cbranch_scc1 L_fc_r2
    s_cmp_eq_u32 s{s_ni}, 3
    s_cbranch_scc1 L_fc_r3
    """)
    def sel(dst, pair, t):
        if t == 0:
            return None
        return f"v_cndmask_b32 v{dst}, v{pair[0]}, v{pair[1]}, s[{s_sel[t]}:{s_sel[t]+1}]"
    for NI in (1, 2, 3):
        tag = f"r{NI}"
        a.label(f"L_fc_{tag}")
        def oload(k):
            for c in range(NI):
                a(f"buffer_load_dwordx4 v[{OB(k)+4*c}:{OB(k)+4*c+3}], v{VO}, {WSR}, s{SJ(k)} offen offset:{1024*c}{ldf}")
        for k in range(7, -1, -1):
            a(f"""
            s_cmp_le_u32 s{s_cnt}, {k}
            s_cbranch_scc1 L_fc_{tag}_p{k}
            """)
            if k + LA < 8:
                a(f"""
                s_cmp_gt_u32 s{s_cnt}, {k + LA}
                s_cbranch_scc1 L_fc_{tag}_pd
                """)
            oload(k)
            a.label(f"L_fc_{tag}_p{k}")
        a.label(f"L_fc_{tag}_pd")
        cst(0)
        for c in range(1, LA):
            a(f"""
            s_cmp_eq_u32 s{s_cnt}, {c}
            s_cbranch_scc0 L_fc_{tag}_w{c}
            s_waitcnt vmcnt({NI*c})
            """)
            a.label(f"L_fc_{tag}_w{c}")
        a(f"s_waitcnt vmcnt({NI*LA})")
        cst(1)
        NSET = 1 if NI == 1 else 2
        for k in range(8):
            if k:
                a(f"""
                s_cmp_le_u32 s{s_cnt}, {k}
                s_cbranch_scc1 L_fc_{tag}_max
                """)
            for X in range(NSET):
                a(f"v_max_f32 v{MN[X]}, v{MN[X]}, v{MLB(k)+2*X}")
        a.label(f"L_fc_{tag}_max")
        for X in range(NSET):
            a(f"""
            v_sub_f32 v{SC[X]}, v{MX[X]}, v{MN[X]}
            v_exp_f32 v{SC[X]}, v{SC[X]}
            v_mov_b32 v{MX[X]}, v{MN[X]}
            """)
        for X in range(NSET):
            a(f"v_mul_f32 v{DEN[X]}, v{DEN[X]}, v{SC[X]}")
        for t in range(NI):
            if t:
                a(sel(WT, SC, t))
            for r in range(8):
                a(f"v_mul_f32 v{ACC+8*t+r}, v{ACC+8*t+r}, v{WT if t else SC[0]}")
        for k in range(7, -1, -1):
            if k:
                a(f"""
                s_cmp_le_u32 s{s_cnt}, {k}
                s_cbranch_scc1 L_fc_{tag}_u{k}
                """)
            if k - LA >= 0:
                oload(k - LA)
            for X in range(NSET):
                a(f"v_sub_f32 v{W[X]}, v{MLB(k)+2*X}, v{MN[X]}")
            for X in range(NSET):
                a(f"v_exp_f32 v{W[X]}, v{W[X]}")
            a("s_nop 0")
            for X in range(NSET):
                a(f"v_fmac_f32 v{DEN[X]}, v{W[X]}, v{MLB(k)+2*X+1}")
            for t in range(NI):
                if t:
                    a(sel(WT, W, t))
                a(f"s_waitcnt vmcnt({NI*min(k, LA) + NI - 1 - t})")
                for r in range(4):
                    u0, u1 = U0 + 2 * (r & 1), U1 + 2 * (r & 1)
                    a(f"""
                    v_lshlrev_b32 v{u0}, 16, v{OB(k)+4*t+r}
                    v_and_b32 v{u1}, 0xffff0000, v{OB(k)+4*t+r}
                    v_fmac_f32 v{ACC+8*t+2*r}, v{WT if t else W[0]}, v{u0}
                    v_fmac_f32 v{ACC+8*t+2*r+1}, v{WT if t else W[0]}, v{u1}
                    """)
            a.label(f"L_fc_{tag}_u{k}")
        cst(2)
        a(f"""
        s_cmp_lg_u64 s[{s_done}:{s_done+1}], s[{s_mask}:{s_mask+1}]
        s_cbranch_scc1 L_fc_poll
        """)
        if NI < 3:
            a("s_branch L_fc_store")
    a.label("L_fc_store")
    cst(3)
    a(f"""
    v_rcp_f32 v{SC[0]}, v{DEN[0]}
    v_rcp_f32 v{SC[1]}, v{DEN[1]}
    s_lshl_b32 s{st}, s{s_b}, 2
    s_add_u32 s{st}, s{st}, s{s_h}
    s_lshl_b32 s{st}, s{st}, 16                  ; (b*32 + 8h)*8192
    """)
    for t in range(3):
        if t:
            a(f"""
            s_cmp_le_u32 s{s_ni}, {t}
            s_cbranch_scc1 L_fc_next
            {sel(WT, SC, t)}
            """)
        A0 = ACC + 8 * t
        a(f"""
        s_add_u32 s{st+1}, s{s_lo}, {t}
        s_lshr_b32 s{st+2}, s{st+1}, 3
        s_lshl_b32 s{st+2}, s{st+2}, 13
        s_and_b32 s{st+1}, s{st+1}, 7
        s_lshl_b32 s{st+1}, s{st+1}, 5
        s_add_u32 s{st+1}, s{st+1}, s{st+2}
        s_add_u32 s{st+1}, s{st+1}, s{st}
        """)
        for r in range(8):
            a(f"v_mul_f32 v{A0+r}, v{A0+r}, v{WT if t else SC[0]}")
        for r in range(4):
            a(f"v_cvt_pk_bf16_f32 v{A0+r}, v{A0+2*r}, v{A0+2*r+1}")
        a(f"""
        s_nop 1
        v_permlane32_swap_b32 v{A0}, v{A0+2}
        v_permlane32_swap_b32 v{A0+1}, v{A0+3}
        buffer_store_dwordx4 v[{A0}:{A0+3}], v{VOUT}, s[{SRD_X}:{SRD_X+3}], s{st+1} offen{cfg['out_flags']}
        """)
    a.label("L_fc_next")
    a(f"""
    s_add_u32 s{s_lo}, s{s_lo}, 3
    s_cmp_lt_u32 s{s_lo}, s{s_hi}
    s_nop 1
    s_cbranch_scc1 L_fc_outer
    """)
    a.label("L_fc_end")


def emit_combine(a, cfg):
    K = "pa_combine_kernel"
    NB = 12
    a.raw(f".globl {K}\n.p2align 8\n.type {K},@function")
    a.label(K)
    VL, VCL, VT_ = 200, 201, 202
    ACC = 160
    DEN, MX, MN, SC, W = 170, 171, 172, 173, 174
    U0, U1 = 176, 177
    OB = 0
    MLB = 64
    SRD_C, SRD_W, SRD_O = 20, 24, 28
    sw, sb, sh, swx, sn, sE, sbase, sj = 40, 41, 42, 43, 44, 45, 46, 47
    st = 60
    a(f"""
    s_cmp_ge_u32 s2, 256
    s_cbranch_scc1 L_cend
    s_load_dwordx16 s[4:19], s[0:1], 0
    {"s_memrealtime s[100:101]" if cfg.get("cpad_to_us") else ""}
    v_lshrrev_b32 v{VT_}, 6, v0
    v_and_b32 v{VL}, 63, v0
    s_lshr_b32 s{sb}, s2, 5
    v_readfirstlane_b32 s{sw}, v{VT_}
    s_lshr_b32 s{sh}, s2, 3
    s_and_b32 s{sh}, s{sh}, 3
    s_and_b32 s{swx}, s2, 7
    v_and_b32 v{VT_+1}, 7, v{VL}
    v_lshlrev_b32 v{VT_+1}, 2, v{VT_+1}
    s_waitcnt lgkmcnt(0)
    """)
    emit_srd(a, SRD_C, s_cl, 32)
    a(f"buffer_load_dword v{VCL}, v{VT_+1}, s[{SRD_C}:{SRD_C+3}], 0 offen")
    emit_srd(a, SRD_W, s_ws, WS_BYTES)
    emit_srd(a, SRD_O, s_out, Q_BYTES)
    VOFF, VML, VOUT = 180, 181, 182
    a(f"""
    s_lshl_b32 s{st}, s{swx}, 13
    s_lshl_b32 s{st+1}, s{sw}, 10
    s_add_u32 s{st}, s{st}, s{st+1}
    v_lshlrev_b32 v{VOFF}, 4, v{VL}
    v_add_u32 v{VOFF}, s{st}, v{VOFF}
    s_lshl_b32 s{st}, s{swx}, 8
    s_add_u32 s{st}, s{st}, 0x{WS_ML:x}
    v_and_b32 v{VML}, 31, v{VL}
    v_lshlrev_b32 v{VOUT}, 8, v{VML}             ; q*256
    v_lshlrev_b32 v{VML}, 3, v{VML}
    v_add_u32 v{VML}, s{st}, v{VML}
    v_lshrrev_b32 v{VT_+2}, 5, v{VL}
    v_lshl_add_u32 v{VOUT}, v{VT_+2}, 3, v{VOUT} ; + h2*8
    s_lshl_b32 s{st}, s2, 13
    s_lshl_b32 s{st+1}, s{sw}, 5
    s_add_u32 s{st}, s{st}, s{st+1}
    v_add_u32 v{VOUT}, s{st}, v{VOUT}
    v_mov_b32 v{DEN}, 0
    v_mov_b32 v{MX}, 0xff800000
    """)
    for r in range(8):
        a(f"v_mov_b32 v{ACC+r}, 0")
    a("s_waitcnt vmcnt(0)")
    R = emit_partition(a, VL, VCL, VT_, st)
    a(f"""
    s_add_u32 s{st}, s{st}, s{sb}
    v_readlane_b32 s{sn}, v{R['n']}, s{st}
    v_readlane_b32 s{sE}, v{R['incl']}, s{st}
    s_nop 3
    s_sub_u32 s{sE}, s{sE}, s{sn}
    s_min_u32 s{sn}, s{sn}, 64
    s_lshl_b32 s{st}, s{sh}, 6
    s_add_u32 s{sE}, s{sE}, s{st}                ; first wgslot
    s_mov_b32 s{sbase}, 0
    """)
    a.label("L_cloop")
    for j in range(NB):
        a(f"""
        s_add_u32 s{sj}, s{sbase}, {j}
        s_add_u32 s{st}, s{sE}, s{sj}
        s_lshl_b32 s{st+1}, s{st}, 16
        s_lshl_b32 s{st}, s{st}, 11
        s_cmp_lt_u32 s{sj}, s{sn}
        s_cselect_b32 s{st+1}, s{st+1}, 0x80000000
        s_cselect_b32 s{st}, s{st}, 0x80000000
        buffer_load_dwordx2 v[{MLB+2*j}:{MLB+2*j+1}], v{VML}, s[{SRD_W}:{SRD_W+3}], s{st} offen
        buffer_load_dwordx4 v[{OB+4*j}:{OB+4*j+3}], v{VOFF}, s[{SRD_W}:{SRD_W+3}], s{st+1} offen
        """)
    a(f"v_mov_b32 v{MN}, v{MX}")
    for j in range(NB):
        a(f"""
        s_add_u32 s{sj}, s{sbase}, {j}
        s_cmp_ge_u32 s{sj}, s{sn}
        s_cbranch_scc1 L_cmaxdone
        s_waitcnt vmcnt({2*(NB-1-j)+1})
        v_max_f32 v{MN}, v{MN}, v{MLB+2*j}
        """)
    a.label("L_cmaxdone")
    a(f"""
    v_sub_f32 v{SC}, v{MX}, v{MN}
    v_exp_f32 v{SC}, v{SC}
    v_mov_b32 v{MX}, v{MN}
    v_mul_f32 v{DEN}, v{DEN}, v{SC}
    """)
    for r in range(8):
        a(f"v_mul_f32 v{ACC+r}, v{ACC+r}, v{SC}")
    for j in range(NB):
        a(f"""
        s_add_u32 s{sj}, s{sbase}, {j}
        s_cmp_ge_u32 s{sj}, s{sn}
        s_cbranch_scc1 L_cfin
        v_sub_f32 v{W}, v{MLB+2*j}, v{MX}
        v_exp_f32 v{W}, v{W}
        s_waitcnt vmcnt({2*(NB-1-j)})
        v_fmac_f32 v{DEN}, v{W}, v{MLB+2*j+1}
        """)
        for r in range(4):
            a(f"""
            v_lshlrev_b32 v{U0}, 16, v{OB+4*j+r}
            v_and_b32 v{U1}, 0xffff0000, v{OB+4*j+r}
            v_fmac_f32 v{ACC+2*r}, v{W}, v{U0}
            v_fmac_f32 v{ACC+2*r+1}, v{W}, v{U1}
            """)
    a(f"""
    s_add_u32 s{sbase}, s{sbase}, {NB}
    s_branch L_cloop
    """)
    a.label("L_cfin")
    a(f"""
    v_rcp_f32 v{SC}, v{DEN}
    s_nop 0
    """)
    for r in range(8):
        a(f"v_mul_f32 v{ACC+r}, v{ACC+r}, v{SC}")
    for r in range(4):
        a(f"v_cvt_pk_bf16_f32 v{ACC+r}, v{ACC+2*r}, v{ACC+2*r+1}")
    a(f"""
    buffer_store_dwordx2 v[{ACC}:{ACC+1}], v{VOUT}, s[{SRD_O}:{SRD_O+3}], 0 offen
    buffer_store_dwordx2 v[{ACC+2}:{ACC+3}], v{VOUT}, s[{SRD_O}:{SRD_O+3}], 0 offen offset:16
    """)
    if cfg.get("cpad_to_us"):
        a(f"""
        s_waitcnt vmcnt(0)
        s_add_u32 s92, s100, {int(cfg["cpad_to_us"]*100)}
        """)
        a.label("L_cdelay")
        a(f"""
        s_sleep 4
        s_memrealtime s[90:91]
        s_waitcnt lgkmcnt(0)
        s_sub_u32 s93, s92, s90
        s_cmp_gt_i32 s93, 0
        s_cbranch_scc1 L_cdelay
        """)
    a.label("L_cend")
    a("s_endpgm")


def descriptor(name, vgpr, accum, sgpr=102):
    return f"""
.p2align 6
.amdhsa_kernel {name}
  .amdhsa_next_free_vgpr {vgpr}
  .amdhsa_next_free_sgpr {sgpr}
  .amdhsa_accum_offset {accum}
  .amdhsa_group_segment_fixed_size 0
  .amdhsa_kernarg_size 64
  .amdhsa_user_sgpr_count 2
  .amdhsa_user_sgpr_kernarg_segment_ptr 1
  .amdhsa_system_sgpr_workgroup_id_x 1
.end_amdhsa_kernel
"""


DEFAULT_CFG = dict(
    vslots=[9, 10, 11, 12, 13, 14, 15, 16, 17, 18, 19, 20, 21, 22, 23, 24],
    rl_slot=22,
    dma_slots=[25, 26, 27, 29],
    dma_cost=12,
    patch_slot=9,
    delta=3,
    br_dist=2,
    empty_gaps=[31],
    bar_period=2,
    pp0=1, pp1=0, ppA=[7, 15], ppB=[15, 31], ppQ=[1, 3, 5, 7],
    pk=1,
    warm=1,
    zero_early=64,
    thr_log2=12,
    st_flags=" sc1",
    fused=1, cld_flags=" sc1", poll_sleep=1, poll_max=200000, cpk=0, clook=3, out_flags=" sc1",
    depth=6, map=0, flagmode="wg", tlbwarm=0, cwarm=0, peel=3, skew=1, peel_slots=[19, 22, 25, 27],
    ld_flags=" nt",
)


def generate(cfg=None, out=OUT):
    c = dict(DEFAULT_CFG)
    if cfg:
        c.update(cfg)
    global LDFLAGS
    LDFLAGS = c["ld_flags"]
    a = Asm()
    a.raw(f"""; Paged attention (GQA, split-KV) for gfx950 -- generated by gen.py (hand-scheduled)
; kernel 1: 256 workgroups, each 256 q rows x a key range of one (batch, kv head); partials -> d_ws
; kernel 2: combines the partials
{("; @launch grid=(256,1,1) block=(256,1,1) lds=163840" if c["fused"] else "; @launch kernel=" + NAME + "_kernel grid=(256,1,1) block=(256,1,1) lds=163840" + chr(10) + "; @launch kernel=pa_combine_kernel grid=(256,1,1) block=(512,1,1) lds=0")}
{"; @launch kernel=pa_nop_kernel grid=(1,1,1) block=(64,1,1) lds=0" + chr(10) if c.get("nop3") else ""}.amdgcn_target "amdgcn-amd-amdhsa--gfx950"
.text""")
    emit_main(a, c)
    if not c["fused"]:
        emit_combine(a, c)
    if c.get("nop3"):
        a.raw(".globl pa_nop_kernel\n.p2align 8\n.type pa_nop_kernel,@function\npa_nop_kernel:\n    s_endpgm")
    a.raw('.section .rodata,"a"')
    if c.get("nop3"):
        a.raw(descriptor("pa_nop_kernel", 8, 8))
    a.raw(descriptor(NAME + "_kernel", 384, 256))
    if not c["fused"]:
        a.raw(descriptor("pa_combine_kernel", 216, 216))
    open(out, "w").write(a.text())


if __name__ == "__main__":
    import json
    cfg = json.loads(sys.argv[1]) if len(sys.argv) > 1 else None
    generate(cfg, sys.argv[2] if len(sys.argv) > 2 else OUT)
```

```python
import sys, math

NAME = "standalone__paged_block_table_kv_pagedattention__sampling"
OUT = "cdna_kernels/%s.s" % NAME

KV_BYTES = 4100 * 16384
Q_BYTES = 8 * 32 * 32 * 128 * 2
BT_BYTES = 8 * 512 * 4
WS_ML = 0x1000000
LDS_ML = 0x27000
LDS_NONCE = 0x27ff0
WS_DBG = WS_ML + 256 * 2048
WS_FLAG = WS_DBG + 0x100000
WS_BYTES = WS_FLAG + 32 * 2048
SCALE = math.log2(math.e) / math.sqrt(128.0)
THR_LOG2 = 12

import struct
def f32bits(x):
    return struct.unpack("<I", struct.pack("<f", x))[0]

class Asm:
    def __init__(self):
        self.lines = []
    def __call__(self, s):
        for l in s.strip("\n").split("\n"):
            self.lines.append("    " + l.strip())
    def label(self, l):
        self.lines.append(l + ":")
    def raw(self, s):
        self.lines.append(s)
    def text(self):
        return "\n".join(self.lines) + "\n"

S_ = {0: 0, 1: 16}
C_ = {0: 32, 1: 48}
O_ = {0: 64, 1: 128}
P_ = {0: 192, 1: 200}
KADDR = 208
VADDR = 216
VOFFK = 220
VOFFV = 222
PAGES = 224
L_ = {0: 225, 1: 226}
M_ = {0: 227, 1: 228}
TS_ = {0: (229, 230), 1: (231, 232)}
ET = 233
VLANE = 239
VT = 240
VH4 = 255
AQ = {0: 0, 1: 32}
AK = 64
AV = 96

s_wg = 2
s_q, s_k, s_v, s_bt, s_cl, s_out, s_dbg, s_ws = 4, 6, 8, 10, 12, 14, 16, 18
SRD_K, SRD_V, SRD_Q, SRD_X, SRD_WS, SRD_BT = 20, 24, 28, 32, 36, 76
s_w = 40
s_h = 41
s_slot = 42
s_n = 43
s_i = 44
s_patch = 45
s_rem = 46
s_idx = 47
s_pg = {0: 48, 1: 49}
s_m0k = 50
s_m0v = 51
s_thr = {0: 52, 1: 52}
s_E = 53
s_nb = 82
s_jj = 3
s_mine = 74
s_own, s_wlo, s_lo, s_hi = 84, 85, 86, 87
s_floor = {0: 54, 1: 55}
s_first = {0: 56, 1: 57}
s_ret = 58
s_t0 = 60
s_qb = 84
s_qlds = 54
s_b = 80
s_start = 81
s_scale = 56
s_wgslot = 83


def emit_srd(a, d, ptr, nbytes):
    a(f"""
    s_mov_b32 s{d}, s{ptr}
    s_and_b32 s{d+1}, s{ptr+1}, 0xffff
    s_mov_b32 s{d+2}, 0x{nbytes:x}
    s_mov_b32 s{d+3}, 0x20000
    """)


def sum8(a, dst, src, tmp):
    a(f"""
    s_nop 1
    v_add_u32_dpp v{tmp}, v{src}, v{src} quad_perm:[1,0,3,2] row_mask:0xf bank_mask:0xf
    s_nop 1
    v_add_u32_dpp v{dst}, v{tmp}, v{tmp} quad_perm:[2,3,0,1] row_mask:0xf bank_mask:0xf
    s_nop 1
    v_add_u32_dpp v{dst}, v{dst}, v{dst} row_half_mirror row_mask:0xf bank_mask:0xf
    """)


def emit_partition(a, vlane, vcl, vt, st):
    Lm1, T_, Cc, Nn, NS, INC, Qq, Rr, X0, X1 = range(vt, vt + 10)
    a(f"""
    v_add_u32 v{Lm1}, -1, v{vcl}
    v_min_u32 v{Lm1}, 0x1fff, v{Lm1}
    v_lshrrev_b32 v{T_}, 5, v{Lm1}
    v_add_u32 v{T_}, 1, v{T_}
    """)
    sum8(a, Cc, T_, X0)
    a(f"""
    v_add_u32 v{Cc}, 63, v{Cc}
    v_lshrrev_b32 v{Cc}, 6, v{Cc}
    v_lshrrev_b32 v{X0}, 3, v{vlane}
    v_add_u32 v{Cc}, v{Cc}, v{X0}
    v_cvt_f32_u32 v{X0}, v{Cc}
    v_rcp_f32 v{X0}, v{X0}
    v_add3_u32 v{X1}, v{T_}, v{Cc}, -1
    v_cvt_f32_u32 v{X1}, v{X1}
    v_add_f32 v{X1}, 0.5, v{X1}
    v_mul_f32 v{X1}, v{X1}, v{X0}
    v_cvt_u32_f32 v{Nn}, v{X1}
    """)
    sum8(a, NS, Nn, X0)
    a(f"""
    s_nop 1
    v_add_u32_dpp v{INC}, v{Nn}, v{Nn} row_shr:1 row_mask:0xf bank_mask:0xf bound_ctrl:0
    v_cvt_f32_u32 v{X0}, v{Nn}
    v_rcp_f32 v{X0}, v{X0}
    v_add_u32_dpp v{INC}, v{INC}, v{INC} row_shr:2 row_mask:0xf bank_mask:0xf bound_ctrl:0
    v_cvt_f32_u32 v{X1}, v{T_}
    v_add_f32 v{X1}, 0.5, v{X1}
    v_add_u32_dpp v{INC}, v{INC}, v{INC} row_shr:4 row_mask:0xf bank_mask:0xf bound_ctrl:0
    v_mul_f32 v{X1}, v{X1}, v{X0}
    v_cvt_u32_f32 v{Qq}, v{X1}
    v_add_u32_dpp v{INC}, v{INC}, v{INC} row_shr:8 row_mask:0xf bank_mask:0xf bound_ctrl:0
    v_mul_u32_u24 v{X0}, v{Qq}, v{Nn}
    v_sub_u32 v{Rr}, v{T_}, v{X0}
    v_mov_b32_dpp v{X1}, v{NS} row_shr:8 row_mask:0xf bank_mask:0xf bound_ctrl:0
    v_sub_u32 v{INC}, v{INC}, v{X1}
    v_cmp_ge_u32 vcc, 64, v{NS}
    s_ff1_i32_b64 s{st}, vcc
    s_mov_b64 s[{st+2}:{st+3}], 0xff
    s_lshl_b64 s[{st+2}:{st+3}], s[{st+2}:{st+3}], s{st}
    """)
    return dict(Lm1=Lm1, t=T_, n=Nn, incl=INC, q=Qq, r=Rr)


def sm_stream(X, et=None):
    S = S_[X]; P = P_[X]
    TS0, TS1 = TS_[X]
    et = ET if et is None else et
    def tmp(j):
        if j == 0:
            return TS0, TS1
        k = (j - 1) % 3
        return et + 2 * k, et + 2 * k + 1
    E = lambda j, h: (8, f"v_exp_f32 v{tmp(j)[h]}, v{S + 2 * j + h}")
    A = lambda j, h: (4, f"v_add_f32 v{(TS0, TS1)[h]}, v{(TS0, TS1)[h]}, v{tmp(j)[h]}")
    C = lambda j: (4, f"v_cvt_pk_bf16_f32 v{P + j}, v{tmp(j)[0]}, v{tmp(j)[1]}")
    st = [E(0, 0), E(0, 1), E(1, 0), C(0), E(1, 1)]
    for j in range(1, 7):
        st += [A(j, 0), E(j + 1, 0), A(j, 1), C(j), E(j + 1, 1)]
    st += [A(7, 0), A(7, 1), C(7), (4, f"v_add_f32 v{TS0}, v{TS0}, v{TS1}")]
    return st


def mfma_qk(X, s):
    c = C_[X] if s == 0 else S_[X]
    return (f"v_mfma_f32_32x32x16_bf16 v[{S_[X]}:{S_[X]+15}], a[{AK+4*s}:{AK+4*s+3}], "
            f"a[{AQ[X]+4*s}:{AQ[X]+4*s+3}], v[{c}:{c+15}]")


def mfma_pv(X, f):
    t, dt = f >> 2, f & 3
    o = O_[X] + 16 * dt
    return (f"v_mfma_f32_32x32x16_bf16 v[{o}:{o+15}], a[{AV+4*f}:{AV+4*f+3}], "
            f"v[{P_[X]+4*t}:{P_[X]+4*t+3}], v[{o}:{o+15}]")


def k_read(s, slot):
    return f"ds_read_b128 a[{AK+4*s}:{AK+4*s+3}], v{KADDR+s} offset:{slot*8192}"


def v_read(f, y, slot):
    t, dt = f >> 2, f & 3
    return (f"ds_read_b64_tr_b16 a[{AV+4*f+2*y}:{AV+4*f+2*y+1}], v{VADDR+dt} "
            f"offset:{slot*8192 + (16*t+8*y)*256}")


LDFLAGS = ""
def dma_k(a_list, slot, spg):
    return [f"s_add_u32 m0, s{s_m0k}, {slot*8192}",
            None,
            f"buffer_load_dwordx4 v{VOFFK}, s[{SRD_K}:{SRD_K+3}], s{spg} offen{LDFLAGS} lds",
            f"buffer_load_dwordx4 v{VOFFK+1}, s[{SRD_K}:{SRD_K+3}], s{spg} offen offset:1024{LDFLAGS} lds"]


def dma_v(a_list, slot, spg):
    return [f"s_add_u32 m0, s{s_m0v}, {slot*8192}",
            None,
            f"buffer_load_dwordx4 v{VOFFV}, s[{SRD_V}:{SRD_V+3}], s{spg} offen{LDFLAGS} lds",
            f"buffer_load_dwordx4 v{VOFFV+1}, s[{SRD_V}:{SRD_V+3}], s{spg} offen offset:1024{LDFLAGS} lds"]


def plan_body(k, cfg, tramps=None, peel=None):
    kn = (k + 1) % 8
    kl = k if peel is None else f"p{k}"
    D = cfg["depth"]
    pgn = s_pg[k & 1]
    pgo = s_pg[(k & 1) ^ 1]
    tramps = [] if tramps is None else tramps
    pre = {i: [] for i in range(32)}
    front = {i: [] for i in range(32)}
    valu = {i: [] for i in range(32)}
    tail = {i: [] for i in range(32)}
    for s in range(8):
        front[s + 1].append((4, k_read(s, kn)))
    vslots = cfg["vslots"]
    vr = [(f, y) for f in range(8) for y in range(2)]
    for (f, y), sl in zip(vr, vslots):
        assert sl >= 9 + f, (f, sl)
        front[sl].append((4, v_read(f, y, k)))
    def vr_before(m):
        return sum(1 for sl in vslots if sl < m)
    pre[16].append(f"s_waitcnt lgkmcnt({vr_before(16)})")
    assert vr_before(24) >= 8
    pre[24].append(f"s_waitcnt lgkmcnt({vr_before(24) - 8})")
    assert vr_before(28) == 16
    pre[28].append("s_waitcnt lgkmcnt(0)")
    ds = cfg["dma_slots"]
    dcost = cfg["dma_cost"]
    if peel is None:
        valu[cfg["rl_slot"]].append((4, f"v_readlane_b32 s{pgn}, v{PAGES}, s{s_idx}"))
        tail[cfg["rl_slot"]].append(f"s_add_u32 s{s_idx}, s{s_idx}, 1")
        dk = dma_k(None, (k + D + 1) % 8, pgn)
        dv = dma_v(None, (k + D) % 8, pgo)
        tail[ds[0] - 1].append(dv[0])
        front[ds[0]].append((dcost, dv[2]))
        front[ds[1]].append((dcost, dv[3]))
        assert ds[2] - 1 >= ds[1]
        tail[ds[2] - 1].append(dk[0])
        front[ds[2]].append((dcost, dk[2]))
        front[ds[3]].append((dcost, dk[3]))
        assert ds[2] > cfg["rl_slot"] + 1
    else:
        g, pb = peel
        seq = [dma_k(None, (g + 1) % 8, pb + g + 1), dma_v(None, g % 8, pb + g),
               dma_k(None, (g + 2) % 8, pb + g + 2), dma_v(None, (g + 1) % 8, pb + g + 1)]
        for d_, sl in zip(seq, cfg["peel_slots"]):
            tail[sl - 1].append(d_[0])
            front[sl].append((dcost, d_[2]))
            front[sl + 1].append((dcost, d_[3]))
    ps = cfg["patch_slot"]
    tail[ps - 1].append(f"s_cmp_eq_u32 s{s_i}, s{s_patch}")
    front[ps].insert(0, (8, f"s_cbranch_scc1 L_patch_{kl}"))
    front[ps].insert(1, (0, f"L_patch_ret_{kl}:"))
    tramps.append((f"L_patch_{kl}", "L_sub_patch", f"L_patch_ret_{kl}"))
    assert max(ds) < 30
    tail[30].append(f"s_add_u32 s{s_i}, s{s_i}, 1")
    tail[30].append(f"s_cmp_ge_u32 s{s_i}, s{s_n}")
    front[31].append((8, "s_cbranch_scc1 L_drain"))
    dl = cfg["delta"]
    for X, lo in ((0, 32 - dl), (1, 16 - dl)):
        hi = lo + 15
        bs = (hi + cfg["br_dist"]) % 32
        front[bs].insert(0, (8, f"s_cbranch_vccnz L_fb{X}_{kl}"))
        front[bs].insert(1, (0, f"L_fb{X}_ret_{kl}:"))
        valu[bs].insert(0, (4, f"v_add_f32 v{L_[X]}, v{L_[X]}, v{TS_[X][0]}"))
        tramps.append((f"L_fb{X}_{kl}", f"L_sub_fb{X}", f"L_fb{X}_ret_{kl}"))
    if peel is not None:
        _, _, valu_r, _ = plan_body(k, cfg)
        for g_ in range(32):
            valu[g_] = [x for x in valu_r[g_] if not x[1].startswith("v_readlane")]
        return pre, front, valu, tail
    for X, lo in ((0, 32 - dl), (1, 16 - dl)):
        gaps = [(lo + j) % 32 for j in range(16)]
        st = sm_stream(X) + [(4, f"v_cmp_lt_f32 vcc, s{s_thr[X]}, v{TS_[X][0]}")]
        tot = sum(c for c, _ in st)
        free = [max(0, 24 - sum(c for c, _ in front[g]) - sum(c for c, _ in valu[g])) for g in gaps]
        for n_, g in enumerate(gaps):
            if g in cfg["empty_gaps"]:
                free[n_] = 0
        ftot = sum(free)
        assert ftot >= tot, (ftot, tot)
        acc = 0.0; done = 0; idx = 0
        for n_, g in enumerate(gaps):
            acc += free[n_] * tot / ftot
            used = 0
            while idx < len(st) and used + st[idx][0] <= free[n_] and len(valu[g]) < 5 and \
                    (done + st[idx][0] / 2.0 <= acc or n_ == 15):
                valu[g].append(st[idx]); done += st[idx][0]; used += st[idx][0]; idx += 1
        assert idx == len(st), (X, idx, len(st))
    return pre, front, valu, tail


def skip(t, cfg):
    if cfg.get("no_dma") and t.startswith("buffer_load"): return True
    if cfg.get("no_lds") and t.startswith("ds_read"): return True
    if cfg.get("no_sm") and (t.startswith("v_exp") or t.startswith("v_add_f32") or t.startswith("v_cvt")): return True
    if cfg.get("no_mfma") and t.startswith("v_mfma"): return True
    return False


def emit_body(a, k, tramps, cfg, peel=None, vm=None):
    D = cfg["depth"]
    mf = [mfma_qk(1, s) for s in range(8)] + [mfma_pv(1, f) for f in range(8)] + \
         [mfma_qk(0, s) for s in range(8)] + [mfma_pv(0, f) for f in range(8)]
    pre, front, valu, tail = plan_body(k, cfg, tramps, peel)
    a.label(f"L_body_{k}" if peel is None else f"L_body_p{k}")
    if cfg.get("stamp"):
        a(f"""
        s_memtime s[90:91]
        s_mov_b32 m0, s{s_i}
        s_waitcnt lgkmcnt(0)
        v_writelane_b32 v{VT+12}, s90, m0
        """)
    bp = cfg["bar_period"]
    if k % bp == 0:
        a(f"s_waitcnt vmcnt({4*(D-bp) if vm is None else vm})")
        if not cfg.get("no_bar"):
            a("s_barrier")
    if cfg.get("stamp"):
        a(f"""
        s_memtime s[90:91]
        s_waitcnt lgkmcnt(0)
        v_writelane_b32 v{VT+13}, s90, m0
        """)
    for i in range(32):
        seq = pre[i] + [mf[i]] + [t for _, t in front[i]] + [t for _, t in valu[i]] + tail[i]
        for t in seq:
            if t.endswith(":"):
                a.label(t[:-1])
            elif not skip(t, cfg):
                a(t)
    if k == 7 and peel is None:
        a("s_branch L_body_0")


def emit_rowmax(a, X, mx, t1):
    S = S_[X]
    out = [f"v_max3_f32 v{mx}, v{S}, v{S+1}, v{S+2}"]
    for r in range(3, 15, 2):
        out.append(f"v_max3_f32 v{mx}, v{mx}, v{S+r}, v{S+r+1}")
    out += [f"v_max_f32 v{mx}, v{mx}, v{S+15}", f"v_mov_b32 v{t1}, v{mx}", "s_nop 1",
            f"v_permlane32_swap_b32 v{mx}, v{t1}", "s_nop 1", f"v_max_f32 v{mx}, v{mx}, v{t1}"]
    return out


def emit_fallback(a, X):
    S = S_[X]; C = C_[X]; O = O_[X]; P = P_[X]
    mx, t1, f = VT, VT + 1, VT + 3
    a.label(f"L_sub_fb{X}")
    a("s_nop 7")
    for t in emit_rowmax(a, X, mx, t1):
        a(t)
    a(f"""
    v_max_f32 v{mx}, 0, v{mx}
    v_exp_f32 v{f}, -v{mx}
    v_add_f32 v{M_[X]}, v{M_[X]}, v{mx}
    """)
    for r in range(16):
        a(f"v_sub_f32 v{C+r}, v{C+r}, v{mx}")
        a(f"v_sub_f32 v{S+r}, v{S+r}, v{mx}")
    a(f"v_mul_f32 v{L_[X]}, v{L_[X]}, v{f}")
    for r in range(64):
        a(f"v_mul_f32 v{O+r}, v{O+r}, v{f}")
    for c, t in sm_stream(X, VT + 4):
        a(t)
    a(f"""
    s_nop 3
    s_setpc_b64 s[{s_ret}:{s_ret+1}]
    """)


def emit_patch(a):
    ninf = VT
    a.label("L_sub_patch")
    a(f"""
    s_nop 7
    v_mov_b32 v{ninf}, 0xff800000
    """)
    for r in range(16):
        cst = 8 * (r >> 2) + (r & 3)
        a(f"""
        s_sub_i32 s{s_mine+1}, s{s_rem}, {cst}
        v_cmp_gt_i32 vcc, s{s_mine+1}, v{VH4}
        s_nop 1
        v_cndmask_b32 v{C_[0]+r}, v{ninf}, v{C_[0]+r}, vcc
        v_cndmask_b32 v{C_[1]+r}, v{ninf}, v{C_[1]+r}, vcc
        """)
    a(f"""
    s_nop 3
    s_setpc_b64 s[{s_ret}:{s_ret+1}]
    """)


MAPS = {
    0: f"""s_lshr_b32 s{s_h}, s{s_wg}, 1
    s_and_b32 s{s_h}, s{s_h}, 3
    s_and_b32 s{s_t0}, s{s_wg}, 1
    s_lshl_b32 s{s_t0}, s{s_t0}, 5
    s_lshr_b32 s{s_slot}, s{s_wg}, 3
    s_or_b32 s{s_slot}, s{s_slot}, s{s_t0}""",
    2: f"""s_lshr_b32 s{s_h}, s{s_wg}, 1
    s_and_b32 s{s_h}, s{s_h}, 3
    s_lshr_b32 s{s_slot}, s{s_wg}, 3
    s_cmp_lt_u32 s{s_slot}, 30
    s_cselect_b32 s{s_t0}, s{s_slot}, 63
    s_add_u32 s{s_slot}, s{s_slot}, 30
    s_and_b32 s{s_t0+1}, s{s_wg}, 1
    s_cmp_eq_u32 s{s_t0+1}, 0
    s_cselect_b32 s{s_slot}, s{s_t0}, s{s_slot}""",
    1: f"""s_lshr_b32 s{s_h}, s{s_wg}, 3
    s_and_b32 s{s_h}, s{s_h}, 3
    s_and_b32 s{s_t0}, s{s_wg}, 7
    s_lshl_b32 s{s_t0}, s{s_t0}, 3
    s_lshr_b32 s{s_slot}, s{s_wg}, 5
    s_or_b32 s{s_slot}, s{s_slot}, s{s_t0}""",
}


def emit_pad(a, us, tag):
    a(f"s_add_u32 s92, s100, {int(us*100)}")
    a.label(f"L_pad_{tag}")
    a(f"""
    s_sleep 2
    s_memrealtime s[90:91]
    s_waitcnt lgkmcnt(0)
    s_sub_u32 s93, s92, s90
    s_cmp_gt_i32 s93, 0
    s_cbranch_scc1 L_pad_{tag}
    """)


def emit_main(a, cfg):
    K = NAME + "_kernel"
    D = cfg["depth"]
    assert D <= 7
    a.raw(f".globl {K}\n.p2align 8\n.type {K},@function")
    a.label(K)
    t0, t1, t2, t3 = VT + 11, VT + 12, VT + 13, VT + 14
    VCL = VT + 10
    def sstamp(n):
        if cfg.get("stamp"):
            a(f"""
            s_memtime s[90:91]
            s_waitcnt lgkmcnt(0)
            s_mov_b32 s{n}, s90
            """)
    def pstamp(n):
        if cfg.get("stamp"):
            a(f"""
            s_memtime s[90:91]
            s_waitcnt lgkmcnt(0)
            v_writelane_b32 v{VT+12}, s90, {40+n}
            """)
    a(f"""
    s_cmp_ge_u32 s{s_wg}, 256
    s_cbranch_scc1 L_end
    s_load_dwordx16 s[4:19], s[0:1], 0
    v_lshrrev_b32 v{VT}, 6, v0
    v_and_b32 v{VLANE}, 63, v0
    v_readfirstlane_b32 s{s_w}, v{VT}
    {MAPS[cfg["map"]]}
    v_and_b32 v{VT+1}, 7, v{VLANE}
    v_lshlrev_b32 v{VT+1}, 2, v{VT+1}
    v_lshlrev_b32 v{VT+2}, 7, v{VLANE}
    """)
    if cfg["fused"]:
        a(f"s_memrealtime s[{s_mine}:{s_mine+1}]")
    if cfg.get("stamp"):
        a("s_memtime s[92:93]")
    if cfg.get("stamp") or cfg.get("pad_to_us") or cfg.get("pad_le") or cfg.get("pad_ls") or cfg.get("pad_pub"):
        a("s_memrealtime s[100:101]")
    a(f"""
    s_and_b32 s{s_t0}, s{s_w}, 1
    s_lshl_b32 s{s_t0}, s{s_t0}, 3               ; 8*(w&1)
    s_lshl_b32 s{s_t0+1}, s{s_h}, 8              ; h*256
    v_lshrrev_b32 v{t0}, 4, v{VLANE}             ; l>>4
    v_and_b32 v{t1}, 15, v{VLANE}                ; pc
    v_add_u32 v{t2}, s{s_t0}, v{t0}              ; R&15 for x=0
    v_xor_b32 v{t3}, v{t1}, v{t2}
    v_lshlrev_b32 v{t3}, 4, v{t3}
    v_lshl_add_u32 v{t3}, v{t2}, 10, v{t3}
    v_add_u32 v{VOFFK}, s{s_t0+1}, v{t3}
    v_add_u32 v{t2}, 4, v{t2}                    ; R&15 for x=1
    v_xor_b32 v{t3}, v{t1}, v{t2}
    v_lshlrev_b32 v{t3}, 4, v{t3}
    v_lshl_add_u32 v{t3}, v{t2}, 10, v{t3}
    v_add_u32 v{t3}, s{s_t0+1}, v{t3}
    v_add_u32 v{VOFFK+1}, 0xfffffc00, v{t3}
    v_lshlrev_b32 v{t3}, 2, v{t0}
    v_xor_b32 v{t3}, v{t1}, v{t3}
    v_lshlrev_b32 v{t3}, 4, v{t3}
    v_add_u32 v{t2}, s{s_t0}, v{t0}
    v_lshl_add_u32 v{t3}, v{t2}, 10, v{t3}
    v_add_u32 v{VOFFV}, s{s_t0+1}, v{t3}
    v_add_u32 v{VOFFV+1}, 0xc00, v{VOFFV}        ; +4096 -1024
    s_lshl_b32 s{s_m0k}, s{s_w}, 11
    s_add_u32 s{s_m0v}, s{s_m0k}, 0x10000
    s_mov_b32 s{s_thr[0]}, 0x{f32bits(2.0**cfg["thr_log2"]):x}
    s_mov_b32 s{s_thr[1]}, 0x{f32bits(2.0**cfg["thr_log2"]):x}
    s_mov_b32 s{s_i}, 0
    s_mov_b32 s{s_idx}, {D+1+cfg["peel"]}
    v_lshrrev_b32 v{t0}, 5, v{VLANE}            ; h2
    v_lshlrev_b32 v{VH4}, 2, v{t0}
    v_lshrrev_b32 v{t2}, 4, v{VLANE}
    v_xor_b32 v{t3}, v{t1}, v{t2}
    v_lshlrev_b32 v{t3}, 4, v{t3}
    v_lshl_add_u32 v{ET}, v{t2}, 8, v{t3}        ; Q voffset (j&3 == 0)
    v_xor_b32 v{ET+1}, 64, v{ET}
    v_xor_b32 v{ET+2}, 0x80, v{ET}
    v_xor_b32 v{ET+3}, 0xc0, v{ET}
    v_lshlrev_b32 v{ET+4}, 3, v{VLANE}
    s_lshl_b32 s{s_qlds}, s{s_w}, 13
    s_add_u32 s{s_qlds}, s{s_qlds}, 0x20000      ; Q_A staging : 128K + w*8K
    s_and_b32 s{s_t0}, s{s_w}, 1
    s_lshl_b32 s{s_t0}, s{s_t0}, 13
    s_lshr_b32 s{s_t0+1}, s{s_w}, 1
    s_lshl_b32 s{s_t0+1}, s{s_t0+1}, 16
    s_add_u32 s{s_t0}, s{s_t0}, s{s_t0+1}
    s_add_u32 s{s_qlds+1}, s{s_t0}, 0xc000
    s_waitcnt lgkmcnt(0)
    """)
    emit_srd(a, SRD_X, s_cl, 32)
    a(f"buffer_load_dword v{VCL}, v{VT+1}, s[{SRD_X}:{SRD_X+3}], 0 offen")
    emit_srd(a, SRD_BT, s_bt, BT_BYTES)
    emit_srd(a, SRD_Q, s_q, Q_BYTES)
    nwarm = 0
    if cfg["warm"]:
        a(f"""
        s_lshr_b32 s{s_t0}, s{s_wg}, 3
        s_lshr_b32 s{s_t0+1}, s{s_t0}, 2
        s_lshl_b32 s{s_t0+1}, s{s_t0+1}, 18          ; b*262144
        s_and_b32 s{s_t0+2}, s{s_t0}, 3
        s_lshl_b32 s{s_t0+2}, s{s_t0+2}, 14
        s_add_u32 s{s_t0+1}, s{s_t0+1}, s{s_t0+2}
        s_lshl_b32 s{s_t0+2}, s{s_h}, 16
        s_add_u32 s{s_t0+1}, s{s_t0+1}, s{s_t0+2}
        s_lshl_b32 s{s_t0+2}, s{s_w}, 13
        s_add_u32 s{s_t0+1}, s{s_t0+1}, s{s_t0+2}
        s_lshl_b32 s{s_t0}, s{s_t0}, 9
        s_cmp_lt_u32 s{s_w}, 2
        s_cselect_b32 s{s_t0+1}, s{s_t0+1}, 0x80000000
        s_cmp_eq_u32 s{s_w}, 2
        s_cselect_b32 s{s_t0}, s{s_t0}, 0x80000000
        v_min_u32 v{VT+3}, 0x180, v{VT+2}
        buffer_load_dword v{P_[0]}, v{VT+2}, s[{SRD_Q}:{SRD_Q+3}], s{s_t0+1} offen
        buffer_load_dword v{P_[0]+1}, v{VT+3}, s[{SRD_BT}:{SRD_BT+3}], s{s_t0} offen
        """)
        nwarm = 2
    if cfg["cwarm"]:
        a(f"""
        s_getpc_b64 s[{SRD_K}:{SRD_K+1}]
        """)
        a.label("L_pc0")
        a(f"""
        s_and_b32 s{SRD_K+1}, s{SRD_K+1}, 0xffff
        s_mov_b32 s{SRD_K+2}, L_code_end-L_pc0
        s_mov_b32 s{SRD_K+3}, 0x20000
        s_lshl_b32 s{s_t0}, s{s_w}, 13
        buffer_load_dword v{P_[0]+2}, v{VT+2}, s[{SRD_K}:{SRD_K+3}], s{s_t0} offen
        """)
        nwarm += 1
    emit_srd(a, SRD_K, s_k, KV_BYTES)
    emit_srd(a, SRD_V, s_v, KV_BYTES)
    emit_srd(a, SRD_WS, s_ws, WS_BYTES)
    if cfg["tlbwarm"]:
        a(f"""
        s_lshr_b32 s{s_t0}, s{s_wg}, 3
        s_lshl_b32 s{s_t0}, s{s_t0}, 2
        s_add_u32 s{s_t0}, s{s_t0}, s{s_w}
        s_cmp_lt_u32 s{s_t0}, {cfg["tlbwarm"]}
        s_cselect_b32 s{s_t0}, 0, 0x80000000
        v_lshlrev_b32 v{VT+3}, 21, v{VLANE}
        buffer_load_dword v{P_[0]+3}, v{VT+3}, s[{SRD_K}:{SRD_K+3}], s{s_t0} offen nt
        buffer_load_dword v{P_[0]+4}, v{VT+3}, s[{SRD_V}:{SRD_V+3}], s{s_t0} offen nt
        buffer_load_dword v{P_[0]+5}, v{VT+3}, s[{SRD_WS}:{SRD_WS+3}], s{s_t0} offen nt
        """)
        nwarm += 3
    sstamp(88)
    a(f"""
    v_and_b32 v{t1}, 31, v{VLANE}               ; key / q
    v_and_b32 v{t2}, 15, v{VLANE}
    v_xor_b32 v{t2}, v{t2}, v{t0}               ; (key&15)^h2
    v_lshlrev_b32 v{t2}, 4, v{t2}
    v_lshl_add_u32 v{KADDR}, v{t1}, 8, v{t2}
    """)
    for s in range(1, 8):
        a(f"v_xor_b32 v{KADDR+s}, {s << 5}, v{KADDR}")
    a(f"""
    v_bfe_u32 v{t1}, v{VLANE}, 2, 2              ; r
    v_add_u32 v{t2}, v{VH4}, v{t1}               ; 4h2 + r
    v_lshlrev_b32 v{t2}, 8, v{t2}
    v_bfe_u32 v{t3}, v{VLANE}, 4, 1              ; sub
    v_lshl_add_u32 v{t2}, v{t3}, 5, v{t2}
    v_and_b32 v{t3}, 3, v{VLANE}                 ; c
    v_lshl_add_u32 v{t2}, v{t3}, 3, v{t2}
    v_add_u32 v{t2}, 0x10000, v{t2}
    v_lshl_add_u32 v{VADDR}, v{t1}, 6, v{t2}     ; dt=0 : (0^r)<<6
    """)
    for dt in range(1, 4):
        a(f"v_xor_b32 v{VADDR+dt}, {dt << 6}, v{VADDR}")
    a(f"s_waitcnt vmcnt({nwarm})")
    sstamp(89)
    st = s_t0
    R = emit_partition(a, VLANE, VCL, VT, st)
    sn, sincl, sLm1, scl, sq, sr, sj = st + 4, st + 5, st + 6, st + 7, st + 8, st + 9, st + 10
    SKEW1 = SKEW2 = ""
    if cfg.get("skew"):
        sh = cfg["skew"]
        g0, g1 = st + 11, st + 12
        SKEW1 = f"""s_sub_u32 s{g0}, s{sn}, s{sj}
    s_mul_i32 s{g1}, s{g0}, s{sj}                ; j*(nb-j)
    s_add_u32 s{st}, s{g1}, s{g0}
    s_sub_u32 s{st}, s{st}, s{sj}
    s_sub_u32 s{st}, s{st}, 1                    ; (j+1)*(nb-j-1)
    s_mul_i32 s{g1}, s{g1}, {cfg.get("skew_mul", 1)}
    s_mul_i32 s{st}, s{st}, {cfg.get("skew_mul", 1)}
    s_lshr_b32 s{g0}, s{g1}, {sh}
    s_lshr_b32 s{g1}, s{st}, {sh}
    s_cmp_gt_u32 s{sq}, s{sn}
    s_cselect_b32 s{g0}, s{g0}, 0
    s_cselect_b32 s{g1}, s{g1}, 0
    s_sub_u32 s{s_start}, s{s_start}, s{g0}"""
        SKEW2 = f"""s_add_u32 s{s_n}, s{s_n}, s{g0}
    s_sub_u32 s{s_n}, s{s_n}, s{g1}"""
    a(f"""
    v_cmp_lt_u32 vcc, s{s_slot}, v{R['incl']}
    s_and_b64 vcc, vcc, s[{st+2}:{st+3}]
    s_cbranch_scc0 L_end
    s_ff1_i32_b64 s{st}, vcc
    s_and_b32 s{s_b}, s{st}, 7
    v_readlane_b32 s{sn}, v{R['n']}, s{st}
    v_readlane_b32 s{sincl}, v{R['incl']}, s{st}
    v_readlane_b32 s{sq}, v{R['q']}, s{st}
    v_readlane_b32 s{sr}, v{R['r']}, s{st}
    v_readlane_b32 s{sLm1}, v{R['Lm1']}, s{st}
    v_readlane_b32 s{scl}, v{VCL}, s{st}
    s_lshl_b32 s{st+2}, s{s_b}, 5
    s_lshl_b32 s{st+1}, s{s_h}, 3
    s_add_u32 s{st+2}, s{st+2}, s{st+1}
    s_lshl_b32 s{st+1}, s{s_w}, 1
    s_add_u32 s{st+2}, s{st+2}, s{st+1}
    s_lshl_b32 s{st+2}, s{st+2}, 13              ; Q base = ((b*32 + 8h + 2w)*32)*256
    s_add_u32 s{st+3}, s{st+2}, 0x2000
    s_sub_u32 s{sj}, s{sincl}, s{sn}
    s_sub_u32 s{sj}, s{s_slot}, s{sj}            ; j = slot - E_b
    s_mul_i32 s{s_start}, s{sj}, s{sq}
    s_min_u32 s{st}, s{sj}, s{sr}
    s_add_u32 s{s_start}, s{s_start}, s{st}
    {SKEW1}
    s_lshl_b32 s{st}, s{s_b}, 9
    s_lshl_b32 s{st+1}, s{s_start}, 1
    s_add_u32 s{st}, s{st}, s{st+1}
    s_lshr_b32 s{st+1}, s{s_w}, 1
    s_add_u32 s{st}, s{st}, s{st+1}
    s_lshl_b32 s{st}, s{st}, 2
    buffer_load_dword v{PAGES}, v{ET+4}, s[{SRD_BT}:{SRD_BT+3}], s{st} offen
    """)
    def qload(X):
        for hf in range(2):
            a(f"s_add_u32 m0, s{s_qlds+X}, {4096*hf}")
            a(f"s_add_u32 s{s_qb+2}, s{s_qb+X}, {4096*hf}")
            for j in range(4):
                a(f"buffer_load_dwordx4 v{ET+j}, s[{SRD_Q}:{SRD_Q+3}], s{s_qb+2} offen offset:{1024*j} lds")
    a(f"""
    s_mov_b32 s{s_qb}, s{st+2}
    s_mov_b32 s{s_qb+1}, s{st+3}
    """)
    qload(0)
    emit_srd(a, SRD_X, s_dbg, 256)
    a(f"""
    s_or_b32 s{s_mine}, s{s_mine}, 1
    v_mov_b32 v{VT+8}, s{s_mine}
    v_mov_b32 v{VT+9}, s{s_mine+1}
    v_mov_b32 v{VT+7}, 0
    s_or_b32 s{st}, s{s_wg}, s{s_w}
    s_cmp_eq_u32 s{st}, 0
    s_cselect_b32 s{st}, 0, 0x80000000
    s_mov_b64 exec, 1
    buffer_store_dwordx2 v[{VT+8}:{VT+9}], v{VT+7}, s[{SRD_X}:{SRD_X+3}], s{st} offen sc1
    s_mov_b64 exec, -1
    """)
    a(f"""
    s_cmp_lt_u32 s{sj}, s{sr}
    s_addc_u32 s{s_n}, s{sq}, 0                  ; n = q + (j<r)
    {SKEW2}
    s_min_u32 s{s_n}, s{s_n}, 54
    s_and_b32 s{s_rem}, s{sLm1}, 31
    s_add_u32 s{s_rem}, s{s_rem}, 1
    s_add_u32 s{st}, s{sj}, 1
    s_cmp_eq_u32 s{st}, s{sn}
    s_cselect_b32 s{s_rem}, s{s_rem}, 32
    s_sub_u32 s{s_patch}, s{s_n}, 2
    s_cmp_lt_u32 s{s_rem}, 32
    s_cselect_b32 s{s_patch}, s{s_patch}, 0x7fffffff
    s_mov_b32 s{s_scale}, 0x{f32bits(SCALE):x}
    s_cmp_lt_i32 s{scl}, 1
    s_cselect_b32 s{s_scale}, 0, s{s_scale}
    s_mov_b32 s{s_scale+1}, s{s_scale}
    s_lshl_b32 s{s_wgslot}, s{s_h}, 6
    s_add_u32 s{s_wgslot}, s{s_wgslot}, s{s_slot}
    s_min_u32 s{s_nb}, s{sn}, 64
    s_mov_b32 s{s_jj}, s{sj}
    s_sub_u32 s{s_E}, s{s_wgslot}, s{sj}
    """)
    sstamp(93)
    nz = cfg["zero_early"]
    for r in range(64, 64 + nz):
        a(f"v_mov_b32 v{r}, 0")
    a(f"""
    v_mov_b32 v{t2}, 0x80000000
    v_cmp_gt_u32 vcc, s{s_n}, v{VLANE}
    s_waitcnt vmcnt(9)
    v_lshlrev_b32 v{PAGES}, 14, v{PAGES}
    v_cndmask_b32 v{PAGES}, v{t2}, v{PAGES}, vcc
    s_nop 0
    """)
    PEEL = cfg["peel"]
    NPRE = D - PEEL
    for j in range(D + 1 + PEEL):
        a(f"v_readlane_b32 s{st+j}, v{PAGES}, {j}")
    a("s_nop 3")
    vm = ["QA"] * 8 + ["NONCE"]
    def vwait(tag):
        idx = max(i for i, t in enumerate(vm) if t == tag)
        a(f"s_waitcnt vmcnt({len(vm) - 1 - idx})")
    def issue(lst, tag):
        a(lst[0]); a("s_nop 0"); a(lst[2]); a(lst[3])
        vm.extend([tag, tag])
    pairs = [("K", 0)]
    for j in range(NPRE):
        pairs += [("K", j + 1), ("V", j)]
    def pair():
        if not pairs:
            return
        kind, j = pairs.pop(0)
        issue(dma_k(None, j, st + j) if kind == "K" else dma_v(None, j, st + j), f"{kind}{j}")
    QRAW = {0: 0, 1: 128}
    def qread(X):
        for s in range(8):
            a(f"v_add_u32 v{VT+4+s}, s{s_qlds+X}, v{KADDR+s}")
        for s in range(8):
            r = QRAW[X] + 4 * s
            a(f"ds_read_b128 v[{r}:{r+3}], v{VT+4+s}")
    def prescale(X, packed):
        out = []
        for i in range(32):
            r = QRAW[X] + i
            ta, tb = VT + (i & 1) * 2, VT + (i & 1) * 2 + 1
            g = []
            if i % 4 == 0:
                g.append(f"s_waitcnt lgkmcnt({7 - i // 4})")
            g += [f"v_lshlrev_b32 v{ta}, 16, v{r}", f"v_and_b32 v{tb}, 0xffff0000, v{r}"]
            if packed(i):
                g.append(f"v_pk_mul_f32 v[{ta}:{tb}], v[{ta}:{tb}], s[{s_scale}:{s_scale+1}]")
            else:
                g += [f"v_mul_f32 v{ta}, s{s_scale}, v{ta}", f"v_mul_f32 v{tb}, s{s_scale}, v{tb}"]
            g += [f"v_cvt_pk_bf16_f32 v{ta}, v{ta}, v{tb}", f"v_accvgpr_write_b32 a{32*X+i}, v{ta}"]
            out.append(g)
        return out
    pstamp(0)
    for _ in range(cfg["pp0"]):
        pair()
    qload(1); vm.extend(["QB"] * 8)
    for _ in range(cfg["pp1"]):
        pair()
    pstamp(1)
    a(f"""
    s_lshl_b32 s{s_lo}, s{s_jj}, 2
    v_add_u32 v{VT+6}, s{s_lo}, v{VLANE}
    v_lshlrev_b32 v{VT+6}, 4, v{VT+6}
    v_cvt_f32_u32 v{VT+6}, v{VT+6}
    v_cvt_f32_u32 v{VT+7}, s{s_nb}
    v_rcp_f32 v{VT+7}, v{VT+7}
    v_add_f32 v{VT+6}, 0.5, v{VT+6}
    s_add_u32 s{s_hi}, s{s_w}, 1
    v_mul_f32 v{VT+6}, v{VT+6}, v{VT+7}
    v_cvt_u32_f32 v{VT+6}, v{VT+6}
    s_lshl_b32 s{st+11}, s{s_w}, 4
    v_readlane_b32 s{s_wlo}, v{VT+6}, 0
    v_readlane_b32 s{s_own}, v{VT+6}, 4
    v_readlane_b32 s{s_hi}, v{VT+6}, s{s_hi}
    v_readlane_b32 s{s_lo}, v{VT+6}, s{s_w}
    s_sub_u32 s{s_own}, s{s_own}, s{s_wlo}
    s_bfm_b64 s[{st+12}:{st+13}], s{s_own}, s{s_wlo}
    s_lshr_b64 s[{st+12}:{st+13}], s[{st+12}:{st+13}], s{st+11}
    s_cmp_ge_u32 s{s_nb}, 3
    s_cselect_b32 s{s_own}, s{st+12}, 0
    """)
    for r in list(range(64 + nz, 128)) + list(range(160, 208)) + list(range(32, 64)):
        a(f"v_mov_b32 v{r}, 0")
    for r in range(32):
        a(f"v_accvgpr_write_b32 a{AV+r}, 0")
    a(f"""
    v_mov_b32 v{L_[0]}, 0
    v_mov_b32 v{L_[1]}, 0
    s_cmp_eq_u32 s{s_patch}, -1
    s_cbranch_scc0 L_nopatch0
    s_call_b64 s[{s_ret}:{s_ret+1}], L_sub_patch
    """)
    a.label("L_nopatch0")
    vwait("QA")
    pstamp(10)
    qread(0)
    for i, g in enumerate(prescale(0, lambda i: cfg["pk"])):
        for t in g:
            a(t)
        if i in cfg["ppA"]:
            pair()
    pstamp(2)
    vwait("QB")
    pstamp(11)
    qread(1)
    for i, g in enumerate(prescale(1, lambda i: cfg["pk"])):
        for t in g:
            a(t)
        if i in cfg["ppB"]:
            pair()
    pstamp(3)
    vwait("K0")
    pstamp(4)
    a("s_barrier")
    pstamp(12)
    for s in range(8):
        a(k_read(s, 0))
    for s in range(8):
        a(f"s_waitcnt lgkmcnt({7-s})")
        a(mfma_qk(0, s))
        if s in cfg["ppQ"]:
            pair()
        for r in range(128 + 4 * s, 132 + 4 * s):
            a(f"v_mov_b32 v{r}, 0")
    a(mfma_qk(1, 0))
    a("s_nop 7")
    mxa = emit_rowmax(a, 0, M_[0], VT)
    mxa += [f"v_sub_f32 v{S_[0]+r}, v{S_[0]+r}, v{M_[0]}" for r in range(16)]
    mxa += [f"v_sub_f32 v{C_[0]+r}, v{C_[0]+r}, v{M_[0]}" for r in range(16)]
    for s in range(1, 8):
        a(mfma_qk(1, s))
        for _ in range(5):
            a(mxa.pop(0))
    while pairs:
        pair()
    a(f"s_mov_b32 s{s_pg[(PEEL & 1) ^ 1]}, s{st+D+PEEL}")
    while mxa:
        a(mxa.pop(0))
    a("s_nop 7")
    for t in emit_rowmax(a, 1, M_[1], VT):
        a(t)
    for r in range(16):
        a(f"v_sub_f32 v{C_[1]+r}, v{C_[1]+r}, v{M_[1]}")
    if cfg["fused"]:
        a(f"""
        s_cmp_eq_u32 s{s_w}, 0
        s_cselect_b32 s{s_mine}, 0, 0x80000000
        buffer_load_dwordx2 v[{VT+10}:{VT+11}], off, s[{SRD_X}:{SRD_X+3}], s{s_mine} sc1
        """)
    sstamp(94)
    sstamp(95)
    if cfg.get("pad_ls"):
        emit_pad(a, cfg["pad_ls"], "ls")
    pre, front, valu, tail = plan_body(7, cfg)
    hd = [t for g in range(32 - cfg["delta"], 32) for _, t in valu[g]
          if not t.startswith(f"v_add_f32 v{L_[1]},")]
    for t in hd:
        a(t)
    a("s_nop 1")
    tramps = []
    for k in range(PEEL):
        issued = NPRE + 2 * k
        need = k + cfg["bar_period"]
        assert issued >= need
        emit_body(a, k, tramps, cfg, peel=(NPRE + 2 * k, st), vm=4 * (issued - need))
    if PEEL:
        a(f"s_branch L_body_{PEEL}")
    for k in range(8):
        emit_body(a, k, tramps, cfg)
    a.label("L_drain")
    if cfg.get("pad_le"):
        emit_pad(a, cfg["pad_le"], "le")
    if cfg.get("stamp"):
        a(f"""
        s_memtime s[90:91]
        s_waitcnt lgkmcnt(0)
        s_mov_b32 s96, s90
        """)
    stf = cfg['st_flags']
    VLD = VT + 5
    assert cfg["fused"]
    def conv(X, dt):
        o = O_[X] + 16 * dt
        d = 8 * (4 * X + dt)
        out = [f"v_cvt_pk_bf16_f32 v{d+j}, v{o+2*j}, v{o+2*j+1}" for j in range(8)]
        out.append(f"s_add_u32 s{st+1}, s{st}, {X*8192 + dt*2048}")
        for kp in range(2):
            f = 8 * X + 2 * dt + kp
            gs = lambda so: f"buffer_store_dwordx4 v[{d+4*kp}:{d+4*kp+3}], v{VT+4}, s[{SRD_WS}:{SRD_WS+3}], {so} offen offset:{1024*kp}{stf}"
            dw = f"ds_write_b128 v{VLD}, v[{d+4*kp}:{d+4*kp+3}] offset:{1024*f}"
            if X == 0 or cfg["flagmode"] != "part":
                out.append(f"""s_bitcmp1_b32 s{s_own}, {f}
                s_cbranch_scc1 L_own_{f}
                {gs(f"s{st+1}")}
                s_branch L_own_r{f}
                L_own_{f}:
                {dw}
                L_own_r{f}:""")
            else:
                out.append(f"""s_bitcmp1_b32 s{s_own}, {f}
                s_cselect_b32 s{st+3}, 0x80000000, s{st+1}
                {gs(f"s{st+3}")}
                s_cbranch_scc0 L_own_r{f}
                {dw}
                L_own_r{f}:""")
        return out
    def put(t):
        for l in t.split("\n"):
            l = l.strip()
            if l.endswith(":"):
                a.label(l[:-1])
            elif l:
                a(l)
    ep = f"""
    v_mov_b32 v{VT+6}, v{L_[0]}
    v_mov_b32 v{VT+7}, v{L_[1]}
    s_lshl_b32 s{st}, s{s_wgslot}, 11
    s_lshl_b32 s{st+1}, s{s_w}, 4
    s_add_u32 s{st}, s{st}, s{st+1}
    v_permlane32_swap_b32 v{L_[0]}, v{VT+6}
    v_permlane32_swap_b32 v{L_[1]}, v{VT+7}
    v_lshlrev_b32 v{VT+8}, 6, v{VLANE}
    v_mov_b32 v{VT}, v{M_[0]}
    v_add_f32 v{VT+1}, v{L_[0]}, v{VT+6}
    v_mov_b32 v{VT+2}, v{M_[1]}
    v_add_f32 v{VT+3}, v{L_[1]}, v{VT+7}
    s_add_u32 s{st}, s{st}, 0x{WS_ML:x}
    s_add_u32 s{st+1}, s{st+1}, 0x{LDS_ML:x}
    v_add_u32 v{VT+9}, s{st+1}, v{VT+8}
    s_mov_b32 exec_hi, 0\nbuffer_store_dwordx4 v[{VT}:{VT+3}], v{VT+8}, s[{SRD_WS}:{SRD_WS+3}], s{st} offen{stf}\nds_write_b128 v{VT+9}, v[{VT}:{VT+3}]\ns_mov_b64 exec, -1
    s_lshl_b32 s{st}, s{s_wgslot}, 16
    s_lshl_b32 s{st+1}, s{s_w}, 14
    s_add_u32 s{st}, s{st}, s{st+1}
    v_lshlrev_b32 v{VT+4}, 4, v{VLANE}
    s_lshl_b32 s{st+2}, s{s_w}, 4
    s_sub_u32 s{st+2}, s{st+2}, s{s_wlo}
    s_lshl_b32 s{st+2}, s{st+2}, 10
    s_add_u32 s{st+2}, s{st+2}, 0x20000
    v_add_u32 v{VLD}, s{st+2}, v{VT+4}
    """.strip().split("\n    ")
    ep += conv(0, 0) + conv(0, 1) + conv(0, 2) + conv(0, 3)
    for f in range(8):
        a(mfma_pv(1, f))
        for _ in range(8):
            put(ep.pop(0))
    while ep:
        put(ep.pop(0))
    a("s_nop 7")
    for dt in range(4):
        for t in conv(1, dt):
            put(t)
    if cfg["fused"]:
        emit_fused_combine(a, cfg, sstamp)
    if cfg.get("stamp"):
        a(f"""
        s_mov_b64 exec, -1
        s_waitcnt vmcnt(0)
        s_memtime s[90:91]
        s_memrealtime s[66:67]
        s_getreg_b32 s98, hwreg(HW_REG_XCC_ID)
        s_waitcnt lgkmcnt(0)
        v_mov_b32 v{VT+14}, 0
        v_writelane_b32 v{VT+14}, s92, 0
        v_writelane_b32 v{VT+14}, s93, 1
        v_writelane_b32 v{VT+14}, s94, 2
        v_writelane_b32 v{VT+14}, s95, 3
        v_writelane_b32 v{VT+14}, s96, 4
        v_writelane_b32 v{VT+14}, s90, 5
        v_writelane_b32 v{VT+14}, s{s_n}, 6
        v_writelane_b32 v{VT+14}, s98, 7
        v_writelane_b32 v{VT+14}, s100, 8
        v_writelane_b32 v{VT+14}, s66, 9
        v_writelane_b32 v{VT+14}, s88, 10
        v_writelane_b32 v{VT+14}, s89, 11
        v_writelane_b32 v{VT+14}, s97, 12
        v_writelane_b32 v{VT+14}, s99, 13
        v_writelane_b32 v{VT+14}, s{s_h}, 14
        s_lshl_b32 s{st}, s{s_wg}, 12
        s_lshl_b32 s{st+1}, s{s_w}, 10
        s_add_u32 s{st}, s{st}, s{st+1}
        s_add_u32 s{st}, s{st}, 0x{WS_DBG:x}
        v_lshlrev_b32 v{VT}, 2, v{VLANE}
        buffer_store_dword v{VT+12}, v{VT}, s[{SRD_WS}:{SRD_WS+3}], s{st} offen
        buffer_store_dword v{VT+13}, v{VT}, s[{SRD_WS}:{SRD_WS+3}], s{st} offen offset:256
        buffer_store_dword v{VT+14}, v{VT}, s[{SRD_WS}:{SRD_WS+3}], s{st} offen offset:512
        """)
    if cfg.get("pad_to_us"):
        a(f"""
        s_waitcnt vmcnt(0)
        s_add_u32 s92, s100, {int(cfg["pad_to_us"]*100)}
        """)
    if cfg.get("delay_us"):
        a(f"""
        s_memrealtime s[90:91]
        s_waitcnt lgkmcnt(0)
        s_add_u32 s92, s90, {int(cfg["delay_us"]*100)}
        """)
    if cfg.get("delay_us") or cfg.get("pad_to_us"):
        a.label("L_delay")
        a(f"""
        s_sleep 4
        s_memrealtime s[90:91]
        s_waitcnt lgkmcnt(0)
        s_sub_u32 s93, s92, s90
        s_cmp_gt_i32 s93, 0
        s_cbranch_scc1 L_delay
        """)
    a.label("L_end")
    a("s_endpgm")
    for lab, sub, ret in tramps:
        a.label(lab)
        a(f"s_call_b64 s[{s_ret}:{s_ret+1}], {sub}")
        a(f"s_branch {ret}")
    a.label("L_code_end")
    emit_fallback(a, 0)
    emit_fallback(a, 1)
    emit_patch(a)


def emit_fused_combine(a, cfg, sstamp):
    st = s_t0
    ldf = cfg["cld_flags"]
    s_nonce, s_to, s_mask, s_done, s_rdy, s_r0 = 54, 55, 56, 62, 64, 78
    s_cnt, s_ni, s_o, s_ml = 68, 69, 70, 72
    s_f0, s_f1 = 42, 52
    s_nonce2 = 46
    assert cfg["flagmode"] == "wg"
    s_sel = (None, 66, 76)
    SJ = lambda k: (48, 49, 50, 51, 71, 73, 44, 45)[k]
    OB = lambda k: 12 * k
    MLB = lambda k: 96 + 4 * k
    ACC = 160
    MX, DEN, MN, SC, W = (192, 193), (194, 195), (196, 197), (198, 199), (204, 205)
    U0, U1, WT = 200, 201, 211
    VO, VML, VOUT, VF, VFO, VA = 206, 207, 208, 214, 210, 212
    WSR = f"s[{SRD_WS}:{SRD_WS+3}]"
    LA = cfg["clook"]
    def cst(n):
        if cfg.get("stamp"):
            a(f"""
            s_memtime s[90:91]
            s_waitcnt lgkmcnt(0)
            v_writelane_b32 v{VT+12}, s90, {53+n}
            """)
    a(f"""
    v_lshlrev_b32 v{VO}, 4, v{VLANE}
    v_and_b32 v{VML}, 31, v{VLANE}
    v_lshlrev_b32 v{VOUT}, 8, v{VML}
    v_lshl_add_u32 v{VOUT}, v{VH4}, 2, v{VOUT}   ; q*256 + h2*16
    v_lshlrev_b32 v{VML}, 6, v{VML}
    v_lshlrev_b32 v{VFO}, 3, v{VLANE}
    v_cmp_gt_u32 vcc, s{s_nb}, v{VLANE}
    s_mov_b64 s[{s_mask}:{s_mask+1}], vcc
    s_lshl_b32 s{s_mine+1}, s{s_b}, 2
    s_add_u32 s{s_mine+1}, s{s_mine+1}, s{s_h}
    s_lshl_b32 s{s_mine+1}, s{s_mine+1}, 11
    s_add_u32 s{s_mine+1}, s{s_mine+1}, 0x{WS_FLAG:x}
    s_lshl_b32 s{st}, s{s_jj}, 3
    s_add_u32 s{st}, s{st}, s{s_mine+1}
    s_mov_b32 s{s_to}, {cfg["poll_max"]}
    v_mov_b32 v{U0}, 0x{LDS_NONCE:x}
    """)
    if cfg.get("pad_pub"):
        a("s_waitcnt vmcnt(0) lgkmcnt(0)")
        emit_pad(a, cfg["pad_pub"], "pub")
    a(f"""
    s_waitcnt vmcnt(0)
    s_cmp_lg_u32 s{s_w}, 0
    s_cbranch_scc1 L_fc_nz
    v_readfirstlane_b32 s{s_nonce}, v{VT+10}
    s_cmp_lg_u32 s{s_nonce}, 0
    s_cbranch_scc1 L_fc_havenonce
    """)
    a.label("L_fc_npoll")
    a(f"""
    buffer_load_dwordx2 v[{VT+10}:{VT+11}], off, s[{SRD_X}:{SRD_X+3}], 0 sc1
    s_waitcnt vmcnt(0)
    v_readfirstlane_b32 s{s_nonce}, v{VT+10}
    s_sub_u32 s{s_to}, s{s_to}, 1
    s_cmp_eq_u32 s{s_to}, 1
    s_cbranch_scc1 L_fc_havenonce
    s_cmp_eq_u32 s{s_nonce}, 0
    s_cbranch_scc1 L_fc_npoll
    """)
    a.label("L_fc_havenonce")
    a(f"ds_write_b64 v{U0}, v[{VT+10}:{VT+11}]")
    a.label("L_fc_nz")
    a(f"""
    s_waitcnt lgkmcnt(0)
    s_barrier
    s_cmp_eq_u32 s{s_w}, 0
    s_cselect_b64 exec, 1, 0
    s_cbranch_scc0 L_fc_noflag
    buffer_store_dwordx2 v[{VT+10}:{VT+11}], off, {WSR}, s{st} sc1
    """)
    a.label("L_fc_noflag")
    a(f"""
    s_mov_b64 exec, -1
    ds_read_b64 v[{VF}:{VF+1}], v{U0}
    """)
    emit_srd(a, SRD_X, s_out, Q_BYTES)
    a(f"""
    s_waitcnt lgkmcnt(0)
    v_readfirstlane_b32 s{s_nonce}, v{VF}
    v_readfirstlane_b32 s{s_nonce2}, v{VF+1}
    """)
    sstamp(97)
    a(f"""
    s_cmp_ge_u32 s{s_lo}, s{s_hi}
    s_cbranch_scc1 L_fc_end
    """)
    a.label("L_fc_outer")
    a(f"""
    s_sub_u32 s{s_ni}, s{s_hi}, s{s_lo}
    s_min_u32 s{s_ni}, s{s_ni}, 3
    s_lshl_b32 s{s_o}, s{s_lo}, 10
    s_lshr_b32 s{st}, s{s_lo}, 3                 ; u0
    s_lshl_b32 s{s_ml}, s{st}, 3
    s_mov_b64 s[{s_done}:{s_done+1}], 0
    s_lshl_b32 s{s_f0}, s{st}, 8
    s_add_u32 s{s_f0}, s{s_f0}, s{s_mine+1}
    s_add_u32 s{s_f1}, s{s_lo}, s{s_ni}
    s_sub_u32 s{s_f1}, s{s_f1}, 1
    s_lshr_b32 s{s_f1}, s{s_f1}, 3
    s_lshl_b32 s{s_f1}, s{s_f1}, 8
    s_add_u32 s{s_f1}, s{s_f1}, s{s_mine+1}
    """)
    for t in (1, 2):
        a(f"""
        s_add_u32 s{st+1}, s{s_lo}, {t}
        s_lshr_b32 s{st+1}, s{st+1}, 3
        s_cmp_lg_u32 s{st+1}, s{st}
        s_cselect_b64 s[{s_sel[t]}:{s_sel[t]+1}], -1, 0
        """)
    a(f"""
    s_cmp_lt_u32 s{s_nb}, 3
    s_cbranch_scc1 L_fc_zero
    s_sub_u32 s{st}, s{s_lo}, s{s_wlo}
    s_lshl_b32 s{st}, s{st}, 10
    s_add_u32 s{st}, s{st}, 0x20000
    v_add_u32 v{VA}, s{st}, v{VO}
    s_add_u32 s{st}, s{s_ml}, 0x{LDS_ML:x}
    v_add_u32 v{VA+1}, s{st}, v{VML}
    ds_read_b128 v[0:3], v{VA}
    ds_read_b128 v[4:7], v{VA} offset:1024
    ds_read_b128 v[8:11], v{VA} offset:2048
    ds_read_b64 v[{MLB(0)}:{MLB(0)+1}], v{VA+1}
    ds_read_b64 v[{MLB(0)+2}:{MLB(0)+3}], v{VA+1} offset:8
    s_bitset1_b64 s[{s_done}:{s_done+1}], s{s_jj}
    s_waitcnt lgkmcnt(0)
    v_mov_b32 v{MX[0]}, v{MLB(0)}
    v_mov_b32 v{DEN[0]}, v{MLB(0)+1}
    v_mov_b32 v{MX[1]}, v{MLB(0)+2}
    v_mov_b32 v{DEN[1]}, v{MLB(0)+3}
    """)
    for r in range(12):
        a(f"""
        v_lshlrev_b32 v{ACC+2*r}, 16, v{r}
        v_and_b32 v{ACC+2*r+1}, 0xffff0000, v{r}
        """)
    a("s_branch L_fc_init")
    a.label("L_fc_zero")
    for X in range(2):
        a(f"v_mov_b32 v{MX[X]}, 0xff800000")
        a(f"v_mov_b32 v{DEN[X]}, 0")
    for r in range(24):
        a(f"v_mov_b32 v{ACC+r}, 0")
    a.label("L_fc_init")
    a(f"s_add_u32 s{s_ml}, s{s_ml}, 0x{WS_ML:x}")
    if cfg["flagmode"] == "part":
        POLL = f"""buffer_load_dword v{VF}, v{VFO}, {WSR}, s{s_f0} offen sc1
    buffer_load_dword v{WT}, v{VFO}, {WSR}, s{s_f1} offen sc1
    s_waitcnt vmcnt(0)
    v_cmp_eq_u32 vcc, s{s_nonce}, v{VF}
    s_and_b64 s[{s_rdy}:{s_rdy+1}], vcc, s[{s_mask}:{s_mask+1}]
    v_cmp_eq_u32 vcc, s{s_nonce}, v{WT}
    s_and_b64 s[{s_rdy}:{s_rdy+1}], vcc, s[{s_rdy}:{s_rdy+1}]"""
    else:
        POLL = f"""buffer_load_dwordx2 v[{VF}:{VF+1}], v{VFO}, {WSR}, s{s_mine+1} offen sc1
    s_waitcnt vmcnt(0)
    v_cmp_eq_u32 vcc, s{s_nonce}, v{VF}
    s_and_b64 s[{s_rdy}:{s_rdy+1}], vcc, s[{s_mask}:{s_mask+1}]
    v_cmp_eq_u32 vcc, s{s_nonce2}, v{VF+1}
    s_and_b64 s[{s_rdy}:{s_rdy+1}], vcc, s[{s_rdy}:{s_rdy+1}]"""
    a.label("L_fc_poll")
    a(f"""
    {POLL}
    s_andn2_b64 s[{s_rdy}:{s_rdy+1}], s[{s_rdy}:{s_rdy+1}], s[{s_done}:{s_done+1}]
    s_cbranch_scc1 L_fc_go
    s_sleep {cfg["poll_sleep"]}
    s_sub_u32 s{s_to}, s{s_to}, 1
    s_cmp_lg_u32 s{s_to}, 0
    s_cbranch_scc1 L_fc_poll
    s_branch L_fc_store
    """)
    a.label("L_fc_go")
    sstamp(99)
    a(f"""
    s_mov_b64 s[{s_r0}:{s_r0+1}], s[{s_rdy}:{s_rdy+1}]
    v_mov_b32 v{MN[0]}, v{MX[0]}
    v_mov_b32 v{MN[1]}, v{MX[1]}
    """)
    for k in range(8):
        a(f"""
        s_ff1_i32_b64 s{st}, s[{s_rdy}:{s_rdy+1}]
        s_bitset0_b64 s[{s_rdy}:{s_rdy+1}], s{st}
        s_add_u32 s{st}, s{st}, s{s_E}
        s_lshl_b32 s{SJ(k)}, s{st}, 16
        s_lshl_b32 s{st}, s{st}, 11
        s_add_u32 s{st}, s{st}, s{s_ml}
        s_add_u32 s{SJ(k)}, s{SJ(k)}, s{s_o}
        s_mov_b32 s{s_cnt}, {k+1}
        buffer_load_dwordx4 v[{MLB(k)}:{MLB(k)+3}], v{VML}, {WSR}, s{st} offen{ldf}
        """)
        if k < 7:
            a(f"""
            s_cmp_eq_u64 s[{s_rdy}:{s_rdy+1}], 0
            s_cbranch_scc1 L_fc_taken
            """)
    a.label("L_fc_taken")
    a(f"""
    s_andn2_b64 s[{s_r0}:{s_r0+1}], s[{s_r0}:{s_r0+1}], s[{s_rdy}:{s_rdy+1}]
    s_or_b64 s[{s_done}:{s_done+1}], s[{s_done}:{s_done+1}], s[{s_r0}:{s_r0+1}]
    s_cmp_eq_u32 s{s_ni}, 2
    s_cbranch_scc1 L_fc_r2
    s_cmp_eq_u32 s{s_ni}, 3
    s_cbranch_scc1 L_fc_r3
    """)
    def sel(dst, pair, t):
        if t == 0:
            return None
        return f"v_cndmask_b32 v{dst}, v{pair[0]}, v{pair[1]}, s[{s_sel[t]}:{s_sel[t]+1}]"
    for NI in (1, 2, 3):
        tag = f"r{NI}"
        a.label(f"L_fc_{tag}")
        def oload(k):
            for c in range(NI):
                a(f"buffer_load_dwordx4 v[{OB(k)+4*c}:{OB(k)+4*c+3}], v{VO}, {WSR}, s{SJ(k)} offen offset:{1024*c}{ldf}")
        for k in range(7, -1, -1):
            a(f"""
            s_cmp_le_u32 s{s_cnt}, {k}
            s_cbranch_scc1 L_fc_{tag}_p{k}
            """)
            if k + LA < 8:
                a(f"""
                s_cmp_gt_u32 s{s_cnt}, {k + LA}
                s_cbranch_scc1 L_fc_{tag}_pd
                """)
            oload(k)
            a.label(f"L_fc_{tag}_p{k}")
        a.label(f"L_fc_{tag}_pd")
        cst(0)
        for c in range(1, LA):
            a(f"""
            s_cmp_eq_u32 s{s_cnt}, {c}
            s_cbranch_scc0 L_fc_{tag}_w{c}
            s_waitcnt vmcnt({NI*c})
            """)
            a.label(f"L_fc_{tag}_w{c}")
        a(f"s_waitcnt vmcnt({NI*LA})")
        cst(1)
        NSET = 1 if NI == 1 else 2
        for k in range(8):
            if k:
                a(f"""
                s_cmp_le_u32 s{s_cnt}, {k}
                s_cbranch_scc1 L_fc_{tag}_max
                """)
            for X in range(NSET):
                a(f"v_max_f32 v{MN[X]}, v{MN[X]}, v{MLB(k)+2*X}")
        a.label(f"L_fc_{tag}_max")
        for X in range(NSET):
            a(f"""
            v_sub_f32 v{SC[X]}, v{MX[X]}, v{MN[X]}
            v_exp_f32 v{SC[X]}, v{SC[X]}
            v_mov_b32 v{MX[X]}, v{MN[X]}
            """)
        for X in range(NSET):
            a(f"v_mul_f32 v{DEN[X]}, v{DEN[X]}, v{SC[X]}")
        for t in range(NI):
            if t:
                a(sel(WT, SC, t))
            for r in range(8):
                a(f"v_mul_f32 v{ACC+8*t+r}, v{ACC+8*t+r}, v{WT if t else SC[0]}")
        for k in range(7, -1, -1):
            if k:
                a(f"""
                s_cmp_le_u32 s{s_cnt}, {k}
                s_cbranch_scc1 L_fc_{tag}_u{k}
                """)
            if k - LA >= 0:
                oload(k - LA)
            for X in range(NSET):
                a(f"v_sub_f32 v{W[X]}, v{MLB(k)+2*X}, v{MN[X]}")
            for X in range(NSET):
                a(f"v_exp_f32 v{W[X]}, v{W[X]}")
            a("s_nop 0")
            for X in range(NSET):
                a(f"v_fmac_f32 v{DEN[X]}, v{W[X]}, v{MLB(k)+2*X+1}")
            for t in range(NI):
                if t:
                    a(sel(WT, W, t))
                a(f"s_waitcnt vmcnt({NI*min(k, LA) + NI - 1 - t})")
                for r in range(4):
                    u0, u1 = U0 + 2 * (r & 1), U1 + 2 * (r & 1)
                    a(f"""
                    v_lshlrev_b32 v{u0}, 16, v{OB(k)+4*t+r}
                    v_and_b32 v{u1}, 0xffff0000, v{OB(k)+4*t+r}
                    v_fmac_f32 v{ACC+8*t+2*r}, v{WT if t else W[0]}, v{u0}
                    v_fmac_f32 v{ACC+8*t+2*r+1}, v{WT if t else W[0]}, v{u1}
                    """)
            a.label(f"L_fc_{tag}_u{k}")
        cst(2)
        a(f"""
        s_cmp_lg_u64 s[{s_done}:{s_done+1}], s[{s_mask}:{s_mask+1}]
        s_cbranch_scc1 L_fc_poll
        """)
        if NI < 3:
            a("s_branch L_fc_store")
    a.label("L_fc_store")
    cst(3)
    a(f"""
    v_rcp_f32 v{SC[0]}, v{DEN[0]}
    v_rcp_f32 v{SC[1]}, v{DEN[1]}
    s_lshl_b32 s{st}, s{s_b}, 2
    s_add_u32 s{st}, s{st}, s{s_h}
    s_lshl_b32 s{st}, s{st}, 16                  ; (b*32 + 8h)*8192
    """)
    for t in range(3):
        if t:
            a(f"""
            s_cmp_le_u32 s{s_ni}, {t}
            s_cbranch_scc1 L_fc_next
            {sel(WT, SC, t)}
            """)
        A0 = ACC + 8 * t
        a(f"""
        s_add_u32 s{st+1}, s{s_lo}, {t}
        s_lshr_b32 s{st+2}, s{st+1}, 3
        s_lshl_b32 s{st+2}, s{st+2}, 13
        s_and_b32 s{st+1}, s{st+1}, 7
        s_lshl_b32 s{st+1}, s{st+1}, 5
        s_add_u32 s{st+1}, s{st+1}, s{st+2}
        s_add_u32 s{st+1}, s{st+1}, s{st}
        """)
        for r in range(8):
            a(f"v_mul_f32 v{A0+r}, v{A0+r}, v{WT if t else SC[0]}")
        for r in range(4):
            a(f"v_cvt_pk_bf16_f32 v{A0+r}, v{A0+2*r}, v{A0+2*r+1}")
        a(f"""
        s_nop 1
        v_permlane32_swap_b32 v{A0}, v{A0+2}
        v_permlane32_swap_b32 v{A0+1}, v{A0+3}
        buffer_store_dwordx4 v[{A0}:{A0+3}], v{VOUT}, s[{SRD_X}:{SRD_X+3}], s{st+1} offen{cfg['out_flags']}
        """)
    a.label("L_fc_next")
    a(f"""
    s_add_u32 s{s_lo}, s{s_lo}, 3
    s_cmp_lt_u32 s{s_lo}, s{s_hi}
    s_nop 1
    s_cbranch_scc1 L_fc_outer
    """)
    a.label("L_fc_end")


def emit_combine(a, cfg):
    K = "pa_combine_kernel"
    NB = 12
    a.raw(f".globl {K}\n.p2align 8\n.type {K},@function")
    a.label(K)
    VL, VCL, VT_ = 200, 201, 202
    ACC = 160
    DEN, MX, MN, SC, W = 170, 171, 172, 173, 174
    U0, U1 = 176, 177
    OB = 0
    MLB = 64
    SRD_C, SRD_W, SRD_O = 20, 24, 28
    sw, sb, sh, swx, sn, sE, sbase, sj = 40, 41, 42, 43, 44, 45, 46, 47
    st = 60
    a(f"""
    s_cmp_ge_u32 s2, 256
    s_cbranch_scc1 L_cend
    s_load_dwordx16 s[4:19], s[0:1], 0
    {"s_memrealtime s[100:101]" if cfg.get("cpad_to_us") else ""}
    v_lshrrev_b32 v{VT_}, 6, v0
    v_and_b32 v{VL}, 63, v0
    s_lshr_b32 s{sb}, s2, 5
    v_readfirstlane_b32 s{sw}, v{VT_}
    s_lshr_b32 s{sh}, s2, 3
    s_and_b32 s{sh}, s{sh}, 3
    s_and_b32 s{swx}, s2, 7
    v_and_b32 v{VT_+1}, 7, v{VL}
    v_lshlrev_b32 v{VT_+1}, 2, v{VT_+1}
    s_waitcnt lgkmcnt(0)
    """)
    emit_srd(a, SRD_C, s_cl, 32)
    a(f"buffer_load_dword v{VCL}, v{VT_+1}, s[{SRD_C}:{SRD_C+3}], 0 offen")
    emit_srd(a, SRD_W, s_ws, WS_BYTES)
    emit_srd(a, SRD_O, s_out, Q_BYTES)
    VOFF, VML, VOUT = 180, 181, 182
    a(f"""
    s_lshl_b32 s{st}, s{swx}, 13
    s_lshl_b32 s{st+1}, s{sw}, 10
    s_add_u32 s{st}, s{st}, s{st+1}
    v_lshlrev_b32 v{VOFF}, 4, v{VL}
    v_add_u32 v{VOFF}, s{st}, v{VOFF}
    s_lshl_b32 s{st}, s{swx}, 8
    s_add_u32 s{st}, s{st}, 0x{WS_ML:x}
    v_and_b32 v{VML}, 31, v{VL}
    v_lshlrev_b32 v{VOUT}, 8, v{VML}             ; q*256
    v_lshlrev_b32 v{VML}, 3, v{VML}
    v_add_u32 v{VML}, s{st}, v{VML}
    v_lshrrev_b32 v{VT_+2}, 5, v{VL}
    v_lshl_add_u32 v{VOUT}, v{VT_+2}, 3, v{VOUT} ; + h2*8
    s_lshl_b32 s{st}, s2, 13
    s_lshl_b32 s{st+1}, s{sw}, 5
    s_add_u32 s{st}, s{st}, s{st+1}
    v_add_u32 v{VOUT}, s{st}, v{VOUT}
    v_mov_b32 v{DEN}, 0
    v_mov_b32 v{MX}, 0xff800000
    """)
    for r in range(8):
        a(f"v_mov_b32 v{ACC+r}, 0")
    a("s_waitcnt vmcnt(0)")
    R = emit_partition(a, VL, VCL, VT_, st)
    a(f"""
    s_add_u32 s{st}, s{st}, s{sb}
    v_readlane_b32 s{sn}, v{R['n']}, s{st}
    v_readlane_b32 s{sE}, v{R['incl']}, s{st}
    s_nop 3
    s_sub_u32 s{sE}, s{sE}, s{sn}
    s_min_u32 s{sn}, s{sn}, 64
    s_lshl_b32 s{st}, s{sh}, 6
    s_add_u32 s{sE}, s{sE}, s{st}                ; first wgslot
    s_mov_b32 s{sbase}, 0
    """)
    a.label("L_cloop")
    for j in range(NB):
        a(f"""
        s_add_u32 s{sj}, s{sbase}, {j}
        s_add_u32 s{st}, s{sE}, s{sj}
        s_lshl_b32 s{st+1}, s{st}, 16
        s_lshl_b32 s{st}, s{st}, 11
        s_cmp_lt_u32 s{sj}, s{sn}
        s_cselect_b32 s{st+1}, s{st+1}, 0x80000000
        s_cselect_b32 s{st}, s{st}, 0x80000000
        buffer_load_dwordx2 v[{MLB+2*j}:{MLB+2*j+1}], v{VML}, s[{SRD_W}:{SRD_W+3}], s{st} offen
        buffer_load_dwordx4 v[{OB+4*j}:{OB+4*j+3}], v{VOFF}, s[{SRD_W}:{SRD_W+3}], s{st+1} offen
        """)
    a(f"v_mov_b32 v{MN}, v{MX}")
    for j in range(NB):
        a(f"""
        s_add_u32 s{sj}, s{sbase}, {j}
        s_cmp_ge_u32 s{sj}, s{sn}
        s_cbranch_scc1 L_cmaxdone
        s_waitcnt vmcnt({2*(NB-1-j)+1})
        v_max_f32 v{MN}, v{MN}, v{MLB+2*j}
        """)
    a.label("L_cmaxdone")
    a(f"""
    v_sub_f32 v{SC}, v{MX}, v{MN}
    v_exp_f32 v{SC}, v{SC}
    v_mov_b32 v{MX}, v{MN}
    v_mul_f32 v{DEN}, v{DEN}, v{SC}
    """)
    for r in range(8):
        a(f"v_mul_f32 v{ACC+r}, v{ACC+r}, v{SC}")
    for j in range(NB):
        a(f"""
        s_add_u32 s{sj}, s{sbase}, {j}
        s_cmp_ge_u32 s{sj}, s{sn}
        s_cbranch_scc1 L_cfin
        v_sub_f32 v{W}, v{MLB+2*j}, v{MX}
        v_exp_f32 v{W}, v{W}
        s_waitcnt vmcnt({2*(NB-1-j)})
        v_fmac_f32 v{DEN}, v{W}, v{MLB+2*j+1}
        """)
        for r in range(4):
            a(f"""
            v_lshlrev_b32 v{U0}, 16, v{OB+4*j+r}
            v_and_b32 v{U1}, 0xffff0000, v{OB+4*j+r}
            v_fmac_f32 v{ACC+2*r}, v{W}, v{U0}
            v_fmac_f32 v{ACC+2*r+1}, v{W}, v{U1}
            """)
    a(f"""
    s_add_u32 s{sbase}, s{sbase}, {NB}
    s_branch L_cloop
    """)
    a.label("L_cfin")
    a(f"""
    v_rcp_f32 v{SC}, v{DEN}
    s_nop 0
    """)
    for r in range(8):
        a(f"v_mul_f32 v{ACC+r}, v{ACC+r}, v{SC}")
    for r in range(4):
        a(f"v_cvt_pk_bf16_f32 v{ACC+r}, v{ACC+2*r}, v{ACC+2*r+1}")
    a(f"""
    buffer_store_dwordx2 v[{ACC}:{ACC+1}], v{VOUT}, s[{SRD_O}:{SRD_O+3}], 0 offen
    buffer_store_dwordx2 v[{ACC+2}:{ACC+3}], v{VOUT}, s[{SRD_O}:{SRD_O+3}], 0 offen offset:16
    """)
    if cfg.get("cpad_to_us"):
        a(f"""
        s_waitcnt vmcnt(0)
        s_add_u32 s92, s100, {int(cfg["cpad_to_us"]*100)}
        """)
        a.label("L_cdelay")
        a(f"""
        s_sleep 4
        s_memrealtime s[90:91]
        s_waitcnt lgkmcnt(0)
        s_sub_u32 s93, s92, s90
        s_cmp_gt_i32 s93, 0
        s_cbranch_scc1 L_cdelay
        """)
    a.label("L_cend")
    a("s_endpgm")


def descriptor(name, vgpr, accum, sgpr=102):
    return f"""
.p2align 6
.amdhsa_kernel {name}
  .amdhsa_next_free_vgpr {vgpr}
  .amdhsa_next_free_sgpr {sgpr}
  .amdhsa_accum_offset {accum}
  .amdhsa_group_segment_fixed_size 0
  .amdhsa_kernarg_size 64
  .amdhsa_user_sgpr_count 2
  .amdhsa_user_sgpr_kernarg_segment_ptr 1
  .amdhsa_system_sgpr_workgroup_id_x 1
.end_amdhsa_kernel
"""


DEFAULT_CFG = dict(
    vslots=[9, 10, 11, 12, 13, 14, 15, 16, 17, 18, 19, 20, 21, 22, 23, 24],
    rl_slot=22,
    dma_slots=[25, 26, 27, 29],
    dma_cost=12,
    patch_slot=9,
    delta=3,
    br_dist=2,
    empty_gaps=[31],
    bar_period=2,
    pp0=1, pp1=0, ppA=[7, 15], ppB=[15, 31], ppQ=[1, 3, 5, 7],
    pk=1,
    warm=1,
    zero_early=64,
    thr_log2=12,
    st_flags=" sc1",
    fused=1, cld_flags=" sc1", poll_sleep=1, poll_max=200000, cpk=0, clook=3, out_flags=" sc1",
    depth=6, map=0, flagmode="wg", tlbwarm=0, cwarm=0, peel=3, skew=0, peel_slots=[19, 22, 25, 27],
    ld_flags=" nt",
)


def generate(cfg=None, out=OUT):
    c = dict(DEFAULT_CFG)
    if cfg:
        c.update(cfg)
    global LDFLAGS
    LDFLAGS = c["ld_flags"]
    a = Asm()
    a.raw(f"""; Paged attention (GQA, split-KV) for gfx950 -- generated by gen.py (hand-scheduled)
; kernel 1: 256 workgroups, each 256 q rows x a key range of one (batch, kv head); partials -> d_ws
; kernel 2: combines the partials
{("; @launch grid=(256,1,1) block=(256,1,1) lds=163840" if c["fused"] else "; @launch kernel=" + NAME + "_kernel grid=(256,1,1) block=(256,1,1) lds=163840" + chr(10) + "; @launch kernel=pa_combine_kernel grid=(256,1,1) block=(512,1,1) lds=0")}
{"; @launch kernel=pa_nop_kernel grid=(1,1,1) block=(64,1,1) lds=0" + chr(10) if c.get("nop3") else ""}.amdgcn_target "amdgcn-amd-amdhsa--gfx950"
.text""")
    emit_main(a, c)
    if not c["fused"]:
        emit_combine(a, c)
    if c.get("nop3"):
        a.raw(".globl pa_nop_kernel\n.p2align 8\n.type pa_nop_kernel,@function\npa_nop_kernel:\n    s_endpgm")
    a.raw('.section .rodata,"a"')
    if c.get("nop3"):
        a.raw(descriptor("pa_nop_kernel", 8, 8))
    a.raw(descriptor(NAME + "_kernel", 384, 256))
    if not c["fused"]:
        a.raw(descriptor("pa_combine_kernel", 216, 216))
    open(out, "w").write(a.text())


if __name__ == "__main__":
    import json
    cfg = json.loads(sys.argv[1]) if len(sys.argv) > 1 else None
    generate(cfg, sys.argv[2] if len(sys.argv) > 2 else OUT)
```

```python
import sys, math

NAME = "standalone__paged_block_table_kv_pagedattention__sampling"
OUT = "cdna_kernels/%s.s" % NAME

KV_BYTES = 4100 * 16384
Q_BYTES = 8 * 32 * 32 * 128 * 2
BT_BYTES = 8 * 512 * 4
WS_ML = 0x1000000
LDS_ML = 0x27000
LDS_NONCE = 0x27ff0
WS_DBG = WS_ML + 256 * 2048
WS_FLAG = WS_DBG + 0x100000
WS_BYTES = WS_FLAG + 32 * 2048
SCALE = math.log2(math.e) / math.sqrt(128.0)
THR_LOG2 = 12

import struct
def f32bits(x):
    return struct.unpack("<I", struct.pack("<f", x))[0]

class Asm:
    def __init__(self):
        self.lines = []
    def __call__(self, s):
        for l in s.strip("\n").split("\n"):
            self.lines.append("    " + l.strip())
    def label(self, l):
        self.lines.append(l + ":")
    def raw(self, s):
        self.lines.append(s)
    def text(self):
        return "\n".join(self.lines) + "\n"

S_ = {0: 0, 1: 16}
C_ = {0: 32, 1: 48}
O_ = {0: 64, 1: 128}
P_ = {0: 192, 1: 200}
KADDR = 208
VADDR = 216
VOFFK = 220
VOFFV = 222
PAGES = 224
L_ = {0: 225, 1: 226}
M_ = {0: 227, 1: 228}
TS_ = {0: (229, 230), 1: (231, 232)}
ET = 233
VLANE = 239
VT = 240
VH4 = 255
AQ = {0: 0, 1: 32}
AK = 64
AV = 96

s_wg = 2
s_q, s_k, s_v, s_bt, s_cl, s_out, s_dbg, s_ws = 4, 6, 8, 10, 12, 14, 16, 18
SRD_K, SRD_V, SRD_Q, SRD_X, SRD_WS, SRD_BT = 20, 24, 28, 32, 36, 76
s_w = 40
s_h = 41
s_slot = 42
s_n = 43
s_i = 44
s_patch = 45
s_rem = 46
s_idx = 47
s_pg = {0: 48, 1: 49}
s_m0k = 50
s_m0v = 51
s_thr = {0: 52, 1: 52}
s_E = 53
s_nb = 82
s_jj = 3
s_mine = 74
s_own, s_wlo, s_lo, s_hi = 84, 85, 86, 87
s_floor = {0: 54, 1: 55}
s_first = {0: 56, 1: 57}
s_ret = 58
s_t0 = 60
s_qb = 84
s_qlds = 54
s_b = 80
s_start = 81
s_scale = 56
s_wgslot = 83


def emit_srd(a, d, ptr, nbytes):
    a(f"""
    s_mov_b32 s{d}, s{ptr}
    s_and_b32 s{d+1}, s{ptr+1}, 0xffff
    s_mov_b32 s{d+2}, 0x{nbytes:x}
    s_mov_b32 s{d+3}, 0x20000
    """)


def sum8(a, dst, src, tmp):
    a(f"""
    s_nop 1
    v_add_u32_dpp v{tmp}, v{src}, v{src} quad_perm:[1,0,3,2] row_mask:0xf bank_mask:0xf
    s_nop 1
    v_add_u32_dpp v{dst}, v{tmp}, v{tmp} quad_perm:[2,3,0,1] row_mask:0xf bank_mask:0xf
    s_nop 1
    v_add_u32_dpp v{dst}, v{dst}, v{dst} row_half_mirror row_mask:0xf bank_mask:0xf
    """)


def emit_partition(a, vlane, vcl, vt, st):
    Lm1, T_, Cc, Nn, NS, INC, Qq, Rr, X0, X1 = range(vt, vt + 10)
    a(f"""
    v_add_u32 v{Lm1}, -1, v{vcl}
    v_min_u32 v{Lm1}, 0x1fff, v{Lm1}
    v_lshrrev_b32 v{T_}, 5, v{Lm1}
    v_add_u32 v{T_}, 1, v{T_}
    """)
    sum8(a, Cc, T_, X0)
    a(f"""
    v_add_u32 v{Cc}, 63, v{Cc}
    v_lshrrev_b32 v{Cc}, 6, v{Cc}
    v_lshrrev_b32 v{X0}, 3, v{vlane}
    v_add_u32 v{Cc}, v{Cc}, v{X0}
    v_cvt_f32_u32 v{X0}, v{Cc}
    v_rcp_f32 v{X0}, v{X0}
    v_add3_u32 v{X1}, v{T_}, v{Cc}, -1
    v_cvt_f32_u32 v{X1}, v{X1}
    v_add_f32 v{X1}, 0.5, v{X1}
    v_mul_f32 v{X1}, v{X1}, v{X0}
    v_cvt_u32_f32 v{Nn}, v{X1}
    """)
    sum8(a, NS, Nn, X0)
    a(f"""
    s_nop 1
    v_add_u32_dpp v{INC}, v{Nn}, v{Nn} row_shr:1 row_mask:0xf bank_mask:0xf bound_ctrl:0
    v_cvt_f32_u32 v{X0}, v{Nn}
    v_rcp_f32 v{X0}, v{X0}
    v_add_u32_dpp v{INC}, v{INC}, v{INC} row_shr:2 row_mask:0xf bank_mask:0xf bound_ctrl:0
    v_cvt_f32_u32 v{X1}, v{T_}
    v_add_f32 v{X1}, 0.5, v{X1}
    v_add_u32_dpp v{INC}, v{INC}, v{INC} row_shr:4 row_mask:0xf bank_mask:0xf bound_ctrl:0
    v_mul_f32 v{X1}, v{X1}, v{X0}
    v_cvt_u32_f32 v{Qq}, v{X1}
    v_add_u32_dpp v{INC}, v{INC}, v{INC} row_shr:8 row_mask:0xf bank_mask:0xf bound_ctrl:0
    v_mul_u32_u24 v{X0}, v{Qq}, v{Nn}
    v_sub_u32 v{Rr}, v{T_}, v{X0}
    v_mov_b32_dpp v{X1}, v{NS} row_shr:8 row_mask:0xf bank_mask:0xf bound_ctrl:0
    v_sub_u32 v{INC}, v{INC}, v{X1}
    v_cmp_ge_u32 vcc, 64, v{NS}
    s_ff1_i32_b64 s{st}, vcc
    s_mov_b64 s[{st+2}:{st+3}], 0xff
    s_lshl_b64 s[{st+2}:{st+3}], s[{st+2}:{st+3}], s{st}
    """)
    return dict(Lm1=Lm1, t=T_, n=Nn, incl=INC, q=Qq, r=Rr)


def sm_stream(X, et=None):
    S = S_[X]; P = P_[X]
    TS0, TS1 = TS_[X]
    et = ET if et is None else et
    def tmp(j):
        if j == 0:
            return TS0, TS1
        k = (j - 1) % 3
        return et + 2 * k, et + 2 * k + 1
    E = lambda j, h: (8, f"v_exp_f32 v{tmp(j)[h]}, v{S + 2 * j + h}")
    A = lambda j, h: (4, f"v_add_f32 v{(TS0, TS1)[h]}, v{(TS0, TS1)[h]}, v{tmp(j)[h]}")
    C = lambda j: (4, f"v_cvt_pk_bf16_f32 v{P + j}, v{tmp(j)[0]}, v{tmp(j)[1]}")
    st = [E(0, 0), E(0, 1), E(1, 0), C(0), E(1, 1)]
    for j in range(1, 7):
        st += [A(j, 0), E(j + 1, 0), A(j, 1), C(j), E(j + 1, 1)]
    st += [A(7, 0), A(7, 1), C(7), (4, f"v_add_f32 v{TS0}, v{TS0}, v{TS1}")]
    return st


def mfma_qk(X, s):
    c = C_[X] if s == 0 else S_[X]
    return (f"v_mfma_f32_32x32x16_bf16 v[{S_[X]}:{S_[X]+15}], a[{AK+4*s}:{AK+4*s+3}], "
            f"a[{AQ[X]+4*s}:{AQ[X]+4*s+3}], v[{c}:{c+15}]")


def mfma_pv(X, f):
    t, dt = f >> 2, f & 3
    o = O_[X] + 16 * dt
    return (f"v_mfma_f32_32x32x16_bf16 v[{o}:{o+15}], a[{AV+4*f}:{AV+4*f+3}], "
            f"v[{P_[X]+4*t}:{P_[X]+4*t+3}], v[{o}:{o+15}]")


def k_read(s, slot):
    return f"ds_read_b128 a[{AK+4*s}:{AK+4*s+3}], v{KADDR+s} offset:{slot*8192}"


def v_read(f, y, slot):
    t, dt = f >> 2, f & 3
    return (f"ds_read_b64_tr_b16 a[{AV+4*f+2*y}:{AV+4*f+2*y+1}], v{VADDR+dt} "
            f"offset:{slot*8192 + (16*t+8*y)*256}")


LDFLAGS = ""
def dma_k(a_list, slot, spg):
    return [f"s_add_u32 m0, s{s_m0k}, {slot*8192}",
            None,
            f"buffer_load_dwordx4 v{VOFFK}, s[{SRD_K}:{SRD_K+3}], s{spg} offen{LDFLAGS} lds",
            f"buffer_load_dwordx4 v{VOFFK+1}, s[{SRD_K}:{SRD_K+3}], s{spg} offen offset:1024{LDFLAGS} lds"]


def dma_v(a_list, slot, spg):
    return [f"s_add_u32 m0, s{s_m0v}, {slot*8192}",
            None,
            f"buffer_load_dwordx4 v{VOFFV}, s[{SRD_V}:{SRD_V+3}], s{spg} offen{LDFLAGS} lds",
            f"buffer_load_dwordx4 v{VOFFV+1}, s[{SRD_V}:{SRD_V+3}], s{spg} offen offset:1024{LDFLAGS} lds"]


def plan_body(k, cfg, tramps=None, peel=None):
    kn = (k + 1) % 8
    kl = k if peel is None else f"p{k}"
    D = cfg["depth"]
    pgn = s_pg[k & 1]
    pgo = s_pg[(k & 1) ^ 1]
    tramps = [] if tramps is None else tramps
    pre = {i: [] for i in range(32)}
    front = {i: [] for i in range(32)}
    valu = {i: [] for i in range(32)}
    tail = {i: [] for i in range(32)}
    for s in range(8):
        front[s + 1].append((4, k_read(s, kn)))
    vslots = cfg["vslots"]
    vr = [(f, y) for f in range(8) for y in range(2)]
    for (f, y), sl in zip(vr, vslots):
        assert sl >= 9 + f, (f, sl)
        front[sl].append((4, v_read(f, y, k)))
    def vr_before(m):
        return sum(1 for sl in vslots if sl < m)
    pre[16].append(f"s_waitcnt lgkmcnt({vr_before(16)})")
    assert vr_before(24) >= 8
    pre[24].append(f"s_waitcnt lgkmcnt({vr_before(24) - 8})")
    assert vr_before(28) == 16
    pre[28].append("s_waitcnt lgkmcnt(0)")
    ds = cfg["dma_slots"]
    dcost = cfg["dma_cost"]
    if peel is None:
        valu[cfg["rl_slot"]].append((4, f"v_readlane_b32 s{pgn}, v{PAGES}, s{s_idx}"))
        tail[cfg["rl_slot"]].append(f"s_add_u32 s{s_idx}, s{s_idx}, 1")
        dk = dma_k(None, (k + D + 1) % 8, pgn)
        dv = dma_v(None, (k + D) % 8, pgo)
        tail[ds[0] - 1].append(dv[0])
        front[ds[0]].append((dcost, dv[2]))
        front[ds[1]].append((dcost, dv[3]))
        assert ds[2] - 1 >= ds[1]
        tail[ds[2] - 1].append(dk[0])
        front[ds[2]].append((dcost, dk[2]))
        front[ds[3]].append((dcost, dk[3]))
        assert ds[2] > cfg["rl_slot"] + 1
    else:
        g, pb = peel
        seq = [dma_k(None, (g + 1) % 8, pb + g + 1), dma_v(None, g % 8, pb + g),
               dma_k(None, (g + 2) % 8, pb + g + 2), dma_v(None, (g + 1) % 8, pb + g + 1)]
        for d_, sl in zip(seq, cfg["peel_slots"]):
            tail[sl - 1].append(d_[0])
            front[sl].append((dcost, d_[2]))
            front[sl + 1].append((dcost, d_[3]))
    ps = cfg["patch_slot"]
    tail[ps - 1].append(f"s_cmp_eq_u32 s{s_i}, s{s_patch}")
    front[ps].insert(0, (8, f"s_cbranch_scc1 L_patch_{kl}"))
    front[ps].insert(1, (0, f"L_patch_ret_{kl}:"))
    tramps.append((f"L_patch_{kl}", "L_sub_patch", f"L_patch_ret_{kl}"))
    assert max(ds) < 30
    tail[30].append(f"s_add_u32 s{s_i}, s{s_i}, 1")
    tail[30].append(f"s_cmp_ge_u32 s{s_i}, s{s_n}")
    front[31].append((8, "s_cbranch_scc1 L_drain"))
    dl = cfg["delta"]
    for X, lo in ((0, 32 - dl), (1, 16 - dl)):
        hi = lo + 15
        bs = (hi + cfg["br_dist"]) % 32
        front[bs].insert(0, (8, f"s_cbranch_vccnz L_fb{X}_{kl}"))
        front[bs].insert(1, (0, f"L_fb{X}_ret_{kl}:"))
        valu[bs].insert(0, (4, f"v_add_f32 v{L_[X]}, v{L_[X]}, v{TS_[X][0]}"))
        tramps.append((f"L_fb{X}_{kl}", f"L_sub_fb{X}", f"L_fb{X}_ret_{kl}"))
    if peel is not None:
        _, _, valu_r, _ = plan_body(k, cfg)
        for g_ in range(32):
            valu[g_] = [x for x in valu_r[g_] if not x[1].startswith("v_readlane")]
        return pre, front, valu, tail
    for X, lo in ((0, 32 - dl), (1, 16 - dl)):
        gaps = [(lo + j) % 32 for j in range(16)]
        st = sm_stream(X) + [(4, f"v_cmp_lt_f32 vcc, s{s_thr[X]}, v{TS_[X][0]}")]
        tot = sum(c for c, _ in st)
        free = [max(0, 24 - sum(c for c, _ in front[g]) - sum(c for c, _ in valu[g])) for g in gaps]
        for n_, g in enumerate(gaps):
            if g in cfg["empty_gaps"]:
                free[n_] = 0
        ftot = sum(free)
        assert ftot >= tot, (ftot, tot)
        acc = 0.0; done = 0; idx = 0
        for n_, g in enumerate(gaps):
            acc += free[n_] * tot / ftot
            used = 0
            while idx < len(st) and used + st[idx][0] <= free[n_] and len(valu[g]) < 5 and \
                    (done + st[idx][0] / 2.0 <= acc or n_ == 15):
                valu[g].append(st[idx]); done += st[idx][0]; used += st[idx][0]; idx += 1
        assert idx == len(st), (X, idx, len(st))
    return pre, front, valu, tail


def skip(t, cfg):
    if cfg.get("no_dma") and t.startswith("buffer_load"): return True
    if cfg.get("no_lds") and t.startswith("ds_read"): return True
    if cfg.get("no_sm") and (t.startswith("v_exp") or t.startswith("v_add_f32") or t.startswith("v_cvt")): return True
    if cfg.get("no_mfma") and t.startswith("v_mfma"): return True
    return False


def emit_body(a, k, tramps, cfg, peel=None, vm=None):
    D = cfg["depth"]
    mf = [mfma_qk(1, s) for s in range(8)] + [mfma_pv(1, f) for f in range(8)] + \
         [mfma_qk(0, s) for s in range(8)] + [mfma_pv(0, f) for f in range(8)]
    pre, front, valu, tail = plan_body(k, cfg, tramps, peel)
    if peel is None and k == 0 and cfg.get("align") is not None:
        a.raw(".p2align 6")
        for _ in range(cfg["align"]):
            a("s_nop 0")
    a.label(f"L_body_{k}" if peel is None else f"L_body_p{k}")
    if cfg.get("stamp") and not cfg.get("light"):
        a(f"""
        s_memtime s[90:91]
        s_mov_b32 m0, s{s_i}
        s_waitcnt lgkmcnt(0)
        v_writelane_b32 v{VT+12}, s90, m0
        """)
    bp = cfg["bar_period"]
    if k % bp == 0:
        a(f"s_waitcnt vmcnt({4*(D-bp) if vm is None else vm})")
        if not cfg.get("no_bar"):
            a("s_barrier")
    if cfg.get("stamp") and not cfg.get("light"):
        a(f"""
        s_memtime s[90:91]
        s_waitcnt lgkmcnt(0)
        v_writelane_b32 v{VT+13}, s90, m0
        """)
    for i in range(32):
        seq = pre[i] + [mf[i]] + [t for _, t in front[i]] + [t for _, t in valu[i]] + tail[i]
        for t in seq:
            if t.endswith(":"):
                a.label(t[:-1])
            elif not skip(t, cfg):
                a(t)
    if k == 7 and peel is None:
        a("s_branch L_body_0")


def emit_rowmax(a, X, mx, t1):
    S = S_[X]
    out = [f"v_max3_f32 v{mx}, v{S}, v{S+1}, v{S+2}"]
    for r in range(3, 15, 2):
        out.append(f"v_max3_f32 v{mx}, v{mx}, v{S+r}, v{S+r+1}")
    out += [f"v_max_f32 v{mx}, v{mx}, v{S+15}", f"v_mov_b32 v{t1}, v{mx}", "s_nop 1",
            f"v_permlane32_swap_b32 v{mx}, v{t1}", "s_nop 1", f"v_max_f32 v{mx}, v{mx}, v{t1}"]
    return out


def emit_fallback(a, X):
    S = S_[X]; C = C_[X]; O = O_[X]; P = P_[X]
    mx, t1, f = VT, VT + 1, VT + 3
    a.label(f"L_sub_fb{X}")
    a("s_nop 7")
    for t in emit_rowmax(a, X, mx, t1):
        a(t)
    a(f"""
    v_max_f32 v{mx}, 0, v{mx}
    v_exp_f32 v{f}, -v{mx}
    v_add_f32 v{M_[X]}, v{M_[X]}, v{mx}
    """)
    for r in range(16):
        a(f"v_sub_f32 v{C+r}, v{C+r}, v{mx}")
        a(f"v_sub_f32 v{S+r}, v{S+r}, v{mx}")
    a(f"v_mul_f32 v{L_[X]}, v{L_[X]}, v{f}")
    for r in range(64):
        a(f"v_mul_f32 v{O+r}, v{O+r}, v{f}")
    for c, t in sm_stream(X, VT + 4):
        a(t)
    a(f"""
    s_nop 3
    s_setpc_b64 s[{s_ret}:{s_ret+1}]
    """)


def emit_patch(a):
    ninf = VT
    a.label("L_sub_patch")
    a(f"""
    s_nop 7
    v_mov_b32 v{ninf}, 0xff800000
    """)
    for r in range(16):
        cst = 8 * (r >> 2) + (r & 3)
        a(f"""
        s_sub_i32 s{s_mine+1}, s{s_rem}, {cst}
        v_cmp_gt_i32 vcc, s{s_mine+1}, v{VH4}
        s_nop 1
        v_cndmask_b32 v{C_[0]+r}, v{ninf}, v{C_[0]+r}, vcc
        v_cndmask_b32 v{C_[1]+r}, v{ninf}, v{C_[1]+r}, vcc
        """)
    a(f"""
    s_nop 3
    s_setpc_b64 s[{s_ret}:{s_ret+1}]
    """)


MAPS = {
    0: f"""s_lshr_b32 s{s_h}, s{s_wg}, 1
    s_and_b32 s{s_h}, s{s_h}, 3
    s_and_b32 s{s_t0}, s{s_wg}, 1
    s_lshl_b32 s{s_t0}, s{s_t0}, 5
    s_lshr_b32 s{s_slot}, s{s_wg}, 3
    s_or_b32 s{s_slot}, s{s_slot}, s{s_t0}""",
    2: f"""s_lshr_b32 s{s_h}, s{s_wg}, 1
    s_and_b32 s{s_h}, s{s_h}, 3
    s_lshr_b32 s{s_slot}, s{s_wg}, 3
    s_cmp_lt_u32 s{s_slot}, 30
    s_cselect_b32 s{s_t0}, s{s_slot}, 63
    s_add_u32 s{s_slot}, s{s_slot}, 30
    s_and_b32 s{s_t0+1}, s{s_wg}, 1
    s_cmp_eq_u32 s{s_t0+1}, 0
    s_cselect_b32 s{s_slot}, s{s_t0}, s{s_slot}""",
    1: f"""s_lshr_b32 s{s_h}, s{s_wg}, 3
    s_and_b32 s{s_h}, s{s_h}, 3
    s_and_b32 s{s_t0}, s{s_wg}, 7
    s_lshl_b32 s{s_t0}, s{s_t0}, 3
    s_lshr_b32 s{s_slot}, s{s_wg}, 5
    s_or_b32 s{s_slot}, s{s_slot}, s{s_t0}""",
}


def emit_pad(a, us, tag):
    a(f"s_add_u32 s92, s100, {int(us*100)}")
    a.label(f"L_pad_{tag}")
    a(f"""
    s_sleep 2
    s_memrealtime s[90:91]
    s_waitcnt lgkmcnt(0)
    s_sub_u32 s93, s92, s90
    s_cmp_gt_i32 s93, 0
    s_cbranch_scc1 L_pad_{tag}
    """)


def emit_main(a, cfg):
    K = NAME + "_kernel"
    D = cfg["depth"]
    assert D <= 7
    a.raw(f".globl {K}\n.p2align 8\n.type {K},@function")
    a.label(K)
    t0, t1, t2, t3 = VT + 11, VT + 12, VT + 13, VT + 14
    VCL = VT + 10
    def sstamp(n):
        if cfg.get("stamp"):
            a(f"""
            s_memtime s[90:91]
            s_waitcnt lgkmcnt(0)
            s_mov_b32 s{n}, s90
            """)
    def pstamp(n):
        if cfg.get("stamp"):
            a(f"""
            s_memtime s[90:91]
            s_waitcnt lgkmcnt(0)
            v_writelane_b32 v{VT+12}, s90, {40+n}
            """)
    a(f"""
    s_cmp_ge_u32 s{s_wg}, 256
    s_cbranch_scc1 L_end
    s_load_dwordx16 s[4:19], s[0:1], 0
    v_lshrrev_b32 v{VT}, 6, v0
    v_and_b32 v{VLANE}, 63, v0
    v_readfirstlane_b32 s{s_w}, v{VT}
    {MAPS[cfg["map"]]}
    v_and_b32 v{VT+1}, 7, v{VLANE}
    v_lshlrev_b32 v{VT+1}, 2, v{VT+1}
    v_lshlrev_b32 v{VT+2}, 7, v{VLANE}
    """)
    if cfg["fused"]:
        a(f"s_memrealtime s[{s_mine}:{s_mine+1}]")
    if cfg.get("stamp"):
        a("s_memtime s[92:93]")
    if cfg.get("stamp") or cfg.get("pad_to_us") or cfg.get("pad_le") or cfg.get("pad_ls") or cfg.get("pad_pub"):
        a("s_memrealtime s[100:101]")
    a(f"""
    s_and_b32 s{s_t0}, s{s_w}, 1
    s_lshl_b32 s{s_t0}, s{s_t0}, 3               ; 8*(w&1)
    s_lshl_b32 s{s_t0+1}, s{s_h}, 8              ; h*256
    v_lshrrev_b32 v{t0}, 4, v{VLANE}             ; l>>4
    v_and_b32 v{t1}, 15, v{VLANE}                ; pc
    v_add_u32 v{t2}, s{s_t0}, v{t0}              ; R&15 for x=0
    v_xor_b32 v{t3}, v{t1}, v{t2}
    v_lshlrev_b32 v{t3}, 4, v{t3}
    v_lshl_add_u32 v{t3}, v{t2}, 10, v{t3}
    v_add_u32 v{VOFFK}, s{s_t0+1}, v{t3}
    v_add_u32 v{t2}, 4, v{t2}                    ; R&15 for x=1
    v_xor_b32 v{t3}, v{t1}, v{t2}
    v_lshlrev_b32 v{t3}, 4, v{t3}
    v_lshl_add_u32 v{t3}, v{t2}, 10, v{t3}
    v_add_u32 v{t3}, s{s_t0+1}, v{t3}
    v_add_u32 v{VOFFK+1}, 0xfffffc00, v{t3}
    v_lshlrev_b32 v{t3}, 2, v{t0}
    v_xor_b32 v{t3}, v{t1}, v{t3}
    v_lshlrev_b32 v{t3}, 4, v{t3}
    v_add_u32 v{t2}, s{s_t0}, v{t0}
    v_lshl_add_u32 v{t3}, v{t2}, 10, v{t3}
    v_add_u32 v{VOFFV}, s{s_t0+1}, v{t3}
    v_add_u32 v{VOFFV+1}, 0xc00, v{VOFFV}        ; +4096 -1024
    s_lshl_b32 s{s_m0k}, s{s_w}, 11
    s_add_u32 s{s_m0v}, s{s_m0k}, 0x10000
    s_mov_b32 s{s_thr[0]}, 0x{f32bits(2.0**cfg["thr_log2"]):x}
    s_mov_b32 s{s_thr[1]}, 0x{f32bits(2.0**cfg["thr_log2"]):x}
    s_mov_b32 s{s_i}, 0
    s_mov_b32 s{s_idx}, {D+1+cfg["peel"]}
    v_lshrrev_b32 v{t0}, 5, v{VLANE}            ; h2
    v_lshlrev_b32 v{VH4}, 2, v{t0}
    v_lshrrev_b32 v{t2}, 4, v{VLANE}
    v_xor_b32 v{t3}, v{t1}, v{t2}
    v_lshlrev_b32 v{t3}, 4, v{t3}
    v_lshl_add_u32 v{ET}, v{t2}, 8, v{t3}        ; Q voffset (j&3 == 0)
    v_xor_b32 v{ET+1}, 64, v{ET}
    v_xor_b32 v{ET+2}, 0x80, v{ET}
    v_xor_b32 v{ET+3}, 0xc0, v{ET}
    v_lshlrev_b32 v{ET+4}, 3, v{VLANE}
    s_lshl_b32 s{s_qlds}, s{s_w}, 13
    s_add_u32 s{s_qlds}, s{s_qlds}, 0x20000      ; Q_A staging : 128K + w*8K
    s_and_b32 s{s_t0}, s{s_w}, 1
    s_lshl_b32 s{s_t0}, s{s_t0}, 13
    s_lshr_b32 s{s_t0+1}, s{s_w}, 1
    s_lshl_b32 s{s_t0+1}, s{s_t0+1}, 16
    s_add_u32 s{s_t0}, s{s_t0}, s{s_t0+1}
    s_add_u32 s{s_qlds+1}, s{s_t0}, 0xc000
    s_waitcnt lgkmcnt(0)
    """)
    emit_srd(a, SRD_X, s_cl, 32)
    a(f"buffer_load_dword v{VCL}, v{VT+1}, s[{SRD_X}:{SRD_X+3}], 0 offen")
    emit_srd(a, SRD_BT, s_bt, BT_BYTES)
    emit_srd(a, SRD_Q, s_q, Q_BYTES)
    nwarm = 0
    if cfg["warm"]:
        a(f"""
        s_lshr_b32 s{s_t0}, s{s_wg}, 3
        s_lshr_b32 s{s_t0+1}, s{s_t0}, 2
        s_lshl_b32 s{s_t0+1}, s{s_t0+1}, 18          ; b*262144
        s_and_b32 s{s_t0+2}, s{s_t0}, 3
        s_lshl_b32 s{s_t0+2}, s{s_t0+2}, 14
        s_add_u32 s{s_t0+1}, s{s_t0+1}, s{s_t0+2}
        s_lshl_b32 s{s_t0+2}, s{s_h}, 16
        s_add_u32 s{s_t0+1}, s{s_t0+1}, s{s_t0+2}
        s_lshl_b32 s{s_t0+2}, s{s_w}, 13
        s_add_u32 s{s_t0+1}, s{s_t0+1}, s{s_t0+2}
        s_lshl_b32 s{s_t0}, s{s_t0}, 9
        s_cmp_lt_u32 s{s_w}, 2
        s_cselect_b32 s{s_t0+1}, s{s_t0+1}, 0x80000000
        s_cmp_eq_u32 s{s_w}, 2
        s_cselect_b32 s{s_t0}, s{s_t0}, 0x80000000
        v_min_u32 v{VT+3}, 0x180, v{VT+2}
        buffer_load_dword v{P_[0]}, v{VT+2}, s[{SRD_Q}:{SRD_Q+3}], s{s_t0+1} offen
        buffer_load_dword v{P_[0]+1}, v{VT+3}, s[{SRD_BT}:{SRD_BT+3}], s{s_t0} offen
        """)
        nwarm = 2
    if cfg["cwarm"]:
        a(f"""
        s_getpc_b64 s[{SRD_K}:{SRD_K+1}]
        """)
        a.label("L_pc0")
        a(f"""
        s_and_b32 s{SRD_K+1}, s{SRD_K+1}, 0xffff
        s_mov_b32 s{SRD_K+2}, L_code_end-L_pc0
        s_mov_b32 s{SRD_K+3}, 0x20000
        s_lshl_b32 s{s_t0}, s{s_w}, 13
        buffer_load_dword v{P_[0]+2}, v{VT+2}, s[{SRD_K}:{SRD_K+3}], s{s_t0} offen
        """)
        nwarm += 1
    emit_srd(a, SRD_K, s_k, KV_BYTES)
    emit_srd(a, SRD_V, s_v, KV_BYTES)
    emit_srd(a, SRD_WS, s_ws, WS_BYTES)
    if cfg["tlbwarm"]:
        a(f"""
        s_lshr_b32 s{s_t0}, s{s_wg}, 3
        s_lshl_b32 s{s_t0}, s{s_t0}, 2
        s_add_u32 s{s_t0}, s{s_t0}, s{s_w}
        s_cmp_lt_u32 s{s_t0}, {cfg["tlbwarm"]}
        s_cselect_b32 s{s_t0}, 0, 0x80000000
        v_lshlrev_b32 v{VT+3}, 21, v{VLANE}
        buffer_load_dword v{P_[0]+3}, v{VT+3}, s[{SRD_K}:{SRD_K+3}], s{s_t0} offen nt
        buffer_load_dword v{P_[0]+4}, v{VT+3}, s[{SRD_V}:{SRD_V+3}], s{s_t0} offen nt
        buffer_load_dword v{P_[0]+5}, v{VT+3}, s[{SRD_WS}:{SRD_WS+3}], s{s_t0} offen nt
        """)
        nwarm += 3
    sstamp(88)
    a(f"""
    v_and_b32 v{t1}, 31, v{VLANE}               ; key / q
    v_and_b32 v{t2}, 15, v{VLANE}
    v_xor_b32 v{t2}, v{t2}, v{t0}               ; (key&15)^h2
    v_lshlrev_b32 v{t2}, 4, v{t2}
    v_lshl_add_u32 v{KADDR}, v{t1}, 8, v{t2}
    """)
    for s in range(1, 8):
        a(f"v_xor_b32 v{KADDR+s}, {s << 5}, v{KADDR}")
    a(f"""
    v_bfe_u32 v{t1}, v{VLANE}, 2, 2              ; r
    v_add_u32 v{t2}, v{VH4}, v{t1}               ; 4h2 + r
    v_lshlrev_b32 v{t2}, 8, v{t2}
    v_bfe_u32 v{t3}, v{VLANE}, 4, 1              ; sub
    v_lshl_add_u32 v{t2}, v{t3}, 5, v{t2}
    v_and_b32 v{t3}, 3, v{VLANE}                 ; c
    v_lshl_add_u32 v{t2}, v{t3}, 3, v{t2}
    v_add_u32 v{t2}, 0x10000, v{t2}
    v_lshl_add_u32 v{VADDR}, v{t1}, 6, v{t2}     ; dt=0 : (0^r)<<6
    """)
    for dt in range(1, 4):
        a(f"v_xor_b32 v{VADDR+dt}, {dt << 6}, v{VADDR}")
    a(f"s_waitcnt vmcnt({nwarm})")
    sstamp(89)
    st = s_t0
    R = emit_partition(a, VLANE, VCL, VT, st)
    sn, sincl, sLm1, scl, sq, sr, sj = st + 4, st + 5, st + 6, st + 7, st + 8, st + 9, st + 10
    SKEW1 = SKEW2 = ""
    if cfg.get("skew"):
        sh = cfg["skew"]
        g0, g1 = st + 11, st + 12
        SKEW1 = f"""s_sub_u32 s{g0}, s{sn}, s{sj}
    s_mul_i32 s{g1}, s{g0}, s{sj}                ; j*(nb-j)
    s_add_u32 s{st}, s{g1}, s{g0}
    s_sub_u32 s{st}, s{st}, s{sj}
    s_sub_u32 s{st}, s{st}, 1                    ; (j+1)*(nb-j-1)
    s_mul_i32 s{g1}, s{g1}, {cfg.get("skew_mul", 1)}
    s_mul_i32 s{st}, s{st}, {cfg.get("skew_mul", 1)}
    s_lshr_b32 s{g0}, s{g1}, {sh}
    s_lshr_b32 s{g1}, s{st}, {sh}
    s_cmp_gt_u32 s{sq}, s{sn}
    s_cselect_b32 s{g0}, s{g0}, 0
    s_cselect_b32 s{g1}, s{g1}, 0
    s_sub_u32 s{s_start}, s{s_start}, s{g0}"""
        SKEW2 = f"""s_add_u32 s{s_n}, s{s_n}, s{g0}
    s_sub_u32 s{s_n}, s{s_n}, s{g1}"""
    a(f"""
    v_cmp_lt_u32 vcc, s{s_slot}, v{R['incl']}
    s_and_b64 vcc, vcc, s[{st+2}:{st+3}]
    s_cbranch_scc0 L_end
    s_ff1_i32_b64 s{st}, vcc
    s_and_b32 s{s_b}, s{st}, 7
    v_readlane_b32 s{sn}, v{R['n']}, s{st}
    v_readlane_b32 s{sincl}, v{R['incl']}, s{st}
    v_readlane_b32 s{sq}, v{R['q']}, s{st}
    v_readlane_b32 s{sr}, v{R['r']}, s{st}
    v_readlane_b32 s{sLm1}, v{R['Lm1']}, s{st}
    v_readlane_b32 s{scl}, v{VCL}, s{st}
    s_lshl_b32 s{st+2}, s{s_b}, 5
    s_lshl_b32 s{st+1}, s{s_h}, 3
    s_add_u32 s{st+2}, s{st+2}, s{st+1}
    s_lshl_b32 s{st+1}, s{s_w}, 1
    s_add_u32 s{st+2}, s{st+2}, s{st+1}
    s_lshl_b32 s{st+2}, s{st+2}, 13              ; Q base = ((b*32 + 8h + 2w)*32)*256
    s_add_u32 s{st+3}, s{st+2}, 0x2000
    s_sub_u32 s{sj}, s{sincl}, s{sn}
    s_sub_u32 s{sj}, s{s_slot}, s{sj}            ; j = slot - E_b
    s_mul_i32 s{s_start}, s{sj}, s{sq}
    s_min_u32 s{st}, s{sj}, s{sr}
    s_add_u32 s{s_start}, s{s_start}, s{st}
    {SKEW1}
    s_lshl_b32 s{st}, s{s_b}, 9
    s_lshl_b32 s{st+1}, s{s_start}, 1
    s_add_u32 s{st}, s{st}, s{st+1}
    s_lshr_b32 s{st+1}, s{s_w}, 1
    s_add_u32 s{st}, s{st}, s{st+1}
    s_lshl_b32 s{st}, s{st}, 2
    buffer_load_dword v{PAGES}, v{ET+4}, s[{SRD_BT}:{SRD_BT+3}], s{st} offen
    """)
    def qload(X):
        for hf in range(2):
            a(f"s_add_u32 m0, s{s_qlds+X}, {4096*hf}")
            a(f"s_add_u32 s{s_qb+2}, s{s_qb+X}, {4096*hf}")
            for j in range(4):
                a(f"buffer_load_dwordx4 v{ET+j}, s[{SRD_Q}:{SRD_Q+3}], s{s_qb+2} offen offset:{1024*j} lds")
    a(f"""
    s_mov_b32 s{s_qb}, s{st+2}
    s_mov_b32 s{s_qb+1}, s{st+3}
    """)
    qload(0)
    emit_srd(a, SRD_X, s_dbg, 256)
    a(f"""
    s_or_b32 s{s_mine}, s{s_mine}, 1
    v_mov_b32 v{VT+8}, s{s_mine}
    v_mov_b32 v{VT+9}, s{s_mine+1}
    v_mov_b32 v{VT+7}, 0
    s_or_b32 s{st}, s{s_wg}, s{s_w}
    s_cmp_eq_u32 s{st}, 0
    s_cselect_b32 s{st}, 0, 0x80000000
    s_mov_b64 exec, 1
    buffer_store_dwordx2 v[{VT+8}:{VT+9}], v{VT+7}, s[{SRD_X}:{SRD_X+3}], s{st} offen sc1
    s_mov_b64 exec, -1
    """)
    a(f"""
    s_cmp_lt_u32 s{sj}, s{sr}
    s_addc_u32 s{s_n}, s{sq}, 0                  ; n = q + (j<r)
    {SKEW2}
    s_min_u32 s{s_n}, s{s_n}, 54
    s_and_b32 s{s_rem}, s{sLm1}, 31
    s_add_u32 s{s_rem}, s{s_rem}, 1
    s_add_u32 s{st}, s{sj}, 1
    s_cmp_eq_u32 s{st}, s{sn}
    s_cselect_b32 s{s_rem}, s{s_rem}, 32
    s_sub_u32 s{s_patch}, s{s_n}, 2
    s_cmp_lt_u32 s{s_rem}, 32
    s_cselect_b32 s{s_patch}, s{s_patch}, 0x7fffffff
    s_mov_b32 s{s_scale}, 0x{f32bits(SCALE):x}
    s_cmp_lt_i32 s{scl}, 1
    s_cselect_b32 s{s_scale}, 0, s{s_scale}
    s_mov_b32 s{s_scale+1}, s{s_scale}
    s_lshl_b32 s{s_wgslot}, s{s_h}, 6
    s_add_u32 s{s_wgslot}, s{s_wgslot}, s{s_slot}
    s_min_u32 s{s_nb}, s{sn}, 64
    s_mov_b32 s{s_jj}, s{sj}
    s_sub_u32 s{s_E}, s{s_wgslot}, s{sj}
    """)
    sstamp(93)
    nz = cfg["zero_early"]
    for r in range(64, 64 + nz):
        a(f"v_mov_b32 v{r}, 0")
    a(f"""
    v_mov_b32 v{t2}, 0x80000000
    v_cmp_gt_u32 vcc, s{s_n}, v{VLANE}
    s_waitcnt vmcnt(9)
    v_lshlrev_b32 v{PAGES}, 14, v{PAGES}
    v_cndmask_b32 v{PAGES}, v{t2}, v{PAGES}, vcc
    s_nop 0
    """)
    PEEL = cfg["peel"]
    NPRE = D - PEEL
    for j in range(D + 1 + PEEL):
        a(f"v_readlane_b32 s{st+j}, v{PAGES}, {j}")
    a("s_nop 3")
    vm = ["QA"] * 8 + ["NONCE"]
    def vwait(tag):
        idx = max(i for i, t in enumerate(vm) if t == tag)
        a(f"s_waitcnt vmcnt({len(vm) - 1 - idx})")
    def issue(lst, tag):
        a(lst[0]); a("s_nop 0"); a(lst[2]); a(lst[3])
        vm.extend([tag, tag])
    pairs = [("K", 0)]
    for j in range(NPRE):
        pairs += [("K", j + 1), ("V", j)]
    def pair():
        if not pairs:
            return
        kind, j = pairs.pop(0)
        issue(dma_k(None, j, st + j) if kind == "K" else dma_v(None, j, st + j), f"{kind}{j}")
    QRAW = {0: 0, 1: 128}
    def qread(X):
        for s in range(8):
            a(f"v_add_u32 v{VT+4+s}, s{s_qlds+X}, v{KADDR+s}")
        for s in range(8):
            r = QRAW[X] + 4 * s
            a(f"ds_read_b128 v[{r}:{r+3}], v{VT+4+s}")
    def prescale(X, packed):
        out = []
        for i in range(32):
            r = QRAW[X] + i
            ta, tb = VT + (i & 1) * 2, VT + (i & 1) * 2 + 1
            g = []
            if i % 4 == 0:
                g.append(f"s_waitcnt lgkmcnt({7 - i // 4})")
            g += [f"v_lshlrev_b32 v{ta}, 16, v{r}", f"v_and_b32 v{tb}, 0xffff0000, v{r}"]
            if packed(i):
                g.append(f"v_pk_mul_f32 v[{ta}:{tb}], v[{ta}:{tb}], s[{s_scale}:{s_scale+1}]")
            else:
                g += [f"v_mul_f32 v{ta}, s{s_scale}, v{ta}", f"v_mul_f32 v{tb}, s{s_scale}, v{tb}"]
            g += [f"v_cvt_pk_bf16_f32 v{ta}, v{ta}, v{tb}", f"v_accvgpr_write_b32 a{32*X+i}, v{ta}"]
            out.append(g)
        return out
    pstamp(0)
    for _ in range(cfg["pp0"]):
        pair()
    qload(1); vm.extend(["QB"] * 8)
    for _ in range(cfg["pp1"]):
        pair()
    pstamp(1)
    a(f"""
    s_lshl_b32 s{s_lo}, s{s_jj}, 2
    v_add_u32 v{VT+6}, s{s_lo}, v{VLANE}
    v_lshlrev_b32 v{VT+6}, 4, v{VT+6}
    v_cvt_f32_u32 v{VT+6}, v{VT+6}
    v_cvt_f32_u32 v{VT+7}, s{s_nb}
    v_rcp_f32 v{VT+7}, v{VT+7}
    v_add_f32 v{VT+6}, 0.5, v{VT+6}
    s_add_u32 s{s_hi}, s{s_w}, 1
    v_mul_f32 v{VT+6}, v{VT+6}, v{VT+7}
    v_cvt_u32_f32 v{VT+6}, v{VT+6}
    s_lshl_b32 s{st+11}, s{s_w}, 4
    v_readlane_b32 s{s_wlo}, v{VT+6}, 0
    v_readlane_b32 s{s_own}, v{VT+6}, 4
    v_readlane_b32 s{s_hi}, v{VT+6}, s{s_hi}
    v_readlane_b32 s{s_lo}, v{VT+6}, s{s_w}
    s_sub_u32 s{s_own}, s{s_own}, s{s_wlo}
    s_bfm_b64 s[{st+12}:{st+13}], s{s_own}, s{s_wlo}
    s_lshr_b64 s[{st+12}:{st+13}], s[{st+12}:{st+13}], s{st+11}
    s_cmp_ge_u32 s{s_nb}, 3
    s_cselect_b32 s{s_own}, s{st+12}, 0
    """)
    for r in list(range(64 + nz, 128)) + list(range(160, 208)) + list(range(32, 64)):
        a(f"v_mov_b32 v{r}, 0")
    for r in range(32):
        a(f"v_accvgpr_write_b32 a{AV+r}, 0")
    a(f"""
    v_mov_b32 v{L_[0]}, 0
    v_mov_b32 v{L_[1]}, 0
    s_cmp_eq_u32 s{s_patch}, -1
    s_cbranch_scc0 L_nopatch0
    s_call_b64 s[{s_ret}:{s_ret+1}], L_sub_patch
    """)
    a.label("L_nopatch0")
    vwait("QA")
    pstamp(10)
    qread(0)
    for i, g in enumerate(prescale(0, lambda i: cfg["pk"])):
        for t in g:
            a(t)
        if i in cfg["ppA"]:
            pair()
    pstamp(2)
    vwait("QB")
    pstamp(11)
    qread(1)
    for i, g in enumerate(prescale(1, lambda i: cfg["pk"])):
        for t in g:
            a(t)
        if i in cfg["ppB"]:
            pair()
    pstamp(3)
    vwait("K0")
    pstamp(4)
    a("s_barrier")
    pstamp(12)
    for s in range(8):
        a(k_read(s, 0))
    for s in range(8):
        a(f"s_waitcnt lgkmcnt({7-s})")
        a(mfma_qk(0, s))
        if s in cfg["ppQ"]:
            pair()
        for r in range(128 + 4 * s, 132 + 4 * s):
            a(f"v_mov_b32 v{r}, 0")
    a(mfma_qk(1, 0))
    a("s_nop 7")
    mxa = emit_rowmax(a, 0, M_[0], VT)
    mxa += [f"v_sub_f32 v{S_[0]+r}, v{S_[0]+r}, v{M_[0]}" for r in range(16)]
    mxa += [f"v_sub_f32 v{C_[0]+r}, v{C_[0]+r}, v{M_[0]}" for r in range(16)]
    for s in range(1, 8):
        a(mfma_qk(1, s))
        for _ in range(5):
            a(mxa.pop(0))
    while pairs:
        pair()
    a(f"s_mov_b32 s{s_pg[(PEEL & 1) ^ 1]}, s{st+D+PEEL}")
    while mxa:
        a(mxa.pop(0))
    a("s_nop 7")
    for t in emit_rowmax(a, 1, M_[1], VT):
        a(t)
    for r in range(16):
        a(f"v_sub_f32 v{C_[1]+r}, v{C_[1]+r}, v{M_[1]}")
    if cfg["fused"]:
        a(f"""
        s_cmp_eq_u32 s{s_w}, 0
        s_cselect_b32 s{s_mine}, 0, 0x80000000
        buffer_load_dwordx2 v[{VT+10}:{VT+11}], off, s[{SRD_X}:{SRD_X+3}], s{s_mine} sc1
        """)
    sstamp(94)
    sstamp(95)
    if cfg.get("pad_ls"):
        emit_pad(a, cfg["pad_ls"], "ls")
    pre, front, valu, tail = plan_body(7, cfg)
    hd = [t for g in range(32 - cfg["delta"], 32) for _, t in valu[g]
          if not t.startswith(f"v_add_f32 v{L_[1]},")]
    for t in hd:
        a(t)
    a("s_nop 1")
    tramps = []
    for k in range(PEEL):
        issued = NPRE + 2 * k
        need = k + cfg["bar_period"]
        assert issued >= need
        emit_body(a, k, tramps, cfg, peel=(NPRE + 2 * k, st), vm=4 * (issued - need))
    if PEEL:
        a(f"s_branch L_body_{PEEL}")
    for k in range(8):
        emit_body(a, k, tramps, cfg)
    a.label("L_drain")
    if cfg.get("pad_le"):
        emit_pad(a, cfg["pad_le"], "le")
    if cfg.get("stamp"):
        a(f"""
        s_memtime s[90:91]
        s_waitcnt lgkmcnt(0)
        s_mov_b32 s96, s90
        """)
    stf = cfg['st_flags']
    VLD = VT + 5
    assert cfg["fused"]
    def conv(X, dt):
        o = O_[X] + 16 * dt
        d = 8 * (4 * X + dt)
        out = [f"v_cvt_pk_bf16_f32 v{d+j}, v{o+2*j}, v{o+2*j+1}" for j in range(8)]
        out.append(f"s_add_u32 s{st+1}, s{st}, {X*8192 + dt*2048}")
        for kp in range(2):
            f = 8 * X + 2 * dt + kp
            gs = lambda so: f"buffer_store_dwordx4 v[{d+4*kp}:{d+4*kp+3}], v{VT+4}, s[{SRD_WS}:{SRD_WS+3}], {so} offen offset:{1024*kp}{stf}"
            dw = f"ds_write_b128 v{VLD}, v[{d+4*kp}:{d+4*kp+3}] offset:{1024*f}"
            if X == 0 or cfg["flagmode"] != "part":
                out.append(f"""s_bitcmp1_b32 s{s_own}, {f}
                s_cbranch_scc1 L_own_{f}
                {gs(f"s{st+1}")}
                s_branch L_own_r{f}
                L_own_{f}:
                {dw}
                L_own_r{f}:""")
            else:
                out.append(f"""s_bitcmp1_b32 s{s_own}, {f}
                s_cselect_b32 s{st+3}, 0x80000000, s{st+1}
                {gs(f"s{st+3}")}
                s_cbranch_scc0 L_own_r{f}
                {dw}
                L_own_r{f}:""")
        return out
    def put(t):
        for l in t.split("\n"):
            l = l.strip()
            if l.endswith(":"):
                a.label(l[:-1])
            elif l:
                a(l)
    ep = f"""
    v_mov_b32 v{VT+6}, v{L_[0]}
    v_mov_b32 v{VT+7}, v{L_[1]}
    s_lshl_b32 s{st}, s{s_wgslot}, 11
    s_lshl_b32 s{st+1}, s{s_w}, 4
    s_add_u32 s{st}, s{st}, s{st+1}
    v_permlane32_swap_b32 v{L_[0]}, v{VT+6}
    v_permlane32_swap_b32 v{L_[1]}, v{VT+7}
    v_lshlrev_b32 v{VT+8}, 6, v{VLANE}
    v_mov_b32 v{VT}, v{M_[0]}
    v_add_f32 v{VT+1}, v{L_[0]}, v{VT+6}
    v_mov_b32 v{VT+2}, v{M_[1]}
    v_add_f32 v{VT+3}, v{L_[1]}, v{VT+7}
    s_add_u32 s{st}, s{st}, 0x{WS_ML:x}
    s_add_u32 s{st+1}, s{st+1}, 0x{LDS_ML:x}
    v_add_u32 v{VT+9}, s{st+1}, v{VT+8}
    s_mov_b32 exec_hi, 0\nbuffer_store_dwordx4 v[{VT}:{VT+3}], v{VT+8}, s[{SRD_WS}:{SRD_WS+3}], s{st} offen{stf}\nds_write_b128 v{VT+9}, v[{VT}:{VT+3}]\ns_mov_b64 exec, -1
    s_lshl_b32 s{st}, s{s_wgslot}, 16
    s_lshl_b32 s{st+1}, s{s_w}, 14
    s_add_u32 s{st}, s{st}, s{st+1}
    v_lshlrev_b32 v{VT+4}, 4, v{VLANE}
    s_lshl_b32 s{st+2}, s{s_w}, 4
    s_sub_u32 s{st+2}, s{st+2}, s{s_wlo}
    s_lshl_b32 s{st+2}, s{st+2}, 10
    s_add_u32 s{st+2}, s{st+2}, 0x20000
    v_add_u32 v{VLD}, s{st+2}, v{VT+4}
    """.strip().split("\n    ")
    ep += conv(0, 0) + conv(0, 1) + conv(0, 2) + conv(0, 3)
    for f in range(8):
        a(mfma_pv(1, f))
        for _ in range(8):
            put(ep.pop(0))
    while ep:
        put(ep.pop(0))
    a("s_nop 7")
    for dt in range(4):
        for t in conv(1, dt):
            put(t)
    if cfg["fused"]:
        emit_fused_combine(a, cfg, sstamp)
    if cfg.get("stamp"):
        a(f"""
        s_mov_b64 exec, -1
        s_waitcnt vmcnt(0)
        s_memtime s[90:91]
        s_memrealtime s[66:67]
        s_getreg_b32 s98, hwreg(HW_REG_XCC_ID)
        s_waitcnt lgkmcnt(0)
        v_mov_b32 v{VT+14}, 0
        v_writelane_b32 v{VT+14}, s92, 0
        v_writelane_b32 v{VT+14}, s93, 1
        v_writelane_b32 v{VT+14}, s94, 2
        v_writelane_b32 v{VT+14}, s95, 3
        v_writelane_b32 v{VT+14}, s96, 4
        v_writelane_b32 v{VT+14}, s90, 5
        v_writelane_b32 v{VT+14}, s{s_n}, 6
        v_writelane_b32 v{VT+14}, s98, 7
        v_writelane_b32 v{VT+14}, s100, 8
        v_writelane_b32 v{VT+14}, s66, 9
        v_writelane_b32 v{VT+14}, s88, 10
        v_writelane_b32 v{VT+14}, s89, 11
        v_writelane_b32 v{VT+14}, s97, 12
        v_writelane_b32 v{VT+14}, s99, 13
        v_writelane_b32 v{VT+14}, s{s_h}, 14
        s_lshl_b32 s{st}, s{s_wg}, 12
        s_lshl_b32 s{st+1}, s{s_w}, 10
        s_add_u32 s{st}, s{st}, s{st+1}
        s_add_u32 s{st}, s{st}, 0x{WS_DBG:x}
        v_lshlrev_b32 v{VT}, 2, v{VLANE}
        buffer_store_dword v{VT+12}, v{VT}, s[{SRD_WS}:{SRD_WS+3}], s{st} offen
        buffer_store_dword v{VT+13}, v{VT}, s[{SRD_WS}:{SRD_WS+3}], s{st} offen offset:256
        buffer_store_dword v{VT+14}, v{VT}, s[{SRD_WS}:{SRD_WS+3}], s{st} offen offset:512
        """)
    if cfg.get("pad_to_us"):
        a(f"""
        s_waitcnt vmcnt(0)
        s_add_u32 s92, s100, {int(cfg["pad_to_us"]*100)}
        """)
    if cfg.get("delay_us"):
        a(f"""
        s_memrealtime s[90:91]
        s_waitcnt lgkmcnt(0)
        s_add_u32 s92, s90, {int(cfg["delay_us"]*100)}
        """)
    if cfg.get("delay_us") or cfg.get("pad_to_us"):
        a.label("L_delay")
        a(f"""
        s_sleep 4
        s_memrealtime s[90:91]
        s_waitcnt lgkmcnt(0)
        s_sub_u32 s93, s92, s90
        s_cmp_gt_i32 s93, 0
        s_cbranch_scc1 L_delay
        """)
    a.label("L_end")
    a("s_endpgm")
    for lab, sub, ret in tramps:
        a.label(lab)
        a(f"s_call_b64 s[{s_ret}:{s_ret+1}], {sub}")
        a(f"s_branch {ret}")
    a.label("L_code_end")
    emit_fallback(a, 0)
    emit_fallback(a, 1)
    emit_patch(a)


def emit_fused_combine(a, cfg, sstamp):
    st = s_t0
    ldf = cfg["cld_flags"]
    s_nonce, s_to, s_mask, s_done, s_rdy, s_r0 = 54, 55, 56, 62, 64, 78
    s_cnt, s_ni, s_o, s_ml = 68, 69, 70, 72
    s_f0, s_f1 = 42, 52
    s_nonce2 = 46
    assert cfg["flagmode"] == "wg"
    s_sel = (None, 66, 76)
    SJ = lambda k: (48, 49, 50, 51, 71, 73, 44, 45)[k]
    OB = lambda k: 12 * k
    MLB = lambda k: 96 + 4 * k
    ACC = 160
    MX, DEN, MN, SC, W = (192, 193), (194, 195), (196, 197), (198, 199), (204, 205)
    U0, U1, WT = 200, 201, 211
    VO, VML, VOUT, VF, VFO, VA = 206, 207, 208, 214, 210, 212
    WSR = f"s[{SRD_WS}:{SRD_WS+3}]"
    LA = cfg["clook"]
    def cst(n):
        if cfg.get("stamp"):
            a(f"""
            s_memtime s[90:91]
            s_waitcnt lgkmcnt(0)
            v_writelane_b32 v{VT+12}, s90, {53+n}
            """)
    a(f"""
    v_lshlrev_b32 v{VO}, 4, v{VLANE}
    v_and_b32 v{VML}, 31, v{VLANE}
    v_lshlrev_b32 v{VOUT}, 8, v{VML}
    v_lshl_add_u32 v{VOUT}, v{VH4}, 2, v{VOUT}   ; q*256 + h2*16
    v_lshlrev_b32 v{VML}, 6, v{VML}
    v_lshlrev_b32 v{VFO}, 3, v{VLANE}
    v_cmp_gt_u32 vcc, s{s_nb}, v{VLANE}
    s_mov_b64 s[{s_mask}:{s_mask+1}], vcc
    s_lshl_b32 s{s_mine+1}, s{s_b}, 2
    s_add_u32 s{s_mine+1}, s{s_mine+1}, s{s_h}
    s_lshl_b32 s{s_mine+1}, s{s_mine+1}, 11
    s_add_u32 s{s_mine+1}, s{s_mine+1}, 0x{WS_FLAG:x}
    s_lshl_b32 s{st}, s{s_jj}, 3
    s_add_u32 s{st}, s{st}, s{s_mine+1}
    s_mov_b32 s{s_to}, {cfg["poll_max"]}
    v_mov_b32 v{U0}, 0x{LDS_NONCE:x}
    """)
    if cfg.get("pad_pub"):
        a("s_waitcnt vmcnt(0) lgkmcnt(0)")
        emit_pad(a, cfg["pad_pub"], "pub")
    a(f"""
    s_waitcnt vmcnt(0)
    s_cmp_lg_u32 s{s_w}, 0
    s_cbranch_scc1 L_fc_nz
    v_readfirstlane_b32 s{s_nonce}, v{VT+10}
    s_cmp_lg_u32 s{s_nonce}, 0
    s_cbranch_scc1 L_fc_havenonce
    """)
    a.label("L_fc_npoll")
    a(f"""
    buffer_load_dwordx2 v[{VT+10}:{VT+11}], off, s[{SRD_X}:{SRD_X+3}], 0 sc1
    s_waitcnt vmcnt(0)
    v_readfirstlane_b32 s{s_nonce}, v{VT+10}
    s_sub_u32 s{s_to}, s{s_to}, 1
    s_cmp_eq_u32 s{s_to}, 1
    s_cbranch_scc1 L_fc_havenonce
    s_cmp_eq_u32 s{s_nonce}, 0
    s_cbranch_scc1 L_fc_npoll
    """)
    a.label("L_fc_havenonce")
    a(f"ds_write_b64 v{U0}, v[{VT+10}:{VT+11}]")
    a.label("L_fc_nz")
    a(f"""
    s_waitcnt lgkmcnt(0)
    s_barrier
    s_cmp_eq_u32 s{s_w}, 0
    s_cselect_b64 exec, 1, 0
    s_cbranch_scc0 L_fc_noflag
    buffer_store_dwordx2 v[{VT+10}:{VT+11}], off, {WSR}, s{st} sc1
    """)
    a.label("L_fc_noflag")
    a(f"""
    s_mov_b64 exec, -1
    ds_read_b64 v[{VF}:{VF+1}], v{U0}
    """)
    emit_srd(a, SRD_X, s_out, Q_BYTES)
    a(f"""
    s_waitcnt lgkmcnt(0)
    v_readfirstlane_b32 s{s_nonce}, v{VF}
    v_readfirstlane_b32 s{s_nonce2}, v{VF+1}
    """)
    sstamp(97)
    a(f"""
    s_cmp_ge_u32 s{s_lo}, s{s_hi}
    s_cbranch_scc1 L_fc_end
    """)
    a.label("L_fc_outer")
    a(f"""
    s_sub_u32 s{s_ni}, s{s_hi}, s{s_lo}
    s_min_u32 s{s_ni}, s{s_ni}, 3
    s_lshl_b32 s{s_o}, s{s_lo}, 10
    s_lshr_b32 s{st}, s{s_lo}, 3                 ; u0
    s_lshl_b32 s{s_ml}, s{st}, 3
    s_mov_b64 s[{s_done}:{s_done+1}], 0
    s_lshl_b32 s{s_f0}, s{st}, 8
    s_add_u32 s{s_f0}, s{s_f0}, s{s_mine+1}
    s_add_u32 s{s_f1}, s{s_lo}, s{s_ni}
    s_sub_u32 s{s_f1}, s{s_f1}, 1
    s_lshr_b32 s{s_f1}, s{s_f1}, 3
    s_lshl_b32 s{s_f1}, s{s_f1}, 8
    s_add_u32 s{s_f1}, s{s_f1}, s{s_mine+1}
    """)
    for t in (1, 2):
        a(f"""
        s_add_u32 s{st+1}, s{s_lo}, {t}
        s_lshr_b32 s{st+1}, s{st+1}, 3
        s_cmp_lg_u32 s{st+1}, s{st}
        s_cselect_b64 s[{s_sel[t]}:{s_sel[t]+1}], -1, 0
        """)
    a(f"""
    s_cmp_lt_u32 s{s_nb}, 3
    s_cbranch_scc1 L_fc_zero
    s_sub_u32 s{st}, s{s_lo}, s{s_wlo}
    s_lshl_b32 s{st}, s{st}, 10
    s_add_u32 s{st}, s{st}, 0x20000
    v_add_u32 v{VA}, s{st}, v{VO}
    s_add_u32 s{st}, s{s_ml}, 0x{LDS_ML:x}
    v_add_u32 v{VA+1}, s{st}, v{VML}
    ds_read_b128 v[0:3], v{VA}
    ds_read_b128 v[4:7], v{VA} offset:1024
    ds_read_b128 v[8:11], v{VA} offset:2048
    ds_read_b64 v[{MLB(0)}:{MLB(0)+1}], v{VA+1}
    ds_read_b64 v[{MLB(0)+2}:{MLB(0)+3}], v{VA+1} offset:8
    s_bitset1_b64 s[{s_done}:{s_done+1}], s{s_jj}
    s_waitcnt lgkmcnt(0)
    v_mov_b32 v{MX[0]}, v{MLB(0)}
    v_mov_b32 v{DEN[0]}, v{MLB(0)+1}
    v_mov_b32 v{MX[1]}, v{MLB(0)+2}
    v_mov_b32 v{DEN[1]}, v{MLB(0)+3}
    """)
    for r in range(12):
        a(f"""
        v_lshlrev_b32 v{ACC+2*r}, 16, v{r}
        v_and_b32 v{ACC+2*r+1}, 0xffff0000, v{r}
        """)
    a("s_branch L_fc_init")
    a.label("L_fc_zero")
    for X in range(2):
        a(f"v_mov_b32 v{MX[X]}, 0xff800000")
        a(f"v_mov_b32 v{DEN[X]}, 0")
    for r in range(24):
        a(f"v_mov_b32 v{ACC+r}, 0")
    a.label("L_fc_init")
    a(f"s_add_u32 s{s_ml}, s{s_ml}, 0x{WS_ML:x}")
    if cfg["flagmode"] == "part":
        POLL = f"""buffer_load_dword v{VF}, v{VFO}, {WSR}, s{s_f0} offen sc1
    buffer_load_dword v{WT}, v{VFO}, {WSR}, s{s_f1} offen sc1
    s_waitcnt vmcnt(0)
    v_cmp_eq_u32 vcc, s{s_nonce}, v{VF}
    s_and_b64 s[{s_rdy}:{s_rdy+1}], vcc, s[{s_mask}:{s_mask+1}]
    v_cmp_eq_u32 vcc, s{s_nonce}, v{WT}
    s_and_b64 s[{s_rdy}:{s_rdy+1}], vcc, s[{s_rdy}:{s_rdy+1}]"""
    else:
        POLL = f"""buffer_load_dwordx2 v[{VF}:{VF+1}], v{VFO}, {WSR}, s{s_mine+1} offen sc1
    s_waitcnt vmcnt(0)
    v_cmp_eq_u32 vcc, s{s_nonce}, v{VF}
    s_and_b64 s[{s_rdy}:{s_rdy+1}], vcc, s[{s_mask}:{s_mask+1}]
    v_cmp_eq_u32 vcc, s{s_nonce2}, v{VF+1}
    s_and_b64 s[{s_rdy}:{s_rdy+1}], vcc, s[{s_rdy}:{s_rdy+1}]"""
    a.label("L_fc_poll")
    a(f"""
    {POLL}
    s_andn2_b64 s[{s_rdy}:{s_rdy+1}], s[{s_rdy}:{s_rdy+1}], s[{s_done}:{s_done+1}]
    s_cbranch_scc1 L_fc_go
    s_sleep {cfg["poll_sleep"]}
    s_sub_u32 s{s_to}, s{s_to}, 1
    s_cmp_lg_u32 s{s_to}, 0
    s_cbranch_scc1 L_fc_poll
    s_branch L_fc_store
    """)
    a.label("L_fc_go")
    sstamp(99)
    a(f"""
    s_mov_b64 s[{s_r0}:{s_r0+1}], s[{s_rdy}:{s_rdy+1}]
    v_mov_b32 v{MN[0]}, v{MX[0]}
    v_mov_b32 v{MN[1]}, v{MX[1]}
    """)
    for k in range(8):
        a(f"""
        s_ff1_i32_b64 s{st}, s[{s_rdy}:{s_rdy+1}]
        s_bitset0_b64 s[{s_rdy}:{s_rdy+1}], s{st}
        s_add_u32 s{st}, s{st}, s{s_E}
        s_lshl_b32 s{SJ(k)}, s{st}, 16
        s_lshl_b32 s{st}, s{st}, 11
        s_add_u32 s{st}, s{st}, s{s_ml}
        s_add_u32 s{SJ(k)}, s{SJ(k)}, s{s_o}
        s_mov_b32 s{s_cnt}, {k+1}
        buffer_load_dwordx4 v[{MLB(k)}:{MLB(k)+3}], v{VML}, {WSR}, s{st} offen{ldf}
        """)
        if k < 7:
            a(f"""
            s_cmp_eq_u64 s[{s_rdy}:{s_rdy+1}], 0
            s_cbranch_scc1 L_fc_taken
            """)
    a.label("L_fc_taken")
    a(f"""
    s_andn2_b64 s[{s_r0}:{s_r0+1}], s[{s_r0}:{s_r0+1}], s[{s_rdy}:{s_rdy+1}]
    s_or_b64 s[{s_done}:{s_done+1}], s[{s_done}:{s_done+1}], s[{s_r0}:{s_r0+1}]
    s_cmp_eq_u32 s{s_ni}, 2
    s_cbranch_scc1 L_fc_r2
    s_cmp_eq_u32 s{s_ni}, 3
    s_cbranch_scc1 L_fc_r3
    """)
    def sel(dst, pair, t):
        if t == 0:
            return None
        return f"v_cndmask_b32 v{dst}, v{pair[0]}, v{pair[1]}, s[{s_sel[t]}:{s_sel[t]+1}]"
    for NI in (1, 2, 3):
        tag = f"r{NI}"
        a.label(f"L_fc_{tag}")
        def oload(k):
            for c in range(NI):
                a(f"buffer_load_dwordx4 v[{OB(k)+4*c}:{OB(k)+4*c+3}], v{VO}, {WSR}, s{SJ(k)} offen offset:{1024*c}{ldf}")
        for k in range(7, -1, -1):
            a(f"""
            s_cmp_le_u32 s{s_cnt}, {k}
            s_cbranch_scc1 L_fc_{tag}_p{k}
            """)
            if k + LA < 8:
                a(f"""
                s_cmp_gt_u32 s{s_cnt}, {k + LA}
                s_cbranch_scc1 L_fc_{tag}_pd
                """)
            oload(k)
            a.label(f"L_fc_{tag}_p{k}")
        a.label(f"L_fc_{tag}_pd")
        cst(0)
        for c in range(1, LA):
            a(f"""
            s_cmp_eq_u32 s{s_cnt}, {c}
            s_cbranch_scc0 L_fc_{tag}_w{c}
            s_waitcnt vmcnt({NI*c})
            """)
            a.label(f"L_fc_{tag}_w{c}")
        a(f"s_waitcnt vmcnt({NI*LA})")
        cst(1)
        NSET = 1 if NI == 1 else 2
        for k in range(8):
            if k:
                a(f"""
                s_cmp_le_u32 s{s_cnt}, {k}
                s_cbranch_scc1 L_fc_{tag}_max
                """)
            for X in range(NSET):
                a(f"v_max_f32 v{MN[X]}, v{MN[X]}, v{MLB(k)+2*X}")
        a.label(f"L_fc_{tag}_max")
        for X in range(NSET):
            a(f"""
            v_sub_f32 v{SC[X]}, v{MX[X]}, v{MN[X]}
            v_exp_f32 v{SC[X]}, v{SC[X]}
            v_mov_b32 v{MX[X]}, v{MN[X]}
            """)
        for X in range(NSET):
            a(f"v_mul_f32 v{DEN[X]}, v{DEN[X]}, v{SC[X]}")
        for t in range(NI):
            if t:
                a(sel(WT, SC, t))
            for r in range(8):
                a(f"v_mul_f32 v{ACC+8*t+r}, v{ACC+8*t+r}, v{WT if t else SC[0]}")
        for k in range(7, -1, -1):
            if k:
                a(f"""
                s_cmp_le_u32 s{s_cnt}, {k}
                s_cbranch_scc1 L_fc_{tag}_u{k}
                """)
            if k - LA >= 0:
                oload(k - LA)
            for X in range(NSET):
                a(f"v_sub_f32 v{W[X]}, v{MLB(k)+2*X}, v{MN[X]}")
            for X in range(NSET):
                a(f"v_exp_f32 v{W[X]}, v{W[X]}")
            a("s_nop 0")
            for X in range(NSET):
                a(f"v_fmac_f32 v{DEN[X]}, v{W[X]}, v{MLB(k)+2*X+1}")
            for t in range(NI):
                if t:
                    a(sel(WT, W, t))
                a(f"s_waitcnt vmcnt({NI*min(k, LA) + NI - 1 - t})")
                for r in range(4):
                    u0, u1 = U0 + 2 * (r & 1), U1 + 2 * (r & 1)
                    a(f"""
                    v_lshlrev_b32 v{u0}, 16, v{OB(k)+4*t+r}
                    v_and_b32 v{u1}, 0xffff0000, v{OB(k)+4*t+r}
                    v_fmac_f32 v{ACC+8*t+2*r}, v{WT if t else W[0]}, v{u0}
                    v_fmac_f32 v{ACC+8*t+2*r+1}, v{WT if t else W[0]}, v{u1}
                    """)
            a.label(f"L_fc_{tag}_u{k}")
        cst(2)
        a(f"""
        s_cmp_lg_u64 s[{s_done}:{s_done+1}], s[{s_mask}:{s_mask+1}]
        s_cbranch_scc1 L_fc_poll
        """)
        if NI < 3:
            a("s_branch L_fc_store")
    a.label("L_fc_store")
    cst(3)
    a(f"""
    v_rcp_f32 v{SC[0]}, v{DEN[0]}
    v_rcp_f32 v{SC[1]}, v{DEN[1]}
    s_lshl_b32 s{st}, s{s_b}, 2
    s_add_u32 s{st}, s{st}, s{s_h}
    s_lshl_b32 s{st}, s{st}, 16                  ; (b*32 + 8h)*8192
    """)
    for t in range(3):
        if t:
            a(f"""
            s_cmp_le_u32 s{s_ni}, {t}
            s_cbranch_scc1 L_fc_next
            {sel(WT, SC, t)}
            """)
        A0 = ACC + 8 * t
        a(f"""
        s_add_u32 s{st+1}, s{s_lo}, {t}
        s_lshr_b32 s{st+2}, s{st+1}, 3
        s_lshl_b32 s{st+2}, s{st+2}, 13
        s_and_b32 s{st+1}, s{st+1}, 7
        s_lshl_b32 s{st+1}, s{st+1}, 5
        s_add_u32 s{st+1}, s{st+1}, s{st+2}
        s_add_u32 s{st+1}, s{st+1}, s{st}
        """)
        for r in range(8):
            a(f"v_mul_f32 v{A0+r}, v{A0+r}, v{WT if t else SC[0]}")
        for r in range(4):
            a(f"v_cvt_pk_bf16_f32 v{A0+r}, v{A0+2*r}, v{A0+2*r+1}")
        a(f"""
        s_nop 1
        v_permlane32_swap_b32 v{A0}, v{A0+2}
        v_permlane32_swap_b32 v{A0+1}, v{A0+3}
        buffer_store_dwordx4 v[{A0}:{A0+3}], v{VOUT}, s[{SRD_X}:{SRD_X+3}], s{st+1} offen{cfg['out_flags']}
        """)
    a.label("L_fc_next")
    a(f"""
    s_add_u32 s{s_lo}, s{s_lo}, 3
    s_cmp_lt_u32 s{s_lo}, s{s_hi}
    s_nop 1
    s_cbranch_scc1 L_fc_outer
    """)
    a.label("L_fc_end")


def emit_combine(a, cfg):
    K = "pa_combine_kernel"
    NB = 12
    a.raw(f".globl {K}\n.p2align 8\n.type {K},@function")
    a.label(K)
    VL, VCL, VT_ = 200, 201, 202
    ACC = 160
    DEN, MX, MN, SC, W = 170, 171, 172, 173, 174
    U0, U1 = 176, 177
    OB = 0
    MLB = 64
    SRD_C, SRD_W, SRD_O = 20, 24, 28
    sw, sb, sh, swx, sn, sE, sbase, sj = 40, 41, 42, 43, 44, 45, 46, 47
    st = 60
    a(f"""
    s_cmp_ge_u32 s2, 256
    s_cbranch_scc1 L_cend
    s_load_dwordx16 s[4:19], s[0:1], 0
    {"s_memrealtime s[100:101]" if cfg.get("cpad_to_us") else ""}
    v_lshrrev_b32 v{VT_}, 6, v0
    v_and_b32 v{VL}, 63, v0
    s_lshr_b32 s{sb}, s2, 5
    v_readfirstlane_b32 s{sw}, v{VT_}
    s_lshr_b32 s{sh}, s2, 3
    s_and_b32 s{sh}, s{sh}, 3
    s_and_b32 s{swx}, s2, 7
    v_and_b32 v{VT_+1}, 7, v{VL}
    v_lshlrev_b32 v{VT_+1}, 2, v{VT_+1}
    s_waitcnt lgkmcnt(0)
    """)
    emit_srd(a, SRD_C, s_cl, 32)
    a(f"buffer_load_dword v{VCL}, v{VT_+1}, s[{SRD_C}:{SRD_C+3}], 0 offen")
    emit_srd(a, SRD_W, s_ws, WS_BYTES)
    emit_srd(a, SRD_O, s_out, Q_BYTES)
    VOFF, VML, VOUT = 180, 181, 182
    a(f"""
    s_lshl_b32 s{st}, s{swx}, 13
    s_lshl_b32 s{st+1}, s{sw}, 10
    s_add_u32 s{st}, s{st}, s{st+1}
    v_lshlrev_b32 v{VOFF}, 4, v{VL}
    v_add_u32 v{VOFF}, s{st}, v{VOFF}
    s_lshl_b32 s{st}, s{swx}, 8
    s_add_u32 s{st}, s{st}, 0x{WS_ML:x}
    v_and_b32 v{VML}, 31, v{VL}
    v_lshlrev_b32 v{VOUT}, 8, v{VML}             ; q*256
    v_lshlrev_b32 v{VML}, 3, v{VML}
    v_add_u32 v{VML}, s{st}, v{VML}
    v_lshrrev_b32 v{VT_+2}, 5, v{VL}
    v_lshl_add_u32 v{VOUT}, v{VT_+2}, 3, v{VOUT} ; + h2*8
    s_lshl_b32 s{st}, s2, 13
    s_lshl_b32 s{st+1}, s{sw}, 5
    s_add_u32 s{st}, s{st}, s{st+1}
    v_add_u32 v{VOUT}, s{st}, v{VOUT}
    v_mov_b32 v{DEN}, 0
    v_mov_b32 v{MX}, 0xff800000
    """)
    for r in range(8):
        a(f"v_mov_b32 v{ACC+r}, 0")
    a("s_waitcnt vmcnt(0)")
    R = emit_partition(a, VL, VCL, VT_, st)
    a(f"""
    s_add_u32 s{st}, s{st}, s{sb}
    v_readlane_b32 s{sn}, v{R['n']}, s{st}
    v_readlane_b32 s{sE}, v{R['incl']}, s{st}
    s_nop 3
    s_sub_u32 s{sE}, s{sE}, s{sn}
    s_min_u32 s{sn}, s{sn}, 64
    s_lshl_b32 s{st}, s{sh}, 6
    s_add_u32 s{sE}, s{sE}, s{st}                ; first wgslot
    s_mov_b32 s{sbase}, 0
    """)
    a.label("L_cloop")
    for j in range(NB):
        a(f"""
        s_add_u32 s{sj}, s{sbase}, {j}
        s_add_u32 s{st}, s{sE}, s{sj}
        s_lshl_b32 s{st+1}, s{st}, 16
        s_lshl_b32 s{st}, s{st}, 11
        s_cmp_lt_u32 s{sj}, s{sn}
        s_cselect_b32 s{st+1}, s{st+1}, 0x80000000
        s_cselect_b32 s{st}, s{st}, 0x80000000
        buffer_load_dwordx2 v[{MLB+2*j}:{MLB+2*j+1}], v{VML}, s[{SRD_W}:{SRD_W+3}], s{st} offen
        buffer_load_dwordx4 v[{OB+4*j}:{OB+4*j+3}], v{VOFF}, s[{SRD_W}:{SRD_W+3}], s{st+1} offen
        """)
    a(f"v_mov_b32 v{MN}, v{MX}")
    for j in range(NB):
        a(f"""
        s_add_u32 s{sj}, s{sbase}, {j}
        s_cmp_ge_u32 s{sj}, s{sn}
        s_cbranch_scc1 L_cmaxdone
        s_waitcnt vmcnt({2*(NB-1-j)+1})
        v_max_f32 v{MN}, v{MN}, v{MLB+2*j}
        """)
    a.label("L_cmaxdone")
    a(f"""
    v_sub_f32 v{SC}, v{MX}, v{MN}
    v_exp_f32 v{SC}, v{SC}
    v_mov_b32 v{MX}, v{MN}
    v_mul_f32 v{DEN}, v{DEN}, v{SC}
    """)
    for r in range(8):
        a(f"v_mul_f32 v{ACC+r}, v{ACC+r}, v{SC}")
    for j in range(NB):
        a(f"""
        s_add_u32 s{sj}, s{sbase}, {j}
        s_cmp_ge_u32 s{sj}, s{sn}
        s_cbranch_scc1 L_cfin
        v_sub_f32 v{W}, v{MLB+2*j}, v{MX}
        v_exp_f32 v{W}, v{W}
        s_waitcnt vmcnt({2*(NB-1-j)})
        v_fmac_f32 v{DEN}, v{W}, v{MLB+2*j+1}
        """)
        for r in range(4):
            a(f"""
            v_lshlrev_b32 v{U0}, 16, v{OB+4*j+r}
            v_and_b32 v{U1}, 0xffff0000, v{OB+4*j+r}
            v_fmac_f32 v{ACC+2*r}, v{W}, v{U0}
            v_fmac_f32 v{ACC+2*r+1}, v{W}, v{U1}
            """)
    a(f"""
    s_add_u32 s{sbase}, s{sbase}, {NB}
    s_branch L_cloop
    """)
    a.label("L_cfin")
    a(f"""
    v_rcp_f32 v{SC}, v{DEN}
    s_nop 0
    """)
    for r in range(8):
        a(f"v_mul_f32 v{ACC+r}, v{ACC+r}, v{SC}")
    for r in range(4):
        a(f"v_cvt_pk_bf16_f32 v{ACC+r}, v{ACC+2*r}, v{ACC+2*r+1}")
    a(f"""
    buffer_store_dwordx2 v[{ACC}:{ACC+1}], v{VOUT}, s[{SRD_O}:{SRD_O+3}], 0 offen
    buffer_store_dwordx2 v[{ACC+2}:{ACC+3}], v{VOUT}, s[{SRD_O}:{SRD_O+3}], 0 offen offset:16
    """)
    if cfg.get("cpad_to_us"):
        a(f"""
        s_waitcnt vmcnt(0)
        s_add_u32 s92, s100, {int(cfg["cpad_to_us"]*100)}
        """)
        a.label("L_cdelay")
        a(f"""
        s_sleep 4
        s_memrealtime s[90:91]
        s_waitcnt lgkmcnt(0)
        s_sub_u32 s93, s92, s90
        s_cmp_gt_i32 s93, 0
        s_cbranch_scc1 L_cdelay
        """)
    a.label("L_cend")
    a("s_endpgm")


def descriptor(name, vgpr, accum, sgpr=102):
    return f"""
.p2align 6
.amdhsa_kernel {name}
  .amdhsa_next_free_vgpr {vgpr}
  .amdhsa_next_free_sgpr {sgpr}
  .amdhsa_accum_offset {accum}
  .amdhsa_group_segment_fixed_size 0
  .amdhsa_kernarg_size 64
  .amdhsa_user_sgpr_count 2
  .amdhsa_user_sgpr_kernarg_segment_ptr 1
  .amdhsa_system_sgpr_workgroup_id_x 1
.end_amdhsa_kernel
"""


DEFAULT_CFG = dict(
    vslots=[9, 10, 11, 12, 13, 14, 15, 16, 17, 18, 19, 20, 21, 22, 23, 24],
    rl_slot=22,
    dma_slots=[25, 26, 27, 29],
    dma_cost=12,
    patch_slot=9,
    delta=3,
    br_dist=2,
    empty_gaps=[31],
    bar_period=2,
    pp0=1, pp1=0, ppA=[7, 15], ppB=[15, 31], ppQ=[],
    pk=1,
    warm=1,
    zero_early=64,
    thr_log2=12,
    st_flags=" sc1",
    fused=1, cld_flags=" sc1", poll_sleep=1, poll_max=200000, cpk=0, clook=3, out_flags=" sc1",
    depth=5, map=0, flagmode="wg", tlbwarm=0, cwarm=0, peel=3, skew=0, peel_slots=[19, 22, 25, 27],
    ld_flags=" nt",
)


def generate(cfg=None, out=OUT):
    c = dict(DEFAULT_CFG)
    if cfg:
        c.update(cfg)
    global LDFLAGS
    LDFLAGS = c["ld_flags"]
    a = Asm()
    a.raw(f"""; Paged GQA attention (split-KV, single launch) for gfx950 -- hand-scheduled, emitted by the author's generator script.
; d_ws with write-through stores + a launch-unique flag; every wave then combines 1-3 slices of its group's partials.
{("; @launch grid=(256,1,1) block=(256,1,1) lds=163840" if c["fused"] else "; @launch kernel=" + NAME + "_kernel grid=(256,1,1) block=(256,1,1) lds=163840" + chr(10) + "; @launch kernel=pa_combine_kernel grid=(256,1,1) block=(512,1,1) lds=0")}
{"; @launch kernel=pa_nop_kernel grid=(1,1,1) block=(64,1,1) lds=0" + chr(10) if c.get("nop3") else ""}.amdgcn_target "amdgcn-amd-amdhsa--gfx950"
.text""")
    emit_main(a, c)
    if not c["fused"]:
        emit_combine(a, c)
    if c.get("nop3"):
        a.raw(".globl pa_nop_kernel\n.p2align 8\n.type pa_nop_kernel,@function\npa_nop_kernel:\n    s_endpgm")
    a.raw('.section .rodata,"a"')
    if c.get("nop3"):
        a.raw(descriptor("pa_nop_kernel", 8, 8))
    a.raw(descriptor(NAME + "_kernel", 384, 256))
    if not c["fused"]:
        a.raw(descriptor("pa_combine_kernel", 216, 216))
    open(out, "w").write(a.text())


if __name__ == "__main__":
    import json
    cfg = json.loads(sys.argv[1]) if len(sys.argv) > 1 else None
    generate(cfg, sys.argv[2] if len(sys.argv) > 2 else OUT)
```

```python
import sys, math

NAME = "standalone__paged_block_table_kv_pagedattention__sampling"
OUT = "cdna_kernels/%s.s" % NAME

KV_BYTES = 4100 * 16384
Q_BYTES = 8 * 32 * 32 * 128 * 2
BT_BYTES = 8 * 512 * 4
WS_ML = 0x1000000
LDS_ML = 0x27000
LDS_NONCE = 0x27ff0
WS_DBG = WS_ML + 256 * 2048
WS_FLAG = WS_DBG + 0x100000
WS_BYTES = WS_FLAG + 32 * 2048
SCALE = math.log2(math.e) / math.sqrt(128.0)
THR_LOG2 = 12

import struct
def f32bits(x):
    return struct.unpack("<I", struct.pack("<f", x))[0]

class Asm:
    def __init__(self):
        self.lines = []
    def __call__(self, s):
        for l in s.strip("\n").split("\n"):
            self.lines.append("    " + l.strip())
    def label(self, l):
        self.lines.append(l + ":")
    def raw(self, s):
        self.lines.append(s)
    def text(self):
        return "\n".join(self.lines) + "\n"

S_ = {0: 0, 1: 16}
C_ = {0: 32, 1: 48}
O_ = {0: 64, 1: 128}
P_ = {0: 192, 1: 200}
KADDR = 208
VADDR = 216
VOFFK = 220
VOFFV = 222
PAGES = 224
L_ = {0: 225, 1: 226}
M_ = {0: 227, 1: 228}
TS_ = {0: (229, 230), 1: (231, 232)}
ET = 233
VLANE = 239
VT = 240
VH4 = 255
AQ = {0: 0, 1: 32}
AK = 64
AV = 96

s_wg = 2
s_q, s_k, s_v, s_bt, s_cl, s_out, s_dbg, s_ws = 4, 6, 8, 10, 12, 14, 16, 18
SRD_K, SRD_V, SRD_Q, SRD_X, SRD_WS, SRD_BT = 20, 24, 28, 32, 36, 76
s_w = 40
s_h = 41
s_slot = 42
s_n = 43
s_i = 44
s_patch = 45
s_rem = 46
s_idx = 47
s_pg = {0: 48, 1: 49}
s_m0k = 50
s_m0v = 51
s_thr = {0: 52, 1: 52}
s_E = 53
s_nb = 82
s_jj = 3
s_mine = 74
s_own, s_wlo, s_lo, s_hi = 84, 85, 86, 87
s_floor = {0: 54, 1: 55}
s_first = {0: 56, 1: 57}
s_ret = 58
s_t0 = 60
s_qb = 84
s_qb2 = 70
s_qlds = 54
s_b = 80
s_start = 81
s_scale = 56
s_wgslot = 83


def emit_srd(a, d, ptr, nbytes):
    a(f"""
    s_mov_b32 s{d}, s{ptr}
    s_and_b32 s{d+1}, s{ptr+1}, 0xffff
    s_mov_b32 s{d+2}, 0x{nbytes:x}
    s_mov_b32 s{d+3}, 0x20000
    """)


def sum8(a, dst, src, tmp):
    a(f"""
    s_nop 1
    v_add_u32_dpp v{tmp}, v{src}, v{src} quad_perm:[1,0,3,2] row_mask:0xf bank_mask:0xf
    s_nop 1
    v_add_u32_dpp v{dst}, v{tmp}, v{tmp} quad_perm:[2,3,0,1] row_mask:0xf bank_mask:0xf
    s_nop 1
    v_add_u32_dpp v{dst}, v{dst}, v{dst} row_half_mirror row_mask:0xf bank_mask:0xf
    """)


def emit_partition(a, vlane, vcl, vt, st):
    Lm1, T_, Cc, Nn, NS, INC, Qq, Rr, X0, X1 = range(vt, vt + 10)
    a(f"""
    v_add_u32 v{Lm1}, -1, v{vcl}
    v_min_u32 v{Lm1}, 0x1fff, v{Lm1}
    v_lshrrev_b32 v{T_}, 5, v{Lm1}
    v_add_u32 v{T_}, 1, v{T_}
    """)
    sum8(a, Cc, T_, X0)
    a(f"""
    v_add_u32 v{Cc}, 63, v{Cc}
    v_lshrrev_b32 v{Cc}, 6, v{Cc}
    v_lshrrev_b32 v{X0}, 3, v{vlane}
    v_add_u32 v{Cc}, v{Cc}, v{X0}
    v_cvt_f32_u32 v{X0}, v{Cc}
    v_rcp_f32 v{X0}, v{X0}
    v_add3_u32 v{X1}, v{T_}, v{Cc}, -1
    v_cvt_f32_u32 v{X1}, v{X1}
    v_add_f32 v{X1}, 0.5, v{X1}
    v_mul_f32 v{X1}, v{X1}, v{X0}
    v_cvt_u32_f32 v{Nn}, v{X1}
    """)
    sum8(a, NS, Nn, X0)
    a(f"""
    s_nop 1
    v_add_u32_dpp v{INC}, v{Nn}, v{Nn} row_shr:1 row_mask:0xf bank_mask:0xf bound_ctrl:0
    v_cvt_f32_u32 v{X0}, v{Nn}
    v_rcp_f32 v{X0}, v{X0}
    v_add_u32_dpp v{INC}, v{INC}, v{INC} row_shr:2 row_mask:0xf bank_mask:0xf bound_ctrl:0
    v_cvt_f32_u32 v{X1}, v{T_}
    v_add_f32 v{X1}, 0.5, v{X1}
    v_add_u32_dpp v{INC}, v{INC}, v{INC} row_shr:4 row_mask:0xf bank_mask:0xf bound_ctrl:0
    v_mul_f32 v{X1}, v{X1}, v{X0}
    v_cvt_u32_f32 v{Qq}, v{X1}
    v_add_u32_dpp v{INC}, v{INC}, v{INC} row_shr:8 row_mask:0xf bank_mask:0xf bound_ctrl:0
    v_mul_u32_u24 v{X0}, v{Qq}, v{Nn}
    v_sub_u32 v{Rr}, v{T_}, v{X0}
    v_mov_b32_dpp v{X1}, v{NS} row_shr:8 row_mask:0xf bank_mask:0xf bound_ctrl:0
    v_sub_u32 v{INC}, v{INC}, v{X1}
    v_cmp_ge_u32 vcc, 64, v{NS}
    s_ff1_i32_b64 s{st}, vcc
    s_mov_b64 s[{st+2}:{st+3}], 0xff
    s_lshl_b64 s[{st+2}:{st+3}], s[{st+2}:{st+3}], s{st}
    """)
    return dict(Lm1=Lm1, t=T_, n=Nn, incl=INC, q=Qq, r=Rr)


def sm_stream(X, et=None):
    S = S_[X]; P = P_[X]
    TS0, TS1 = TS_[X]
    et = ET if et is None else et
    def tmp(j):
        if j == 0:
            return TS0, TS1
        k = (j - 1) % 3
        return et + 2 * k, et + 2 * k + 1
    E = lambda j, h: (8, f"v_exp_f32 v{tmp(j)[h]}, v{S + 2 * j + h}")
    A = lambda j, h: (4, f"v_add_f32 v{(TS0, TS1)[h]}, v{(TS0, TS1)[h]}, v{tmp(j)[h]}")
    C = lambda j: (4, f"v_cvt_pk_bf16_f32 v{P + j}, v{tmp(j)[0]}, v{tmp(j)[1]}")
    st = [E(0, 0), E(0, 1), E(1, 0), C(0), E(1, 1)]
    for j in range(1, 7):
        st += [A(j, 0), E(j + 1, 0), A(j, 1), C(j), E(j + 1, 1)]
    st += [A(7, 0), A(7, 1), C(7), (4, f"v_add_f32 v{TS0}, v{TS0}, v{TS1}")]
    return st


def mfma_qk(X, s):
    c = C_[X] if s == 0 else S_[X]
    return (f"v_mfma_f32_32x32x16_bf16 v[{S_[X]}:{S_[X]+15}], a[{AK+4*s}:{AK+4*s+3}], "
            f"a[{AQ[X]+4*s}:{AQ[X]+4*s+3}], v[{c}:{c+15}]")


def mfma_pv(X, f):
    t, dt = f >> 2, f & 3
    o = O_[X] + 16 * dt
    return (f"v_mfma_f32_32x32x16_bf16 v[{o}:{o+15}], a[{AV+4*f}:{AV+4*f+3}], "
            f"v[{P_[X]+4*t}:{P_[X]+4*t+3}], v[{o}:{o+15}]")


def k_read(s, slot):
    return f"ds_read_b128 a[{AK+4*s}:{AK+4*s+3}], v{KADDR+s} offset:{slot*8192}"


def v_read(f, y, slot):
    t, dt = f >> 2, f & 3
    return (f"ds_read_b64_tr_b16 a[{AV+4*f+2*y}:{AV+4*f+2*y+1}], v{VADDR+dt} "
            f"offset:{slot*8192 + (16*t+8*y)*256}")


LDFLAGS = ""
def dma_k(a_list, slot, spg):
    return [f"s_add_u32 m0, s{s_m0k}, {slot*8192}",
            None,
            f"buffer_load_dwordx4 v{VOFFK}, s[{SRD_K}:{SRD_K+3}], s{spg} offen{LDFLAGS} lds",
            f"buffer_load_dwordx4 v{VOFFK+1}, s[{SRD_K}:{SRD_K+3}], s{spg} offen offset:1024{LDFLAGS} lds"]


def dma_v(a_list, slot, spg):
    return [f"s_add_u32 m0, s{s_m0v}, {slot*8192}",
            None,
            f"buffer_load_dwordx4 v{VOFFV}, s[{SRD_V}:{SRD_V+3}], s{spg} offen{LDFLAGS} lds",
            f"buffer_load_dwordx4 v{VOFFV+1}, s[{SRD_V}:{SRD_V+3}], s{spg} offen offset:1024{LDFLAGS} lds"]


def plan_body(k, cfg, tramps=None, peel=None):
    kn = (k + 1) % 8
    kl = k if peel is None else f"p{k}"
    D = cfg["depth"]
    pgn = s_pg[k & 1]
    pgo = s_pg[(k & 1) ^ 1]
    tramps = [] if tramps is None else tramps
    pre = {i: [] for i in range(32)}
    front = {i: [] for i in range(32)}
    valu = {i: [] for i in range(32)}
    tail = {i: [] for i in range(32)}
    for s in range(8):
        front[s + 1].append((4, k_read(s, kn)))
    vslots = cfg["vslots"]
    vr = [(f, y) for f in range(8) for y in range(2)]
    for (f, y), sl in zip(vr, vslots):
        assert sl >= 9 + f, (f, sl)
        front[sl].append((4, v_read(f, y, k)))
    def vr_before(m):
        return sum(1 for sl in vslots if sl < m)
    pre[16].append(f"s_waitcnt lgkmcnt({vr_before(16)})")
    assert vr_before(24) >= 8
    pre[24].append(f"s_waitcnt lgkmcnt({vr_before(24) - 8})")
    assert vr_before(28) == 16
    pre[28].append("s_waitcnt lgkmcnt(0)")
    ds = cfg["dma_slots"]
    dcost = cfg["dma_cost"]
    if peel is None:
        valu[cfg["rl_slot"]].append((4, f"v_readlane_b32 s{pgn}, v{PAGES}, s{s_idx}"))
        tail[cfg["rl_slot"]].append(f"s_add_u32 s{s_idx}, s{s_idx}, 1")
        dk = dma_k(None, (k + D + 1) % 8, pgn)
        dv = dma_v(None, (k + D) % 8, pgo)
        tail[ds[0] - 1].append(dv[0])
        front[ds[0]].append((dcost, dv[2]))
        front[ds[1]].append((dcost, dv[3]))
        assert ds[2] - 1 >= ds[1]
        tail[ds[2] - 1].append(dk[0])
        front[ds[2]].append((dcost, dk[2]))
        front[ds[3]].append((dcost, dk[3]))
        assert ds[2] > cfg["rl_slot"] + 1
    else:
        g, pb = peel
        seq = [dma_k(None, (g + 1) % 8, pb + g + 1), dma_v(None, g % 8, pb + g),
               dma_k(None, (g + 2) % 8, pb + g + 2), dma_v(None, (g + 1) % 8, pb + g + 1)]
        for d_, sl in zip(seq, cfg["peel_slots"]):
            tail[sl - 1].append(d_[0])
            front[sl].append((dcost, d_[2]))
            front[sl + 1].append((dcost, d_[3]))
    ps = cfg["patch_slot"]
    tail[ps - 1].append(f"s_cmp_eq_u32 s{s_i}, s{s_patch}")
    front[ps].insert(0, (8, f"s_cbranch_scc1 L_patch_{kl}"))
    front[ps].insert(1, (0, f"L_patch_ret_{kl}:"))
    tramps.append((f"L_patch_{kl}", "L_sub_patch", f"L_patch_ret_{kl}"))
    assert max(ds) < 30
    tail[30].append(f"s_add_u32 s{s_i}, s{s_i}, 1")
    tail[30].append(f"s_cmp_ge_u32 s{s_i}, s{s_n}")
    front[31].append((8, "s_cbranch_scc1 L_drain"))
    dl = cfg["delta"]
    for X, lo in ((0, 32 - dl), (1, 16 - dl)):
        hi = lo + 15
        bs = (hi + cfg["br_dist"]) % 32
        front[bs].insert(0, (8, f"s_cbranch_vccnz L_fb{X}_{kl}"))
        front[bs].insert(1, (0, f"L_fb{X}_ret_{kl}:"))
        valu[bs].insert(0, (4, f"v_add_f32 v{L_[X]}, v{L_[X]}, v{TS_[X][0]}"))
        tramps.append((f"L_fb{X}_{kl}", f"L_sub_fb{X}", f"L_fb{X}_ret_{kl}"))
    if peel is not None:
        _, _, valu_r, _ = plan_body(k, cfg)
        for g_ in range(32):
            valu[g_] = [x for x in valu_r[g_] if not x[1].startswith("v_readlane")]
        return pre, front, valu, tail
    for X, lo in ((0, 32 - dl), (1, 16 - dl)):
        gaps = [(lo + j) % 32 for j in range(16)]
        st = sm_stream(X) + [(4, f"v_cmp_lt_f32 vcc, s{s_thr[X]}, v{TS_[X][0]}")]
        tot = sum(c for c, _ in st)
        free = [max(0, 24 - sum(c for c, _ in front[g]) - sum(c for c, _ in valu[g])) for g in gaps]
        for n_, g in enumerate(gaps):
            if g in cfg["empty_gaps"]:
                free[n_] = 0
        ftot = sum(free)
        assert ftot >= tot, (ftot, tot)
        acc = 0.0; done = 0; idx = 0
        for n_, g in enumerate(gaps):
            acc += free[n_] * tot / ftot
            used = 0
            while idx < len(st) and used + st[idx][0] <= free[n_] and len(valu[g]) < 5 and \
                    (done + st[idx][0] / 2.0 <= acc or n_ == 15):
                valu[g].append(st[idx]); done += st[idx][0]; used += st[idx][0]; idx += 1
        assert idx == len(st), (X, idx, len(st))
    return pre, front, valu, tail


def skip(t, cfg):
    if cfg.get("no_dma") and t.startswith("buffer_load"): return True
    if cfg.get("no_lds") and t.startswith("ds_read"): return True
    if cfg.get("no_sm") and (t.startswith("v_exp") or t.startswith("v_add_f32") or t.startswith("v_cvt")): return True
    if cfg.get("no_mfma") and t.startswith("v_mfma"): return True
    return False


def emit_body(a, k, tramps, cfg, peel=None, vm=None):
    D = cfg["depth"]
    mf = [mfma_qk(1, s) for s in range(8)] + [mfma_pv(1, f) for f in range(8)] + \
         [mfma_qk(0, s) for s in range(8)] + [mfma_pv(0, f) for f in range(8)]
    pre, front, valu, tail = plan_body(k, cfg, tramps, peel)
    if peel is None and k == 0 and cfg.get("align") is not None:
        a.raw(".p2align 6")
        for _ in range(cfg["align"]):
            a("s_nop 0")
    a.label(f"L_body_{k}" if peel is None else f"L_body_p{k}")
    if cfg.get("stamp") and not cfg.get("light"):
        a(f"""
        s_memtime s[90:91]
        s_mov_b32 m0, s{s_i}
        s_waitcnt lgkmcnt(0)
        v_writelane_b32 v{VT+12}, s90, m0
        """)
    bp = cfg["bar_period"]
    if k % bp == 0:
        a(f"s_waitcnt vmcnt({4*(D-bp) if vm is None else vm})")
        if not cfg.get("no_bar"):
            a("s_barrier")
    if cfg.get("stamp") and not cfg.get("light"):
        a(f"""
        s_memtime s[90:91]
        s_waitcnt lgkmcnt(0)
        v_writelane_b32 v{VT+13}, s90, m0
        """)
    for i in range(32):
        seq = pre[i] + [mf[i]] + [t for _, t in front[i]] + [t for _, t in valu[i]] + tail[i]
        for t in seq:
            if t.endswith(":"):
                a.label(t[:-1])
            elif not skip(t, cfg):
                a(t)
    if k == 7 and peel is None:
        a("s_branch L_body_0")


def emit_rowmax(a, X, mx, t1):
    S = S_[X]
    out = [f"v_max3_f32 v{mx}, v{S}, v{S+1}, v{S+2}"]
    for r in range(3, 15, 2):
        out.append(f"v_max3_f32 v{mx}, v{mx}, v{S+r}, v{S+r+1}")
    out += [f"v_max_f32 v{mx}, v{mx}, v{S+15}", f"v_mov_b32 v{t1}, v{mx}", "s_nop 1",
            f"v_permlane32_swap_b32 v{mx}, v{t1}", "s_nop 1", f"v_max_f32 v{mx}, v{mx}, v{t1}"]
    return out


def emit_fallback(a, X):
    S = S_[X]; C = C_[X]; O = O_[X]; P = P_[X]
    mx, t1, f = VT, VT + 1, VT + 3
    a.label(f"L_sub_fb{X}")
    a("s_nop 7")
    for t in emit_rowmax(a, X, mx, t1):
        a(t)
    a(f"""
    v_max_f32 v{mx}, 0, v{mx}
    v_exp_f32 v{f}, -v{mx}
    v_add_f32 v{M_[X]}, v{M_[X]}, v{mx}
    """)
    for r in range(16):
        a(f"v_sub_f32 v{C+r}, v{C+r}, v{mx}")
        a(f"v_sub_f32 v{S+r}, v{S+r}, v{mx}")
    a(f"v_mul_f32 v{L_[X]}, v{L_[X]}, v{f}")
    for r in range(64):
        a(f"v_mul_f32 v{O+r}, v{O+r}, v{f}")
    for c, t in sm_stream(X, VT + 4):
        a(t)
    a(f"""
    s_nop 3
    s_setpc_b64 s[{s_ret}:{s_ret+1}]
    """)


def emit_patch(a):
    ninf = VT
    a.label("L_sub_patch")
    a(f"""
    s_nop 7
    v_mov_b32 v{ninf}, 0xff800000
    """)
    for r in range(16):
        cst = 8 * (r >> 2) + (r & 3)
        a(f"""
        s_sub_i32 s{s_mine+1}, s{s_rem}, {cst}
        v_cmp_gt_i32 vcc, s{s_mine+1}, v{VH4}
        s_nop 1
        v_cndmask_b32 v{C_[0]+r}, v{ninf}, v{C_[0]+r}, vcc
        v_cndmask_b32 v{C_[1]+r}, v{ninf}, v{C_[1]+r}, vcc
        """)
    a(f"""
    s_nop 3
    s_setpc_b64 s[{s_ret}:{s_ret+1}]
    """)


MAPS = {
    0: f"""s_lshr_b32 s{s_h}, s{s_wg}, 1
    s_and_b32 s{s_h}, s{s_h}, 3
    s_and_b32 s{s_t0}, s{s_wg}, 1
    s_lshl_b32 s{s_t0}, s{s_t0}, 5
    s_lshr_b32 s{s_slot}, s{s_wg}, 3
    s_or_b32 s{s_slot}, s{s_slot}, s{s_t0}""",
    2: f"""s_lshr_b32 s{s_h}, s{s_wg}, 1
    s_and_b32 s{s_h}, s{s_h}, 3
    s_lshr_b32 s{s_slot}, s{s_wg}, 3
    s_cmp_lt_u32 s{s_slot}, 30
    s_cselect_b32 s{s_t0}, s{s_slot}, 63
    s_add_u32 s{s_slot}, s{s_slot}, 30
    s_and_b32 s{s_t0+1}, s{s_wg}, 1
    s_cmp_eq_u32 s{s_t0+1}, 0
    s_cselect_b32 s{s_slot}, s{s_t0}, s{s_slot}""",
    1: f"""s_lshr_b32 s{s_h}, s{s_wg}, 3
    s_and_b32 s{s_h}, s{s_h}, 3
    s_and_b32 s{s_t0}, s{s_wg}, 7
    s_lshl_b32 s{s_t0}, s{s_t0}, 3
    s_lshr_b32 s{s_slot}, s{s_wg}, 5
    s_or_b32 s{s_slot}, s{s_slot}, s{s_t0}""",
}


def emit_pad(a, us, tag):
    a(f"s_add_u32 s92, s100, {int(us*100)}")
    a.label(f"L_pad_{tag}")
    a(f"""
    s_sleep 2
    s_memrealtime s[90:91]
    s_waitcnt lgkmcnt(0)
    s_sub_u32 s93, s92, s90
    s_cmp_gt_i32 s93, 0
    s_cbranch_scc1 L_pad_{tag}
    """)


def emit_main(a, cfg):
    K = NAME + "_kernel"
    D = cfg["depth"]
    assert D <= 7
    a.raw(f".globl {K}\n.p2align 8\n.type {K},@function")
    a.label(K)
    t0, t1, t2, t3 = VT + 11, VT + 12, VT + 13, VT + 14
    VCL = VT + 10
    def sstamp(n):
        if cfg.get("stamp"):
            a(f"""
            s_memtime s[90:91]
            s_waitcnt lgkmcnt(0)
            s_mov_b32 s{n}, s90
            """)
    def pstamp(n):
        if cfg.get("stamp"):
            a(f"""
            s_memtime s[90:91]
            s_waitcnt lgkmcnt(0)
            v_writelane_b32 v{VT+12}, s90, {40+n}
            """)
    a(f"""
    s_cmp_ge_u32 s{s_wg}, 256
    s_cbranch_scc1 L_end
    s_load_dwordx16 s[4:19], s[0:1], 0
    v_lshrrev_b32 v{VT}, 6, v0
    v_and_b32 v{VLANE}, 63, v0
    v_readfirstlane_b32 s{s_w}, v{VT}
    {MAPS[cfg["map"]]}
    v_and_b32 v{VT+1}, 7, v{VLANE}
    v_lshlrev_b32 v{VT+1}, 2, v{VT+1}
    v_lshlrev_b32 v{VT+2}, 7, v{VLANE}
    """)
    if cfg["fused"]:
        a(f"s_memrealtime s[{s_mine}:{s_mine+1}]")
    if cfg.get("stamp"):
        a("s_memtime s[92:93]")
    if cfg.get("stamp") or cfg.get("pad_to_us") or cfg.get("pad_le") or cfg.get("pad_ls") or cfg.get("pad_pub"):
        a("s_memrealtime s[100:101]")
    a(f"""
    s_and_b32 s{s_t0}, s{s_w}, 1
    s_lshl_b32 s{s_t0}, s{s_t0}, 3               ; 8*(w&1)
    s_lshl_b32 s{s_t0+1}, s{s_h}, 8              ; h*256
    v_lshrrev_b32 v{t0}, 4, v{VLANE}             ; l>>4
    v_and_b32 v{t1}, 15, v{VLANE}                ; pc
    v_add_u32 v{t2}, s{s_t0}, v{t0}              ; R&15 for x=0
    v_xor_b32 v{t3}, v{t1}, v{t2}
    v_lshlrev_b32 v{t3}, 4, v{t3}
    v_lshl_add_u32 v{t3}, v{t2}, 10, v{t3}
    v_add_u32 v{VOFFK}, s{s_t0+1}, v{t3}
    v_add_u32 v{t2}, 4, v{t2}                    ; R&15 for x=1
    v_xor_b32 v{t3}, v{t1}, v{t2}
    v_lshlrev_b32 v{t3}, 4, v{t3}
    v_lshl_add_u32 v{t3}, v{t2}, 10, v{t3}
    v_add_u32 v{t3}, s{s_t0+1}, v{t3}
    v_add_u32 v{VOFFK+1}, 0xfffffc00, v{t3}
    v_lshlrev_b32 v{t3}, 2, v{t0}
    v_xor_b32 v{t3}, v{t1}, v{t3}
    v_lshlrev_b32 v{t3}, 4, v{t3}
    v_add_u32 v{t2}, s{s_t0}, v{t0}
    v_lshl_add_u32 v{t3}, v{t2}, 10, v{t3}
    v_add_u32 v{VOFFV}, s{s_t0+1}, v{t3}
    v_add_u32 v{VOFFV+1}, 0xc00, v{VOFFV}        ; +4096 -1024
    s_lshl_b32 s{s_m0k}, s{s_w}, 11
    s_add_u32 s{s_m0v}, s{s_m0k}, 0x10000
    s_mov_b32 s{s_thr[0]}, 0x{f32bits(2.0**cfg["thr_log2"]):x}
    s_mov_b32 s{s_thr[1]}, 0x{f32bits(2.0**cfg["thr_log2"]):x}
    s_mov_b32 s{s_i}, 0
    s_mov_b32 s{s_idx}, {D+1+cfg["peel"]}
    v_lshrrev_b32 v{t0}, 5, v{VLANE}            ; h2
    v_lshlrev_b32 v{VH4}, 2, v{t0}
    v_lshrrev_b32 v{t2}, 4, v{VLANE}
    v_xor_b32 v{t3}, v{t1}, v{t2}
    v_lshlrev_b32 v{t3}, 4, v{t3}
    v_lshl_add_u32 v{ET}, v{t2}, 8, v{t3}        ; Q voffset (j&3 == 0)
    v_xor_b32 v{ET+1}, 64, v{ET}
    v_xor_b32 v{ET+2}, 0x80, v{ET}
    v_xor_b32 v{ET+3}, 0xc0, v{ET}
    v_lshlrev_b32 v{ET+4}, 3, v{VLANE}
    s_lshl_b32 s{s_qlds}, s{s_w}, 13
    s_add_u32 s{s_qlds}, s{s_qlds}, 0x20000      ; Q_A staging : 128K + w*8K
    s_and_b32 s{s_t0}, s{s_w}, 1
    s_lshl_b32 s{s_t0}, s{s_t0}, 13
    s_lshr_b32 s{s_t0+1}, s{s_w}, 1
    s_lshl_b32 s{s_t0+1}, s{s_t0+1}, 16
    s_add_u32 s{s_t0}, s{s_t0}, s{s_t0+1}
    s_add_u32 s{s_qlds+1}, s{s_t0}, 0xc000
    s_waitcnt lgkmcnt(0)
    """)
    emit_srd(a, SRD_X, s_cl, 32)
    a(f"buffer_load_dword v{VCL}, v{VT+1}, s[{SRD_X}:{SRD_X+3}], 0 offen")
    emit_srd(a, SRD_BT, s_bt, BT_BYTES)
    emit_srd(a, SRD_Q, s_q, Q_BYTES)
    nwarm = 0
    if cfg["warm"]:
        a(f"""
        s_lshr_b32 s{s_t0}, s{s_wg}, 3
        s_lshr_b32 s{s_t0+1}, s{s_t0}, 2
        s_lshl_b32 s{s_t0+1}, s{s_t0+1}, 18          ; b*262144
        s_and_b32 s{s_t0+2}, s{s_t0}, 3
        s_lshl_b32 s{s_t0+2}, s{s_t0+2}, 14
        s_add_u32 s{s_t0+1}, s{s_t0+1}, s{s_t0+2}
        s_lshl_b32 s{s_t0+2}, s{s_h}, 16
        s_add_u32 s{s_t0+1}, s{s_t0+1}, s{s_t0+2}
        s_lshl_b32 s{s_t0+2}, s{s_w}, 13
        s_add_u32 s{s_t0+1}, s{s_t0+1}, s{s_t0+2}
        s_lshl_b32 s{s_t0}, s{s_t0}, 9
        s_cmp_lt_u32 s{s_w}, 2
        s_cselect_b32 s{s_t0+1}, s{s_t0+1}, 0x80000000
        s_cmp_eq_u32 s{s_w}, 2
        s_cselect_b32 s{s_t0}, s{s_t0}, 0x80000000
        v_min_u32 v{VT+3}, 0x180, v{VT+2}
        buffer_load_dword v{P_[0]}, v{VT+2}, s[{SRD_Q}:{SRD_Q+3}], s{s_t0+1} offen
        buffer_load_dword v{P_[0]+1}, v{VT+3}, s[{SRD_BT}:{SRD_BT+3}], s{s_t0} offen
        """)
        nwarm = 2
    if cfg["cwarm"]:
        a(f"""
        s_getpc_b64 s[{SRD_K}:{SRD_K+1}]
        """)
        a.label("L_pc0")
        a(f"""
        s_and_b32 s{SRD_K+1}, s{SRD_K+1}, 0xffff
        s_mov_b32 s{SRD_K+2}, L_code_end-L_pc0
        s_mov_b32 s{SRD_K+3}, 0x20000
        s_lshl_b32 s{s_t0}, s{s_w}, 13
        buffer_load_dword v{P_[0]+2}, v{VT+2}, s[{SRD_K}:{SRD_K+3}], s{s_t0} offen
        """)
        nwarm += 1
    emit_srd(a, SRD_K, s_k, KV_BYTES)
    emit_srd(a, SRD_V, s_v, KV_BYTES)
    emit_srd(a, SRD_WS, s_ws, WS_BYTES)
    if cfg["tlbwarm"]:
        a(f"""
        s_lshr_b32 s{s_t0}, s{s_wg}, 3
        s_lshl_b32 s{s_t0}, s{s_t0}, 2
        s_add_u32 s{s_t0}, s{s_t0}, s{s_w}
        s_cmp_lt_u32 s{s_t0}, {cfg["tlbwarm"]}
        s_cselect_b32 s{s_t0}, 0, 0x80000000
        v_lshlrev_b32 v{VT+3}, 21, v{VLANE}
        buffer_load_dword v{P_[0]+3}, v{VT+3}, s[{SRD_K}:{SRD_K+3}], s{s_t0} offen nt
        buffer_load_dword v{P_[0]+4}, v{VT+3}, s[{SRD_V}:{SRD_V+3}], s{s_t0} offen nt
        buffer_load_dword v{P_[0]+5}, v{VT+3}, s[{SRD_WS}:{SRD_WS+3}], s{s_t0} offen nt
        """)
        nwarm += 3
    sstamp(88)
    a(f"""
    v_and_b32 v{t1}, 31, v{VLANE}               ; key / q
    v_and_b32 v{t2}, 15, v{VLANE}
    v_xor_b32 v{t2}, v{t2}, v{t0}               ; (key&15)^h2
    v_lshlrev_b32 v{t2}, 4, v{t2}
    v_lshl_add_u32 v{KADDR}, v{t1}, 8, v{t2}
    """)
    for s in range(1, 8):
        a(f"v_xor_b32 v{KADDR+s}, {s << 5}, v{KADDR}")
    a(f"""
    v_bfe_u32 v{t1}, v{VLANE}, 2, 2              ; r
    v_add_u32 v{t2}, v{VH4}, v{t1}               ; 4h2 + r
    v_lshlrev_b32 v{t2}, 8, v{t2}
    v_bfe_u32 v{t3}, v{VLANE}, 4, 1              ; sub
    v_lshl_add_u32 v{t2}, v{t3}, 5, v{t2}
    v_and_b32 v{t3}, 3, v{VLANE}                 ; c
    v_lshl_add_u32 v{t2}, v{t3}, 3, v{t2}
    v_add_u32 v{t2}, 0x10000, v{t2}
    v_lshl_add_u32 v{VADDR}, v{t1}, 6, v{t2}     ; dt=0 : (0^r)<<6
    """)
    for dt in range(1, 4):
        a(f"v_xor_b32 v{VADDR+dt}, {dt << 6}, v{VADDR}")
    a(f"s_waitcnt vmcnt({nwarm})")
    sstamp(89)
    st = s_t0
    R = emit_partition(a, VLANE, VCL, VT, st)
    sn, sincl, sLm1, scl, sq, sr, sj = st + 4, st + 5, st + 6, st + 7, st + 8, st + 9, st + 10
    SKEW1 = SKEW2 = ""
    if cfg.get("skew"):
        sh = cfg["skew"]
        g0, g1 = st + 11, st + 12
        SKEW1 = f"""s_sub_u32 s{g0}, s{sn}, s{sj}
    s_mul_i32 s{g1}, s{g0}, s{sj}                ; j*(nb-j)
    s_add_u32 s{st}, s{g1}, s{g0}
    s_sub_u32 s{st}, s{st}, s{sj}
    s_sub_u32 s{st}, s{st}, 1                    ; (j+1)*(nb-j-1)
    s_mul_i32 s{g1}, s{g1}, {cfg.get("skew_mul", 1)}
    s_mul_i32 s{st}, s{st}, {cfg.get("skew_mul", 1)}
    s_lshr_b32 s{g0}, s{g1}, {sh}
    s_lshr_b32 s{g1}, s{st}, {sh}
    s_cmp_gt_u32 s{sq}, s{sn}
    s_cselect_b32 s{g0}, s{g0}, 0
    s_cselect_b32 s{g1}, s{g1}, 0
    s_sub_u32 s{s_start}, s{s_start}, s{g0}"""
        SKEW2 = f"""s_add_u32 s{s_n}, s{s_n}, s{g0}
    s_sub_u32 s{s_n}, s{s_n}, s{g1}"""
    a(f"""
    v_cmp_lt_u32 vcc, s{s_slot}, v{R['incl']}
    s_and_b64 vcc, vcc, s[{st+2}:{st+3}]
    s_cbranch_scc0 L_end
    s_ff1_i32_b64 s{st}, vcc
    s_and_b32 s{s_b}, s{st}, 7
    v_readlane_b32 s{sn}, v{R['n']}, s{st}
    v_readlane_b32 s{sincl}, v{R['incl']}, s{st}
    v_readlane_b32 s{sq}, v{R['q']}, s{st}
    v_readlane_b32 s{sr}, v{R['r']}, s{st}
    v_readlane_b32 s{sLm1}, v{R['Lm1']}, s{st}
    v_readlane_b32 s{scl}, v{VCL}, s{st}
    s_lshl_b32 s{st+2}, s{s_b}, 5
    s_lshl_b32 s{st+1}, s{s_h}, 3
    s_add_u32 s{st+2}, s{st+2}, s{st+1}
    s_lshl_b32 s{st+1}, s{s_w}, 1
    s_add_u32 s{st+2}, s{st+2}, s{st+1}
    s_lshl_b32 s{st+2}, s{st+2}, 13              ; Q base = ((b*32 + 8h + 2w)*32)*256
    s_add_u32 s{st+3}, s{st+2}, 0x2000
    s_sub_u32 s{sj}, s{sincl}, s{sn}
    s_sub_u32 s{sj}, s{s_slot}, s{sj}            ; j = slot - E_b
    s_mul_i32 s{s_start}, s{sj}, s{sq}
    s_min_u32 s{st}, s{sj}, s{sr}
    s_add_u32 s{s_start}, s{s_start}, s{st}
    {SKEW1}
    s_lshl_b32 s{st}, s{s_b}, 9
    s_lshl_b32 s{st+1}, s{s_start}, 1
    s_add_u32 s{st}, s{st}, s{st+1}
    s_lshr_b32 s{st+1}, s{s_w}, 1
    s_add_u32 s{st}, s{st}, s{st+1}
    s_lshl_b32 s{st}, s{st}, 2
    buffer_load_dword v{PAGES}, v{ET+4}, s[{SRD_BT}:{SRD_BT+3}], s{st} offen
    """)
    def qload(X):
        for hf in range(2):
            a(f"s_add_u32 m0, s{s_qlds+X}, {4096*hf}")
            a(f"s_add_u32 s{s_qb+2}, s{s_qb+X}, {4096*hf}")
            for j in range(4):
                a(f"buffer_load_dwordx4 v{ET+j}, s[{SRD_Q}:{SRD_Q+3}], s{s_qb+2} offen offset:{1024*j} lds")
    a(f"""
    s_mov_b32 s{s_qb}, s{st+2}
    s_mov_b32 s{s_qb+1}, s{st+3}
    """)
    qload(0)
    emit_srd(a, SRD_X, s_dbg, 256)
    a(f"""
    s_or_b32 s{s_mine}, s{s_mine}, 1
    v_mov_b32 v{VT+8}, s{s_mine}
    v_mov_b32 v{VT+9}, s{s_mine+1}
    v_mov_b32 v{VT+7}, 0
    s_or_b32 s{st}, s{s_wg}, s{s_w}
    s_cmp_eq_u32 s{st}, 0
    s_cselect_b32 s{st}, 0, 0x80000000
    s_mov_b64 exec, 1
    buffer_store_dwordx2 v[{VT+8}:{VT+9}], v{VT+7}, s[{SRD_X}:{SRD_X+3}], s{st} offen sc1
    s_mov_b64 exec, -1
    """)
    a(f"""
    s_cmp_lt_u32 s{sj}, s{sr}
    s_addc_u32 s{s_n}, s{sq}, 0                  ; n = q + (j<r)
    {SKEW2}
    s_min_u32 s{s_n}, s{s_n}, 54
    s_and_b32 s{s_rem}, s{sLm1}, 31
    s_add_u32 s{s_rem}, s{s_rem}, 1
    s_add_u32 s{st}, s{sj}, 1
    s_cmp_eq_u32 s{st}, s{sn}
    s_cselect_b32 s{s_rem}, s{s_rem}, 32
    s_sub_u32 s{s_patch}, s{s_n}, 2
    s_cmp_lt_u32 s{s_rem}, 32
    s_cselect_b32 s{s_patch}, s{s_patch}, 0x7fffffff
    s_mov_b32 s{s_scale}, 0x{f32bits(SCALE):x}
    s_cmp_lt_i32 s{scl}, 1
    s_cselect_b32 s{s_scale}, 0, s{s_scale}
    s_mov_b32 s{s_scale+1}, s{s_scale}
    s_lshl_b32 s{s_wgslot}, s{s_h}, 6
    s_add_u32 s{s_wgslot}, s{s_wgslot}, s{s_slot}
    s_min_u32 s{s_nb}, s{sn}, 64
    s_mov_b32 s{s_jj}, s{sj}
    s_sub_u32 s{s_E}, s{s_wgslot}, s{sj}
    """)
    sstamp(93)
    nz = cfg["zero_early"]
    for r in range(64, 64 + nz):
        a(f"v_mov_b32 v{r}, 0")
    a(f"""
    v_mov_b32 v{t2}, 0x80000000
    v_cmp_gt_u32 vcc, s{s_n}, v{VLANE}
    s_waitcnt vmcnt(9)
    v_lshlrev_b32 v{PAGES}, 14, v{PAGES}
    v_cndmask_b32 v{PAGES}, v{t2}, v{PAGES}, vcc
    s_nop 0
    """)
    PEEL = cfg["peel"]
    NPRE = D - PEEL
    for j in range(D + 1 + PEEL):
        a(f"v_readlane_b32 s{st+j}, v{PAGES}, {j}")
    a("s_nop 3")
    vm = ["QA"] * 8 + ["NONCE"]
    def vwait(tag):
        idx = max(i for i, t in enumerate(vm) if t == tag)
        a(f"s_waitcnt vmcnt({len(vm) - 1 - idx})")
    def issue(lst, tag):
        a(lst[0]); a("s_nop 0"); a(lst[2]); a(lst[3])
        vm.extend([tag, tag])
    pairs = [("K", 0)]
    for j in range(NPRE):
        pairs += [("K", j + 1), ("V", j)]
    def pair():
        if not pairs:
            return
        kind, j = pairs.pop(0)
        issue(dma_k(None, j, st + j) if kind == "K" else dma_v(None, j, st + j), f"{kind}{j}")
    QRAW = {0: 0, 1: 128}
    def qread(X):
        for s in range(8):
            a(f"v_add_u32 v{VT+4+s}, s{s_qlds+X}, v{KADDR+s}")
        for s in range(8):
            r = QRAW[X] + 4 * s
            a(f"ds_read_b128 v[{r}:{r+3}], v{VT+4+s}")
    def prescale(X, packed):
        out = []
        for i in range(32):
            r = QRAW[X] + i
            ta, tb = VT + (i & 1) * 2, VT + (i & 1) * 2 + 1
            g = []
            if i % 4 == 0:
                g.append(f"s_waitcnt lgkmcnt({7 - i // 4})")
            g += [f"v_lshlrev_b32 v{ta}, 16, v{r}", f"v_and_b32 v{tb}, 0xffff0000, v{r}"]
            if packed(i):
                g.append(f"v_pk_mul_f32 v[{ta}:{tb}], v[{ta}:{tb}], s[{s_scale}:{s_scale+1}]")
            else:
                g += [f"v_mul_f32 v{ta}, s{s_scale}, v{ta}", f"v_mul_f32 v{tb}, s{s_scale}, v{tb}"]
            g += [f"v_cvt_pk_bf16_f32 v{ta}, v{ta}, v{tb}", f"v_accvgpr_write_b32 a{32*X+i}, v{ta}"]
            out.append(g)
        return out
    pstamp(0)
    for _ in range(cfg["pp0"]):
        pair()
    if not cfg.get("qb_late"):
        qload(1); vm.extend(["QB"] * 8)
    else:
        a(f"s_mov_b32 s{s_qb2}, s{s_qb+1}")
    for _ in range(cfg["pp1"]):
        pair()
    pstamp(1)
    a(f"""
    s_lshl_b32 s{s_lo}, s{s_jj}, 2
    v_add_u32 v{VT+6}, s{s_lo}, v{VLANE}
    v_lshlrev_b32 v{VT+6}, 4, v{VT+6}
    v_cvt_f32_u32 v{VT+6}, v{VT+6}
    v_cvt_f32_u32 v{VT+7}, s{s_nb}
    v_rcp_f32 v{VT+7}, v{VT+7}
    v_add_f32 v{VT+6}, 0.5, v{VT+6}
    s_add_u32 s{s_hi}, s{s_w}, 1
    v_mul_f32 v{VT+6}, v{VT+6}, v{VT+7}
    v_cvt_u32_f32 v{VT+6}, v{VT+6}
    s_lshl_b32 s{st+11}, s{s_w}, 4
    v_readlane_b32 s{s_wlo}, v{VT+6}, 0
    v_readlane_b32 s{s_own}, v{VT+6}, 4
    v_readlane_b32 s{s_hi}, v{VT+6}, s{s_hi}
    v_readlane_b32 s{s_lo}, v{VT+6}, s{s_w}
    s_sub_u32 s{s_own}, s{s_own}, s{s_wlo}
    s_bfm_b64 s[{st+12}:{st+13}], s{s_own}, s{s_wlo}
    s_lshr_b64 s[{st+12}:{st+13}], s[{st+12}:{st+13}], s{st+11}
    s_cmp_ge_u32 s{s_nb}, 3
    s_cselect_b32 s{s_own}, s{st+12}, 0
    """)
    for r in list(range(64 + nz, 128)) + list(range(160, 208)) + list(range(32, 64)):
        a(f"v_mov_b32 v{r}, 0")
    for r in range(32):
        a(f"v_accvgpr_write_b32 a{AV+r}, 0")
    a(f"""
    v_mov_b32 v{L_[0]}, 0
    v_mov_b32 v{L_[1]}, 0
    s_cmp_eq_u32 s{s_patch}, -1
    s_cbranch_scc0 L_nopatch0
    s_call_b64 s[{s_ret}:{s_ret+1}], L_sub_patch
    """)
    a.label("L_nopatch0")
    vwait("QA")
    pstamp(10)
    qread(0)
    if cfg.get("qb_late"):
        for hf in range(2):
            a(f"s_add_u32 m0, s{s_qlds+1}, {4096*hf}")
            a(f"s_add_u32 s{s_qb2+1}, s{s_qb2}, {4096*hf}")
            for j in range(4):
                a(f"buffer_load_dwordx4 v{ET+j}, s[{SRD_Q}:{SRD_Q+3}], s{s_qb2+1} offen offset:{1024*j} lds")
        vm.extend(["QB"] * 8)
    for i, g in enumerate(prescale(0, lambda i: cfg["pk"])):
        for t in g:
            a(t)
        if i in cfg["ppA"]:
            pair()
    pstamp(2)
    vwait("QB")
    pstamp(11)
    qread(1)
    for i, g in enumerate(prescale(1, lambda i: cfg["pk"])):
        for t in g:
            a(t)
        if i in cfg["ppB"]:
            pair()
    pstamp(3)
    vwait("K0")
    pstamp(4)
    a("s_barrier")
    pstamp(12)
    for s in range(8):
        a(k_read(s, 0))
    for s in range(8):
        a(f"s_waitcnt lgkmcnt({7-s})")
        a(mfma_qk(0, s))
        if s in cfg["ppQ"]:
            pair()
        for r in range(128 + 4 * s, 132 + 4 * s):
            a(f"v_mov_b32 v{r}, 0")
    a(mfma_qk(1, 0))
    a("s_nop 7")
    mxa = emit_rowmax(a, 0, M_[0], VT)
    mxa += [f"v_sub_f32 v{S_[0]+r}, v{S_[0]+r}, v{M_[0]}" for r in range(16)]
    mxa += [f"v_sub_f32 v{C_[0]+r}, v{C_[0]+r}, v{M_[0]}" for r in range(16)]
    for s in range(1, 8):
        a(mfma_qk(1, s))
        for _ in range(5):
            a(mxa.pop(0))
    while pairs:
        pair()
    a(f"s_mov_b32 s{s_pg[(PEEL & 1) ^ 1]}, s{st+D+PEEL}")
    while mxa:
        a(mxa.pop(0))
    a("s_nop 7")
    for t in emit_rowmax(a, 1, M_[1], VT):
        a(t)
    for r in range(16):
        a(f"v_sub_f32 v{C_[1]+r}, v{C_[1]+r}, v{M_[1]}")
    if cfg["fused"]:
        a(f"""
        s_cmp_eq_u32 s{s_w}, 0
        s_cselect_b32 s{s_mine}, 0, 0x80000000
        buffer_load_dwordx2 v[{VT+10}:{VT+11}], off, s[{SRD_X}:{SRD_X+3}], s{s_mine} sc1
        """)
    sstamp(94)
    sstamp(95)
    if cfg.get("pad_ls"):
        emit_pad(a, cfg["pad_ls"], "ls")
    pre, front, valu, tail = plan_body(7, cfg)
    hd = [t for g in range(32 - cfg["delta"], 32) for _, t in valu[g]
          if not t.startswith(f"v_add_f32 v{L_[1]},")]
    for t in hd:
        a(t)
    a("s_nop 1")
    tramps = []
    for k in range(PEEL):
        issued = NPRE + 2 * k
        need = k + cfg["bar_period"]
        assert issued >= need
        emit_body(a, k, tramps, cfg, peel=(NPRE + 2 * k, st), vm=4 * (issued - need))
    if PEEL:
        a(f"s_branch L_body_{PEEL}")
    for k in range(8):
        emit_body(a, k, tramps, cfg)
    a.label("L_drain")
    if cfg.get("pad_le"):
        emit_pad(a, cfg["pad_le"], "le")
    if cfg.get("stamp"):
        a(f"""
        s_memtime s[90:91]
        s_waitcnt lgkmcnt(0)
        s_mov_b32 s96, s90
        """)
    stf = cfg['st_flags']
    VLD = VT + 5
    assert cfg["fused"]
    def conv(X, dt):
        o = O_[X] + 16 * dt
        d = 8 * (4 * X + dt)
        out = [f"v_cvt_pk_bf16_f32 v{d+j}, v{o+2*j}, v{o+2*j+1}" for j in range(8)]
        out.append(f"s_add_u32 s{st+1}, s{st}, {X*8192 + dt*2048}")
        for kp in range(2):
            f = 8 * X + 2 * dt + kp
            gs = lambda so: f"buffer_store_dwordx4 v[{d+4*kp}:{d+4*kp+3}], v{VT+4}, s[{SRD_WS}:{SRD_WS+3}], {so} offen offset:{1024*kp}{stf}"
            dw = f"ds_write_b128 v{VLD}, v[{d+4*kp}:{d+4*kp+3}] offset:{1024*f}"
            if X == 0 or cfg["flagmode"] != "part":
                out.append(f"""s_bitcmp1_b32 s{s_own}, {f}
                s_cbranch_scc1 L_own_{f}
                {gs(f"s{st+1}")}
                s_branch L_own_r{f}
                L_own_{f}:
                {dw}
                L_own_r{f}:""")
            else:
                out.append(f"""s_bitcmp1_b32 s{s_own}, {f}
                s_cselect_b32 s{st+3}, 0x80000000, s{st+1}
                {gs(f"s{st+3}")}
                s_cbranch_scc0 L_own_r{f}
                {dw}
                L_own_r{f}:""")
        return out
    def put(t):
        for l in t.split("\n"):
            l = l.strip()
            if l.endswith(":"):
                a.label(l[:-1])
            elif l:
                a(l)
    ep = f"""
    v_mov_b32 v{VT+6}, v{L_[0]}
    v_mov_b32 v{VT+7}, v{L_[1]}
    s_lshl_b32 s{st}, s{s_wgslot}, 11
    s_lshl_b32 s{st+1}, s{s_w}, 4
    s_add_u32 s{st}, s{st}, s{st+1}
    v_permlane32_swap_b32 v{L_[0]}, v{VT+6}
    v_permlane32_swap_b32 v{L_[1]}, v{VT+7}
    v_lshlrev_b32 v{VT+8}, 6, v{VLANE}
    v_mov_b32 v{VT}, v{M_[0]}
    v_add_f32 v{VT+1}, v{L_[0]}, v{VT+6}
    v_mov_b32 v{VT+2}, v{M_[1]}
    v_add_f32 v{VT+3}, v{L_[1]}, v{VT+7}
    s_add_u32 s{st}, s{st}, 0x{WS_ML:x}
    s_add_u32 s{st+1}, s{st+1}, 0x{LDS_ML:x}
    v_add_u32 v{VT+9}, s{st+1}, v{VT+8}
    s_mov_b32 exec_hi, 0\nbuffer_store_dwordx4 v[{VT}:{VT+3}], v{VT+8}, s[{SRD_WS}:{SRD_WS+3}], s{st} offen{stf}\nds_write_b128 v{VT+9}, v[{VT}:{VT+3}]\ns_mov_b64 exec, -1
    s_lshl_b32 s{st}, s{s_wgslot}, 16
    s_lshl_b32 s{st+1}, s{s_w}, 14
    s_add_u32 s{st}, s{st}, s{st+1}
    v_lshlrev_b32 v{VT+4}, 4, v{VLANE}
    s_lshl_b32 s{st+2}, s{s_w}, 4
    s_sub_u32 s{st+2}, s{st+2}, s{s_wlo}
    s_lshl_b32 s{st+2}, s{st+2}, 10
    s_add_u32 s{st+2}, s{st+2}, 0x20000
    v_add_u32 v{VLD}, s{st+2}, v{VT+4}
    """.strip().split("\n    ")
    ep += conv(0, 0) + conv(0, 1) + conv(0, 2) + conv(0, 3)
    for f in range(8):
        a(mfma_pv(1, f))
        for _ in range(8):
            put(ep.pop(0))
    while ep:
        put(ep.pop(0))
    a("s_nop 7")
    for dt in range(4):
        for t in conv(1, dt):
            put(t)
    if cfg["fused"]:
        emit_fused_combine(a, cfg, sstamp)
    if cfg.get("stamp"):
        a(f"""
        s_mov_b64 exec, -1
        s_waitcnt vmcnt(0)
        s_memtime s[90:91]
        s_memrealtime s[66:67]
        s_getreg_b32 s98, hwreg(HW_REG_XCC_ID)
        s_waitcnt lgkmcnt(0)
        v_mov_b32 v{VT+14}, 0
        v_writelane_b32 v{VT+14}, s92, 0
        v_writelane_b32 v{VT+14}, s93, 1
        v_writelane_b32 v{VT+14}, s94, 2
        v_writelane_b32 v{VT+14}, s95, 3
        v_writelane_b32 v{VT+14}, s96, 4
        v_writelane_b32 v{VT+14}, s90, 5
        v_writelane_b32 v{VT+14}, s{s_n}, 6
        v_writelane_b32 v{VT+14}, s98, 7
        v_writelane_b32 v{VT+14}, s100, 8
        v_writelane_b32 v{VT+14}, s66, 9
        v_writelane_b32 v{VT+14}, s88, 10
        v_writelane_b32 v{VT+14}, s89, 11
        v_writelane_b32 v{VT+14}, s97, 12
        v_writelane_b32 v{VT+14}, s99, 13
        v_writelane_b32 v{VT+14}, s{s_h}, 14
        s_lshl_b32 s{st}, s{s_wg}, 12
        s_lshl_b32 s{st+1}, s{s_w}, 10
        s_add_u32 s{st}, s{st}, s{st+1}
        s_add_u32 s{st}, s{st}, 0x{WS_DBG:x}
        v_lshlrev_b32 v{VT}, 2, v{VLANE}
        buffer_store_dword v{VT+12}, v{VT}, s[{SRD_WS}:{SRD_WS+3}], s{st} offen
        buffer_store_dword v{VT+13}, v{VT}, s[{SRD_WS}:{SRD_WS+3}], s{st} offen offset:256
        buffer_store_dword v{VT+14}, v{VT}, s[{SRD_WS}:{SRD_WS+3}], s{st} offen offset:512
        """)
    if cfg.get("pad_to_us"):
        a(f"""
        s_waitcnt vmcnt(0)
        s_add_u32 s92, s100, {int(cfg["pad_to_us"]*100)}
        """)
    if cfg.get("delay_us"):
        a(f"""
        s_memrealtime s[90:91]
        s_waitcnt lgkmcnt(0)
        s_add_u32 s92, s90, {int(cfg["delay_us"]*100)}
        """)
    if cfg.get("delay_us") or cfg.get("pad_to_us"):
        a.label("L_delay")
        a(f"""
        s_sleep 4
        s_memrealtime s[90:91]
        s_waitcnt lgkmcnt(0)
        s_sub_u32 s93, s92, s90
        s_cmp_gt_i32 s93, 0
        s_cbranch_scc1 L_delay
        """)
    a.label("L_end")
    a("s_endpgm")
    for lab, sub, ret in tramps:
        a.label(lab)
        a(f"s_call_b64 s[{s_ret}:{s_ret+1}], {sub}")
        a(f"s_branch {ret}")
    a.label("L_code_end")
    emit_fallback(a, 0)
    emit_fallback(a, 1)
    emit_patch(a)


def emit_fused_combine(a, cfg, sstamp):
    st = s_t0
    ldf = cfg["cld_flags"]
    s_nonce, s_to, s_mask, s_done, s_rdy, s_r0 = 54, 55, 56, 62, 64, 78
    s_cnt, s_ni, s_o, s_ml = 68, 69, 70, 72
    s_f0, s_f1 = 42, 52
    s_nonce2 = 46
    assert cfg["flagmode"] == "wg"
    s_sel = (None, 66, 76)
    SJ = lambda k: (48, 49, 50, 51, 71, 73, 44, 45)[k]
    OB = lambda k: 12 * k
    MLB = lambda k: 96 + 4 * k
    ACC = 160
    MX, DEN, MN, SC, W = (192, 193), (194, 195), (196, 197), (198, 199), (204, 205)
    U0, U1, WT = 200, 201, 211
    VO, VML, VOUT, VF, VFO, VA = 206, 207, 208, 214, 210, 212
    WSR = f"s[{SRD_WS}:{SRD_WS+3}]"
    LA = cfg["clook"]
    def cst(n):
        if cfg.get("stamp"):
            a(f"""
            s_memtime s[90:91]
            s_waitcnt lgkmcnt(0)
            v_writelane_b32 v{VT+12}, s90, {53+n}
            """)
    a(f"""
    v_lshlrev_b32 v{VO}, 4, v{VLANE}
    v_and_b32 v{VML}, 31, v{VLANE}
    v_lshlrev_b32 v{VOUT}, 8, v{VML}
    v_lshl_add_u32 v{VOUT}, v{VH4}, 2, v{VOUT}   ; q*256 + h2*16
    v_lshlrev_b32 v{VML}, 6, v{VML}
    v_lshlrev_b32 v{VFO}, 3, v{VLANE}
    v_cmp_gt_u32 vcc, s{s_nb}, v{VLANE}
    s_mov_b64 s[{s_mask}:{s_mask+1}], vcc
    s_lshl_b32 s{s_mine+1}, s{s_b}, 2
    s_add_u32 s{s_mine+1}, s{s_mine+1}, s{s_h}
    s_lshl_b32 s{s_mine+1}, s{s_mine+1}, 11
    s_add_u32 s{s_mine+1}, s{s_mine+1}, 0x{WS_FLAG:x}
    s_lshl_b32 s{st}, s{s_jj}, 3
    s_add_u32 s{st}, s{st}, s{s_mine+1}
    s_mov_b32 s{s_to}, {cfg["poll_max"]}
    v_mov_b32 v{U0}, 0x{LDS_NONCE:x}
    """)
    if cfg.get("pad_pub"):
        a("s_waitcnt vmcnt(0) lgkmcnt(0)")
        emit_pad(a, cfg["pad_pub"], "pub")
    a(f"""
    s_waitcnt vmcnt(0)
    s_cmp_lg_u32 s{s_w}, 0
    s_cbranch_scc1 L_fc_nz
    v_readfirstlane_b32 s{s_nonce}, v{VT+10}
    s_cmp_lg_u32 s{s_nonce}, 0
    s_cbranch_scc1 L_fc_havenonce
    """)
    a.label("L_fc_npoll")
    a(f"""
    buffer_load_dwordx2 v[{VT+10}:{VT+11}], off, s[{SRD_X}:{SRD_X+3}], 0 sc1
    s_waitcnt vmcnt(0)
    v_readfirstlane_b32 s{s_nonce}, v{VT+10}
    s_sub_u32 s{s_to}, s{s_to}, 1
    s_cmp_eq_u32 s{s_to}, 1
    s_cbranch_scc1 L_fc_havenonce
    s_cmp_eq_u32 s{s_nonce}, 0
    s_cbranch_scc1 L_fc_npoll
    """)
    a.label("L_fc_havenonce")
    a(f"ds_write_b64 v{U0}, v[{VT+10}:{VT+11}]")
    a.label("L_fc_nz")
    a(f"""
    s_waitcnt lgkmcnt(0)
    s_barrier
    s_cmp_eq_u32 s{s_w}, 0
    s_cselect_b64 exec, 1, 0
    s_cbranch_scc0 L_fc_noflag
    buffer_store_dwordx2 v[{VT+10}:{VT+11}], off, {WSR}, s{st} sc1
    """)
    a.label("L_fc_noflag")
    a(f"""
    s_mov_b64 exec, -1
    ds_read_b64 v[{VF}:{VF+1}], v{U0}
    """)
    emit_srd(a, SRD_X, s_out, Q_BYTES)
    a(f"""
    s_waitcnt lgkmcnt(0)
    v_readfirstlane_b32 s{s_nonce}, v{VF}
    v_readfirstlane_b32 s{s_nonce2}, v{VF+1}
    """)
    sstamp(97)
    a(f"""
    s_cmp_ge_u32 s{s_lo}, s{s_hi}
    s_cbranch_scc1 L_fc_end
    """)
    a.label("L_fc_outer")
    a(f"""
    s_sub_u32 s{s_ni}, s{s_hi}, s{s_lo}
    s_min_u32 s{s_ni}, s{s_ni}, 3
    s_lshl_b32 s{s_o}, s{s_lo}, 10
    s_lshr_b32 s{st}, s{s_lo}, 3                 ; u0
    s_lshl_b32 s{s_ml}, s{st}, 3
    s_mov_b64 s[{s_done}:{s_done+1}], 0
    s_lshl_b32 s{s_f0}, s{st}, 8
    s_add_u32 s{s_f0}, s{s_f0}, s{s_mine+1}
    s_add_u32 s{s_f1}, s{s_lo}, s{s_ni}
    s_sub_u32 s{s_f1}, s{s_f1}, 1
    s_lshr_b32 s{s_f1}, s{s_f1}, 3
    s_lshl_b32 s{s_f1}, s{s_f1}, 8
    s_add_u32 s{s_f1}, s{s_f1}, s{s_mine+1}
    """)
    for t in (1, 2):
        a(f"""
        s_add_u32 s{st+1}, s{s_lo}, {t}
        s_lshr_b32 s{st+1}, s{st+1}, 3
        s_cmp_lg_u32 s{st+1}, s{st}
        s_cselect_b64 s[{s_sel[t]}:{s_sel[t]+1}], -1, 0
        """)
    a(f"""
    s_cmp_lt_u32 s{s_nb}, 3
    s_cbranch_scc1 L_fc_zero
    s_sub_u32 s{st}, s{s_lo}, s{s_wlo}
    s_lshl_b32 s{st}, s{st}, 10
    s_add_u32 s{st}, s{st}, 0x20000
    v_add_u32 v{VA}, s{st}, v{VO}
    s_add_u32 s{st}, s{s_ml}, 0x{LDS_ML:x}
    v_add_u32 v{VA+1}, s{st}, v{VML}
    ds_read_b128 v[0:3], v{VA}
    ds_read_b128 v[4:7], v{VA} offset:1024
    ds_read_b128 v[8:11], v{VA} offset:2048
    ds_read_b64 v[{MLB(0)}:{MLB(0)+1}], v{VA+1}
    ds_read_b64 v[{MLB(0)+2}:{MLB(0)+3}], v{VA+1} offset:8
    s_bitset1_b64 s[{s_done}:{s_done+1}], s{s_jj}
    s_waitcnt lgkmcnt(0)
    v_mov_b32 v{MX[0]}, v{MLB(0)}
    v_mov_b32 v{DEN[0]}, v{MLB(0)+1}
    v_mov_b32 v{MX[1]}, v{MLB(0)+2}
    v_mov_b32 v{DEN[1]}, v{MLB(0)+3}
    """)
    for r in range(12):
        a(f"""
        v_lshlrev_b32 v{ACC+2*r}, 16, v{r}
        v_and_b32 v{ACC+2*r+1}, 0xffff0000, v{r}
        """)
    a("s_branch L_fc_init")
    a.label("L_fc_zero")
    for X in range(2):
        a(f"v_mov_b32 v{MX[X]}, 0xff800000")
        a(f"v_mov_b32 v{DEN[X]}, 0")
    for r in range(24):
        a(f"v_mov_b32 v{ACC+r}, 0")
    a.label("L_fc_init")
    a(f"s_add_u32 s{s_ml}, s{s_ml}, 0x{WS_ML:x}")
    if cfg["flagmode"] == "part":
        POLL = f"""buffer_load_dword v{VF}, v{VFO}, {WSR}, s{s_f0} offen sc1
    buffer_load_dword v{WT}, v{VFO}, {WSR}, s{s_f1} offen sc1
    s_waitcnt vmcnt(0)
    v_cmp_eq_u32 vcc, s{s_nonce}, v{VF}
    s_and_b64 s[{s_rdy}:{s_rdy+1}], vcc, s[{s_mask}:{s_mask+1}]
    v_cmp_eq_u32 vcc, s{s_nonce}, v{WT}
    s_and_b64 s[{s_rdy}:{s_rdy+1}], vcc, s[{s_rdy}:{s_rdy+1}]"""
    else:
        POLL = f"""buffer_load_dwordx2 v[{VF}:{VF+1}], v{VFO}, {WSR}, s{s_mine+1} offen sc1
    s_waitcnt vmcnt(0)
    v_cmp_eq_u32 vcc, s{s_nonce}, v{VF}
    s_and_b64 s[{s_rdy}:{s_rdy+1}], vcc, s[{s_mask}:{s_mask+1}]
    v_cmp_eq_u32 vcc, s{s_nonce2}, v{VF+1}
    s_and_b64 s[{s_rdy}:{s_rdy+1}], vcc, s[{s_rdy}:{s_rdy+1}]"""
    a.label("L_fc_poll")
    a(f"""
    {POLL}
    s_andn2_b64 s[{s_rdy}:{s_rdy+1}], s[{s_rdy}:{s_rdy+1}], s[{s_done}:{s_done+1}]
    s_cbranch_scc1 L_fc_go
    s_sleep {cfg["poll_sleep"]}
    s_sub_u32 s{s_to}, s{s_to}, 1
    s_cmp_lg_u32 s{s_to}, 0
    s_cbranch_scc1 L_fc_poll
    s_branch L_fc_store
    """)
    a.label("L_fc_go")
    sstamp(99)
    a(f"""
    s_mov_b64 s[{s_r0}:{s_r0+1}], s[{s_rdy}:{s_rdy+1}]
    v_mov_b32 v{MN[0]}, v{MX[0]}
    v_mov_b32 v{MN[1]}, v{MX[1]}
    """)
    for k in range(8):
        a(f"""
        s_ff1_i32_b64 s{st}, s[{s_rdy}:{s_rdy+1}]
        s_bitset0_b64 s[{s_rdy}:{s_rdy+1}], s{st}
        s_add_u32 s{st}, s{st}, s{s_E}
        s_lshl_b32 s{SJ(k)}, s{st}, 16
        s_lshl_b32 s{st}, s{st}, 11
        s_add_u32 s{st}, s{st}, s{s_ml}
        s_add_u32 s{SJ(k)}, s{SJ(k)}, s{s_o}
        s_mov_b32 s{s_cnt}, {k+1}
        buffer_load_dwordx4 v[{MLB(k)}:{MLB(k)+3}], v{VML}, {WSR}, s{st} offen{ldf}
        """)
        if k < 7:
            a(f"""
            s_cmp_eq_u64 s[{s_rdy}:{s_rdy+1}], 0
            s_cbranch_scc1 L_fc_taken
            """)
    a.label("L_fc_taken")
    a(f"""
    s_andn2_b64 s[{s_r0}:{s_r0+1}], s[{s_r0}:{s_r0+1}], s[{s_rdy}:{s_rdy+1}]
    s_or_b64 s[{s_done}:{s_done+1}], s[{s_done}:{s_done+1}], s[{s_r0}:{s_r0+1}]
    s_cmp_eq_u32 s{s_ni}, 2
    s_cbranch_scc1 L_fc_r2
    s_cmp_eq_u32 s{s_ni}, 3
    s_cbranch_scc1 L_fc_r3
    """)
    def sel(dst, pair, t):
        if t == 0:
            return None
        return f"v_cndmask_b32 v{dst}, v{pair[0]}, v{pair[1]}, s[{s_sel[t]}:{s_sel[t]+1}]"
    for NI in (1, 2, 3):
        tag = f"r{NI}"
        a.label(f"L_fc_{tag}")
        def oload(k):
            for c in range(NI):
                a(f"buffer_load_dwordx4 v[{OB(k)+4*c}:{OB(k)+4*c+3}], v{VO}, {WSR}, s{SJ(k)} offen offset:{1024*c}{ldf}")
        for k in range(7, -1, -1):
            a(f"""
            s_cmp_le_u32 s{s_cnt}, {k}
            s_cbranch_scc1 L_fc_{tag}_p{k}
            """)
            if k + LA < 8:
                a(f"""
                s_cmp_gt_u32 s{s_cnt}, {k + LA}
                s_cbranch_scc1 L_fc_{tag}_pd
                """)
            oload(k)
            a.label(f"L_fc_{tag}_p{k}")
        a.label(f"L_fc_{tag}_pd")
        cst(0)
        for c in range(1, LA):
            a(f"""
            s_cmp_eq_u32 s{s_cnt}, {c}
            s_cbranch_scc0 L_fc_{tag}_w{c}
            s_waitcnt vmcnt({NI*c})
            """)
            a.label(f"L_fc_{tag}_w{c}")
        a(f"s_waitcnt vmcnt({NI*LA})")
        cst(1)
        NSET = 1 if NI == 1 else 2
        for k in range(8):
            if k:
                a(f"""
                s_cmp_le_u32 s{s_cnt}, {k}
                s_cbranch_scc1 L_fc_{tag}_max
                """)
            for X in range(NSET):
                a(f"v_max_f32 v{MN[X]}, v{MN[X]}, v{MLB(k)+2*X}")
        a.label(f"L_fc_{tag}_max")
        for X in range(NSET):
            a(f"""
            v_sub_f32 v{SC[X]}, v{MX[X]}, v{MN[X]}
            v_exp_f32 v{SC[X]}, v{SC[X]}
            v_mov_b32 v{MX[X]}, v{MN[X]}
            """)
        for X in range(NSET):
            a(f"v_mul_f32 v{DEN[X]}, v{DEN[X]}, v{SC[X]}")
        for t in range(NI):
            if t:
                a(sel(WT, SC, t))
            for r in range(8):
                a(f"v_mul_f32 v{ACC+8*t+r}, v{ACC+8*t+r}, v{WT if t else SC[0]}")
        for k in range(7, -1, -1):
            if k:
                a(f"""
                s_cmp_le_u32 s{s_cnt}, {k}
                s_cbranch_scc1 L_fc_{tag}_u{k}
                """)
            if k - LA >= 0:
                oload(k - LA)
            for X in range(NSET):
                a(f"v_sub_f32 v{W[X]}, v{MLB(k)+2*X}, v{MN[X]}")
            for X in range(NSET):
                a(f"v_exp_f32 v{W[X]}, v{W[X]}")
            a("s_nop 0")
            for X in range(NSET):
                a(f"v_fmac_f32 v{DEN[X]}, v{W[X]}, v{MLB(k)+2*X+1}")
            for t in range(NI):
                if t:
                    a(sel(WT, W, t))
                a(f"s_waitcnt vmcnt({NI*min(k, LA) + NI - 1 - t})")
                for r in range(4):
                    u0, u1 = U0 + 2 * (r & 1), U1 + 2 * (r & 1)
                    a(f"""
                    v_lshlrev_b32 v{u0}, 16, v{OB(k)+4*t+r}
                    v_and_b32 v{u1}, 0xffff0000, v{OB(k)+4*t+r}
                    v_fmac_f32 v{ACC+8*t+2*r}, v{WT if t else W[0]}, v{u0}
                    v_fmac_f32 v{ACC+8*t+2*r+1}, v{WT if t else W[0]}, v{u1}
                    """)
            a.label(f"L_fc_{tag}_u{k}")
        cst(2)
        a(f"""
        s_cmp_lg_u64 s[{s_done}:{s_done+1}], s[{s_mask}:{s_mask+1}]
        s_cbranch_scc1 L_fc_poll
        """)
        if NI < 3:
            a("s_branch L_fc_store")
    a.label("L_fc_store")
    cst(3)
    a(f"""
    v_rcp_f32 v{SC[0]}, v{DEN[0]}
    v_rcp_f32 v{SC[1]}, v{DEN[1]}
    s_lshl_b32 s{st}, s{s_b}, 2
    s_add_u32 s{st}, s{st}, s{s_h}
    s_lshl_b32 s{st}, s{st}, 16                  ; (b*32 + 8h)*8192
    """)
    for t in range(3):
        if t:
            a(f"""
            s_cmp_le_u32 s{s_ni}, {t}
            s_cbranch_scc1 L_fc_next
            {sel(WT, SC, t)}
            """)
        A0 = ACC + 8 * t
        a(f"""
        s_add_u32 s{st+1}, s{s_lo}, {t}
        s_lshr_b32 s{st+2}, s{st+1}, 3
        s_lshl_b32 s{st+2}, s{st+2}, 13
        s_and_b32 s{st+1}, s{st+1}, 7
        s_lshl_b32 s{st+1}, s{st+1}, 5
        s_add_u32 s{st+1}, s{st+1}, s{st+2}
        s_add_u32 s{st+1}, s{st+1}, s{st}
        """)
        for r in range(8):
            a(f"v_mul_f32 v{A0+r}, v{A0+r}, v{WT if t else SC[0]}")
        for r in range(4):
            a(f"v_cvt_pk_bf16_f32 v{A0+r}, v{A0+2*r}, v{A0+2*r+1}")
        a(f"""
        s_nop 1
        v_permlane32_swap_b32 v{A0}, v{A0+2}
        v_permlane32_swap_b32 v{A0+1}, v{A0+3}
        buffer_store_dwordx4 v[{A0}:{A0+3}], v{VOUT}, s[{SRD_X}:{SRD_X+3}], s{st+1} offen{cfg['out_flags']}
        """)
    a.label("L_fc_next")
    a(f"""
    s_add_u32 s{s_lo}, s{s_lo}, 3
    s_cmp_lt_u32 s{s_lo}, s{s_hi}
    s_nop 1
    s_cbranch_scc1 L_fc_outer
    """)
    a.label("L_fc_end")


def emit_combine(a, cfg):
    K = "pa_combine_kernel"
    NB = 12
    a.raw(f".globl {K}\n.p2align 8\n.type {K},@function")
    a.label(K)
    VL, VCL, VT_ = 200, 201, 202
    ACC = 160
    DEN, MX, MN, SC, W = 170, 171, 172, 173, 174
    U0, U1 = 176, 177
    OB = 0
    MLB = 64
    SRD_C, SRD_W, SRD_O = 20, 24, 28
    sw, sb, sh, swx, sn, sE, sbase, sj = 40, 41, 42, 43, 44, 45, 46, 47
    st = 60
    a(f"""
    s_cmp_ge_u32 s2, 256
    s_cbranch_scc1 L_cend
    s_load_dwordx16 s[4:19], s[0:1], 0
    {"s_memrealtime s[100:101]" if cfg.get("cpad_to_us") else ""}
    v_lshrrev_b32 v{VT_}, 6, v0
    v_and_b32 v{VL}, 63, v0
    s_lshr_b32 s{sb}, s2, 5
    v_readfirstlane_b32 s{sw}, v{VT_}
    s_lshr_b32 s{sh}, s2, 3
    s_and_b32 s{sh}, s{sh}, 3
    s_and_b32 s{swx}, s2, 7
    v_and_b32 v{VT_+1}, 7, v{VL}
    v_lshlrev_b32 v{VT_+1}, 2, v{VT_+1}
    s_waitcnt lgkmcnt(0)
    """)
    emit_srd(a, SRD_C, s_cl, 32)
    a(f"buffer_load_dword v{VCL}, v{VT_+1}, s[{SRD_C}:{SRD_C+3}], 0 offen")
    emit_srd(a, SRD_W, s_ws, WS_BYTES)
    emit_srd(a, SRD_O, s_out, Q_BYTES)
    VOFF, VML, VOUT = 180, 181, 182
    a(f"""
    s_lshl_b32 s{st}, s{swx}, 13
    s_lshl_b32 s{st+1}, s{sw}, 10
    s_add_u32 s{st}, s{st}, s{st+1}
    v_lshlrev_b32 v{VOFF}, 4, v{VL}
    v_add_u32 v{VOFF}, s{st}, v{VOFF}
    s_lshl_b32 s{st}, s{swx}, 8
    s_add_u32 s{st}, s{st}, 0x{WS_ML:x}
    v_and_b32 v{VML}, 31, v{VL}
    v_lshlrev_b32 v{VOUT}, 8, v{VML}             ; q*256
    v_lshlrev_b32 v{VML}, 3, v{VML}
    v_add_u32 v{VML}, s{st}, v{VML}
    v_lshrrev_b32 v{VT_+2}, 5, v{VL}
    v_lshl_add_u32 v{VOUT}, v{VT_+2}, 3, v{VOUT} ; + h2*8
    s_lshl_b32 s{st}, s2, 13
    s_lshl_b32 s{st+1}, s{sw}, 5
    s_add_u32 s{st}, s{st}, s{st+1}
    v_add_u32 v{VOUT}, s{st}, v{VOUT}
    v_mov_b32 v{DEN}, 0
    v_mov_b32 v{MX}, 0xff800000
    """)
    for r in range(8):
        a(f"v_mov_b32 v{ACC+r}, 0")
    a("s_waitcnt vmcnt(0)")
    R = emit_partition(a, VL, VCL, VT_, st)
    a(f"""
    s_add_u32 s{st}, s{st}, s{sb}
    v_readlane_b32 s{sn}, v{R['n']}, s{st}
    v_readlane_b32 s{sE}, v{R['incl']}, s{st}
    s_nop 3
    s_sub_u32 s{sE}, s{sE}, s{sn}
    s_min_u32 s{sn}, s{sn}, 64
    s_lshl_b32 s{st}, s{sh}, 6
    s_add_u32 s{sE}, s{sE}, s{st}                ; first wgslot
    s_mov_b32 s{sbase}, 0
    """)
    a.label("L_cloop")
    for j in range(NB):
        a(f"""
        s_add_u32 s{sj}, s{sbase}, {j}
        s_add_u32 s{st}, s{sE}, s{sj}
        s_lshl_b32 s{st+1}, s{st}, 16
        s_lshl_b32 s{st}, s{st}, 11
        s_cmp_lt_u32 s{sj}, s{sn}
        s_cselect_b32 s{st+1}, s{st+1}, 0x80000000
        s_cselect_b32 s{st}, s{st}, 0x80000000
        buffer_load_dwordx2 v[{MLB+2*j}:{MLB+2*j+1}], v{VML}, s[{SRD_W}:{SRD_W+3}], s{st} offen
        buffer_load_dwordx4 v[{OB+4*j}:{OB+4*j+3}], v{VOFF}, s[{SRD_W}:{SRD_W+3}], s{st+1} offen
        """)
    a(f"v_mov_b32 v{MN}, v{MX}")
    for j in range(NB):
        a(f"""
        s_add_u32 s{sj}, s{sbase}, {j}
        s_cmp_ge_u32 s{sj}, s{sn}
        s_cbranch_scc1 L_cmaxdone
        s_waitcnt vmcnt({2*(NB-1-j)+1})
        v_max_f32 v{MN}, v{MN}, v{MLB+2*j}
        """)
    a.label("L_cmaxdone")
    a(f"""
    v_sub_f32 v{SC}, v{MX}, v{MN}
    v_exp_f32 v{SC}, v{SC}
    v_mov_b32 v{MX}, v{MN}
    v_mul_f32 v{DEN}, v{DEN}, v{SC}
    """)
    for r in range(8):
        a(f"v_mul_f32 v{ACC+r}, v{ACC+r}, v{SC}")
    for j in range(NB):
        a(f"""
        s_add_u32 s{sj}, s{sbase}, {j}
        s_cmp_ge_u32 s{sj}, s{sn}
        s_cbranch_scc1 L_cfin
        v_sub_f32 v{W}, v{MLB+2*j}, v{MX}
        v_exp_f32 v{W}, v{W}
        s_waitcnt vmcnt({2*(NB-1-j)})
        v_fmac_f32 v{DEN}, v{W}, v{MLB+2*j+1}
        """)
        for r in range(4):
            a(f"""
            v_lshlrev_b32 v{U0}, 16, v{OB+4*j+r}
            v_and_b32 v{U1}, 0xffff0000, v{OB+4*j+r}
            v_fmac_f32 v{ACC+2*r}, v{W}, v{U0}
            v_fmac_f32 v{ACC+2*r+1}, v{W}, v{U1}
            """)
    a(f"""
    s_add_u32 s{sbase}, s{sbase}, {NB}
    s_branch L_cloop
    """)
    a.label("L_cfin")
    a(f"""
    v_rcp_f32 v{SC}, v{DEN}
    s_nop 0
    """)
    for r in range(8):
        a(f"v_mul_f32 v{ACC+r}, v{ACC+r}, v{SC}")
    for r in range(4):
        a(f"v_cvt_pk_bf16_f32 v{ACC+r}, v{ACC+2*r}, v{ACC+2*r+1}")
    a(f"""
    buffer_store_dwordx2 v[{ACC}:{ACC+1}], v{VOUT}, s[{SRD_O}:{SRD_O+3}], 0 offen
    buffer_store_dwordx2 v[{ACC+2}:{ACC+3}], v{VOUT}, s[{SRD_O}:{SRD_O+3}], 0 offen offset:16
    """)
    if cfg.get("cpad_to_us"):
        a(f"""
        s_waitcnt vmcnt(0)
        s_add_u32 s92, s100, {int(cfg["cpad_to_us"]*100)}
        """)
        a.label("L_cdelay")
        a(f"""
        s_sleep 4
        s_memrealtime s[90:91]
        s_waitcnt lgkmcnt(0)
        s_sub_u32 s93, s92, s90
        s_cmp_gt_i32 s93, 0
        s_cbranch_scc1 L_cdelay
        """)
    a.label("L_cend")
    a("s_endpgm")


def descriptor(name, vgpr, accum, sgpr=102):
    return f"""
.p2align 6
.amdhsa_kernel {name}
  .amdhsa_next_free_vgpr {vgpr}
  .amdhsa_next_free_sgpr {sgpr}
  .amdhsa_accum_offset {accum}
  .amdhsa_group_segment_fixed_size 0
  .amdhsa_kernarg_size 64
  .amdhsa_user_sgpr_count 2
  .amdhsa_user_sgpr_kernarg_segment_ptr 1
  .amdhsa_system_sgpr_workgroup_id_x 1
.end_amdhsa_kernel
"""


DEFAULT_CFG = dict(
    vslots=[9, 10, 11, 12, 13, 14, 15, 16, 17, 18, 19, 20, 21, 22, 23, 24],
    rl_slot=22,
    dma_slots=[25, 26, 27, 29],
    dma_cost=12,
    patch_slot=9,
    delta=3,
    br_dist=2,
    empty_gaps=[31],
    bar_period=2,
    pp0=1, pp1=0, ppA=[7, 15], ppB=[15, 31], ppQ=[],
    pk=1,
    warm=1,
    zero_early=64,
    thr_log2=12,
    st_flags=" sc1",
    fused=1, cld_flags=" sc1", poll_sleep=1, poll_max=200000, cpk=0, clook=3, out_flags=" sc1",
    depth=5, map=0, flagmode="wg", tlbwarm=0, cwarm=0, peel=3, skew=0, peel_slots=[19, 22, 25, 27],
    ld_flags=" nt",
)


def generate(cfg=None, out=OUT):
    c = dict(DEFAULT_CFG)
    if cfg:
        c.update(cfg)
    global LDFLAGS
    LDFLAGS = c["ld_flags"]
    a = Asm()
    a.raw(f"""; Paged GQA attention (split-KV, single launch) for gfx950 -- hand-scheduled, emitted by the author's generator script.
; d_ws with write-through stores + a launch-unique flag; every wave then combines 1-3 slices of its group's partials.
{("; @launch grid=(256,1,1) block=(256,1,1) lds=163840" if c["fused"] else "; @launch kernel=" + NAME + "_kernel grid=(256,1,1) block=(256,1,1) lds=163840" + chr(10) + "; @launch kernel=pa_combine_kernel grid=(256,1,1) block=(512,1,1) lds=0")}
{"; @launch kernel=pa_nop_kernel grid=(1,1,1) block=(64,1,1) lds=0" + chr(10) if c.get("nop3") else ""}.amdgcn_target "amdgcn-amd-amdhsa--gfx950"
.text""")
    emit_main(a, c)
    if not c["fused"]:
        emit_combine(a, c)
    if c.get("nop3"):
        a.raw(".globl pa_nop_kernel\n.p2align 8\n.type pa_nop_kernel,@function\npa_nop_kernel:\n    s_endpgm")
    a.raw('.section .rodata,"a"')
    if c.get("nop3"):
        a.raw(descriptor("pa_nop_kernel", 8, 8))
    a.raw(descriptor(NAME + "_kernel", 384, 256))
    if not c["fused"]:
        a.raw(descriptor("pa_combine_kernel", 216, 216))
    open(out, "w").write(a.text())


if __name__ == "__main__":
    import json
    cfg = json.loads(sys.argv[1]) if len(sys.argv) > 1 else None
    generate(cfg, sys.argv[2] if len(sys.argv) > 2 else OUT)
```
